```python
import torch

def _softmax(x, axis=-1):
    return torch.softmax(x, dim=axis)
def _gelu(x):
    return torch.nn.functional.gelu(x, approximate="tanh")
def _silu(x):
    return torch.nn.functional.silu(x)
def _sigmoid(x):
    return torch.sigmoid(x)
def _layernorm(x, axis=-1, eps=1e-5):
    m = x.mean(dim=axis, keepdim=True)
    v = x.var(dim=axis, keepdim=True, unbiased=False)
    return (x - m) / torch.sqrt(v + eps)
def _scatter_add(tgt, idx, src, axis=0):
    return tgt.clone().index_add_(axis, idx, src)
def _segment_sum(src, seg, n):
    out = torch.zeros((n,) + src.shape[1:], dtype=src.dtype)
    return out.index_add_(0, seg, src)
def _pad(x, pw):
    flat = tuple(v for pair in reversed(pw) for v in pair)
    return torch.nn.functional.pad(x, flat)

kernel_name = 'interleave_layers__linear_attn_block__geglu_ffn__prompt'

def setup_inputs():

    _w = (lambda a: (lambda t: t.to(torch.bfloat16) if t.is_floating_point() else t)(torch.as_tensor(a)))
    def _A_setup():
        B, S, D = 1, 2048, 640
        return {
            "x": _w((lambda *s: torch.randn(*s, dtype=torch.bfloat16) * 0.05)(B, S, D)),
            "wqkv": _w((lambda *s: torch.randn(*s, dtype=torch.bfloat16) * 0.05)(D, 3 * D)),
            "wo": _w((lambda *s: torch.randn(*s, dtype=torch.bfloat16) * 0.05)(D, D)),
        }
    _A_in = _A_setup()

    def _B_setup():
        B, S, D, F = 1, 2048, 640, 1536
        return {
            "x": _w((lambda *s: torch.randn(*s, dtype=torch.bfloat16) * 0.05)(B, S, D)),
            "w_gate": _w((lambda *s: torch.randn(*s, dtype=torch.bfloat16) * 0.05)(D, F)),
            "w_up": _w((lambda *s: torch.randn(*s, dtype=torch.bfloat16) * 0.05)(D, F)),
            "w_down": _w((lambda *s: torch.randn(*s, dtype=torch.bfloat16) * 0.05)(F, D)),
        }
    _B_in = _B_setup()

    return {
        "A_x": _A_in["x"],
        "A_wqkv": _A_in["wqkv"],
        "A_wo": _A_in["wo"],
        "B_x": _B_in["x"],
        "B_w_gate": _B_in["w_gate"],
        "B_w_up": _B_in["w_up"],
        "B_w_down": _B_in["w_down"],
    }

def reference(A_x, A_wqkv, A_wo, B_x, B_w_gate, B_w_up, B_w_down):
    def _A_ref(x, wqkv, wo):
        B, S, D = x.shape
        H = 32; Dh = D // H
        qkv = (lambda x, *d: x.permute(*d))((x @ wqkv).reshape(B, S, 3, H, Dh), 2, 0, 3, 1, 4)
        q, k, v = qkv[0], qkv[1], qkv[2]
        phi = lambda t: torch.where(t > 0, t + 1, torch.exp(t)) + 1e-6
        pq, pk = phi(q), phi(k)
        kv = torch.einsum("bhsd,bhse->bhde", pk, v)
        z = torch.einsum("bhsd->bhd", pk)
        num = torch.einsum("bhqd,bhde->bhqe", pq, kv)
        den = torch.einsum("bhqd,bhd->bhq", pq, z)[..., None] + 1e-6
        o = num / den
        return (lambda x, *d: x.permute(*d))(o, 0, 2, 1, 3).reshape(B, S, D) @ wo

    def _B_ref(x, w_gate, w_up, w_down):
        return (_gelu(x @ w_gate) * (x @ w_up)) @ w_down

    x = A_x
    x = x + _A_ref(_layernorm(x, axis=-1), A_wqkv, A_wo)
    x = x + _B_ref(_layernorm(x, axis=-1), B_w_gate, B_w_up, B_w_down)
    x = x + _A_ref(_layernorm(x, axis=-1), A_wqkv, A_wo)
    x = x + _B_ref(_layernorm(x, axis=-1), B_w_gate, B_w_up, B_w_down)
    return x
```

```python
import re

TRANS = ("v_exp_f32", "v_log_f32", "v_rcp_f32", "v_rsq_f32", "v_sqrt_f32", "v_sin_f32", "v_cos_f32")


def regs_of(tok):
    tok = tok.strip()
    neg = tok.startswith("-")
    if neg:
        tok = tok[1:]
    m = re.fullmatch(r"abs\((.*)\)", tok)
    if m:
        tok = m.group(1)
    m = re.fullmatch(r"\|(.*)\|", tok)
    if m:
        tok = m.group(1)
    m = re.fullmatch(r"([vas])(\d+)", tok)
    if m:
        return [tok]
    m = re.fullmatch(r"([vas])\[(\d+):(\d+)\]", tok)
    if m:
        return ["%s%d" % (m.group(1), i) for i in range(int(m.group(2)), int(m.group(3)) + 1)]
    if tok in ("vcc", "exec"):
        return [tok]
    if tok in ("vcc_lo", "vcc_hi"):
        return ["vcc"]
    if tok in ("exec_lo", "exec_hi"):
        return ["exec"]
    if tok == "m0":
        return ["m0"]
    return []


def split_ops(s):
    out, depth, cur = [], 0, ""
    for ch in s:
        if ch in "[(":
            depth += 1
        if ch in "])":
            depth -= 1
        if ch == "," and depth == 0:
            out.append(cur.strip())
            cur = ""
        else:
            cur += ch
    if cur.strip():
        out.append(cur.strip())
    return out


class Ins:
    __slots__ = ("text", "mn", "kind", "w", "r", "passes", "cregs", "abregs", "storedata", "lds_dma", "states")

    def __init__(self, text):
        self.text = text
        t = text.split(";")[0].strip()
        self.w, self.r = set(), set()
        self.passes = 0
        self.cregs, self.abregs, self.storedata = [], set(), set()
        self.lds_dma = False
        self.states = 1
        if t.endswith(":") or t.startswith(".") or not t:
            self.mn, self.kind = "", "label" if t.endswith(":") else "dir"
            self.states = 0
            return
        parts = t.split(None, 1)
        mn = parts[0]
        rest = parts[1] if len(parts) > 1 else ""
        self.mn = mn
        ops = split_ops(rest)
        mods = ""
        if ops:
            last = ops[-1].split(None, 1)
            if len(last) > 1 and not mn.startswith("s_waitcnt"):
                ops[-1] = last[0]
                mods = last[1]
        R = lambda i: regs_of(ops[i]) if i < len(ops) else []
        base = re.sub(r"_(e32|e64|dpp|sdwa)$", "", mn)
        if mn.startswith("v_mfma"):
            self.kind = "mfma"
            self.passes = 8 if "32x32" in mn else 4
            self.w = set(R(0))
            self.abregs = set(R(1)) | set(R(2))
            self.cregs = R(3)
            self.r = self.abregs | set(self.cregs)
        elif mn.startswith("v_"):
            self.kind = "trans" if base in TRANS else "valu"
            if base.startswith("v_cmp"):
                self.w = set(R(0))
                self.r = set(R(1)) | set(R(2))
            elif base in ("v_readfirstlane_b32", "v_readlane_b32"):
                self.w = set(R(0))
                self.r = set(R(1)) | set(R(2))
                self.kind = "rdlane"
            elif base.startswith("v_permlane"):
                self.w = set(R(0)) | set(R(1))
                self.r = set(self.w)
                self.kind = "permlane"
            elif base in ("v_add_co_u32", "v_sub_co_u32", "v_addc_co_u32"):
                self.w = set(R(0)) | set(R(1))
                self.r = set().union(*[set(R(i)) for i in range(2, len(ops))])
            else:
                self.w = set(R(0))
                self.r = set().union(*[set(R(i)) for i in range(1, len(ops))]) if len(ops) > 1 else set()
                if base in ("v_fmac_f32", "v_dot2c_f32_bf16"):
                    self.r |= self.w
                if base == "v_cndmask_b32" and len(ops) == 3:
                    self.r.add("vcc")
                if base.startswith("v_dot2"):
                    self.kind = "dot"
                if mn.endswith("_dpp"):
                    self.kind = "dpp"
                    self.r |= self.w
        elif mn.startswith("buffer_") or mn.startswith("global_"):
            self.kind = "vmem"
            if mn in ("buffer_inv", "buffer_wbl2"):
                pass
            elif "lds" in mods.split() or "_lds_" in mn:
                self.lds_dma = True
                self.r = set().union(*[set(R(i)) for i in range(len(ops))]) | {"m0"}
            elif "load" in mn:
                self.w = set(R(0))
                self.r = set().union(*[set(R(i)) for i in range(1, len(ops))])
            else:
                self.r = set().union(*[set(R(i)) for i in range(len(ops))])
                di = 0 if mn.startswith("buffer_") else 1
                if "x4" in mn or "x3" in mn:
                    self.storedata = set(R(di))
                if "atomic" in mn and "sc0" in mods.split():
                    self.w = set(R(0))
        elif mn.startswith("ds_"):
            self.kind = "ds"
            if mn.startswith("ds_read") or "permute" in mn or "swizzle" in mn:
                self.w = set(R(0))
                self.r = set().union(*[set(R(i)) for i in range(1, len(ops))])
            else:
                self.r = set().union(*[set(R(i)) for i in range(len(ops))])
        elif mn.startswith("s_"):
            self.kind = "salu"
            if mn == "s_nop":
                self.states = int(ops[0], 0) + 1
                self.kind = "nop"
            elif mn.startswith("s_waitcnt") or mn in ("s_barrier", "s_endpgm", "s_setprio", "s_sleep"):
                self.kind = "ctl"
            elif mn.startswith("s_cbranch") or mn == "s_branch":
                self.kind = "branch"
            elif mn.startswith("s_cmp") or mn.startswith("s_bitcmp"):
                self.r = set(R(0)) | set(R(1))
            elif mn.startswith("s_load") or mn.startswith("s_memtime") or mn.startswith("s_memrealtime") or mn.startswith("s_atomic"):
                self.kind = "smem"
                self.w = set(R(0))
                self.r = set(R(1)) | set(R(2))
            else:
                self.w = set(R(0))
                self.r = set().union(*[set(R(i)) for i in range(1, len(ops))]) if len(ops) > 1 else set()
                if "saveexec" in mn:
                    self.w.add("exec")
                    self.r.add("exec")
        else:
            raise ValueError("unknown instruction: " + text)


VALUISH = ("valu", "trans", "rdlane", "permlane", "dot", "dpp")


def need(p, c):
    n = 0
    pw = p.w
    if p.kind in VALUISH:
        vw = {x for x in pw if x[0] in "va" and x != "vcc"}
        sw = {x for x in pw if x[0] == "s" or x == "vcc"}
        if c.kind == "mfma" and vw & c.r:
            n = max(n, 3 if p.kind == "dot" else 2)
        if c.kind == "vmem" and sw & c.r:
            n = max(n, 5)
        if c.kind in VALUISH and sw & c.r:
            n = max(n, 4 if c.kind == "rdlane" else 2)
        if c.kind == "rdlane" and vw & c.r:
            n = max(n, 1)
        if c.kind in ("permlane", "dpp") and vw & c.r:
            n = max(n, 2)
        if p.kind == "trans" and c.kind in VALUISH and c.kind != "trans" and vw & c.r:
            n = max(n, 1)
        if p.kind == "trans" and c.kind in ("vmem", "ds", "trans") and vw & c.r:
            n = max(n, 1)
        if p.kind == "dot":
            if c.kind == "dot" and c.mn == p.mn:
                if (vw & c.r) and not (vw & c.w):
                    n = max(n, 3)
            elif vw & (c.r | c.w):
                n = max(n, 3)
        if "exec" in pw and c.kind in ("mfma", "dpp", "rdlane", "permlane"):
            n = max(n, 5)
    if p.kind == "mfma":
        big = {4: 8, 8: 12}[p.passes]
        if c.kind == "mfma":
            if pw & c.abregs:
                n = max(n, big)
            if pw & set(c.cregs):
                if not (set(c.cregs) == pw and c.passes == p.passes):
                    n = max(n, p.passes + 2)
            elif pw & c.w:
                n = max(n, big)
        elif c.kind in VALUISH or c.kind in ("vmem", "ds"):
            if pw & (c.r | c.w):
                n = max(n, big)
            if c.kind in VALUISH and set(p.cregs) & c.w:
                n = max(n, p.passes - 1)
    if p.kind == "salu" and "m0" in pw and c.lds_dma:
        n = max(n, 1)
    if p.kind == "vmem" and p.storedata and (p.storedata & c.w):
        n = max(n, 2 if c.kind in VALUISH else 1)
    return n


class Asm:
    def __init__(self):
        self.lines = []
        self.vm = []
        self.lg = []
        self.smem_out = False

    def __call__(self, text):
        for l in text.split("\n"):
            l = l.strip()
            if l:
                self.lines.append(l)

    def vmem(self, text, tag=None):
        self(text)
        self.vm.append(tag)
        assert len(self.vm) <= 63, "too many outstanding vmem"

    def ds(self, text, tag=None):
        self(text)
        self.lg.append(tag)

    def _count(self, q, tags):
        if not isinstance(tags, (list, set)):
            tags = [tags]
        last = -1
        for i, t in enumerate(q):
            if t in tags:
                last = i
        return last

    def wait_vm(self, tags, extra=""):
        last = self._count(self.vm, tags)
        if last < 0:
            return
        n = len(self.vm) - 1 - last
        n = min(n, 63)
        self("s_waitcnt vmcnt(%d)%s" % (n, extra))
        self.vm = self.vm[len(self.vm) - n:] if n else []

    def wait_lg(self, tags):
        last = self._count(self.lg, tags)
        if last < 0:
            return
        n = len(self.lg) - 1 - last
        n = min(n, 15)
        self("s_waitcnt lgkmcnt(%d)" % n)
        self.lg = self.lg[len(self.lg) - n:] if n else []

    def wait_all(self, vm=True, lg=True):
        s = []
        if vm:
            s.append("vmcnt(0)")
            self.vm = []
        if lg:
            s.append("lgkmcnt(0)")
            self.lg = []
        self("s_waitcnt " + " ".join(s))

    def text(self, pad=True, stats=None):
        out = []
        hist = []
        nopad = 0
        for l in self.lines:
            ins = Ins(l)
            if ins.kind == "dir":
                out.append(l)
                continue
            if ins.kind == "label":
                out.append(l)
                continue
            req = 0
            dist = 0
            for p in reversed(hist):
                k = need(p, ins)
                if k > dist:
                    req = max(req, k - dist)
                dist += p.states
                if dist >= 20:
                    break
            if req > 0 and pad:
                nopad += req
                n = Ins("s_nop %d" % (req - 1))
                out.append(n.text)
                hist.append(n)
            out.append(l)
            hist.append(ins)
            if len(hist) > 40:
                hist = hist[-40:]
        if stats is not None:
            stats["pad"] = nopad
        return "\n".join(out) + "\n"


KD = """.section .rodata,"a"
.p2align 6
.amdhsa_kernel {name}
  .amdhsa_next_free_vgpr {vgpr}
  .amdhsa_next_free_sgpr {sgpr}
  .amdhsa_accum_offset {acc}
  .amdhsa_group_segment_fixed_size 0
  .amdhsa_kernarg_size 80
  .amdhsa_user_sgpr_count 2
  .amdhsa_user_sgpr_kernarg_segment_ptr 1
  .amdhsa_system_sgpr_workgroup_id_x 1
.end_amdhsa_kernel
.text
"""


def kd(name, vgpr, sgpr, acc):
    return KD.format(name=name, vgpr=vgpr, sgpr=sgpr, acc=acc)


def entry(name):
    return ".text\n.globl %s\n.p2align 8\n.type %s,@function\n%s:\n" % (name, name, name)


def vr(base, n=1, kind="v"):
    return "%s%d" % (kind, base) if n == 1 else "%s[%d:%d]" % (kind, base, base + n - 1)


class Reg:
    def __init__(self, kind, base, n):
        self.kind, self.base, self.n = kind, base, n

    def __getitem__(self, i):
        if isinstance(i, slice):
            s = i.start or 0
            e = self.n if i.stop is None else i.stop
            return Reg(self.kind, self.base + s, e - s)
        return Reg(self.kind, self.base + i, 1)

    def q(self, i, w=4):
        return Reg(self.kind, self.base + i * w, w)

    def __str__(self):
        return vr(self.base, self.n, self.kind)

    __repr__ = __str__


class Alloc:
    def __init__(self, kind, start, limit):
        self.kind, self.p, self.limit = kind, start, limit

    def get(self, n, align=None):
        if align is None:
            align = 1 if n == 1 else 2 if self.kind != "s" or n == 2 else 4
            if self.kind in "va" and n >= 4:
                align = 4
        self.p = (self.p + align - 1) // align * align
        r = Reg(self.kind, self.p, n)
        self.p += n
        assert self.p <= self.limit, "out of %s regs" % self.kind
        return r
```

```python
import sys, struct
from asmlib import *

S, D, F = 2048, 640, 1536
NAME = "interleave_layers__linear_attn_block__geglu_ffn__prompt"

_off = 0
def ws(n):
    global _off
    o = _off
    _off += (n + 4095) // 4096 * 4096
    return o
W1 = ws(16 * 20 * 8 * 1024)
W2 = ws(8 * 20 * 5 * 1024)
W3 = ws(16 * 20 * 12 * 1024)
W4 = ws(8 * 48 * 5 * 1024)
CSP1 = ws(20 * 2048 * 4)
CSP3 = ws(20 * 3072 * 4)
CSW = ws(256 * 1280)
CNT = ws(256 * 128 + 16 * 128 + 16 * 128)
CNT_C = CNT + 256 * 128
CNT_G = CNT_C + 16 * 128
XA = ws(128 * 20 * 1024); STA = ws(2048 * 64); KV = ws(14 * 4096); PQ = ws(128 * 20 * 1024)
XB = ws(128 * 20 * 1024); STB = ws(2048 * 64); H = ws(128 * 48 * 1024)
LSTR = _off - XA
ws(LSTR)
PROFO = ws(8 * 256 * 4 * 64 + 2048 * 32)
WS_USED = _off
OOB = 0x40000000
PROF = False
CFG = dict(NPRE1=7, NPRE3=5, NW4L=24, NW4E=18, NW4D=8, NW4W=6, NP1W=8, NW2D=8, NW2L=6, SP4=4, HOT=0, LEAD=26, RATE=10, RA1=6, CPF=1, NPRE1A=2, ARRK=9, ZF1=2, SP2=6, DBG=0, KARR=6, KPOLL=11, RD2=0, ZFP=4, NWQ=5, TLB=0, K0NT=7, B2O=0, SC=1, PD1=6, PD3=6, P1=8, P3=8, TMO=30000, ROT=0, NPOLL=3, EW3=16, PW=1, PSL=0)

def f32(x):
    return "0x%08x" % struct.unpack("<I", struct.pack("<f", x))[0]
LOG2E = 1.4426950408889634
MF = "v_mfma_f32_16x16x32_bf16"
H2 = [slice(0, 2), slice(2, 4)]

sWAVE, sRB, sP, sRB64, sCG, sLAY, sTGT, sPH = "s10", "s11", "s12", "s13", "s14", "s15", "s40", "s41"
sROT10, sROT12 = "s8", "s9"
vN, vG = Reg("v", 3, 1), Reg("v", 4, 1)
vCNT, vPL, vPG = Reg("v", 5, 1), Reg("v", 6, 1), Reg("v", 7, 1)
vPRE = Reg("v", 8, 4)
VBASE = 12

def SC():
    return " sc1" if CFG["SC"] else ""


def stamp(a, i):
    if PROF:
        a("s_memtime s[%d:%d]" % (60 + 2 * i, 61 + 2 * i))

def stamp_dump(a, vb=240):
    if not PROF:
        return
    a("s_memrealtime s[78:79]")
    a("s_lshl_b32 s59, %s, 8" % sPH)
    a("s_add_u32 s59, s59, s2")
    a("s_lshl_b32 s59, s59, 2")
    a("s_add_u32 s59, s59, s10")
    a("s_lshl_b32 s59, s59, 6")
    a("s_add_u32 s59, s59, %d" % PROFO)
    a("s_waitcnt lgkmcnt(0)")
    a.lg = []
    a("s_mov_b64 exec, 1")
    for i in range(10):
        a("v_mov_b32 v%d, s%d" % (vb + i, 60 + 2 * i))
    a("v_mov_b32 v%d, s80" % (vb + 11))
    a("v_mov_b32 v%d, s59" % (vb + 10))
    a("buffer_store_dwordx4 v[%d:%d], v%d, s[4:7], 0 offen" % (vb, vb + 3, vb + 10))
    a("buffer_store_dwordx4 v[%d:%d], v%d, s[4:7], 0 offen offset:16" % (vb + 4, vb + 7, vb + 10))
    a("buffer_store_dwordx4 v[%d:%d], v%d, s[4:7], 0 offen offset:32" % (vb + 8, vb + 11, vb + 10))
    a("s_mov_b64 exec, -1")
    a("s_add_u32 %s, %s, 1" % (sPH, sPH))


_lbl = [0]
def label(p):
    _lbl[0] += 1
    return "L_%s_%d" % (p, _lbl[0])


def arrive(a, loads=()):
    for f in loads:
        f()
    stamp(a, 6)
    a.wait_vm("out")
    a.wait_all(vm=False)
    stamp(a, 7)
    a("s_add_u32 %s, %s, 16" % (sTGT, sTGT))
    a("s_barrier")
    l = label("arr")
    a("s_cmp_lg_u32 %s, 0" % sWAVE)
    a("s_cbranch_scc1 %s" % l)
    a("v_mov_b32 v255, 1")
    a("buffer_atomic_add v255, %s, s[4:7], 0 offen" % vCNT)
    a("%s:" % l)


def poll_issue(a, k):
    a("v_mov_b32 v%d, 0" % (255 - k))
    a("buffer_atomic_add v%d, %s, s[4:7], 0 offen sc0" % (255 - k, vPL))


def poll_loop(a, d, first):
    NP = CFG["NPOLL"]
    l = label("poll")
    a("s_mov_b32 s42, %d" % CFG["TMO"])
    a("%s:" % l)
    for k0 in range(NP):
        k = (k0 + first) % NP
        poll_issue(a, (k + NP - 1) % NP)
        a("s_waitcnt vmcnt(%d)" % (NP - 1))
        a("v_readfirstlane_b32 s43, v%d" % (255 - k))
        a("s_cmp_ge_u32 s43, %s" % sTGT)
        a("s_cbranch_scc1 %s" % d)
    a("s_sub_u32 s42, s42, 1")
    a("s_cbranch_scc0 %s" % l)


def phase_open(a, vb=240):
    a("s_barrier")
    stamp(a, 8)
    stamp_dump(a, vb)
    stamp(a, 0)


def wait(a, loads=()):
    d, o = label("pdone"), label("other")
    NP = CFG["NPOLL"]
    loads = list(loads)
    a("s_cmp_lg_u32 %s, %d" % (sWAVE, CFG["PW"]))
    a("s_cbranch_scc1 %s" % o)
    save = list(a.vm)
    per = (len(loads) + NP - 2) // (NP - 1)
    after = []
    for k in range(NP - 1):
        poll_issue(a, k)
        chunk = loads[k * per:(k + 1) * per]
        for f in chunk:
            f()
        if len(chunk) < 2:
            a("s_sleep %d" % (10 // NP))
        after.append(len(chunk))
    a.vm = save
    for k in range(NP - 1):
        poll_issue(a, (k + NP - 1) % NP)
        a("s_waitcnt vmcnt(%d)" % (NP - 1 + sum(after[k:])))
        a("v_readfirstlane_b32 s43, v%d" % (255 - k))
        a("s_cmp_ge_u32 s43, %s" % sTGT)
        a("s_cbranch_scc1 %s" % d)
    poll_loop(a, d, NP - 1)
    a("s_branch %s" % d)
    a("%s:" % o)
    for f in loads:
        f()
    a("%s:" % d)
    phase_open(a)


def wrap_add(a, r, step, end):
    if (CFG["HOT"] & 1 and r == "s20") or (CFG["HOT"] & 2 and r != "s20"):
        return
    if not CFG["ROT"]:
        a("s_add_u32 %s, %s, %d" % (r, r, step))
        return
    a("s_add_u32 %s, %s, %d" % (r, r, step))
    a("s_cmp_eq_u32 %s, %d" % (r, end))
    a("s_cselect_b32 %s, 0, %s" % (r, r))


def xsum4(a, v, t):
    a("v_mov_b32 %s, %s" % (t, v))
    a("v_permlane16_swap_b32 %s, %s" % (v, t))
    a("v_add_f32 %s, %s, %s" % (v, v, t))
    a("v_mov_b32 %s, %s" % (t, v))
    a("v_permlane32_swap_b32 %s, %s" % (v, t))
    a("v_add_f32 %s, %s, %s" % (v, v, t))


def stats_finish(a, q, mean, rstd, t):
    a("v_add_f32 %s, %s, %s" % (q[0], q[0], q[2]))
    a("v_add_f32 %s, %s, %s" % (q[1], q[1], q[3]))
    xsum4(a, q[0], t)
    xsum4(a, q[1], t)
    a("v_mul_f32 %s, %s, %s" % (mean, f32(1.0 / D), q[0]))
    a("v_mul_f32 %s, %s, %s" % (q[1], f32(1.0 / D), q[1]))
    a("v_fma_f32 %s, -%s, %s, %s" % (q[1], mean, mean, q[1]))
    a("v_max_f32 %s, 0, %s" % (q[1], q[1]))
    a("v_add_f32 %s, %s, %s" % (q[1], f32(1e-5), q[1]))
    a("v_rsq_f32 %s, %s" % (rstd, q[1]))


def pk(op, d, *src, neg=None):
    ops, lo, hi = [], [], []
    for x in src:
        if isinstance(x, str):
            n = int(x[1:])
            ops.append("s[%d:%d]" % (n & ~1, (n & ~1) + 1)); lo.append(n & 1); hi.append(n & 1)
        elif x.n == 2:
            assert x.base % 2 == 0
            ops.append(str(x)); lo.append(0); hi.append(1)
        else:
            b = x.base & ~1
            ops.append("v[%d:%d]" % (b, b + 1)); lo.append(x.base & 1); hi.append(x.base & 1)
    t = "v_pk_%s_f32 %s, %s op_sel:[%s] op_sel_hi:[%s]" % (op, d, ", ".join(ops), ",".join(map(str, lo)), ",".join(map(str, hi)))
    if neg is not None:
        m = ",".join("1" if i == neg else "0" for i in range(len(src)))
        t += " neg_lo:[%s] neg_hi:[%s]" % (m, m)
    return t


class Weaver:
    def __init__(self, a, items, period):
        self.a, self.items, self.period, self.n = a, list(items), period, 0
    def __call__(self, line):
        self.a(line)
        self.n += 1
        if self.n % self.period == 0 and self.items:
            self.items.pop(0)()
    def flush(self):
        while self.items:
            self.items.pop(0)()


class Ring:
    def __init__(self, a, NT, R, vB, vBlast, sL, sB, sB2):
        self.a, self.NT, self.R = a, NT, R
        self.vB, self.vBlast, self.sL, self.sB, self.sB2 = vB, vBlast, sL, sB, sB2
        self.FPS = 2 * NT
        self.SB = self.FPS * 1024
        self.per = self.FPS // 4

    def init_lines(self):
        return ["s_mul_i32 %s, %s, %d" % (self.sB, sROT10, self.SB)] + (["s_add_u32 %s, %s, 3072" % (self.sB2, self.sB)] if self.per > 4 else [])

    def loads(self, s):
        a, per, SB = self.a, self.per, self.SB
        grp = 4 if per == 4 else 3
        out = []
        for i in range(per):
            def f(i=i):
                if i % grp == 0:
                    a("s_add_u32 m0, %s, %d" % (self.sL, (s % self.R) * SB + i * 1024))
                so = self.sB if i < grp else self.sB2
                vb = self.vBlast if i == per - 1 else self.vB
                a.vmem("buffer_load_dwordx4 %s, s[4:7], %s offen offset:%d lds" % (vb, so, (i % grp) * 1024), ("st", s))
                if i == per - 1:
                    wrap_add(a, self.sB, SB, 10 * SB)
                    if per > grp:
                        a("s_add_u32 %s, %s, 3072" % (self.sB2, self.sB))
            out.append(f)
        return out


def gemm_s(a, ring, NPRE, vA, vL, acc, Aring, Bregs, transposed, sA, RA, tail_loads=(), fill=(), nsetup=0, PD=6, P=12, first_barrier=False, NTAIL=99, early=()):
    NST = 10
    NT, R, FPS, SB = ring.NT, ring.R, ring.FPS, ring.SB
    NB = Bregs.n // 4
    BPOS = FPS - PD

    def a_loads(s):
        out = []
        ar = Aring[((s % RA) * 16):((s % RA) * 16 + 16)]
        for ks in range(2):
            for rt in range(2):
                def f(ks=ks, rt=rt):
                    a.vmem("buffer_load_dwordx4 %s, %s, s[4:7], %s offen offset:%d%s" % (ar.q(ks * 2 + rt), vA[rt], sA, ks * 1024, SC()), ("a", s, ks))
                    if ks == 1 and rt == 1:
                        wrap_add(a, sA, 2048, 20480)
                out.append(("a", s, f))
        return out
    bq = [("b", s, f) for s in range(NPRE, NST) for f in ring.loads(s)]
    aq = [x for s in range(NST) for x in a_loads(s)]
    tail = [("t", -1, f) for f in tail_loads]
    fill = list(fill)
    nfill0 = len(fill)
    for k in range(P):
        aq.pop(0)[2]()
    for f in early:
        f()
    stamp(a, 1)
    a.wait_vm(("a", 0, 0))
    if first_barrier:
        a("s_barrier")
    stamp(a, 2)

    def rd(n):
        s, i = divmod(n, FPS)
        addr = (s % R) * SB + i * 1024
        a.ds("ds_read_b128 %s, %s offset:%d" % (Bregs.q(n % NB), vL[addr >> 16], addr & 0xffff), ("f", n))

    NF = NST * FPS
    for n in range(PD):
        rd(n)
    passed = -1

    def next_load(s):
        ca = aq[0] if aq and aq[0][1] - RA < s else None
        cb = bq[0] if bq and (bq[0][1] < R or bq[0][1] - R + 1 <= passed) else None
        ct = len(tail) > keep and len(fill) <= nfill0 - nsetup
        da = ca[1] - s if ca else 99
        db = cb[1] - s - 0.5 if cb else 99
        if min(da, db) > LEAD and ct:
            tail.pop(0)[2]()
        elif ca and da <= db:
            aq.pop(0)[2]()
        elif cb:
            bq.pop(0)[2]()
        elif ct:
            tail.pop(0)[2]()
        else:
            return False
        return True

    nload = len(aq) + len(bq) + min(len(tail), NTAIL)
    LEAD = CFG["LEAD"] / 10.0
    keep = max(0, len(tail) - NTAIL)
    span = FPS * (NST - 1)
    credit = 0.0
    for n in range(NF):
        s, i = divmod(n, FPS)
        ks, j = divmod(i, NT)
        if i == BPOS and s + 1 < NST and s >= 1 and (bq or s + 1 >= NPRE):
            while bq and bq[0][1] <= s + 1:
                sys.stderr.write("late ring load at stage %d\n" % s)
                bq.pop(0)[2]()
            a.wait_vm(("st", s + 1))
            a("s_barrier")
            passed = s
        if j == 0:
            while aq and aq[0][1] <= s:
                sys.stderr.write("late activation load at stage %d\n" % s)
                aq.pop(0)[2]()
            a.wait_vm(("a", s, ks))
        if n + PD < NF:
            rd(n + PD)
        a.wait_lg(("f", n))
        ar = Aring[((s % RA) * 16):((s % RA) * 16 + 16)]
        credit += nload / span * CFG["RATE"] / 10.0
        did = False
        for rt in range(2):
            c = "0" if (s == 0 and ks == 0) else str(acc[rt][j])
            w, x = Bregs.q(n % NB), ar.q(ks * 2 + rt)
            if transposed[j]:
                a("%s %s, %s, %s, %s" % (MF, acc[rt][j], w, x, c))
            else:
                a("%s %s, %s, %s, %s" % (MF, acc[rt][j], x, w, c))
            if rt == 0 and credit >= 1.0:
                did = next_load(s)
                if did:
                    credit -= 1.0
                credit = min(credit, 1.5)
            if rt == 0 and not did and n > FPS:
                for _ in range(2):
                    if fill:
                        x = fill.pop(0)
                        x() if callable(x) else a(x)
    assert not aq and not bq and not fill, (len(aq), len(bq), len(fill))
    stamp(a, 3)
    return [t[2] for t in tail]


K1_RED = 0
K1_TRASH = K1_RED + 4 * 3584 + 1024
K1_PAIRS = [(0, 2), (0, 3), (1, 2), (1, 3), (1, 4), (2, 2), (2, 3), (2, 4)]

class P1:
    def __init__(self, a):
        self.a = a

    def pre_setup(self):
        return ["s_mul_i32 s17, %s, 163840" % sP,
                "s_lshl_b32 s44, %s, 12" % sWAVE,
                "s_add_u32 s17, s17, s44",
                "s_add_u32 s17, s17, %d" % W1,
                "v_add_u32 %s, s17, v2" % vPRE[0],
                "s_mov_b32 s45, 0"]

    def round_loads(self, rho):
        a = self.a
        out = []
        for i in range(4):
            def f(i=i):
                if i == 0:
                    a("s_add_u32 m0, s44, s45")
                    a("s_nop 0")
                a.vmem("buffer_load_dwordx4 %s, s[4:7], s45 offen offset:%d lds" % (vPRE[0], i * 1024), ("st", rho))
                if i == 3:
                    a("s_add_u32 s45, s45, 16384")
            out.append(f)
        return out

    def pre_loads(self, n):
        return [f for rho in range(n) for f in self.round_loads(rho)]

    def alloc(self):
        V = Alloc("v", VBASE, 240)
        r = self
        r.vA = [V.get(1), V.get(1)]
        r.vL = [Reg("v", 2, 1), V.get(1), V.get(1)]
        r.vS = V.get(1); r.vCn = V.get(1); r.vCt = V.get(1)
        r.vQ = V.get(2, 1); r.vKa = V.get(8); r.vGl = V.get(1); r.vR = V.get(1); r.vC1 = V.get(1); r.ret = V.get(1)
        r.mean = [V.get(1), V.get(1)]; r.rstd = [V.get(1), V.get(1)]; r.rl = [V.get(1), V.get(1)]
        r.meanN = [V.get(4), V.get(4)]; r.rstdN = [V.get(4), V.get(4)]; r.rlN = [V.get(4), V.get(4)]
        r.tmp = V.get(16)
        r.acc = [[V.get(4) for j in range(8)] for rt in range(2)]
        r.csn = V.get(8); r.cst = V.get(12)
        r.Xf = V.get(24)
        r.kvd = V.get(32)
        r.A = Reg("a", 0, 160)
        r.Bregs = Reg("a", 160, 32)

    def before_wait(self, emit=None):
        self.alloc()
        r, b = self, (emit or self.a)
        n_, g_ = vN, vG
        t = r.kvd
        b("s_lshl_b32 s16, %s, 3" % sRB)
        b("s_lshl_b32 s17, %s, 1" % sWAVE)
        b("s_add_u32 s16, s16, s17")
        b("s_mul_i32 s19, s16, 20480")
        b("s_add_u32 s19, s19, %s" % sLAY)
        b("s_add_u32 s17, s19, %d" % XA)
        b("v_add_u32 %s, s17, v2" % r.vA[0])
        b("v_add_u32 %s, 20480, %s" % (r.vA[1], r.vA[0]))
        b("v_add_u32 %s, 0x10000, v2" % r.vL[1])
        b("v_lshlrev_b32 %s, 3, %s" % (t[0], n_))
        b("v_lshl_add_u32 %s, %s, 8, %s" % (t[0], g_, t[0]))
        b("s_lshl_b32 s17, s16, 10")
        b("s_add_u32 s17, s17, %s" % sLAY)
        b("s_add_u32 s17, s17, %d" % STA)
        b("v_add_u32 %s, s17, %s" % (r.vS, t[0]))
        b("v_cmp_lt_u32 s[26:27], %s, 8" % n_)
        b("v_add_u32 %s, 0x20000, v2" % r.vL[2])
        b("s_lshr_b32 s17, %s, 2" % sP)
        b("s_mul_i32 s17, s17, 5120")
        b("s_add_u32 s19, s19, s17")
        b("s_add_u32 s19, s19, %d" % PQ)
        b("s_and_b32 s17, %s, 3" % sP)
        b("s_lshl_b32 s18, s17, 10")
        b("s_add_u32 s18, s18, s19")
        b("v_add_u32 %s, s18, v2" % r.vQ[0])
        b("s_lshl_b32 s17, s17, 8")
        b("s_add_u32 s17, s17, s19")
        b("s_add_u32 s17, s17, 4096")
        b("v_add_u32 %s, s17, v2" % r.vQ[1])
        b("v_mov_b32 %s, 0x%x" % (t[2], OOB))
        b("v_cmp_gt_u32 vcc, 16, v1")
        b("v_cndmask_b32 %s, %s, %s, vcc" % (r.vQ[1], t[2], r.vQ[1]))
        b("s_lshl_b32 s17, %s, 7" % sRB)
        b("s_add_u32 s17, s17, %d" % CNT_C)
        b("v_mov_b32 %s, s17" % r.vC1)
        b("v_cmp_eq_u32 vcc, 0, v0")
        b("v_cndmask_b32 %s, %s, %s, vcc" % (r.vC1, t[2], r.vC1))
        b("v_add_u32 %s, %d, v2" % (t[5], K1_TRASH))
        b("s_mul_i32 s19, %s, 3584" % sWAVE)
        b("s_add_u32 s19, s19, %d" % K1_RED)
        b("s_add_u32 s17, s19, 3200")
        for pi, (ka, vb) in enumerate(K1_PAIRS):
            b("v_lshl_add_u32 %s, %s, 2, %d" % (t[0], g_, 16 * ka))
            b("v_add_u32 %s, %d, %s" % (t[1], 16 * vb - 40, n_))
            b("v_cmp_le_u32 vcc, 20, %s" % t[0])
            b("v_cndmask_b32 %s, 0, 20, vcc" % t[2])
            b("v_sub_u32 %s, %s, %s" % (t[3], t[1], t[2]))
            b("v_sub_u32 %s, %s, %s" % (t[2], t[0], t[2]))
            b("v_cmp_gt_u32 vcc, 20, %s" % t[3])
            b("v_mad_i32_i24 %s, %s, 20, %s" % (t[2], t[1], t[2]))
            b("v_lshl_add_u32 %s, %s, 2, s19" % (t[2], t[2]))
            b("v_cndmask_b32 %s, %s, %s, vcc" % (r.vKa[pi], t[5], t[2]))
            if vb == 2:
                b("v_cmp_eq_u32 vcc, 0, %s" % n_)
                b("v_lshl_add_u32 %s, %s, 2, s17" % (t[2], t[0]))
                b("v_cndmask_b32 %s, %s, %s, vcc" % (r.vKa[pi], r.vKa[pi], t[2]))
            if ka == 2:
                b("v_cmp_gt_u32 vcc, 2, %s" % g_)
                b("v_cndmask_b32 %s, %s, %s, vcc" % (r.vKa[pi], t[5], r.vKa[pi]))
        b("v_lshlrev_b32 %s, 2, v0" % r.vR)
        b("s_mul_i32 s17, %s, 3360" % sP)
        b("s_add_u32 s17, s17, %s" % sLAY)
        b("s_add_u32 s17, s17, %d" % KV)
        b("v_add_u32 %s, s17, %s" % (r.vGl, r.vR))
        b("v_add_u32 %s, %d, %s" % (r.vR, K1_RED, r.vR))
        b("s_mul_i32 s17, s2, 1280")
        b("s_add_u32 s17, s17, %d" % CSW)
        b("v_lshl_add_u32 %s, %s, 2, s17" % (r.vCn, n_))
        b("v_lshl_add_u32 %s, %s, 4, s17" % (r.vCt, g_))
        b("s_mov_b32 s23, 20480")
        b("s_mov_b32 s20, 0")
        b("v_lshlrev_b32 %s, 4, %s" % (t[0], g_))
        for q in range(4):
            b("v_add_u32 %s, %d, %s" % (t[1 + q], 4 * q, t[0]))

    def body(self, nxt, NPRE):
        r, a = self, self.a
        tmp, t, acc, Xf, kvd, A, Bregs = r.tmp, r.kvd, r.acc, r.Xf, r.kvd, r.A, r.Bregs
        stat_loads = [(lambda rt=rt, h=h: a.vmem("buffer_load_dwordx2 %s, %s, s[4:7], 0 offen offset:%d%s" % (tmp.q(rt)[2 * h:2 * h + 2], r.vS, rt * 1024 + h * 128, SC()), "stats"))
                      for rt in range(2) for h in range(2)]
        b = Asm()
        for rt in range(2):
            stats_finish(b, tmp.q(rt), r.mean[rt], r.rstd[rt], tmp[8])
            b("v_mul_f32 %s, %s, %s" % (r.rl[rt], f32(LOG2E), r.rstd[rt]))
        fill = [lambda: a.wait_vm("stats")] + list(b.lines)
        for rt in range(2):
            for q in range(4):
                fill.append(lambda rt=rt, q=q: a.ds("ds_bpermute_b32 %s, %s, %s" % (r.meanN[rt][q], t[1 + q], r.mean[rt]), "bp"))
                fill.append(lambda rt=rt, q=q: a.ds("ds_bpermute_b32 %s, %s, %s" % (r.rstdN[rt][q], t[1 + q], r.rstd[rt]), "bp"))
        fill += [None] * 6
        fill.append(lambda: a.wait_lg("bp"))
        for rt in range(2):
            for q in range(4):
                fill.append("v_mul_f32 %s, %s, %s" % (r.rlN[rt][q], f32(LOG2E), r.rstdN[rt][q]))
        fill += nxt.pre_setup()
        cs = [(lambda j=j: a.vmem("buffer_load_dword %s, %s, s[4:7], 0 offen offset:%d" % (r.csn[j], r.vCn, j * 64), "cs")) for j in range(5)]
        cs += [(lambda j=j: a.vmem("buffer_load_dwordx4 %s, %s, s[4:7], 0 offen offset:%d" % (r.cst.q(j), r.vCt, (5 + j) * 64), "cs")) for j in range(3)]
        PD, NB = CFG["PD1"], 8
        seq = [(ks, j, 6 * ks + j) for ks in range(20) for j in range(6)] + [(ks, j, 120 + 2 * ks + j - 6) for ks in range(20) for j in (6, 7)]
        aq = []
        for ks in range(20):
            for rt in range(2):
                def f(ks=ks, rt=rt):
                    a.vmem("buffer_load_dwordx4 %s, %s, s[4:7], s20 offen offset:%d%s" % (A.q(2 * ks + rt), r.vA[rt], (ks % 4) * 1024, SC()), ("a", ks))
                    if ks % 4 == 3 and rt == 1:
                        a("s_add_u32 s20, s20, 4096")
                aq.append((6 * ks, f))
        bq = [(16 * rho - PD, f) for rho in range(NPRE, 10) for f in self.round_loads(rho)]
        for _ in range(CFG["P1"]):
            aq.pop(0)[1]()
        for f in stat_loads:
            f()
        stamp(a, 1)
        a.wait_vm(("a", 0))
        a("s_barrier")
        stamp(a, 2)

        def rd(n):
            f = seq[n][2]
            if f % 16 == 0 and f // 16 >= NPRE:
                while bq and bq[0][0] <= f - PD:
                    sys.stderr.write("P1: late weight load\n")
                    bq.pop(0)[1]()
                a.wait_vm(("st", f // 16))
                a("s_barrier")
            a.ds("ds_read_b128 %s, %s offset:%d" % (Bregs.q(n % NB), r.vL[f >> 6], (f & 63) * 1024), ("f", n))

        def pair(n, mid):
            ks, j, f = seq[n]
            if n + PD < len(seq) and n + PD not in done_rd:
                rd(n + PD)
            if n % 2 == 0 or n == 120:
                a.wait_lg(("f", min(n + 1, len(seq) - 1) if n != 119 else n))
            else:
                a.wait_lg(("f", n))
            for rt in range(2):
                c = "0" if ks == 0 else str(acc[rt][j])
                w, x = Bregs.q(n % NB), A.q(2 * ks + rt)
                a("%s %s, %s, %s, %s" % ((MF, acc[rt][j], w, x, c) if j >= 5 else (MF, acc[rt][j], x, w, c)))
                if rt == 0:
                    mid()
        done_rd = set()
        for n in range(PD):
            rd(n)
        late = [x for x in bq if x[0] >= 120 - PD]
        nload = len(aq) + len(bq) - len(late) + len(cs)
        st = dict(credit=0.0)
        for n in range(120):
            ks, j, f = seq[n]
            if j == 0:
                while aq and aq[0][0] <= n:
                    sys.stderr.write("P1: late activation load\n")
                    aq.pop(0)[1]()
                a.wait_vm(("a", ks))
            def mid():
                st["credit"] += nload / 108.0
                if st["credit"] >= 1.0:
                    cb = bq and bq[0][0] < 120 - PD
                    q = None
                    if aq and (not cb or aq[0][0] <= bq[0][0]):
                        q = aq
                    elif cb:
                        q = bq
                    if q is not None:
                        q.pop(0)[1]()
                    elif cs:
                        cs.pop(0)()
                    elif bq:
                        bq.pop(0)[1]()
                    st["credit"] -= 1.0
                elif n > 12:
                    for _ in range(2):
                        if fill:
                            x = fill.pop(0)
                            if x is not None:
                                x() if callable(x) else a(x)
            pair(n, mid)
        for x in fill:
            if x is not None:
                x() if callable(x) else a(x)
        for f in cs:
            f()
        assert not aq
        stamp(a, 3)
        a.wait_vm("cs")
        a("s_mov_b32 s24, %s" % f32(1e-6))
        e = Weaver(a, [x[1] for x in bq], 16)
        bq[:] = []

        def phi(x, m, c, rs, rlg, t, vraw=None):
            for h in H2:
                e(pk("fma", x[h], m(h), c(h), x[h], neg=0))
            for h in H2:
                e(pk("mul", t[h], x[h], rlg(h)))
            if vraw is not None:
                for h in H2:
                    e(pk("mul", vraw[h], x[h], rs(h)))
            for h in H2:
                e(pk("fma", x[h], x[h], rs(h), "s24"))
            for q in range(4):
                e("v_exp_f32 %s, %s clamp" % (t[q], t[q]))
            for q in range(4):
                e("v_max_f32 %s, s24, %s" % (x[q], x[q]))
            for h in H2:
                e(pk("add", x[h], x[h], t[h]))

        for j in range(5):
            for rt in range(2):
                x = acc[rt][j]
                m = lambda h, rt=rt: r.meanN[rt][h]
                rs = lambda h, rt=rt: r.rstdN[rt][h]
                rg = lambda h, rt=rt: r.rlN[rt][h]
                c = lambda h, j=j: r.csn[j]
                if j < 2:
                    phi(x, m, c, rs, rg, tmp[0:4])
                elif j == 2:
                    phi(x, m, c, rs, rg, tmp[0:4], vraw=tmp[4:8])
                    for q in range(4):
                        e("v_cndmask_b32 %s, %s, %s, s[26:27]" % (x[q], tmp[4 + q], x[q]))
                else:
                    for h in H2:
                        e(pk("fma", x[h], m(h), c(h), x[h], neg=0))
                    for h in H2:
                        e(pk("mul", x[h], x[h], rs(h)))
                e("v_cvt_pk_bf16_f32 %s, %s, %s" % (Xf.q(j)[2 * rt], x[0], x[1]))
                e("v_cvt_pk_bf16_f32 %s, %s, %s" % (Xf.q(j)[2 * rt + 1], x[2], x[3]))
        e("v_mov_b32 %s, 0x3f803f80" % tmp[0])
        for q in range(4):
            e("v_cndmask_b32 %s, %s, %s, s[26:27]" % (Xf.q(5)[q], Xf.q(2)[q], tmp[0]))
        e.flush()
        for pi, (ka, vb) in enumerate(K1_PAIRS):
            a("%s %s, %s, %s, 0" % (MF, kvd.q(pi), Xf.q(ka), Xf.q(5 if vb == 2 else vb)))
        qo = [Xf.q(0), Xf.q(1), Xf.q(2), Xf.q(3)]

        def qtile(j, rt):
            x = acc[rt][5 + j]
            phi(x, lambda h: r.mean[rt], lambda h: r.cst.q(j)[h], lambda h: r.rstd[rt], lambda h: r.rl[rt], tmp[0:4])
            o = qo[rt][2 * j:2 * j + 2] if j < 2 else qo[2 + rt][0:2]
            e("v_cvt_pk_bf16_f32 %s, %s, %s" % (o[0], x[0], x[1]))
            e("v_cvt_pk_bf16_f32 %s, %s, %s" % (o[1], x[2], x[3]))
            if j == 1:
                a.vmem("buffer_store_dwordx4 %s, %s, s[4:7], %s offen%s" % (qo[rt], r.vQ[0], "s23" if rt else "0", SC()), "out")
            if j == 2:
                z = qo[2 + rt]
                e("v_mov_b32 %s, %s" % (z[2], z[0]))
                e("v_mov_b32 %s, %s" % (z[3], z[1]))
                e("v_permlane16_swap_b32 %s, %s" % (z[0], z[2]))
                e("v_permlane16_swap_b32 %s, %s" % (z[1], z[3]))
                a.vmem("buffer_store_dwordx4 %s, %s, s[4:7], %s offen%s" % (z, r.vQ[1], "s23" if rt else "0", SC()), "out")
        if NPRE >= 8:
            a("s_barrier")
        for pi in range(8):
            a.ds("ds_write_b128 %s, %s" % (r.vKa[pi], kvd.q(pi)), "add")
        qtile(0, 0)
        a.wait_lg("add")
        a("s_barrier")
        for i in range(4):
            for w in range(4):
                a.ds("ds_read_b32 %s, %s offset:%d" % (kvd[4 * i + w], r.vR, i * 1024 + w * 3584), ("rd", i))
        a("v_mov_b32 %s, 0x%x" % (kvd[17], OOB))
        a("v_cmp_gt_u32 vcc, 72, v0")
        a("v_cndmask_b32 %s, %s, %s, vcc" % (kvd[16], kvd[17], r.vGl))
        for i in range(4):
            a.wait_lg(("rd", i))
            a(pk("add", kvd[4 * i:4 * i + 2], kvd[4 * i:4 * i + 2], kvd[4 * i + 2:4 * i + 4]))
            a("v_add_f32 %s, %s, %s" % (kvd[4 * i], kvd[4 * i], kvd[4 * i + 1]))
            a.vmem("buffer_atomic_add_f32 %s, %s, s[4:7], 0 offen offset:%d" % (kvd[4 * i], r.vGl if i < 3 else kvd[16], i * 1024), "kv")
        a("v_mov_b32 %s, 1" % r.ret)
        stamp(a, 4)
        wo = nxt.pre_loads()
        nwo = len(wo)
        nxt.before_wait()
        early, zf = list(nxt.early), list(nxt.zf)
        for n in range(120, 160):
            ks = seq[n][0]
            if n == 120 + 2 * CFG["ARRK"]:
                a.wait_vm("kv")
                a("s_barrier")
                a.vmem("buffer_atomic_add %s, %s, s[4:7], 0 offen sc0" % (r.ret, r.vC1), "ret")
            def mid():
                k = 25 - len(wo)
                if n % 3 == 2 and k < nwo and (4 * k + 3) // 8 < ks:
                    wo.pop(0)()
                elif early:
                    for _ in range(2):
                        if early:
                            a(early.pop(0))
                elif ks > CFG["ARRK"] and n % CFG["ZFP"] == 0:
                    zf.pop(0)()
            pair(n, mid)
        l = label("fan")
        if CFG["DBG"] == 2:
            stamp(a, 1)
        a.wait_vm("ret")
        a("v_readfirstlane_b32 s17, %s" % r.ret)
        a("s_and_b32 s17, s17, 15")
        a("s_cmp_eq_u32 s17, 15")
        a("s_cbranch_scc0 %s" % l)
        a("s_mov_b64 exec, 0xffff")
        a("v_mov_b32 %s, 1" % r.ret)
        a("v_lshlrev_b32 %s, 7, v1" % r.vC1)
        a("s_mov_b32 s17, %d" % CNT_G)
        a("buffer_atomic_add %s, %s, s[4:7], s17 offen" % (r.ret, r.vC1))
        a("s_mov_b64 exec, -1")
        a("%s:" % l)
        if CFG["DBG"] == 2:
            stamp(a, 2)
        assert not early
        nxt.wo_rest = wo[CFG["NWQ"]:]
        e = Weaver(a, zf + wo[:CFG["NWQ"]], 6)
        qtile(0, 1)
        qtile(1, 0)
        qtile(1, 1)
        qtile(2, 0)
        nxt.go_load()
        qtile(2, 1)
        e.flush()
        if CFG["DBG"] == 2:
            stamp(a, 3)


class P3:
    def __init__(self, a):
        self.a = a
        self.ring = Ring(a, 12, 6, vPRE[0], vPRE[0], "s44", "s45", "s46")

    def pre_setup(self):
        return ["s_mul_i32 s17, %s, 245760" % sP,
                "s_mul_i32 s44, %s, 6144" % sWAVE,
                "s_add_u32 s17, s17, s44",
                "s_add_u32 s17, s17, %d" % W3,
                "v_add_u32 %s, s17, v2" % vPRE[0]] + self.ring.init_lines()

    def pre_loads(self):
        return [f for s in range(min(4, CFG["NPRE3"])) for f in self.ring.loads(s)]

    def wait_loads(self):
        return [f for s in range(4, CFG["NPRE3"]) for f in self.ring.loads(s)]

    def before_wait(self):
        r, a = self, self.a
        V = Alloc("v", VBASE, 240)
        r.vA = [V.get(1), V.get(1)]
        r.vL = [Reg("v", 2, 1), V.get(1), V.get(1)]
        r.vS = V.get(1); r.vC = V.get(1); r.vH = V.get(1)
        r.mean = [V.get(1), V.get(1)]; r.rstd = [V.get(1), V.get(1)]; r.std = [V.get(1), V.get(1)]
        r.tmp = V.get(16)
        r.acc = [[V.get(4) for j in range(12)] for rt in range(2)]
        r.cs = V.get(48)
        r.Aring = Reg("a", 160, 64)
        r.Bregs = Reg("a", 224, 32)
        tmp = r.tmp
        a("s_lshl_b32 s16, %s, 3" % sRB)
        a("s_lshl_b32 s17, %s, 1" % sWAVE)
        a("s_add_u32 s16, s16, s17")
        a("s_mul_i32 s17, s16, 20480")
        a("s_add_u32 s17, s17, %s" % sLAY)
        a("s_add_u32 s17, s17, %d" % XB)
        a("v_add_u32 %s, s17, v2" % r.vA[0])
        a("v_add_u32 %s, 20480, %s" % (r.vA[1], r.vA[0]))
        a("v_add_u32 %s, 0x10000, v2" % r.vL[1])
        a("v_add_u32 %s, 0x20000, v2" % r.vL[2])
        a("v_lshlrev_b32 %s, 3, %s" % (tmp[0], vN))
        a("v_lshl_add_u32 %s, %s, 8, %s" % (tmp[0], vG, tmp[0]))
        a("s_lshl_b32 s17, s16, 10")
        a("s_add_u32 s17, s17, %s" % sLAY)
        a("s_add_u32 s17, s17, %d" % STB)
        a("v_add_u32 %s, s17, %s" % (r.vS, tmp[0]))
        a("s_mul_i32 s17, s2, 1280")
        a("s_add_u32 s17, s17, %d" % (CSW + 512))
        a("v_lshl_add_u32 %s, %s, 4, s17" % (r.vC, vG))
        a("s_mul_i32 s17, s16, 49152")
        a("s_mul_i32 s19, %s, 3072" % sP)
        a("s_add_u32 s17, s17, s19")
        a("s_add_u32 s17, s17, %s" % sLAY)
        a("s_add_u32 s17, s17, %d" % H)
        a("v_add_u32 %s, s17, v2" % r.vH)
        a("s_mov_b32 s23, 49152")
        a("s_lshl_b32 s20, %s, 11" % sROT10)
        a("s_mov_b32 s24, %s" % f32(-2.0 * 0.7978845608028654 * 0.044715 * LOG2E))
        a("v_mov_b32 %s, %s" % (tmp[15], f32(-2.0 * 0.7978845608028654 * LOG2E)))
        for j in range(12):
            a.vmem("buffer_load_dwordx4 %s, %s, s[4:7], 0 offen offset:%d" % (r.cs.q(j), r.vC, j * 64), "cs")

    def body(self, nxt):
        r, a = self, self.a
        tmp, acc, cs, mean, rstd, std = r.tmp, r.acc, r.cs, r.mean, r.rstd, r.std
        stat_loads = [(lambda rt=rt, h=h: a.vmem("buffer_load_dwordx2 %s, %s, s[4:7], 0 offen offset:%d%s" % (tmp.q(rt)[2 * h:2 * h + 2], r.vS, rt * 1024 + h * 128, SC()), "stats"))
                      for rt in range(2) for h in range(2)]
        b = Asm()
        for rt in range(2):
            stats_finish(b, tmp.q(rt), mean[rt], rstd[rt], tmp[8])
            b("v_rcp_f32 %s, %s" % (std[rt], rstd[rt]))
        fill = nxt.pre_setup() + [lambda: a.wait_vm("stats")] + list(b.lines)
        pre = nxt.pre_loads()
        nl = CFG["NW4L"]
        rest = gemm_s(a, self.ring, CFG["NPRE3"], r.vA, r.vL, acc, r.Aring, r.Bregs, [True] * 12, "s20", 4,
                      pre[:nl], fill, len(nxt.pre_setup()), PD=CFG["PD3"], P=CFG["P3"], first_barrier=True, early=stat_loads)
        e = Weaver(a, rest + pre[nl:], CFG["EW3"])
        out = tmp[0:8]
        for rt in range(2):
            for m in range(3):
                o = out.q((rt * 3 + m) % 2)
                for hh in range(2):
                    jp = 2 * m + hh
                    g, u = acc[rt][2 * jp], acc[rt][2 * jp + 1]
                    cg, cu = cs.q(2 * jp), cs.q(2 * jp + 1)
                    t = tmp[8:12]
                    for h in H2:
                        e(pk("fma", g[h], cg[h], mean[rt], g[h], neg=1))
                    for h in H2:
                        e(pk("fma", u[h], cu[h], mean[rt], u[h], neg=1))
                    for h in H2:
                        e(pk("mul", g[h], g[h], rstd[rt]))
                    for h in H2:
                        e(pk("mul", t[h], g[h], g[h]))
                    for h in H2:
                        e(pk("fma", t[h], t[h], "s24", tmp[15]))
                    for h in H2:
                        e(pk("mul", t[h], g[h], t[h]))
                    for h in H2:
                        e(pk("mul", u[h], g[h], u[h]))
                    for q in range(4):
                        e("v_exp_f32 %s, %s" % (t[q], t[q]))
                    for h in H2:
                        e(pk("fma", t[h], t[h], std[rt], std[rt]))
                    for q in range(4):
                        e("v_rcp_f32 %s, %s" % (t[q], t[q]))
                    for h in H2:
                        e(pk("mul", u[h], u[h], t[h]))
                    e("v_cvt_pk_bf16_f32 %s, %s, %s" % (o[2 * hh], u[0], u[1]))
                    e("v_cvt_pk_bf16_f32 %s, %s, %s" % (o[2 * hh + 1], u[2], u[3]))
                a.vmem("buffer_store_dwordx4 %s, %s, s[4:7], %s offen offset:%d%s" % (o, r.vH, "s23" if rt else "0", m * 1024, SC()), "out")
        e.flush()


def p_addr(a, r, t, red_base, xres, stout):
    for i in range(1, 4):
        a("s_add_u32 s17, %s, %d" % (sWAVE, i))
        a("s_and_b32 s17, s17, 3")
        a("s_mul_i32 s17, s17, 15360")
        a("s_add_u32 s17, s17, %d" % (red_base + (i - 1) * 5120))
        a("v_add_u32 %s, s17, v2" % r.vW[i - 1])
    a("s_mul_i32 s17, %s, 15360" % sWAVE)
    a("s_add_u32 s17, s17, %d" % red_base)
    a("v_add_u32 %s, s17, v2" % r.vRd)
    a("s_lshl_b32 s16, %s, 2" % sRB64)
    a("s_add_u32 s16, s16, %s" % sWAVE)
    a("s_and_b32 s19, %s, 1" % sCG)
    a("s_mul_i32 s29, %s, 5" % sCG)
    a("s_add_u32 s30, s29, s19")
    a("s_xor_b32 s19, s19, 1")
    a("s_lshl_b32 s19, s19, 2")
    a("s_add_u32 s29, s29, s19")
    a("s_mul_i32 s17, s16, 20480")
    a("s_add_u32 s17, s17, %s" % sLAY)
    a("s_add_u32 s17, s17, %d" % xres)
    a("s_lshl_b32 s19, s30, 9")
    a("s_add_u32 s19, s19, s17")
    a("v_add_u32 %s, s19, v2" % r.vRes[0])
    a("s_lshr_b32 s19, s29, 1")
    a("s_lshl_b32 s19, s19, 10")
    a("s_add_u32 s19, s19, s17")
    a("s_and_b32 s17, s29, 1")
    a("s_lshl_b32 s17, s17, 9")
    a("s_add_u32 s19, s19, s17")
    a("v_lshrrev_b32 %s, 1, %s" % (t, vG))
    a("v_lshlrev_b32 %s, 8, %s" % (t, t))
    a("v_lshl_add_u32 %s, %s, 4, %s" % (t, vN, t))
    a("v_add_u32 %s, s19, %s" % (r.vRes[2], t))
    a("v_and_b32 %s, 1, %s" % (t, vG))
    a("v_lshl_add_u32 %s, %s, 3, %s" % (r.vRes[1], t, r.vRes[2]))
    a("v_lshl_add_u32 %s, %s, 30, %s" % (r.vRes[2], t, r.vRes[2]))
    a("s_lshl_b32 s17, s16, 10")
    a("s_add_u32 s17, s17, %s" % sLAY)
    a("s_add_u32 s17, s17, %d" % stout)
    a("s_lshl_b32 s19, %s, 7" % sCG)
    a("s_add_u32 s17, s17, s19")
    a("v_lshl_add_u32 %s, %s, 3, s17" % (r.vSt, vN))
    a("v_mov_b32 %s, 0x%x" % (t, OOB))
    a("v_cmp_gt_u32 vcc, 16, v1")
    a("v_cndmask_b32 %s, %s, %s, vcc" % (r.vSt, t, r.vSt))


def p_res_loads(a, res, vRes):
    a.vmem("buffer_load_dwordx4 %s, %s, s[4:7], 0 offen%s" % (res[0:4], vRes[0], SC()), "res")
    a.vmem("buffer_load_dwordx4 %s, %s, s[4:7], 0 offen offset:1024%s" % (res[4:8], vRes[0], SC()), "res")
    a.vmem("buffer_load_dwordx2 %s, %s, s[4:7], 0 offen%s" % (res[8:10], vRes[1], SC()), "res")


def p_write(a, acc, i, vW):
    for j in range(5):
        a.ds("ds_write_b128 %s, %s offset:%d" % (vW[i - 1], acc[i][j], j * 1024), "rw")


def p_epilogue(a, r, acc, res, part, tmp, xdelta, pre, final):
    stamp(a, 3)
    a.wait_all(vm=False)
    a("s_barrier")
    stamp(a, 4)
    for m in range(15):
        a.ds("ds_read_b128 %s, %s offset:%d" % (part.q(m), r.vRd, m * 1024), ("p", m))
    a("s_mov_b32 s28, %d" % xdelta)
    a.wait_vm("res")
    y = acc[0]
    for j in range(5):
        for h in range(2):
            d = res[2 * j + h]
            a("v_lshlrev_b32 %s, 16, %s" % (tmp[2 * h], d))
            a("v_and_b32 %s, 0xffff0000, %s" % (tmp[2 * h + 1], d))
        for h in H2:
            a(pk("add", y[j][h], y[j][h], tmp[h]))
    for i in range(3):
        for j in range(5):
            a.wait_lg(("p", 5 * i + j))
            for h in H2:
                a(pk("add", y[j][h], y[j][h], part.q(5 * i + j)[h]))
    o = res
    for j in range(5):
        a("v_cvt_pk_bf16_f32 %s, %s, %s" % (o[2 * j], y[j][0], y[j][1]))
        a("v_cvt_pk_bf16_f32 %s, %s, %s" % (o[2 * j + 1], y[j][2], y[j][3]))
    if final:
        a("s_cmp_lg_u32 %s, 0" % sLAY)
        a("s_cbranch_scc1 L_final")
    a.vmem("buffer_store_dwordx4 %s, %s, s[4:7], s28 offen%s" % (o[0:4], r.vRes[0], SC()), "out")
    a.vmem("buffer_store_dwordx4 %s, %s, s[4:7], s28 offen offset:1024%s" % (o[4:8], r.vRes[0], SC()), "out")
    a("v_mov_b32 %s, %s" % (tmp[4], o[8]))
    a("v_mov_b32 %s, %s" % (tmp[5], o[9]))
    a("v_mov_b32 %s, %s" % (tmp[6], o[8]))
    a("v_mov_b32 %s, %s" % (tmp[7], o[9]))
    a("v_permlane16_swap_b32 %s, %s" % (tmp[4], tmp[6]))
    a("v_permlane16_swap_b32 %s, %s" % (tmp[5], tmp[7]))
    a.vmem("buffer_store_dwordx4 %s, %s, s[4:7], s28 offen%s" % (tmp[4:8], r.vRes[2], SC()), "out")
    sq = tmp[2:4]
    a("s_mov_b32 s24, 0x3f803f80")
    for q in range(4):
        a("v_mov_b32 %s, 0" % tmp[q])
    for k in range(10):
        a("v_dot2c_f32_bf16 %s, s24, %s" % (tmp[2 * (k % 2)], o[k]))
        a("v_dot2c_f32_bf16 %s, %s, %s" % (tmp[1 + 2 * (k % 2)], o[k], o[k]))
    a(pk("add", sq, sq, tmp[0:2]))
    xsum4(a, sq[0], tmp[0])
    xsum4(a, sq[1], tmp[0])
    a.vmem("buffer_store_dwordx2 %s, %s, s[4:7], 0 offen%s" % (sq, r.vSt, SC()), "out")
    for f in pre:
        f()


def final_store(a, o, tmp):
    a("L_final:")
    a("s_load_dwordx2 s[32:33], s[0:1], 56")
    a("s_mov_b32 s34, %d" % (S * D * 2))
    a("s_mov_b32 s35, 0x20000")
    a("s_mul_i32 s17, s16, 20480")
    a("v_mul_u32_u24 %s, 1280, %s" % (tmp[0], vN))
    a("v_lshl_add_u32 %s, %s, 3, %s" % (tmp[0], vG, tmp[0]))
    a("v_add_u32 %s, s17, %s" % (tmp[0], tmp[0]))
    a("s_lshl_b32 s30, s30, 5")
    a("s_lshl_b32 s29, s29, 5")
    a("s_waitcnt lgkmcnt(0)")
    for j in range(4):
        a("buffer_store_dwordx2 %s, %s, s[32:35], s30 offen offset:%d" % (o[2 * j:2 * j + 2], tmp[0], j * 32))
    a("buffer_store_dwordx2 %s, %s, s[32:35], s29 offen" % (o[8:10], tmp[0]))
    if PROF:
        stamp(a, 5)
        a("s_waitcnt vmcnt(0)")
        stamp(a, 6)
        stamp(a, 7)
        stamp(a, 8)
        stamp_dump(a)


P4_RED = 98304
class P4:
    def __init__(self, a):
        self.a = a
        self.W = Reg("a", 0, 240)

    def pre_setup(self):
        return ["s_mul_i32 s17, %s, %d" % (sCG, 48 * 5120),
                "s_mul_i32 s19, %s, %d" % (sWAVE, 12 * 5120),
                "s_add_u32 s17, s17, s19",
                "s_add_u32 s17, s17, %d" % W4,
                "v_add_u32 %s, s17, v2" % vPRE[2],
                "v_add_u32 %s, 4096, %s" % (vPRE[3], vPRE[2]),
                "s_mul_i32 s47, %s, 5120" % sROT12]

    def wload(self, k):
        a = self.a
        def f():
            j = k % 5
            a.vmem("buffer_load_dwordx4 %s, %s, s[4:7], s47 offen offset:%d" % (self.W.q(k), vPRE[2] if j < 4 else vPRE[3], (j % 4) * 1024), ("w", k))
            if j == 4:
                wrap_add(a, "s47", 5120, 61440)
        return f

    def pre_loads(self):
        return [self.wload(k) for k in range(CFG["NW4L"] + CFG["NW4E"])]

    def drain_loads(self):
        n = CFG["NW4L"] + CFG["NW4E"]
        return [self.wload(k) for k in range(n, n + CFG["NW4D"])]

    def wait_loads(self):
        n = CFG["NW4L"] + CFG["NW4E"] + CFG["NW4D"]
        return [self.wload(k) for k in range(n, n + CFG["NW4W"])]

    def before_wait(self):
        r, a = self, self.a
        V = Alloc("v", VBASE, 240)
        r.vA = V.get(4)
        r.vW = V.get(3); r.vRd = V.get(1); r.vRes = V.get(3, 1); r.vSt = V.get(1)
        r.tmp = V.get(8)
        r.res = V.get(12)
        r.acc = [[V.get(4) for j in range(5)] for i in range(4)]
        r.ring = V.get(80)
        r.part = r.ring[0:60]
        for i in range(4):
            a("s_add_u32 s17, %s, %d" % (sWAVE, i))
            a("s_and_b32 s17, s17, 3")
            a("s_lshl_b32 s16, %s, 2" % sRB64)
            a("s_add_u32 s17, s17, s16")
            a("s_mul_i32 s17, s17, 49152")
            a("s_mul_i32 s16, %s, 12288" % sWAVE)
            a("s_add_u32 s17, s17, s16")
            a("s_add_u32 s17, s17, %s" % sLAY)
            a("s_add_u32 s17, s17, %d" % H)
            a("v_add_u32 %s, s17, v2" % r.vA[i])
        p_addr(a, r, r.tmp[0], P4_RED, XB, STA + LSTR)
        a("s_lshl_b32 s20, %s, 10" % sROT12)
        p_res_loads(a, r.res, r.vRes)

    def body(self, nxt):
        r, a = self, self.a
        acc = r.acc
        NK, RA = 12, 5
        npre = CFG["NW4L"] + CFG["NW4E"] + CFG["NW4D"] + CFG["NW4W"]
        aq = []
        for ks in range(NK):
            for i in range(4):
                def f(ks=ks, i=i):
                    a.vmem("buffer_load_dwordx4 %s, %s, s[4:7], s20 offen%s" % (r.ring.q((ks % RA) * 4 + i), r.vA[i], SC()), ("x", ks, i))
                    if i == 3:
                        wrap_add(a, "s20", 1024, 12288)
                aq.append((ks, f))
        wq = [(k // 5, self.wload(k)) for k in range(npre, 60)]
        for _ in range(14):
            aq.pop(0)[1]()
        stamp(a, 1)
        setup = list(nxt.pre_setup())
        cnt = 0
        for ks in range(NK):
            order = [0, 1, 2, 3] if ks < NK - 1 else [1, 2, 3, 0]
            while wq and wq[0][0] <= ks:
                wq.pop(0)[1]()
            for oi, i in enumerate(order):
                while aq and aq[0][0] <= ks:
                    aq.pop(0)[1]()
                a.wait_vm([("w", k) for k in range(5 * ks, 5 * ks + 5)] + [("x", ks, i)])
                if ks == 0 and oi == 0:
                    stamp(a, 2)
                for j in range(5):
                    c = "0" if ks == 0 else str(acc[i][j])
                    a("%s %s, %s, %s, %s" % (MF, acc[i][j], self.W.q(5 * ks + j), r.ring.q((ks % RA) * 4 + i), c))
                    cnt += 1
                    if cnt % CFG["SP4"] == 0:
                        ca = aq and aq[0][0] - RA < ks
                        if ca and (not wq or aq[0][0] <= wq[0][0] - 1):
                            aq.pop(0)[1]()
                        elif wq:
                            wq.pop(0)[1]()
                        elif ca:
                            aq.pop(0)[1]()
                    elif cnt % CFG["SP4"] == 1 and setup and ks >= 2:
                        a(setup.pop(0))
                if ks == NK - 1 and oi >= 1:
                    p_write(a, acc, order[oi - 1], r.vW)
        assert not aq and not wq and not setup
        pl = nxt.pre_loads(CFG["NPRE1"])
        assert len(pl) - CFG["NP1W"] <= 24
        self.rest = pl[len(pl) - CFG["NP1W"]:]
        self.drain = pl[:len(pl) - CFG["NP1W"]]
        p_epilogue(a, r, acc, r.res, r.part, r.tmp, XA + LSTR - XB, [], True)


K2_BAND = {0: [0], 1: [0, 4], 2: [0, 1, 4], 3: [1, 4], 4: [1, 4], 5: [2], 6: [2, 4], 7: [2, 3, 4], 8: [3, 4], 9: [3, 4]}
K2_ZG = [[0, 1, 4], [2, 3, 4]]
K2_WB = 23552
K2_KV0 = 96
K2_Z0 = 96 + 160 * 136 + 144
P2_RED = 102400
class P2:
    def __init__(self, a):
        self.a = a
        self.Wf = Reg("a", 0, 100)

    def pre_setup(self):
        return ["s_mul_i32 s17, %s, %d" % (sCG, 20 * 5120),
                "s_mul_i32 s19, %s, %d" % (sWAVE, 5 * 5120),
                "s_add_u32 s17, s17, s19",
                "s_add_u32 s17, s17, %d" % W2,
                "v_add_u32 %s, s17, v2" % vPRE[2],
                "s_mov_b32 s47, 0"]

    def pre_loads(self):
        a = self.a
        out = []
        for k in range(25):
            def f(k=k):
                a.vmem("buffer_load_dwordx4 %s, %s, s[4:7], s47 offen offset:%d" % (self.Wf.q(k), vPRE[2], (k % 4) * 1024), "wo")
                if k % 4 == 3:
                    a("s_add_u32 s47, s47, 4096")
            out.append(f)
        return out

    def before_wait(self):
        r, a = self, self.a
        V = Alloc("v", VBASE, 256)
        r.vW = V.get(3); r.vRd = V.get(1); r.vRes = V.get(3, 1); r.vSt = V.get(1)
        r.eps = V.get(4)
        r.tmp = V.get(8)
        r.num = [V.get(40), V.get(40)]
        r.den = [V.get(8), V.get(8), V.get(8)]
        r.dsel = V.get(8)
        r.accB = V.get(28)
        V.get(4)
        r.of = V.get(80)
        r.P = Reg("a", 100, 80); r.KVf = Reg("a", 180, 76)
        pr = r.num[1]
        r.vP = pr[0:4]; r.vKg = pr[6]; r.vKl = pr[7]; r.vZg = pr[8]; r.vZl = pr[9]
        r.bt = pr[10:20]; r.zb = pr[20:24]; r.bt4 = r.num[0][0:10]; r.vGo = pr[4]; r.vP1 = pr[5]
        t = r.den[1]
        tmp = r.tmp
        n_, g_ = vN, vG
        b = Asm()
        b("s_mul_i32 s18, %s, %d" % (sWAVE, K2_WB))
        for q in range(4):
            b("v_mov_b32 %s, 0" % tmp[q])
        b("v_add_u32 %s, s18, v2" % tmp[4])
        r.zf = [(lambda k=k: a.ds("ds_write_b128 %s, %s offset:%d" % (tmp[4], tmp[0:4], k * 1024), "z")) for k in range(K2_WB // 1024)]
        b("s_lshl_b32 s17, %s, 7" % sRB)
        b("s_add_u32 s17, s17, %d" % CNT_G)
        b("v_mov_b32 %s, s17" % r.vGo)
        b.lines.append("s_cmp_eq_u32 %s, %d\ns_cselect_b32 s17, 0, 0x%x" % (sWAVE, CFG["PW"], OOB))
        b("v_or_b32 %s, s17, %s" % (r.vP1, vPL))
        b("s_mul_i32 s17, %s, 13440" % sWAVE)
        b("s_add_u32 s17, s17, %s" % sLAY)
        b("s_add_u32 s17, s17, %d" % KV)
        b("v_add_u32 %s, s17, v2" % r.vKg)
        b("v_mov_b32 %s, 0x%x" % (t[2], OOB))
        b("v_cmp_gt_u32 s[56:57], 50, v1")
        b("v_mul_u32_u24 %s, 52, v1" % t[0])
        b("v_lshrrev_b32 %s, 8, %s" % (t[0], t[0]))
        b("v_cndmask_b32 %s, %s, %s, s[56:57]" % (r.vKg, t[2], r.vKg))
        b("v_lshrrev_b32 %s, 1, %s" % (t[3], t[0]))
        b("v_mul_u32_u24 %s, 3200, %s" % (t[3], t[3]))
        b("v_add3_u32 %s, v2, %s, s17" % (t[3], t[3]))
        b("v_cmp_gt_u32 s[36:37], 40, v1")
        b("v_add_u32 %s, 3200, %s" % (t[3], t[3]))
        b("v_cndmask_b32 %s, %s, %s, s[36:37]" % (r.vZg, t[2], t[3]))
        r.early = b.lines
        late = Asm()
        b = late
        for i in range(4):
            b("s_add_u32 s17, %s, %d" % (sWAVE, i + 1))
            b("s_and_b32 s17, s17, 3")
            b("s_lshl_b32 s16, %s, 2" % sRB64)
            b("s_add_u32 s17, s17, s16")
            b("s_mul_i32 s17, s17, 20480")
            b("s_mul_i32 s16, %s, 5120" % sWAVE)
            b("s_add_u32 s17, s17, s16")
            b("s_add_u32 s17, s17, %s" % sLAY)
            b("s_add_u32 s17, s17, %d" % PQ)
            b("v_add_u32 %s, s17, v2" % r.vP[i])
        b("s_mov_b32 s20, 4096")
        b("v_mul_u32_u24 %s, 5, %s" % (t[1], t[0]))
        b("v_sub_u32 %s, v1, %s" % (t[1], t[1]))
        b("v_mul_u32_u24 %s, 136, %s" % (r.vKl, t[0]))
        b("v_lshl_add_u32 %s, %s, 3, %s" % (r.vKl, t[1], r.vKl))
        b("v_add_u32 %s, s18, %s" % (r.vKl, r.vKl))
        b("v_mul_u32_u24 %s, 176, %s" % (r.vZl, t[0]))
        b("v_lshl_add_u32 %s, %s, 3, %s" % (r.vZl, t[1], r.vZl))
        b("v_cndmask_b32 %s, 48, %s, s[36:37]" % (r.vZl, r.vZl))
        b("v_add_u32 %s, s18, %s" % (r.vZl, r.vZl))
        b("s_add_u32 s19, s18, %d" % K2_KV0)
        b("s_add_u32 s16, s18, %d" % K2_Z0)
        b("v_lshl_add_u32 %s, %s, 1, 1" % (t[4], g_))
        for tt in range(10):
            b("v_add_u32 %s, %d, %s" % (t[0], 16 * tt, n_))
            b("v_mul_u32_u24 %s, 205, %s" % (t[1], t[0]))
            b("v_lshrrev_b32 %s, 12, %s" % (t[1], t[1]))
            b("v_mul_u32_u24 %s, 136, %s" % (t[0], t[0]))
            b("v_add_u32 %s, s19, %s" % (t[0], t[0]))
            if 4 in K2_BAND[tt]:
                b("v_cmp_eq_u32 vcc, %s, %s" % (t[1], t[4]))
                b("v_cndmask_b32 %s, 48, 24, vcc" % t[2])
                b("v_add_u32 %s, %s, %s" % (r.bt4[tt], t[0], t[2]))
            b("v_mul_u32_u24 %s, 40, %s" % (t[1], t[1]))
            b("v_sub_u32 %s, %s, %s" % (t[0], t[0], t[1]))
            b("v_lshl_add_u32 %s, %s, 3, %s" % (r.bt[tt], g_, t[0]))
        for gi in range(2):
            b("v_and_b32 %s, 3, v1" % t[0])
            b("v_add_u32 %s, %d, %s" % (t[0], 4 * gi, t[0]))
            b("v_cmp_eq_u32 vcc, %s, %s" % (t[0], t[4]))
            b("v_mul_u32_u24 %s, 176, %s" % (t[1], t[0]))
            b("v_cndmask_b32 %s, 48, 24, vcc" % t[2])
            b("v_add3_u32 %s, %s, %s, s16" % (r.zb[2 + gi], t[1], t[2]))
            b("v_mul_u32_u24 %s, 136, %s" % (t[0], t[0]))
            b("v_lshl_add_u32 %s, %s, 3, %s" % (t[0], g_, t[0]))
            b("v_add_u32 %s, s16, %s" % (r.zb[gi], t[0]))
        for q in range(3):
            b("v_cmp_lt_u32 s[%d:%d], %d, %s" % (50 + 2 * q, 51 + 2 * q, q, g_))
        for q in range(4):
            b("v_mov_b32 %s, %s" % (r.eps[q], f32(1e-6)))
        p_addr(b, r, tmp[5], P2_RED, XA, STB)
        r.late = late.lines

    def go_load(self):
        self.a.vmem("buffer_load_dword v252, %s, s[4:7], 0 offen sc1" % self.vGo, "go")

    def kv_stage(self):
        r, a = self, self.a
        stg = r.of
        l, d = label("gp"), label("gd")
        a("s_add_u32 s49, s49, 16")
        a("s_mov_b32 s42, %d" % CFG["TMO"])
        a.wait_vm("go")
        a("%s:" % l)
        a("v_readfirstlane_b32 s43, v252")
        a("s_cmp_ge_u32 s43, s49")
        a("s_cbranch_scc1 %s" % d)
        a("buffer_load_dword v252, %s, s[4:7], 0 offen sc1" % r.vGo)
        a("s_sub_u32 s42, s42, 1")
        a("s_waitcnt vmcnt(0)")
        a("s_cbranch_scc0 %s" % l)
        a("%s:" % d)
        stamp(a, 5)
        late = list(r.late)
        for k in range(17):
            p, q = divmod(k, 4)
            if k < 16:
                if p and q == 0:
                    a("s_mov_b32 s21, %d" % (3360 * p))
                a.vmem("buffer_load_dwordx4 %s, %s, s[4:7], %s offen offset:%d%s" % (stg.q(k), r.vKg, "s21" if p else "0", q * 800, SC()), ("kv", k))
            else:
                a.vmem("buffer_load_dwordx4 %s, %s, s[4:7], 0 offen%s" % (stg.q(16), r.vZg, SC()), ("kv", 16))
            for _ in range(len(r.late) // 16 + 1):
                if late:
                    a(late.pop(0))
            if k == CFG["KARR"]:
                arrive(a)
            if k == CFG["KPOLL"]:
                a("v_mov_b32 v255, 0")
                a.vmem("buffer_atomic_add v255, %s, s[4:7], 0 offen sc0" % r.vP1, "poll")
        assert not late
        d = label("pdone")
        a("s_cmp_lg_u32 %s, %d" % (sWAVE, CFG["PW"]))
        a("s_cbranch_scc1 %s" % d)
        save = list(a.vm)
        a.wait_vm("poll")
        a.vm = save
        a("v_readfirstlane_b32 s43, v255")
        a("s_cmp_ge_u32 s43, %s" % sTGT)
        a("s_cbranch_scc1 %s" % d)
        for k in range(CFG["NPOLL"] - 1):
            poll_issue(a, k)
        poll_loop(a, d, 0)
        a("%s:" % d)
        phase_open(a, 144)

    def stage(self):
        r, a = self, self.a
        stg = r.of
        for k in range(17):
            a.wait_vm(("kv", k))
            s4 = stg.q(k)
            a("v_cvt_pk_bf16_f32 %s, %s, %s" % (s4[0], s4[0], s4[1]))
            a("v_cvt_pk_bf16_f32 %s, %s, %s" % (s4[1], s4[2], s4[3]))
            if k < 16:
                a.ds("ds_write_b64 %s, %s offset:%d" % (r.vKl, s4[0:2], K2_KV0 + k * 1360), "s")
            else:
                a.ds("ds_write_b64 %s, %s offset:%d" % (r.vZl, s4[0:2], K2_Z0), "s")
            if k % 2 == 1 and r.later:
                r.later.pop(0)()
        r.kvi, r.zi = {}, {}
        cnt = 0
        for gi, kbs in enumerate(K2_ZG):
            for kb in kbs:
                r.zi[(gi, kb)] = r.accB.q(cnt); cnt += 1
        cnt = 0
        for tt in range(10):
            for kb in K2_BAND[tt]:
                r.kvi[(tt, kb)] = r.KVf.q(cnt) if cnt < 19 else r.accB.q(6); cnt += 1
        rds = []
        for gi, kbs in enumerate(K2_ZG):
            for kb in kbs:
                rds.append((r.zi[(gi, kb)],) + ((r.zb[gi], 10 * kb, 10 * kb + 4) if kb < 4 else (r.zb[2 + gi], 0, 1)))
        for tt in range(10):
            for kb in K2_BAND[tt]:
                rds.append((r.kvi[(tt, kb)],) + ((r.bt[tt], 10 * kb, 10 * kb + 4) if kb < 4 else (r.bt4[tt], 0, 1)))
        for n, x in enumerate(rds):
            if CFG["RD2"]:
                a.ds("ds_read2_b64 %s, %s offset0:%d offset1:%d" % x, ("k", n))
            else:
                a.ds("ds_read_b64 %s, %s offset:%d" % (x[0][0:2], x[1], 8 * x[2]), ("k", n))
                a.ds("ds_read_b64 %s, %s offset:%d" % (x[0][2:4], x[1], 8 * x[3]), ("k", n))

    def body(self, nxt):
        r, a = self, self.a
        num, den, of, accB, P, KVf, Wf, tmp = r.num, r.den, r.of, r.accB, r.P, r.KVf, self.Wf, r.tmp
        acc = [[accB.q(j) for j in range(5)]] + [[P.q(5 * i + j) for j in range(5)] for i in range(3)]
        later = []
        for i in range(4):
            for kb in range(5):
                later.append(lambda i=i, kb=kb: a.vmem("buffer_load_dwordx4 %s, %s, s[4:7], %s offen offset:%d%s" % (P.q(5 * i + kb), r.vP[i], "s20" if kb == 4 else "0", (kb % 4) * 1024, SC()), ("p", i)))
        for _ in range(7):
            later.pop(0)()
        stamp(a, 1)
        r.later = later
        self.stage()
        kvi, zi = r.kvi, r.zi

        def A_blk(i):
            out = []
            nb, db = num[i % 2], den[i % 3]
            for gi, kbs in enumerate(K2_ZG):
                for x, kb in enumerate(kbs):
                    out.append(("%s %s, %s, %s, %s" % (MF, db.q(gi), zi[(gi, kb)], P.q(5 * i + kb), r.eps if x == 0 else db.q(gi)), None))
            for tt in range(10):
                for x, kb in enumerate(K2_BAND[tt]):
                    out.append(("%s %s, %s, %s, %s" % (MF, nb.q(tt), kvi[(tt, kb)], P.q(5 * i + kb), "0" if x == 0 else nb.q(tt)), tt if x == 0 else None))
            return out

        def V_blk(i):
            out = []
            nb, db = num[i % 2], den[i % 3]
            for q in range(8):
                out.append((i, -1, "v_rcp_f32 %s, %s" % (db[q], db[q])))
            ns = 0
            for tt in range(10):
                hs = [(16 * tt + 4 * g) // 20 for g in range(4)]
                d = db[hs[0]]
                if hs[3] != hs[0]:
                    cut = hs.index(hs[3]) - 1
                    d = r.dsel[ns]; ns += 1
                    out.append((i, tt, "v_cndmask_b32 %s, %s, %s, s[%d:%d]" % (d, db[hs[0]], db[hs[3]], 50 + 2 * cut, 51 + 2 * cut)))
                for q in range(4):
                    out.append((i, tt, "v_mul_f32 %s, %s, %s" % (nb.q(tt)[q], nb.q(tt)[q], d)))
                o = of.q(5 * i + tt // 2)
                out.append((i, tt, "v_cvt_pk_bf16_f32 %s, %s, %s" % (o[2 * (tt % 2)], nb.q(tt)[0], nb.q(tt)[1])))
                out.append((i, tt, "v_cvt_pk_bf16_f32 %s, %s, %s" % (o[2 * (tt % 2) + 1], nb.q(tt)[2], nb.q(tt)[3])))
            return out

        vq = []
        st = dict(n=0)
        def need_v(i, tt):
            while vq and (vq[0][0], vq[0][1]) <= (i, tt):
                a(vq.pop(0)[2])
        def host(text):
            a(text)
            st["n"] += 1
            if st["n"] % CFG["SP2"] == 1 and later:
                later.pop(0)()
                k = 1
            else:
                k = 2
            for _ in range(k):
                if vq:
                    x = vq.pop(0)[2]
                    a(x)
                    if x.startswith("v_rcp"):
                        break

        a.wait_vm(("p", 0))
        stamp(a, 2)
        vq += [(-1, 0, x) for x in nxt.pre_setup()]
        for x, (t_, tt) in enumerate(A_blk(0)):
            a.wait_lg(("k", x))
            a(t_)
            if x % 4 == 1 and later:
                later.pop(0)()
            elif vq:
                a(vq.pop(0)[2])
        assert not later and not vq
        a("s_barrier")
        later += r.wo_rest + nxt.pre_loads()
        for i in range(1, 4):
            vq += V_blk(i - 1)
            a.wait_vm(("p", i))
            for t_, tt in A_blk(i):
                if tt is not None:
                    need_v(i - 2, tt)
                host(t_)
        vq += V_blk(3)
        a.wait_vm("wo")
        res = num[0][0:12]
        part = of[0:60]
        for i in range(4):
            ac = acc[(i + 1) % 4]
            for kb in range(5):
                need_v(i, 2 * kb + 1)
                for j in range(5):
                    host("%s %s, %s, %s, %s" % (MF, ac[j], Wf.q(5 * kb + j), of.q(5 * i + kb), "0" if kb == 0 else ac[j]))
                    if i >= 1 and j == 2:
                        a.ds("ds_write_b128 %s, %s offset:%d" % (r.vW[i - 1], acc[i][kb], kb * 1024), "rw")
                if kb == 0 and i == 3:
                    p_res_loads(a, res, r.vRes)
        assert not vq
        p_epilogue(a, r, acc, res, part, tmp, XB - XA, later, False)


def main_body():
    a = Asm()
    a("s_cmp_ge_u32 s2, 256")
    a("s_cbranch_scc1 L_end")
    a("s_load_dwordx2 s[4:5], s[0:1], 72")
    if PROF:
        a("s_mov_b32 %s, 0" % sPH)
        a("s_memrealtime s[80:81]")
    stamp(a, 0)
    a("v_lshrrev_b32 v1, 6, v0")
    a("s_and_b32 s16, s2, 7")
    a("v_readfirstlane_b32 %s, v1" % sWAVE)
    a("s_lshr_b32 s17, s2, 3")
    a("v_and_b32 v1, 63, v0")
    a("v_lshlrev_b32 v2, 4, v1")
    a("v_and_b32 %s, 15, v1" % vN)
    a("v_lshrrev_b32 %s, 4, v1" % vG)
    a("s_lshr_b32 %s, s16, 1" % sRB)
    a("s_lshl_b32 %s, %s, 2" % (sRB, sRB))
    a("s_and_b32 s18, s17, 3")
    a("s_add_u32 %s, %s, s18" % (sRB, sRB))
    a("s_lshr_b32 s17, s17, 2")
    a("s_and_b32 s16, s16, 1")
    a("s_lshl_b32 %s, s16, 3" % sP)
    a("s_add_u32 %s, %s, s17" % (sP, sP))
    a("s_lshl_b32 %s, %s, 1" % (sRB64, sRB))
    a("s_and_b32 s18, s17, 1")
    a("s_add_u32 %s, %s, s18" % (sRB64, sRB64))
    a("s_lshl_b32 %s, s16, 2" % sCG)
    a("s_lshr_b32 s18, s17, 1")
    a("s_add_u32 %s, %s, s18" % (sCG, sCG))
    a("s_and_b32 s18, %s, %d" % (sRB, 3 if CFG["ROT"] else 0))
    a("s_mul_i32 %s, s18, 3" % sROT12)
    a("s_mul_i32 %s, s18, 5" % sROT10)
    a("s_lshr_b32 %s, %s, 1" % (sROT10, sROT10))
    a("s_mov_b32 s6, %d" % WS_USED)
    a("s_mov_b32 s7, 0x20000")
    a("s_mov_b32 %s, 0" % sLAY)
    a("s_mov_b32 %s, 0" % sTGT)
    a("s_lshl_b32 s17, %s, 11" % sRB)
    a("s_add_u32 s17, s17, %d" % CNT)
    a("v_lshl_add_u32 %s, %s, 7, s17" % (vCNT, vN))
    a("v_mov_b32 v255, 0x%x" % OOB)
    a("v_cmp_gt_u32 vcc, 16, v1")
    a("s_lshl_b32 s18, %s, 7" % sP)
    a("s_add_u32 s17, s17, s18")
    a("v_cndmask_b32 %s, v255, %s, vcc" % (vCNT, vCNT))
    a("v_mov_b32 %s, s17" % vPL)
    a("v_cmp_eq_u32 vcc, 0, v1")
    a("v_cndmask_b32 %s, v255, %s, vcc" % (vPL, vPL))
    p1, p2, p3, p4 = P1(a), P2(a), P3(a), P4(a)
    for l in p1.pre_setup():
        a(l)
    a("s_waitcnt lgkmcnt(0)")
    colsum_final(a)
    for f in p1.pre_loads(CFG["NPRE1A"]):
        f()
    a("s_mov_b32 s49, 0")
    p1.before_wait()
    colsum_final2(a, 4 * CFG["NPRE1A"])
    a.vm = []
    p1.body(p2, CFG["NPRE1A"])
    tail_state = a.vm[a.vm.index("go"):]
    a("L_mid:")
    p2.kv_stage()
    p2.body(p3)
    stamp(a, 5); p3.before_wait(); arrive(a); wait(a, p3.wait_loads())
    p3.body(p4)
    stamp(a, 5); p4.before_wait(); arrive(a, p4.drain_loads()); wait(a, p4.wait_loads())
    p4.body(p1)
    stamp(a, 5)
    a("s_add_u32 %s, %s, %d" % (sLAY, sLAY, LSTR))
    a.weave = Weaver(a, p4.drain, 12)
    p1.before_wait(a.weave); a.weave.flush(); arrive(a); wait(a, p4.rest)
    p1.body(p2, CFG["NPRE1"])
    assert a.vm[a.vm.index("go"):] == tail_state
    a("s_branch L_mid")
    final_store(a, p4.res, p4.tmp)
    a("L_end:")
    a("s_endpgm")
    a("L_code_end:")
    return a, dict(vgpr=512, acc=256, lds=163840)


K0_ST = " sc1"
def k0_body():
    a = Asm()
    U1, U3, U2, U4, UX = 160, 480, 100, 240, 256
    B1 = 0; BX = B1 + U1; B2 = BX + UX; B3 = B2 + U2; B4 = B3 + U3; BZ = B4 + U4
    NZ = 14 + 14 + 9
    a("s_cmp_ge_u32 s2, 256")
    a("s_cbranch_scc1 L_k0_end")
    if PROF:
        a("s_memrealtime s[84:85]")
        a("s_memtime s[86:87]")
    a("s_load_dwordx4 s[36:39], s[0:1], 0")
    a("s_load_dwordx2 s[40:41], s[0:1], 16")
    a("s_load_dwordx4 s[44:47], s[0:1], 32")
    a("s_load_dwordx2 s[42:43], s[0:1], 48")
    a("s_load_dwordx2 s[4:5], s[0:1], 72")
    a("v_lshrrev_b32 v1, 6, v0")
    a("s_mov_b32 s6, %d" % WS_USED)
    a("v_readfirstlane_b32 s10, v1")
    a("s_mov_b32 s7, 0x20000")
    a("s_mov_b32 s15, 0x20000")
    a("v_and_b32 v1, 63, v0")
    a("v_lshlrev_b32 v2, 4, v1")
    a("v_and_b32 v3, 15, v1")
    a("v_lshrrev_b32 v4, 4, v1")
    a("s_lshl_b32 s11, s10, 8")
    a("s_add_u32 s11, s11, s2")
    a("s_lshl_b32 s18, s10, 14")
    a("s_cmp_lt_u32 s11, %d" % BX)
    a("s_cbranch_scc1 L_k0_w1")
    a("s_cmp_lt_u32 s11, %d" % B2)
    a("s_cbranch_scc1 L_k0_x")
    a("s_cmp_lt_u32 s11, %d" % B3)
    a("s_cbranch_scc1 L_k0_w2")
    a("s_cmp_lt_u32 s11, %d" % B4)
    a("s_cbranch_scc1 L_k0_w3")
    a("s_cmp_lt_u32 s11, %d" % BZ)
    a("s_cbranch_scc1 L_k0_w4")
    a("s_cmp_lt_u32 s11, %d" % (BZ + NZ))
    a("s_cbranch_scc0 L_k0_code")
    a("s_sub_u32 s11, s11, %d" % BZ)
    a("s_cmp_ge_u32 s11, 14")
    a("s_cselect_b32 s17, %d, 0" % (LSTR - 14 * 4096))
    a("s_cmp_ge_u32 s11, 28")
    a("s_cselect_b32 s17, 0x%x, s17" % ((CNT - KV - 28 * 4096) & 0xffffffff))
    a("s_add_u32 s17, s17, %d" % KV)
    a("s_lshl_b32 s11, s11, 12")
    a("s_add_u32 s17, s17, s11")
    a("v_add_u32 v5, s17, v2")
    for q in range(4):
        a("v_mov_b32 v%d, 0" % (8 + q))
    a("s_waitcnt lgkmcnt(0)")
    for q in range(4):
        a("buffer_store_dwordx4 v[8:11], v5, s[4:7], 0 offen offset:%d" % (q * 1024))
    a("s_endpgm")

    def k0stamp(r):
        if PROF:
            a("s_memtime s[%d:%d]" % (r, r + 1))
    def k0end():
        if PROF:
            a("s_branch L_k0_prof")
        else:
            a("s_endpgm")
    def nat_flag(a):
        a("s_mul_i32 s29, s22, 52")
        a("s_lshr_b32 s29, s29, 8")
        a("s_mul_i32 s29, s29, 5")
        a("s_sub_u32 s29, s22, s29")
        a("s_cmp_eq_u32 s29, 2")

    def colsum(j, frag, pos):
        a("%s v[%d:%d], v[56:59], %s, 0" % (MF, 64 + 4 * (j % 4), 67 + 4 * (j % 4), frag))

    def colsum_keep(j):
        a("v_cndmask_b32 v%d, v%d, v%d, s[%d:%d]" % (60 + j // 4, 60 + j // 4, 64 + 4 * (j % 4), 48 + 2 * (j % 4), 49 + 2 * (j % 4)))

    def masks():
        for q in range(4):
            a("v_cmp_eq_u32 s[%d:%d], %d, v4" % (48 + 2 * q, 49 + 2 * q, q))
            a("v_mov_b32 v%d, 0x3f803f80" % (56 + q))

    a("L_k0_w1:")
    a("s_lshr_b32 s22, s11, 3")
    a("s_and_b32 s23, s11, 7")
    a("v_mul_u32_u24 v5, 205, v1")
    a("v_lshrrev_b32 v5, 11, v5")
    a("v_mul_u32_u24 v6, 10, v5")
    a("v_sub_u32 v6, v1, v6")
    a("v_cmp_le_u32 vcc, 3, v5")
    a("v_cndmask_b32 v7, 0, 1, vcc")
    a("v_mul_u32_u24 v8, 3, v7")
    a("v_sub_u32 v5, v5, v8")
    a("v_add_u32 v5, 1, v5")
    a("v_cmp_eq_u32 vcc, 3, v5")
    a("v_cndmask_b32 v5, v5, 0, vcc")
    a("v_mul_u32_u24 v5, 1280, v5")
    a("v_lshl_add_u32 v5, v6, 4, v5")
    a("v_mul_u32_u24 v7, 3840, v7")
    a("s_mul_i32 s17, s22, %d" % (32 * 3840))
    a("s_mul_i32 s19, s23, 160")
    a("s_add_u32 s17, s17, s19")
    a("v_add3_u32 v5, v5, v7, s17")
    a("v_mov_b32 v6, 0x%x" % OOB)
    a("v_cmp_gt_u32 vcc, 60, v1")
    a("v_cndmask_b32 v5, v6, v5, vcc")
    a("s_mov_b32 s14, %d" % (640 * 1920 * 2))
    a("s_waitcnt lgkmcnt(0)")
    a("s_mov_b32 s12, s38\ns_mov_b32 s13, s39")
    for i in range(16):
        a("s_add_u32 m0, s18, %d" % (i * 1024))
        a("s_mov_b32 s19, %d" % (i * 7680))
        a("buffer_load_dwordx4 v5, s[12:15], s19 offen%s lds" % (" nt" if CFG["K0NT"] & 1 else ""))
    nat_flag(a)
    a("s_cselect_b32 s29, 2, 1")
    a("s_cselect_b32 s30, 2048, 8192" if False else "s_cselect_b32 s30, 1, 4")
    a("s_lshl_b32 s30, s30, 11")
    a("v_lshrrev_b32 v6, 3, v3")
    a("v_lshl_add_u32 v6, v4, s29, v6")
    a("v_lshlrev_b32 v6, 10, v6")
    a("v_bfe_u32 v7, v3, 2, 1")
    a("v_mul_u32_u24 v7, 480, v7")
    a("v_add3_u32 v6, v6, v7, s18")
    a("v_and_b32 v7, 3, v3")
    a("v_lshlrev_b32 v7, 2, v7")
    for j in range(8):
        a("v_add_u32 v8, %d, v7" % (16 * j))
        a("v_mul_u32_u24 v9, 205, v8")
        a("v_lshrrev_b32 v9, 13, v9")
        a("v_min_u32 v9, 2, v9")
        a("v_mul_u32_u24 v9, 80, v9")
        a("v_lshl_add_u32 v9, v8, 1, v9")
        a("v_add_u32 v%d, v6, v9" % (16 + j))
        a("v_add_u32 v%d, s30, v%d" % (24 + j, 16 + j))
    masks()
    a("s_lshl_b32 s17, s23, 1")
    a("s_mul_i32 s17, s17, 163840")
    a("s_add_u32 s17, s17, %d" % W1)
    a("s_mul_i32 s19, s22, 6144")
    a("s_add_u32 s19, s19, s17")
    a("v_add_u32 v10, s19, v2")
    a("s_lshl_b32 s19, s22, 11")
    a("s_add_u32 s19, s19, s17")
    a("s_add_u32 s19, s19, %d" % (120 * 1024))
    a("v_add_u32 v12, s19, v2")
    a("s_lshl_b32 s17, s22, 13")
    a("s_lshl_b32 s19, s23, 10")
    a("s_add_u32 s17, s17, s19")
    a("s_add_u32 s17, s17, %d" % CSP1)
    a("v_lshl_add_u32 v11, v1, 2, s17")
    a("s_mov_b32 s20, 4096\ns_mov_b32 s21, 163840\ns_mov_b32 s24, %d" % (163840 + 4096))
    k0stamp(88)
    a("s_waitcnt vmcnt(0)")
    k0stamp(90)
    for t in range(16):
        pp, j = divmod(t, 8)
        for h in range(2):
            a.ds("ds_read_b64_tr_b16 v[%d:%d], v%d offset:%d" % (96 + 4 * t + 2 * h, 97 + 4 * t + 2 * h, 16 + j + 8 * h, pp * 80), ("t", t))
    for t in range(16):
        pp, j = divmod(t, 8)
        a.wait_lg(("t", t))
        fr = "v[%d:%d]" % (96 + 4 * t, 99 + 4 * t)
        if j < 6:
            a("buffer_store_dwordx4 %s, v10, s[4:7], %s offen offset:%d%s" % (fr, ["0", "s20", "s21", "s24"][2 * pp + j // 4], (j % 4) * 1024, K0_ST))
        else:
            a("buffer_store_dwordx4 %s, v12, s[4:7], %s offen offset:%d%s" % (fr, ["0", "s21"][pp], (j - 6) * 1024, K0_ST))
        colsum(t, fr, t)
        if t >= 2:
            colsum_keep(t - 2)
    colsum_keep(14); colsum_keep(15)
    for q in range(4):
        a("buffer_store_dword v%d, v11, s[4:7], 0 offen offset:%d%s" % (60 + q, q * 256, K0_ST))
    k0end()

    a("L_k0_w2:")
    a("s_sub_u32 s11, s11, %d" % B2)
    a("s_mov_b32 s14, %d\ns_mov_b32 s26, %d\ns_mov_b32 s27, 20" % (640 * 640 * 2, W2))
    a("s_waitcnt lgkmcnt(0)")
    a("s_mov_b32 s12, s40\ns_mov_b32 s13, s41")
    a("s_branch L_k0_n640")
    a("L_k0_w4:")
    a("s_sub_u32 s11, s11, %d" % B4)
    a("s_mov_b32 s14, %d\ns_mov_b32 s26, %d\ns_mov_b32 s27, 48" % (1536 * 640 * 2, W4))
    a("s_waitcnt lgkmcnt(0)")
    a("s_mov_b32 s12, s42\ns_mov_b32 s13, s43")
    a("L_k0_n640:")
    a("s_mul_i32 s22, s11, 52429")
    a("s_lshr_b32 s22, s22, 18")
    a("s_mul_i32 s17, s22, 5")
    a("s_sub_u32 s23, s11, s17")
    a("s_mov_b32 s16, 1280\ns_mov_b32 s25, 0")
    a("s_branch L_k0_go")
    a("L_k0_w3:")
    a("s_sub_u32 s11, s11, %d" % B3)
    a("s_mul_i32 s22, s11, 43691")
    a("s_lshr_b32 s22, s22, 20")
    a("s_mul_i32 s17, s22, 24")
    a("s_sub_u32 s23, s11, s17")
    a("s_and_b32 s25, s23, 1")
    a("s_lshr_b32 s23, s23, 1")
    a("s_mov_b32 s14, %d\ns_mov_b32 s16, 3072" % (640 * 1536 * 2))
    a("s_cmp_eq_u32 s25, 1")
    a("s_waitcnt lgkmcnt(0)")
    a("s_cselect_b32 s12, s46, s44")
    a("s_cselect_b32 s13, s47, s45")
    a("s_add_u32 s25, s25, 1")
    a("L_k0_go:")
    a("v_mul_lo_u32 v5, v4, s16")
    a("v_lshl_add_u32 v5, v3, 4, v5")
    a("s_mul_i32 s17, s22, s16")
    a("s_lshl_b32 s17, s17, 5")
    a("s_lshl_b32 s19, s23, 8")
    a("s_add_u32 s17, s17, s19")
    a("s_lshl_b32 s19, s16, 2")
    for i in range(8):
        a("s_add_u32 m0, s18, %d" % (i * 1024))
        a("s_nop 0")
        a("buffer_load_dwordx4 v5, s[12:15], s17 offen%s lds" % (" nt" if CFG["K0NT"] & 2 else ""))
        a("s_add_u32 s17, s17, s19")
    nat_flag(a)
    a("s_cselect_b32 s29, s25, 0")
    a("s_cmp_lg_u32 s29, 0")
    a("s_cselect_b32 s29, 3, 2")
    a("s_cselect_b32 s30, 1, 4")
    a("s_lshl_b32 s30, s30, 10")
    a("v_lshrrev_b32 v6, 2, v3")
    a("v_lshl_add_u32 v6, v4, s29, v6")
    a("v_lshlrev_b32 v6, 8, v6")
    a("v_and_b32 v7, 3, v3")
    a("v_lshl_add_u32 v6, v7, 3, v6")
    a("v_add_u32 v6, s18, v6")
    a("v_add_u32 v7, s30, v6")
    masks()
    a("s_cmp_eq_u32 s25, 0")
    a("s_cbranch_scc0 L_k0_d3")
    for i in range(8):
        a("s_lshl_b32 s17, s23, 3")
        a("s_add_u32 s17, s17, %d" % i)
        a("s_mul_i32 s19, s17, 52")
        a("s_lshr_b32 s19, s19, 8")
        a("s_mul_i32 s28, s19, 5")
        a("s_sub_u32 s17, s17, s28")
        a("s_and_b32 s28, s19, 1")
        a("s_sub_u32 s17, s17, s28")
        a("s_cselect_b32 s17, 4, s17")
        a("s_mul_i32 s19, s19, s27")
        a("s_add_u32 s19, s19, s22")
        a("s_mul_i32 s19, s19, 5")
        a("s_add_u32 s19, s19, s17")
        a("s_lshl_b32 s19, s19, 10")
        a("s_add_u32 s%d, s19, s26" % (64 + i))
    a("s_branch L_k0_d")
    a("L_k0_d3:")
    for i in range(8):
        a("s_lshl_b32 s17, s23, 3")
        a("s_add_u32 s17, s17, %d" % i)
        a("s_mul_i32 s19, s17, 43")
        a("s_lshr_b32 s19, s19, 8")
        a("s_mul_i32 s28, s19, 6")
        a("s_sub_u32 s17, s17, s28")
        a("s_lshl_b32 s17, s17, 1")
        a("s_add_u32 s17, s17, s25")
        a("s_sub_u32 s17, s17, 1")
        a("s_mul_i32 s28, s19, 12")
        a("s_add_u32 s28, s28, s17")
        a("s_lshl_b32 s%d, s28, 6" % (72 + i))
        a("s_mul_i32 s19, s19, 20")
        a("s_add_u32 s19, s19, s22")
        a("s_mul_i32 s19, s19, 12")
        a("s_add_u32 s19, s19, s17")
        a("s_lshl_b32 s19, s19, 10")
        a("s_add_u32 s%d, s19, %d" % (64 + i, W3))
    a("L_k0_d:")
    k0stamp(88)
    a("s_waitcnt vmcnt(0)")
    k0stamp(90)
    for t in range(8):
        for h in range(2):
            a.ds("ds_read_b64_tr_b16 v[%d:%d], v%d offset:%d" % (96 + 4 * t + 2 * h, 97 + 4 * t + 2 * h, 6 + h, t * 32), ("t", t))
    for t in range(8):
        a.wait_lg(("t", t))
        a("buffer_store_dwordx4 v[%d:%d], v2, s[4:7], s%d offen%s" % (96 + 4 * t, 99 + 4 * t, 64 + t, K0_ST))
    a("s_cmp_eq_u32 s25, 0")
    a("s_cbranch_scc1 %s" % ("L_k0_prof" if PROF else "L_k0_end"))
    a("s_mul_i32 s17, s22, 12288")
    a("s_add_u32 s17, s17, %d" % CSP3)
    a("v_lshl_add_u32 v11, v3, 2, s17")
    for q in range(2):
        a("v_mov_b32 v%d, s%d" % (12 + q, 72 + 4 * q))
        for z in range(1, 4):
            a("v_mov_b32 v14, s%d" % (72 + 4 * q + z))
            a("v_cndmask_b32 v%d, v%d, v14, s[%d:%d]" % (12 + q, 12 + q, 48 + 2 * z, 49 + 2 * z))
        a("v_add_u32 v%d, v11, v%d" % (12 + q, 12 + q))
    for t in range(8):
        colsum(t, "v[%d:%d]" % (96 + 4 * t, 99 + 4 * t), t)
        if t >= 2:
            colsum_keep(t - 2)
    colsum_keep(6); colsum_keep(7)
    for q in range(2):
        a("buffer_store_dword v%d, v%d, s[4:7], 0 offen%s" % (60 + q, 12 + q, K0_ST))
    k0end()

    a("L_k0_x:")
    a("s_sub_u32 s11, s11, %d" % BX)
    a("s_lshr_b32 s22, s11, 1")
    a("s_and_b32 s23, s11, 1")
    a("s_mul_i32 s17, s22, 20480")
    a("s_mul_i32 s19, s23, 640")
    a("s_add_u32 s19, s19, s17")
    a("v_mul_u32_u24 v5, 1280, v3")
    a("v_lshl_add_u32 v12, v4, 4, v5")
    a("v_lshl_add_u32 v5, v4, 3, v5")
    a("s_mov_b32 s14, %d" % (S * D * 2))
    a("s_waitcnt lgkmcnt(0)")
    a("s_mov_b32 s12, s36\ns_mov_b32 s13, s37")
    for kb in range(10):
        if kb % 5 == 2:
            a("buffer_load_dwordx4 v[%d:%d], v12, s[12:15], s19 offen offset:%d%s" % (16 + 4 * kb, 19 + 4 * kb, kb * 64, " nt" if CFG["K0NT"] & 4 else ""))
            continue
        for h in range(2):
            a("buffer_load_dwordx2 v[%d:%d], v5, s[12:15], s19 offen offset:%d%s" % (16 + 4 * kb + 2 * h, 17 + 4 * kb + 2 * h, kb * 64 + h * 32, " nt" if CFG["K0NT"] & 4 else ""))
    a("s_mul_i32 s19, s23, 10240")
    a("s_add_u32 s17, s17, s19")
    a("s_add_u32 s17, s17, %d" % XA)
    a("v_add_u32 v6, s17, v2")
    for q in range(4):
        a("v_mov_b32 v%d, 0" % (8 + q))
    a("s_mov_b32 s24, 0x3f803f80")
    a("s_mov_b32 s20, 4096\ns_mov_b32 s21, 8192")
    a("s_lshl_b32 s17, s22, 10")
    a("s_lshl_b32 s19, s23, 7")
    a("s_add_u32 s17, s17, s19")
    a("s_add_u32 s17, s17, %d" % STA)
    a("v_lshlrev_b32 v7, 3, v3")
    a("v_lshl_add_u32 v7, v4, 8, v7")
    k0stamp(88)
    a("s_waitcnt vmcnt(0)")
    k0stamp(90)
    for kb in range(10):
        a("buffer_store_dwordx4 v[%d:%d], v6, s[4:7], %s offen offset:%d%s" % (16 + 4 * kb, 19 + 4 * kb, ["0", "s20", "s21"][kb // 4], (kb % 4) * 1024, K0_ST))
        for d in range(4):
            a("v_dot2c_f32_bf16 v%d, s24, v%d" % (8 + 2 * (d % 2), 16 + 4 * kb + d))
            a("v_dot2c_f32_bf16 v%d, v%d, v%d" % (9 + 2 * (d % 2), 16 + 4 * kb + d, 16 + 4 * kb + d))
    a(pk("add", Reg("v", 8, 2), Reg("v", 8, 2), Reg("v", 10, 2)))
    a("buffer_store_dwordx2 v[8:9], v7, s[4:7], s17 offen%s" % K0_ST)
    if PROF:
        a("L_k0_prof:")
        a("s_memtime s[92:93]")
        a("s_waitcnt vmcnt(0)")
        a("s_memtime s[94:95]")
        a("s_memrealtime s[82:83]")
        a("s_lshl_b32 s17, s10, 8")
        a("s_add_u32 s17, s17, s2")
        a("s_lshl_b32 s17, s17, 5")
        a("s_add_u32 s17, s17, %d" % (PROFO + 8 * 256 * 4 * 64))
        a("s_waitcnt lgkmcnt(0)")
        a("s_mov_b64 exec, 1")
        for i in range(7):
            a("v_mov_b32 v%d, s%d" % (8 + i, 82 + 2 * i))
        a("v_mov_b32 v5, s17")
        a("buffer_store_dwordx4 v[8:11], v5, s[4:7], 0 offen")
        a("buffer_store_dwordx4 v[12:15], v5, s[4:7], 0 offen offset:16")
    a("s_endpgm")
    a("L_k0_code:")
    if CFG["TLB"]:
        a("s_cmp_eq_u32 s10, 6")
        a("s_cbranch_scc0 L_k0_code2")
        a("s_load_dwordx2 s[12:13], s[0:1], 56")
        a("s_mov_b32 s14, %d" % (S * D * 2))
        sh = CFG["TLB"]
        a("v_lshlrev_b32 v5, %d, v1" % sh)
        n = (WS_USED + (64 << sh) - 1) // (64 << sh)
        if n > 1:
            a("s_lshr_b32 s17, s2, 3")
            a("s_lshl_b32 s17, s17, %d" % (sh + 6))
            a("v_add_u32 v6, s17, v5")
            assert n <= 32
        else:
            a("v_mov_b32 v6, v5")
        a("s_waitcnt lgkmcnt(0)")
        a("buffer_load_dword v8, v6, s[4:7], 0 offen")
        a("buffer_load_dword v9, %s, s[12:15], 0 offen" % ("v6" if n > 1 else "v5"))
        a("s_endpgm")
        a("L_k0_code2:")
    a("s_cmp_eq_u32 s10, 5")
    a("s_cbranch_scc0 L_k0_end")
    if CFG["CPF"]:
        a("s_getpc_b64 s[20:21]")
        a("L_k0_pc:")
        a("s_lshr_b32 s17, s2, 3")
        a("s_lshl_b32 s17, s17, 11")
        a("s_add_u32 s17, s17, pmain_kernel-L_k0_pc")
        a("v_add_u32 v5, s17, v2")
        a("v_min_u32 v6, L_code_end-L_k0_pc-1040, v5")
        a("v_mov_b32 v9, s21")
        a("v_add_co_u32 v8, vcc, s20, v6")
        a("v_addc_co_u32 v9, vcc, 0, v9, vcc")
        a("global_load_dwordx4 v[12:15], v[8:9], off")
        a("global_load_dwordx4 v[16:19], v[8:9], off offset:1024")
    a("L_k0_end:")
    a("s_endpgm")
    return a, dict(vgpr=160, acc=160, lds=131072, block=512)


def colsum_final(a):
    l1, d = label("cs1"), label("csd")
    a("v_mov_b32 v100, 0x%x" % OOB)
    a("s_cmp_gt_u32 %s, 1" % sWAVE)
    a("s_cbranch_scc1 %s" % d)
    a("s_mul_i32 s19, s2, 1280")
    a("s_add_u32 s19, s19, %d" % CSW)
    a("v_mov_b32 v101, 0x%x" % OOB)
    a("s_cmp_eq_u32 %s, 1" % sWAVE)
    a("s_cbranch_scc1 %s" % l1)
    a("s_lshl_b32 s17, %s, 9" % sP)
    a("s_add_u32 s17, s17, %d" % CSP1)
    a("s_mov_b32 s18, 8192")
    a("v_cmp_gt_u32 vcc, 32, v1")
    a("s_branch %s_go" % d)
    a("%s:" % l1)
    a("s_mul_i32 s17, %s, 768" % sP)
    a("s_add_u32 s17, s17, %d" % CSP3)
    a("s_mov_b32 s18, 12288")
    a("s_add_u32 s19, s19, 512")
    a("v_cmp_gt_u32 vcc, 48, v1")
    a("%s_go:" % d)
    a("s_nop 1")
    a("v_cndmask_b32 v100, v101, v2, vcc")
    for k in range(20):
        a("buffer_load_dwordx4 v[%d:%d], v100, s[4:7], s17 offen" % (104 + 4 * k, 107 + 4 * k))
        a("s_add_u32 s17, s17, s18")
    a("s_mov_b32 s48, s19")
    a("%s:" % d)


def colsum_final2(a, younger):
    d = label("csd")
    a("s_cmp_gt_u32 %s, 1" % sWAVE)
    a("s_cbranch_scc1 %s" % d)
    for k in range(1, 20):
        a("s_waitcnt vmcnt(%d)" % (younger + 19 - k))
        for h in range(2):
            a(pk("add", Reg("v", 104 + 2 * h, 2), Reg("v", 104 + 2 * h, 2), Reg("v", 104 + 4 * k + 2 * h, 2)))
    a("buffer_store_dwordx4 v[104:107], v100, s[4:7], s48 offen")
    a("%s:" % d)


def build_all():
    _lbl[0] = 0
    bodies = [("k0", k0_body()), ("pmain", main_body())]
    out = "".join("; @launch kernel=%s_kernel grid=(256,1,1) block=(%d,1,1) lds=%d\n" % (k, i.get("block", 256), i["lds"]) for k, (a, i) in bodies)
    out += '.amdgcn_target "amdgcn-amd-amdhsa--gfx950"\n'
    kds = ""
    for k, (a, info) in bodies:
        st = {}
        txt = a.text(stats=st)
        sys.stderr.write("%s: %d lines, pad states %d\n" % (k, txt.count("\n"), st["pad"]))
        out += entry(k + "_kernel") + txt
        kds += kd(k + "_kernel", info["vgpr"], 100, info["acc"])
    return out + kds


if __name__ == "__main__":
    import argparse
    ap = argparse.ArgumentParser()
    ap.add_argument("-o", default="cdna_kernels/%s.s" % NAME)
    ap.add_argument("--cfg", default="")
    args = ap.parse_args()
    for kv in args.cfg.split(","):
        if kv:
            k, v = kv.split("="); CFG[k] = int(v)
    txt = build_all()
    open(args.o, "w").write(txt)
```

```python
import sys, struct
from asmlib import *

S, D, F = 2048, 640, 1536
NAME = "interleave_layers__linear_attn_block__geglu_ffn__prompt"

_off = 0
def ws(n):
    global _off
    o = _off
    _off += (n + 4095) // 4096 * 4096
    return o
W1 = ws(16 * 20 * 8 * 1024)
W2 = ws(8 * 20 * 5 * 1024)
W3 = ws(16 * 20 * 12 * 1024)
W4 = ws(8 * 48 * 5 * 1024)
CSP1 = ws(20 * 2048 * 4)
CS3F = ws(3072 * 4)
CSW = ws(256 * 512)
CNT = ws(256 * 128 + 16 * 128 + 16 * 128)
CNT_C = CNT + 256 * 128
CNT_G = CNT_C + 16 * 128
XA = ws(128 * 20 * 1024); STA = ws(2048 * 64); KV = ws(14 * 4096); PQ = ws(128 * 20 * 1024)
XB = ws(128 * 20 * 1024); STB = ws(2048 * 64); H = ws(128 * 48 * 1024)
LSTR = _off - XA
ws(LSTR)
PROFO = ws(9 * 256 * 4 * 64)
WS_USED = _off
OOB = 0x40000000
PROF = False
CFG = dict(NPRE1=7, NPRE3=5, NW4L=24, NW4E=18, NW4D=8, NW4W=6, NP1W=8, NW2D=8, NW2L=6, SP4=4, HOT=0, LEAD=26, RATE=10, RA1=6, CPF=1, NPRE1A=2, ARRK=9, ZF1=2, SP2=6, DBG=0, KARR=6, KPOLL=11, RD2=0, ZFP=4, NWQ=5, TLB=0, K0NT=7, BST=1, B2O=0, SC=1, PD1=6, PD3=6, P1=8, P3=8, TMO=30000, ROT=0, NPOLL=3, EW3=16, PW=1, PSL=0)

def f32(x):
    return "0x%08x" % struct.unpack("<I", struct.pack("<f", x))[0]
LOG2E = 1.4426950408889634
MF = "v_mfma_f32_16x16x32_bf16"
H2 = [slice(0, 2), slice(2, 4)]

sWAVE, sRB, sP, sRB64, sCG, sLAY, sTGT, sPH = "s10", "s11", "s12", "s13", "s14", "s15", "s40", "s41"
sROT10, sROT12 = "s8", "s9"
vN, vG = Reg("v", 3, 1), Reg("v", 4, 1)
vCNT, vPL, vPG = Reg("v", 5, 1), Reg("v", 6, 1), Reg("v", 7, 1)
vPRE = Reg("v", 8, 4)
VBASE = 12

def SC():
    return " sc1" if CFG["SC"] else ""


def stamp(a, i):
    if PROF:
        a("s_memtime s[%d:%d]" % (60 + 2 * i, 61 + 2 * i))

def stamp_dump(a, vb=240):
    if not PROF:
        return
    a("s_memrealtime s[78:79]")
    a("s_lshl_b32 s59, %s, 8" % sPH)
    a("s_add_u32 s59, s59, s2")
    a("s_lshl_b32 s59, s59, 2")
    a("s_add_u32 s59, s59, s10")
    a("s_lshl_b32 s59, s59, 6")
    a("s_add_u32 s59, s59, %d" % PROFO)
    a("s_waitcnt lgkmcnt(0)")
    a.lg = []
    a("s_mov_b64 exec, 1")
    for i in range(10):
        a("v_mov_b32 v%d, s%d" % (vb + i, 60 + 2 * i))
    a("v_mov_b32 v%d, s80" % (vb + 11))
    a("v_mov_b32 v%d, s59" % (vb + 10))
    a("buffer_store_dwordx4 v[%d:%d], v%d, s[4:7], 0 offen" % (vb, vb + 3, vb + 10))
    a("buffer_store_dwordx4 v[%d:%d], v%d, s[4:7], 0 offen offset:16" % (vb + 4, vb + 7, vb + 10))
    a("buffer_store_dwordx4 v[%d:%d], v%d, s[4:7], 0 offen offset:32" % (vb + 8, vb + 11, vb + 10))
    a("s_mov_b64 exec, -1")
    a("s_add_u32 %s, %s, 1" % (sPH, sPH))


_lbl = [0]
def label(p):
    _lbl[0] += 1
    return "L_%s_%d" % (p, _lbl[0])


def arrive(a, loads=()):
    for f in loads:
        f()
    stamp(a, 6)
    a.wait_vm("out")
    a.wait_all(vm=False)
    stamp(a, 7)
    a("s_add_u32 %s, %s, 16" % (sTGT, sTGT))
    a("s_barrier")
    l = label("arr")
    a("s_cmp_lg_u32 %s, 0" % sWAVE)
    a("s_cbranch_scc1 %s" % l)
    a("v_mov_b32 v255, 1")
    a("buffer_atomic_add v255, %s, s[4:7], 0 offen" % vCNT)
    a("%s:" % l)


def poll_issue(a, k):
    a("v_mov_b32 v%d, 0" % (255 - k))
    a("buffer_atomic_add v%d, %s, s[4:7], 0 offen sc0" % (255 - k, vPL))


def poll_loop(a, d, first):
    NP = CFG["NPOLL"]
    l = label("poll")
    a("s_mov_b32 s42, %d" % CFG["TMO"])
    a("%s:" % l)
    for k0 in range(NP):
        k = (k0 + first) % NP
        poll_issue(a, (k + NP - 1) % NP)
        a("s_waitcnt vmcnt(%d)" % (NP - 1))
        a("v_readfirstlane_b32 s43, v%d" % (255 - k))
        a("s_cmp_ge_u32 s43, %s" % sTGT)
        a("s_cbranch_scc1 %s" % d)
    a("s_sub_u32 s42, s42, 1")
    a("s_cbranch_scc0 %s" % l)


def phase_open(a, vb=240):
    a("s_barrier")
    stamp(a, 8)
    stamp_dump(a, vb)
    stamp(a, 0)


def wait(a, loads=()):
    d, o = label("pdone"), label("other")
    NP = CFG["NPOLL"]
    loads = list(loads)
    a("s_cmp_lg_u32 %s, %d" % (sWAVE, CFG["PW"]))
    a("s_cbranch_scc1 %s" % o)
    save = list(a.vm)
    per = (len(loads) + NP - 2) // (NP - 1)
    after = []
    for k in range(NP - 1):
        poll_issue(a, k)
        chunk = loads[k * per:(k + 1) * per]
        for f in chunk:
            f()
        if len(chunk) < 2:
            a("s_sleep %d" % (10 // NP))
        after.append(len(chunk))
    a.vm = save
    for k in range(NP - 1):
        poll_issue(a, (k + NP - 1) % NP)
        a("s_waitcnt vmcnt(%d)" % (NP - 1 + sum(after[k:])))
        a("v_readfirstlane_b32 s43, v%d" % (255 - k))
        a("s_cmp_ge_u32 s43, %s" % sTGT)
        a("s_cbranch_scc1 %s" % d)
    poll_loop(a, d, NP - 1)
    a("s_branch %s" % d)
    a("%s:" % o)
    for f in loads:
        f()
    a("%s:" % d)
    phase_open(a)


def wrap_add(a, r, step, end):
    if (CFG["HOT"] & 1 and r == "s20") or (CFG["HOT"] & 2 and r != "s20"):
        return
    if not CFG["ROT"]:
        a("s_add_u32 %s, %s, %d" % (r, r, step))
        return
    a("s_add_u32 %s, %s, %d" % (r, r, step))
    a("s_cmp_eq_u32 %s, %d" % (r, end))
    a("s_cselect_b32 %s, 0, %s" % (r, r))


def xsum4(a, v, t):
    a("v_mov_b32 %s, %s" % (t, v))
    a("v_permlane16_swap_b32 %s, %s" % (v, t))
    a("v_add_f32 %s, %s, %s" % (v, v, t))
    a("v_mov_b32 %s, %s" % (t, v))
    a("v_permlane32_swap_b32 %s, %s" % (v, t))
    a("v_add_f32 %s, %s, %s" % (v, v, t))


def stats_finish(a, q, mean, rstd, t):
    a("v_add_f32 %s, %s, %s" % (q[0], q[0], q[2]))
    a("v_add_f32 %s, %s, %s" % (q[1], q[1], q[3]))
    xsum4(a, q[0], t)
    xsum4(a, q[1], t)
    a("v_mul_f32 %s, %s, %s" % (mean, f32(1.0 / D), q[0]))
    a("v_mul_f32 %s, %s, %s" % (q[1], f32(1.0 / D), q[1]))
    a("v_fma_f32 %s, -%s, %s, %s" % (q[1], mean, mean, q[1]))
    a("v_max_f32 %s, 0, %s" % (q[1], q[1]))
    a("v_add_f32 %s, %s, %s" % (q[1], f32(1e-5), q[1]))
    a("v_rsq_f32 %s, %s" % (rstd, q[1]))


def pk(op, d, *src, neg=None):
    ops, lo, hi = [], [], []
    for x in src:
        if isinstance(x, str):
            n = int(x[1:])
            ops.append("s[%d:%d]" % (n & ~1, (n & ~1) + 1)); lo.append(n & 1); hi.append(n & 1)
        elif x.n == 2:
            assert x.base % 2 == 0
            ops.append(str(x)); lo.append(0); hi.append(1)
        else:
            b = x.base & ~1
            ops.append("v[%d:%d]" % (b, b + 1)); lo.append(x.base & 1); hi.append(x.base & 1)
    t = "v_pk_%s_f32 %s, %s op_sel:[%s] op_sel_hi:[%s]" % (op, d, ", ".join(ops), ",".join(map(str, lo)), ",".join(map(str, hi)))
    if neg is not None:
        m = ",".join("1" if i == neg else "0" for i in range(len(src)))
        t += " neg_lo:[%s] neg_hi:[%s]" % (m, m)
    return t


class Weaver:
    def __init__(self, a, items, period):
        self.a, self.items, self.period, self.n = a, list(items), period, 0
    def __call__(self, line):
        self.a(line)
        self.n += 1
        if self.n % self.period == 0 and self.items:
            self.items.pop(0)()
    def flush(self):
        while self.items:
            self.items.pop(0)()


class Ring:
    def __init__(self, a, NT, R, vB, vBlast, sL, sB, sB2):
        self.a, self.NT, self.R = a, NT, R
        self.vB, self.vBlast, self.sL, self.sB, self.sB2 = vB, vBlast, sL, sB, sB2
        self.FPS = 2 * NT
        self.SB = self.FPS * 1024
        self.per = self.FPS // 4

    def init_lines(self):
        return ["s_mul_i32 %s, %s, %d" % (self.sB, sROT10, self.SB)] + (["s_add_u32 %s, %s, 3072" % (self.sB2, self.sB)] if self.per > 4 else [])

    def loads(self, s):
        a, per, SB = self.a, self.per, self.SB
        grp = 4 if per == 4 else 3
        out = []
        for i in range(per):
            def f(i=i):
                if i % grp == 0:
                    a("s_add_u32 m0, %s, %d" % (self.sL, (s % self.R) * SB + i * 1024))
                so = self.sB if i < grp else self.sB2
                vb = self.vBlast if i == per - 1 else self.vB
                a.vmem("buffer_load_dwordx4 %s, s[4:7], %s offen offset:%d lds" % (vb, so, (i % grp) * 1024), ("st", s))
                if i == per - 1:
                    wrap_add(a, self.sB, SB, 10 * SB)
                    if per > grp:
                        a("s_add_u32 %s, %s, 3072" % (self.sB2, self.sB))
            out.append(f)
        return out


def gemm_s(a, ring, NPRE, vA, vL, acc, Aring, Bregs, transposed, sA, RA, tail_loads=(), fill=(), nsetup=0, PD=6, P=12, first_barrier=False, NTAIL=99, early=()):
    NST = 10
    NT, R, FPS, SB = ring.NT, ring.R, ring.FPS, ring.SB
    NB = Bregs.n // 4
    BPOS = FPS - PD

    def a_loads(s):
        out = []
        ar = Aring[((s % RA) * 16):((s % RA) * 16 + 16)]
        for ks in range(2):
            for rt in range(2):
                def f(ks=ks, rt=rt):
                    a.vmem("buffer_load_dwordx4 %s, %s, s[4:7], %s offen offset:%d%s" % (ar.q(ks * 2 + rt), vA[rt], sA, ks * 1024, SC()), ("a", s, ks))
                    if ks == 1 and rt == 1:
                        wrap_add(a, sA, 2048, 20480)
                out.append(("a", s, f))
        return out
    bq = [("b", s, f) for s in range(NPRE, NST) for f in ring.loads(s)]
    aq = [x for s in range(NST) for x in a_loads(s)]
    tail = [("t", -1, f) for f in tail_loads]
    fill = list(fill)
    nfill0 = len(fill)
    for k in range(P):
        aq.pop(0)[2]()
    for f in early:
        f()
    stamp(a, 1)
    a.wait_vm(("a", 0, 0))
    if first_barrier:
        a("s_barrier")
    stamp(a, 2)

    def rd(n):
        s, i = divmod(n, FPS)
        addr = (s % R) * SB + i * 1024
        a.ds("ds_read_b128 %s, %s offset:%d" % (Bregs.q(n % NB), vL[addr >> 16], addr & 0xffff), ("f", n))

    NF = NST * FPS
    for n in range(PD):
        rd(n)
    passed = -1

    def next_load(s):
        ca = aq[0] if aq and aq[0][1] - RA < s else None
        cb = bq[0] if bq and (bq[0][1] < R or bq[0][1] - R + 1 <= passed) else None
        ct = len(tail) > keep and len(fill) <= nfill0 - nsetup
        da = ca[1] - s if ca else 99
        db = cb[1] - s - 0.5 if cb else 99
        if min(da, db) > LEAD and ct:
            tail.pop(0)[2]()
        elif ca and da <= db:
            aq.pop(0)[2]()
        elif cb:
            bq.pop(0)[2]()
        elif ct:
            tail.pop(0)[2]()
        else:
            return False
        return True

    nload = len(aq) + len(bq) + min(len(tail), NTAIL)
    LEAD = CFG["LEAD"] / 10.0
    keep = max(0, len(tail) - NTAIL)
    span = FPS * (NST - 1)
    credit = 0.0
    for n in range(NF):
        s, i = divmod(n, FPS)
        ks, j = divmod(i, NT)
        if i == BPOS and s + 1 < NST and s >= 1 and (bq or s + 1 >= NPRE):
            while bq and bq[0][1] <= s + 1:
                sys.stderr.write("late ring load at stage %d\n" % s)
                bq.pop(0)[2]()
            a.wait_vm(("st", s + 1))
            a("s_barrier")
            passed = s
        if j == 0:
            while aq and aq[0][1] <= s:
                sys.stderr.write("late activation load at stage %d\n" % s)
                aq.pop(0)[2]()
            a.wait_vm(("a", s, ks))
        if n + PD < NF:
            rd(n + PD)
        a.wait_lg(("f", n))
        ar = Aring[((s % RA) * 16):((s % RA) * 16 + 16)]
        credit += nload / span * CFG["RATE"] / 10.0
        did = False
        for rt in range(2):
            c = "0" if (s == 0 and ks == 0) else str(acc[rt][j])
            w, x = Bregs.q(n % NB), ar.q(ks * 2 + rt)
            if transposed[j]:
                a("%s %s, %s, %s, %s" % (MF, acc[rt][j], w, x, c))
            else:
                a("%s %s, %s, %s, %s" % (MF, acc[rt][j], x, w, c))
            if rt == 0 and credit >= 1.0:
                did = next_load(s)
                if did:
                    credit -= 1.0
                credit = min(credit, 1.5)
            if rt == 0 and not did and n > FPS:
                for _ in range(2):
                    if fill:
                        x = fill.pop(0)
                        x() if callable(x) else a(x)
    assert not aq and not bq and not fill, (len(aq), len(bq), len(fill))
    stamp(a, 3)
    return [t[2] for t in tail]


K1_RED = 0
K1_TRASH = K1_RED + 4 * 3584 + 1024
K1_PAIRS = [(0, 2), (0, 3), (1, 2), (1, 3), (1, 4), (2, 2), (2, 3), (2, 4)]

class P1:
    def __init__(self, a):
        self.a = a

    def pre_setup(self):
        return ["s_mul_i32 s17, %s, 163840" % sP,
                "s_lshl_b32 s44, %s, 12" % sWAVE,
                "s_add_u32 s17, s17, s44",
                "s_add_u32 s17, s17, %d" % W1,
                "v_add_u32 %s, s17, v2" % vPRE[0],
                "s_mov_b32 s45, 0"]

    def round_loads(self, rho):
        a = self.a
        out = []
        for i in range(4):
            def f(i=i):
                if i == 0:
                    a("s_add_u32 m0, s44, s45")
                    a("s_nop 0")
                a.vmem("buffer_load_dwordx4 %s, s[4:7], s45 offen offset:%d lds" % (vPRE[0], i * 1024), ("st", rho))
                if i == 3:
                    a("s_add_u32 s45, s45, 16384")
            out.append(f)
        return out

    def pre_loads(self, n):
        return [f for rho in range(n) for f in self.round_loads(rho)]

    def alloc(self):
        V = Alloc("v", VBASE, 240)
        r = self
        r.vA = [V.get(1), V.get(1)]
        r.vL = [Reg("v", 2, 1), V.get(1), V.get(1)]
        r.vS = V.get(1); r.vCn = V.get(1); r.vCt = V.get(1)
        r.vQ = V.get(2, 1); r.vKa = V.get(8); r.vGl = V.get(1); r.vR = V.get(1); r.vC1 = V.get(1); r.ret = V.get(1)
        r.mean = [V.get(1), V.get(1)]; r.rstd = [V.get(1), V.get(1)]; r.rl = [V.get(1), V.get(1)]
        r.meanN = [V.get(4), V.get(4)]; r.rstdN = [V.get(4), V.get(4)]; r.rlN = [V.get(4), V.get(4)]
        r.tmp = V.get(16)
        r.acc = [[V.get(4) for j in range(8)] for rt in range(2)]
        r.csn = V.get(8); r.cst = V.get(12)
        r.Xf = V.get(24)
        r.kvd = V.get(32)
        r.A = Reg("a", 0, 160)
        r.Bregs = Reg("a", 160, 32)

    def before_wait(self, emit=None):
        self.alloc()
        r, b = self, (emit or self.a)
        n_, g_ = vN, vG
        t = r.kvd
        b("s_lshl_b32 s16, %s, 3" % sRB)
        b("s_lshl_b32 s17, %s, 1" % sWAVE)
        b("s_add_u32 s16, s16, s17")
        b("s_mul_i32 s19, s16, 20480")
        b("s_add_u32 s19, s19, %s" % sLAY)
        b("s_add_u32 s17, s19, %d" % XA)
        b("v_add_u32 %s, s17, v2" % r.vA[0])
        b("v_add_u32 %s, 20480, %s" % (r.vA[1], r.vA[0]))
        b("v_add_u32 %s, 0x10000, v2" % r.vL[1])
        b("v_lshlrev_b32 %s, 3, %s" % (t[0], n_))
        b("v_lshl_add_u32 %s, %s, 8, %s" % (t[0], g_, t[0]))
        b("s_lshl_b32 s17, s16, 10")
        b("s_add_u32 s17, s17, %s" % sLAY)
        b("s_add_u32 s17, s17, %d" % STA)
        b("v_add_u32 %s, s17, %s" % (r.vS, t[0]))
        b("v_cmp_lt_u32 s[26:27], %s, 8" % n_)
        b("v_add_u32 %s, 0x20000, v2" % r.vL[2])
        b("s_lshr_b32 s17, %s, 2" % sP)
        b("s_mul_i32 s17, s17, 5120")
        b("s_add_u32 s19, s19, s17")
        b("s_add_u32 s19, s19, %d" % PQ)
        b("s_and_b32 s17, %s, 3" % sP)
        b("s_lshl_b32 s18, s17, 10")
        b("s_add_u32 s18, s18, s19")
        b("v_add_u32 %s, s18, v2" % r.vQ[0])
        b("s_lshl_b32 s17, s17, 8")
        b("s_add_u32 s17, s17, s19")
        b("s_add_u32 s17, s17, 4096")
        b("v_add_u32 %s, s17, v2" % r.vQ[1])
        b("v_mov_b32 %s, 0x%x" % (t[2], OOB))
        b("v_cmp_gt_u32 vcc, 16, v1")
        b("v_cndmask_b32 %s, %s, %s, vcc" % (r.vQ[1], t[2], r.vQ[1]))
        b("s_lshl_b32 s17, %s, 7" % sRB)
        b("s_add_u32 s17, s17, %d" % CNT_C)
        b("v_mov_b32 %s, s17" % r.vC1)
        b("v_cmp_eq_u32 vcc, 0, v0")
        b("v_cndmask_b32 %s, %s, %s, vcc" % (r.vC1, t[2], r.vC1))
        b("v_add_u32 %s, %d, v2" % (t[5], K1_TRASH))
        b("s_mul_i32 s19, %s, 3584" % sWAVE)
        b("s_add_u32 s19, s19, %d" % K1_RED)
        b("s_add_u32 s17, s19, 3200")
        for pi, (ka, vb) in enumerate(K1_PAIRS):
            b("v_lshl_add_u32 %s, %s, 2, %d" % (t[0], g_, 16 * ka))
            b("v_add_u32 %s, %d, %s" % (t[1], 16 * vb - 40, n_))
            b("v_cmp_le_u32 vcc, 20, %s" % t[0])
            b("v_cndmask_b32 %s, 0, 20, vcc" % t[2])
            b("v_sub_u32 %s, %s, %s" % (t[3], t[1], t[2]))
            b("v_sub_u32 %s, %s, %s" % (t[2], t[0], t[2]))
            b("v_cmp_gt_u32 vcc, 20, %s" % t[3])
            b("v_mad_i32_i24 %s, %s, 20, %s" % (t[2], t[1], t[2]))
            b("v_lshl_add_u32 %s, %s, 2, s19" % (t[2], t[2]))
            b("v_cndmask_b32 %s, %s, %s, vcc" % (r.vKa[pi], t[5], t[2]))
            if vb == 2:
                b("v_cmp_eq_u32 vcc, 0, %s" % n_)
                b("v_lshl_add_u32 %s, %s, 2, s17" % (t[2], t[0]))
                b("v_cndmask_b32 %s, %s, %s, vcc" % (r.vKa[pi], r.vKa[pi], t[2]))
            if ka == 2:
                b("v_cmp_gt_u32 vcc, 2, %s" % g_)
                b("v_cndmask_b32 %s, %s, %s, vcc" % (r.vKa[pi], t[5], r.vKa[pi]))
        b("v_lshlrev_b32 %s, 2, v0" % r.vR)
        b("s_mul_i32 s17, %s, 3360" % sP)
        b("s_add_u32 s17, s17, %s" % sLAY)
        b("s_add_u32 s17, s17, %d" % KV)
        b("v_add_u32 %s, s17, %s" % (r.vGl, r.vR))
        b("v_add_u32 %s, %d, %s" % (r.vR, K1_RED, r.vR))
        b("s_lshl_b32 s17, s2, 9")
        b("s_add_u32 s17, s17, %d" % CSW)
        b("v_lshl_add_u32 %s, %s, 2, s17" % (r.vCn, n_))
        b("v_lshl_add_u32 %s, %s, 4, s17" % (r.vCt, g_))
        b("s_mov_b32 s23, 20480")
        b("s_mov_b32 s20, 0")
        b("v_lshlrev_b32 %s, 4, %s" % (t[0], g_))
        for q in range(4):
            b("v_add_u32 %s, %d, %s" % (t[1 + q], 4 * q, t[0]))

    def body(self, nxt, NPRE, first=False):
        r, a = self, self.a
        tmp, t, acc, Xf, kvd, A, Bregs = r.tmp, r.kvd, r.acc, r.Xf, r.kvd, r.A, r.Bregs
        stat_loads = [(lambda rt=rt, h=h: a.vmem("buffer_load_dwordx2 %s, %s, s[4:7], 0 offen offset:%d%s" % (tmp.q(rt)[2 * h:2 * h + 2], r.vS, rt * 1024 + h * 128, SC()), "stats"))
                      for rt in range(2) for h in range(2)]
        b = Asm()
        for rt in range(2):
            stats_finish(b, tmp.q(rt), r.mean[rt], r.rstd[rt], tmp[8])
            b("v_mul_f32 %s, %s, %s" % (r.rl[rt], f32(LOG2E), r.rstd[rt]))
        fill = [lambda: a.wait_vm("stats")] + list(b.lines)
        for rt in range(2):
            for q in range(4):
                fill.append(lambda rt=rt, q=q: a.ds("ds_bpermute_b32 %s, %s, %s" % (r.meanN[rt][q], t[1 + q], r.mean[rt]), "bp"))
                fill.append(lambda rt=rt, q=q: a.ds("ds_bpermute_b32 %s, %s, %s" % (r.rstdN[rt][q], t[1 + q], r.rstd[rt]), "bp"))
        fill += [None] * 6
        fill.append(lambda: a.wait_lg("bp"))
        for rt in range(2):
            for q in range(4):
                fill.append("v_mul_f32 %s, %s, %s" % (r.rlN[rt][q], f32(LOG2E), r.rstdN[rt][q]))
        fill += nxt.pre_setup()
        csp = []
        if first:
            cp, ad = Reg("v", 148, 40), Reg("v", 224, 2)
            a("s_lshl_b32 s17, %s, 9" % sP)
            a("s_add_u32 s17, s17, %d" % CSP1)
            a("v_lshrrev_b32 %s, 5, v1" % ad[0])
            a("v_lshlrev_b32 %s, 13, %s" % (ad[0], ad[0]))
            a("v_and_b32 %s, 31, v1" % ad[1])
            a("v_lshlrev_b32 %s, 4, %s" % (ad[1], ad[1]))
            a("s_cmp_eq_u32 %s, 0" % sWAVE)
            a("s_cselect_b32 s19, 0, 0x%x" % OOB)
            a("v_add3_u32 %s, %s, %s, s19" % (ad[0], ad[0], ad[1]))
            a("v_or_b32 %s, s19, %s" % (ad[1], ad[1]))
            a("s_lshl_b32 s48, s2, 9")
            a("s_add_u32 s48, s48, %d" % CSW)
            a("s_mov_b32 s21, s17")
            for k in range(10):
                def f(k=k):
                    a.vmem("buffer_load_dwordx4 %s, %s, s[4:7], s21 offen%s" % (cp.q(k), ad[0], SC()), "csp")
                    a("s_add_u32 s21, s21, 16384")
                csp.append(f)
            fin = [lambda: a.wait_vm("csp")]
            for k in range(1, 10):
                for q in range(4):
                    fin.append("v_add_f32 %s, %s, %s" % (cp[q], cp[q], cp.q(k)[q]))
            for q in range(4):
                fin += ["v_mov_b32 %s, %s" % (cp[4], cp[q]), "v_permlane32_swap_b32 %s, %s" % (cp[q], cp[4]), "v_add_f32 %s, %s, %s" % (cp[q], cp[q], cp[4])]
            fin.append(lambda: a.vmem("buffer_store_dwordx4 %s, %s, s[4:7], s48 offen" % (cp[0:4], ad[1]), "csw"))
            fill = fin + fill
        cs = [(lambda j=j: a.vmem("buffer_load_dword %s, %s, s[4:7], 0 offen offset:%d" % (r.csn[j], r.vCn, j * 64), "cs")) for j in range(5)]
        cs += [(lambda j=j: a.vmem("buffer_load_dwordx4 %s, %s, s[4:7], 0 offen offset:%d" % (r.cst.q(j), r.vCt, (5 + j) * 64), "cs")) for j in range(3)]
        PD, NB = CFG["PD1"], 8
        seq = [(ks, j, 6 * ks + j) for ks in range(20) for j in range(6)] + [(ks, j, 120 + 2 * ks + j - 6) for ks in range(20) for j in (6, 7)]
        aq = []
        for ks in range(20):
            for rt in range(2):
                def f(ks=ks, rt=rt):
                    a.vmem("buffer_load_dwordx4 %s, %s, s[4:7], s20 offen offset:%d%s" % (A.q(2 * ks + rt), r.vA[rt], (ks % 4) * 1024, SC()), ("a", ks))
                    if ks % 4 == 3 and rt == 1:
                        a("s_add_u32 s20, s20, 4096")
                aq.append((6 * ks, f))
        bq = [(16 * rho - PD, f) for rho in range(NPRE, 10) for f in self.round_loads(rho)]
        for _ in range(CFG["P1"]):
            aq.pop(0)[1]()
        for f in stat_loads + csp:
            f()
        stamp(a, 1)
        a.wait_vm(("a", 0))
        a("s_barrier")
        stamp(a, 2)

        def rd(n):
            f = seq[n][2]
            if f % 16 == 0 and f // 16 >= NPRE:
                while bq and bq[0][0] <= f - PD:
                    sys.stderr.write("P1: late weight load\n")
                    bq.pop(0)[1]()
                a.wait_vm([("st", f // 16), "csw"])
                a("s_barrier")
                st["csok"] = not first or (not fill_has_store())
            a.ds("ds_read_b128 %s, %s offset:%d" % (Bregs.q(n % NB), r.vL[f >> 6], (f & 63) * 1024), ("f", n))

        def pair(n, mid):
            ks, j, f = seq[n]
            if n + PD < len(seq) and n + PD not in done_rd:
                rd(n + PD)
            if n % 2 == 0 or n == 120:
                a.wait_lg(("f", min(n + 1, len(seq) - 1) if n != 119 else n))
            else:
                a.wait_lg(("f", n))
            for rt in range(2):
                c = "0" if ks == 0 else str(acc[rt][j])
                w, x = Bregs.q(n % NB), A.q(2 * ks + rt)
                a("%s %s, %s, %s, %s" % ((MF, acc[rt][j], w, x, c) if j >= 5 else (MF, acc[rt][j], x, w, c)))
                if rt == 0:
                    mid()
        done_rd = set()
        st = dict(credit=0.0, csok=not first)
        fill_has_store = lambda: first and fin[-1] in fill
        for n in range(PD):
            rd(n)
        late = [x for x in bq if x[0] >= 120 - PD]
        nload = len(aq) + len(bq) - len(late) + len(cs)
        for n in range(120):
            ks, j, f = seq[n]
            if j == 0:
                while aq and aq[0][0] <= n:
                    sys.stderr.write("P1: late activation load\n")
                    aq.pop(0)[1]()
                a.wait_vm(("a", ks))
            def mid():
                st["credit"] += nload / 108.0
                if st["credit"] >= 1.0:
                    cb = bq and bq[0][0] < 120 - PD
                    q = None
                    if aq and (not cb or aq[0][0] <= bq[0][0]):
                        q = aq
                    elif cb:
                        q = bq
                    if q is not None:
                        q.pop(0)[1]()
                    elif cs and st["csok"]:
                        cs.pop(0)()
                    elif bq:
                        bq.pop(0)[1]()
                    st["credit"] -= 1.0
                elif n > 12:
                    for _ in range(2):
                        if fill:
                            x = fill.pop(0)
                            if x is not None:
                                x() if callable(x) else a(x)
            pair(n, mid)
        for x in fill:
            if x is not None:
                x() if callable(x) else a(x)
        assert st["csok"]
        for f in cs:
            f()
        assert not aq
        stamp(a, 3)
        a.wait_vm("cs")
        a("s_mov_b32 s24, %s" % f32(1e-6))
        e = Weaver(a, [x[1] for x in bq] + (self.bstores if first else []), 10 if first else 16)
        bq[:] = []

        def phi(x, m, c, rs, rlg, t, vraw=None):
            for h in H2:
                e(pk("fma", x[h], m(h), c(h), x[h], neg=0))
            for h in H2:
                e(pk("mul", t[h], x[h], rlg(h)))
            if vraw is not None:
                for h in H2:
                    e(pk("mul", vraw[h], x[h], rs(h)))
            for h in H2:
                e(pk("fma", x[h], x[h], rs(h), "s24"))
            for q in range(4):
                e("v_exp_f32 %s, %s clamp" % (t[q], t[q]))
            for q in range(4):
                e("v_max_f32 %s, s24, %s" % (x[q], x[q]))
            for h in H2:
                e(pk("add", x[h], x[h], t[h]))

        for j in range(5):
            for rt in range(2):
                x = acc[rt][j]
                m = lambda h, rt=rt: r.meanN[rt][h]
                rs = lambda h, rt=rt: r.rstdN[rt][h]
                rg = lambda h, rt=rt: r.rlN[rt][h]
                c = lambda h, j=j: r.csn[j]
                if j < 2:
                    phi(x, m, c, rs, rg, tmp[0:4])
                elif j == 2:
                    phi(x, m, c, rs, rg, tmp[0:4], vraw=tmp[4:8])
                    for q in range(4):
                        e("v_cndmask_b32 %s, %s, %s, s[26:27]" % (x[q], tmp[4 + q], x[q]))
                else:
                    for h in H2:
                        e(pk("fma", x[h], m(h), c(h), x[h], neg=0))
                    for h in H2:
                        e(pk("mul", x[h], x[h], rs(h)))
                e("v_cvt_pk_bf16_f32 %s, %s, %s" % (Xf.q(j)[2 * rt], x[0], x[1]))
                e("v_cvt_pk_bf16_f32 %s, %s, %s" % (Xf.q(j)[2 * rt + 1], x[2], x[3]))
        e("v_mov_b32 %s, 0x3f803f80" % tmp[0])
        for q in range(4):
            e("v_cndmask_b32 %s, %s, %s, s[26:27]" % (Xf.q(5)[q], Xf.q(2)[q], tmp[0]))
        e.flush()
        for pi, (ka, vb) in enumerate(K1_PAIRS):
            a("%s %s, %s, %s, 0" % (MF, kvd.q(pi), Xf.q(ka), Xf.q(5 if vb == 2 else vb)))
        qo = [Xf.q(0), Xf.q(1), Xf.q(2), Xf.q(3)]

        def qtile(j, rt):
            x = acc[rt][5 + j]
            phi(x, lambda h: r.mean[rt], lambda h: r.cst.q(j)[h], lambda h: r.rstd[rt], lambda h: r.rl[rt], tmp[0:4])
            o = qo[rt][2 * j:2 * j + 2] if j < 2 else qo[2 + rt][0:2]
            e("v_cvt_pk_bf16_f32 %s, %s, %s" % (o[0], x[0], x[1]))
            e("v_cvt_pk_bf16_f32 %s, %s, %s" % (o[1], x[2], x[3]))
            if j == 1:
                a.vmem("buffer_store_dwordx4 %s, %s, s[4:7], %s offen%s" % (qo[rt], r.vQ[0], "s23" if rt else "0", SC()), "out")
            if j == 2:
                z = qo[2 + rt]
                e("v_mov_b32 %s, %s" % (z[2], z[0]))
                e("v_mov_b32 %s, %s" % (z[3], z[1]))
                e("v_permlane16_swap_b32 %s, %s" % (z[0], z[2]))
                e("v_permlane16_swap_b32 %s, %s" % (z[1], z[3]))
                a.vmem("buffer_store_dwordx4 %s, %s, s[4:7], %s offen%s" % (z, r.vQ[1], "s23" if rt else "0", SC()), "out")
        if NPRE >= 8:
            a("s_barrier")
        for pi in range(8):
            a.ds("ds_write_b128 %s, %s" % (r.vKa[pi], kvd.q(pi)), "add")
        qtile(0, 0)
        a.wait_lg("add")
        a("s_barrier")
        for i in range(4):
            for w in range(4):
                a.ds("ds_read_b32 %s, %s offset:%d" % (kvd[4 * i + w], r.vR, i * 1024 + w * 3584), ("rd", i))
        a("v_mov_b32 %s, 0x%x" % (kvd[17], OOB))
        a("v_cmp_gt_u32 vcc, 72, v0")
        a("v_cndmask_b32 %s, %s, %s, vcc" % (kvd[16], kvd[17], r.vGl))
        for i in range(4):
            a.wait_lg(("rd", i))
            a(pk("add", kvd[4 * i:4 * i + 2], kvd[4 * i:4 * i + 2], kvd[4 * i + 2:4 * i + 4]))
            a("v_add_f32 %s, %s, %s" % (kvd[4 * i], kvd[4 * i], kvd[4 * i + 1]))
            a.vmem("buffer_atomic_add_f32 %s, %s, s[4:7], 0 offen offset:%d" % (kvd[4 * i], r.vGl if i < 3 else kvd[16], i * 1024), "kv")
        a("v_mov_b32 %s, 1" % r.ret)
        stamp(a, 4)
        wo = nxt.pre_loads()
        nwo = len(wo)
        nxt.before_wait()
        early, zf = list(nxt.early), list(nxt.zf)
        for n in range(120, 160):
            ks = seq[n][0]
            if n == 120 + 2 * CFG["ARRK"]:
                a.wait_vm("kv")
                a("s_barrier")
                a.vmem("buffer_atomic_add %s, %s, s[4:7], 0 offen sc0" % (r.ret, r.vC1), "ret")
            def mid():
                k = 25 - len(wo)
                if n % 3 == 2 and k < nwo and (4 * k + 3) // 8 < ks:
                    wo.pop(0)()
                elif early:
                    for _ in range(2):
                        if early:
                            a(early.pop(0))
                elif ks > CFG["ARRK"] and n % CFG["ZFP"] == 0:
                    zf.pop(0)()
            pair(n, mid)
        l = label("fan")
        if CFG["DBG"] == 2:
            stamp(a, 1)
        a.wait_vm("ret")
        a("v_readfirstlane_b32 s17, %s" % r.ret)
        a("s_and_b32 s17, s17, 15")
        a("s_cmp_eq_u32 s17, 15")
        a("s_cbranch_scc0 %s" % l)
        a("s_mov_b64 exec, 0xffff")
        a("v_mov_b32 %s, 1" % r.ret)
        a("v_lshlrev_b32 %s, 7, v1" % r.vC1)
        a("s_mov_b32 s17, %d" % CNT_G)
        a("buffer_atomic_add %s, %s, s[4:7], s17 offen" % (r.ret, r.vC1))
        a("s_mov_b64 exec, -1")
        a("%s:" % l)
        if CFG["DBG"] == 2:
            stamp(a, 2)
        assert not early
        nxt.wo_rest = wo[CFG["NWQ"]:]
        e = Weaver(a, zf + wo[:CFG["NWQ"]], 6)
        qtile(0, 1)
        qtile(1, 0)
        qtile(1, 1)
        qtile(2, 0)
        nxt.go_load()
        qtile(2, 1)
        e.flush()
        if CFG["DBG"] == 2:
            stamp(a, 3)


class P3:
    def __init__(self, a):
        self.a = a
        self.ring = Ring(a, 12, 6, vPRE[0], vPRE[0], "s44", "s45", "s46")

    def pre_setup(self):
        return ["s_mul_i32 s17, %s, 245760" % sP,
                "s_mul_i32 s44, %s, 6144" % sWAVE,
                "s_add_u32 s17, s17, s44",
                "s_add_u32 s17, s17, %d" % W3,
                "v_add_u32 %s, s17, v2" % vPRE[0]] + self.ring.init_lines()

    def pre_loads(self):
        return [f for s in range(min(4, CFG["NPRE3"])) for f in self.ring.loads(s)]

    def wait_loads(self):
        return [f for s in range(4, CFG["NPRE3"]) for f in self.ring.loads(s)]

    def before_wait(self):
        r, a = self, self.a
        V = Alloc("v", VBASE, 240)
        r.vA = [V.get(1), V.get(1)]
        r.vL = [Reg("v", 2, 1), V.get(1), V.get(1)]
        r.vS = V.get(1); r.vC = V.get(1); r.vH = V.get(1)
        r.mean = [V.get(1), V.get(1)]; r.rstd = [V.get(1), V.get(1)]; r.std = [V.get(1), V.get(1)]
        r.tmp = V.get(16)
        r.acc = [[V.get(4) for j in range(12)] for rt in range(2)]
        r.cs = V.get(48)
        r.Aring = Reg("a", 160, 64)
        r.Bregs = Reg("a", 224, 32)
        tmp = r.tmp
        a("s_lshl_b32 s16, %s, 3" % sRB)
        a("s_lshl_b32 s17, %s, 1" % sWAVE)
        a("s_add_u32 s16, s16, s17")
        a("s_mul_i32 s17, s16, 20480")
        a("s_add_u32 s17, s17, %s" % sLAY)
        a("s_add_u32 s17, s17, %d" % XB)
        a("v_add_u32 %s, s17, v2" % r.vA[0])
        a("v_add_u32 %s, 20480, %s" % (r.vA[1], r.vA[0]))
        a("v_add_u32 %s, 0x10000, v2" % r.vL[1])
        a("v_add_u32 %s, 0x20000, v2" % r.vL[2])
        a("v_lshlrev_b32 %s, 3, %s" % (tmp[0], vN))
        a("v_lshl_add_u32 %s, %s, 8, %s" % (tmp[0], vG, tmp[0]))
        a("s_lshl_b32 s17, s16, 10")
        a("s_add_u32 s17, s17, %s" % sLAY)
        a("s_add_u32 s17, s17, %d" % STB)
        a("v_add_u32 %s, s17, %s" % (r.vS, tmp[0]))
        a("s_mul_i32 s17, %s, 768" % sP)
        a("s_add_u32 s17, s17, %d" % CS3F)
        a("v_lshl_add_u32 %s, %s, 4, s17" % (r.vC, vG))
        a("s_mul_i32 s17, s16, 49152")
        a("s_mul_i32 s19, %s, 3072" % sP)
        a("s_add_u32 s17, s17, s19")
        a("s_add_u32 s17, s17, %s" % sLAY)
        a("s_add_u32 s17, s17, %d" % H)
        a("v_add_u32 %s, s17, v2" % r.vH)
        a("s_mov_b32 s23, 49152")
        a("s_lshl_b32 s20, %s, 11" % sROT10)
        a("s_mov_b32 s24, %s" % f32(-2.0 * 0.7978845608028654 * 0.044715 * LOG2E))
        a("v_mov_b32 %s, %s" % (tmp[15], f32(-2.0 * 0.7978845608028654 * LOG2E)))
        for j in range(12):
            a.vmem("buffer_load_dwordx4 %s, %s, s[4:7], 0 offen offset:%d%s" % (r.cs.q(j), r.vC, j * 64, SC()), "cs")

    def body(self, nxt):
        r, a = self, self.a
        tmp, acc, cs, mean, rstd, std = r.tmp, r.acc, r.cs, r.mean, r.rstd, r.std
        stat_loads = [(lambda rt=rt, h=h: a.vmem("buffer_load_dwordx2 %s, %s, s[4:7], 0 offen offset:%d%s" % (tmp.q(rt)[2 * h:2 * h + 2], r.vS, rt * 1024 + h * 128, SC()), "stats"))
                      for rt in range(2) for h in range(2)]
        b = Asm()
        for rt in range(2):
            stats_finish(b, tmp.q(rt), mean[rt], rstd[rt], tmp[8])
            b("v_rcp_f32 %s, %s" % (std[rt], rstd[rt]))
        fill = nxt.pre_setup() + [lambda: a.wait_vm("stats")] + list(b.lines)
        pre = nxt.pre_loads()
        nl = CFG["NW4L"]
        rest = gemm_s(a, self.ring, CFG["NPRE3"], r.vA, r.vL, acc, r.Aring, r.Bregs, [True] * 12, "s20", 4,
                      pre[:nl], fill, len(nxt.pre_setup()), PD=CFG["PD3"], P=CFG["P3"], first_barrier=True, early=stat_loads)
        e = Weaver(a, rest + pre[nl:], CFG["EW3"])
        out = tmp[0:8]
        for rt in range(2):
            for m in range(3):
                o = out.q((rt * 3 + m) % 2)
                for hh in range(2):
                    jp = 2 * m + hh
                    g, u = acc[rt][2 * jp], acc[rt][2 * jp + 1]
                    cg, cu = cs.q(2 * jp), cs.q(2 * jp + 1)
                    t = tmp[8:12]
                    for h in H2:
                        e(pk("fma", g[h], cg[h], mean[rt], g[h], neg=1))
                    for h in H2:
                        e(pk("fma", u[h], cu[h], mean[rt], u[h], neg=1))
                    for h in H2:
                        e(pk("mul", g[h], g[h], rstd[rt]))
                    for h in H2:
                        e(pk("mul", t[h], g[h], g[h]))
                    for h in H2:
                        e(pk("fma", t[h], t[h], "s24", tmp[15]))
                    for h in H2:
                        e(pk("mul", t[h], g[h], t[h]))
                    for h in H2:
                        e(pk("mul", u[h], g[h], u[h]))
                    for q in range(4):
                        e("v_exp_f32 %s, %s" % (t[q], t[q]))
                    for h in H2:
                        e(pk("fma", t[h], t[h], std[rt], std[rt]))
                    for q in range(4):
                        e("v_rcp_f32 %s, %s" % (t[q], t[q]))
                    for h in H2:
                        e(pk("mul", u[h], u[h], t[h]))
                    e("v_cvt_pk_bf16_f32 %s, %s, %s" % (o[2 * hh], u[0], u[1]))
                    e("v_cvt_pk_bf16_f32 %s, %s, %s" % (o[2 * hh + 1], u[2], u[3]))
                a.vmem("buffer_store_dwordx4 %s, %s, s[4:7], %s offen offset:%d%s" % (o, r.vH, "s23" if rt else "0", m * 1024, SC()), "out")
        e.flush()


def p_addr(a, r, t, red_base, xres, stout, from_x=False):
    for i in range(1, 4):
        a("s_add_u32 s17, %s, %d" % (sWAVE, i))
        a("s_and_b32 s17, s17, 3")
        a("s_mul_i32 s17, s17, 15360")
        a("s_add_u32 s17, s17, %d" % (red_base + (i - 1) * 5120))
        a("v_add_u32 %s, s17, v2" % r.vW[i - 1])
    a("s_mul_i32 s17, %s, 15360" % sWAVE)
    a("s_add_u32 s17, s17, %d" % red_base)
    a("v_add_u32 %s, s17, v2" % r.vRd)
    a("s_lshl_b32 s16, %s, 2" % sRB64)
    a("s_add_u32 s16, s16, %s" % sWAVE)
    a("s_and_b32 s19, %s, 1" % sCG)
    a("s_mul_i32 s29, %s, 5" % sCG)
    a("s_add_u32 s30, s29, s19")
    a("s_xor_b32 s19, s19, 1")
    a("s_lshl_b32 s19, s19, 2")
    a("s_add_u32 s29, s29, s19")
    a("s_mul_i32 s17, s16, 20480")
    a("s_add_u32 s17, s17, %s" % sLAY)
    a("s_add_u32 s17, s17, %d" % xres)
    a("s_lshl_b32 s19, s30, 9")
    a("s_add_u32 s19, s19, s17")
    a("v_add_u32 %s, s19, v2" % r.vRes[0])
    a("v_lshrrev_b32 %s, 1, %s" % (t, vG))
    a("v_lshlrev_b32 %s, 8, %s" % (t, t))
    a("v_lshl_add_u32 %s, %s, 4, %s" % (t, vN, t))
    a("s_lshl_b32 s19, s29, 9")
    a("s_add_u32 s19, s19, s17")
    a("v_add_u32 %s, s19, %s" % (r.vRes[2], t))
    a("v_add_u32 %s, s17, %s" % (r.vRes[1], t))
    a("v_and_b32 %s, 1, %s" % (t, vG))
    a("v_lshl_add_u32 %s, %s, 3, %s" % (r.vRes[1], t, r.vRes[1]))
    a("v_lshl_add_u32 %s, %s, 30, %s" % (r.vRes[2], t, r.vRes[2]))
    a("s_mov_b32 s32, s4\ns_mov_b32 s33, s5\ns_mov_b32 s34, s6\ns_mov_b32 s35, 0x20000\ns_mov_b32 s31, 512")
    if from_x:
        a("v_mul_u32_u24 %s, 1280, %s" % (t, vN))
        a("v_lshl_add_u32 %s, %s, 3, %s" % (t, vG, t))
        a("s_mul_i32 s19, s16, 20480")
        a("v_add_u32 %s, s19, %s" % (t, t))
        one = ["s_cmp_eq_u32 %s, 0" % sLAY, "s_cselect_b32 s32, s84, s32", "s_cselect_b32 s33, s85, s33",
               "s_cselect_b32 s34, %d, s34" % (S * D * 2), "s_cselect_b32 s31, 32, s31", "s_cselect_b64 vcc, -1, 0"]
        a.lines.append("\n".join(one))
        a("v_cndmask_b32 %s, %s, %s, vcc" % (r.vRes[1], r.vRes[1], t))
    a("s_mul_i32 s38, s30, s31")
    a("s_mul_i32 s39, s29, s31")
    a("s_lshl_b32 s17, s16, 10")
    a("s_add_u32 s17, s17, %s" % sLAY)
    a("s_add_u32 s17, s17, %d" % stout)
    a("s_lshl_b32 s19, %s, 7" % sCG)
    a("s_add_u32 s17, s17, s19")
    a("v_lshl_add_u32 %s, %s, 3, s17" % (r.vSt, vN))
    a("v_mov_b32 %s, 0x%x" % (t, OOB))
    a("v_cmp_gt_u32 vcc, 16, v1")
    a("v_cndmask_b32 %s, %s, %s, vcc" % (r.vSt, t, r.vSt))


def p_res_loads(a, res, vRes):
    for j in range(4):
        a.vmem("buffer_load_dwordx2 %s, %s, s[32:35], s38 offen%s" % (res[2 * j:2 * j + 2], vRes[1], SC()), "res")
        if j < 3:
            a("s_add_u32 s38, s38, s31")
    a.vmem("buffer_load_dwordx2 %s, %s, s[32:35], s39 offen%s" % (res[8:10], vRes[1], SC()), "res")


def p_write(a, acc, i, vW):
    for j in range(5):
        a.ds("ds_write_b128 %s, %s offset:%d" % (vW[i - 1], acc[i][j], j * 1024), "rw")


def p_epilogue(a, r, acc, res, part, tmp, xdelta, pre, final):
    stamp(a, 3)
    a.wait_all(vm=False)
    a("s_barrier")
    stamp(a, 4)
    for m in range(15):
        a.ds("ds_read_b128 %s, %s offset:%d" % (part.q(m), r.vRd, m * 1024), ("p", m))
    a("s_mov_b32 s28, %d" % xdelta)
    a.wait_vm("res")
    y = acc[0]
    for j in range(5):
        for h in range(2):
            d = res[2 * j + h]
            a("v_lshlrev_b32 %s, 16, %s" % (tmp[2 * h], d))
            a("v_and_b32 %s, 0xffff0000, %s" % (tmp[2 * h + 1], d))
        for h in H2:
            a(pk("add", y[j][h], y[j][h], tmp[h]))
    for i in range(3):
        for j in range(5):
            a.wait_lg(("p", 5 * i + j))
            for h in H2:
                a(pk("add", y[j][h], y[j][h], part.q(5 * i + j)[h]))
    o = res
    for j in range(5):
        a("v_cvt_pk_bf16_f32 %s, %s, %s" % (o[2 * j], y[j][0], y[j][1]))
        a("v_cvt_pk_bf16_f32 %s, %s, %s" % (o[2 * j + 1], y[j][2], y[j][3]))
    if final:
        a("s_cmp_lg_u32 %s, 0" % sLAY)
        a("s_cbranch_scc1 L_final")
    for b in (0, 4):
        for d in range(2):
            a("v_permlane32_swap_b32 %s, %s" % (o[b + d], o[b + 2 + d]))
    for b in (0, 4):
        for d in range(2):
            a("v_permlane16_swap_b32 %s, %s" % (o[b + d], o[b + 2 + d]))
    a.vmem("buffer_store_dwordx4 %s, %s, s[4:7], s28 offen%s" % (o[0:4], r.vRes[0], SC()), "out")
    a.vmem("buffer_store_dwordx4 %s, %s, s[4:7], s28 offen offset:1024%s" % (o[4:8], r.vRes[0], SC()), "out")
    a("v_mov_b32 %s, %s" % (tmp[4], o[8]))
    a("v_mov_b32 %s, %s" % (tmp[5], o[9]))
    a("v_mov_b32 %s, %s" % (tmp[6], o[8]))
    a("v_mov_b32 %s, %s" % (tmp[7], o[9]))
    a("v_permlane16_swap_b32 %s, %s" % (tmp[4], tmp[6]))
    a("v_permlane16_swap_b32 %s, %s" % (tmp[5], tmp[7]))
    a.vmem("buffer_store_dwordx4 %s, %s, s[4:7], s28 offen%s" % (tmp[4:8], r.vRes[2], SC()), "out")
    sq = tmp[2:4]
    a("s_mov_b32 s24, 0x3f803f80")
    for q in range(4):
        a("v_mov_b32 %s, 0" % tmp[q])
    for k in range(10):
        a("v_dot2c_f32_bf16 %s, s24, %s" % (tmp[2 * (k % 2)], o[k]))
        a("v_dot2c_f32_bf16 %s, %s, %s" % (tmp[1 + 2 * (k % 2)], o[k], o[k]))
    a(pk("add", sq, sq, tmp[0:2]))
    xsum4(a, sq[0], tmp[0])
    xsum4(a, sq[1], tmp[0])
    a.vmem("buffer_store_dwordx2 %s, %s, s[4:7], 0 offen%s" % (sq, r.vSt, SC()), "out")
    for f in pre:
        f()


def final_store(a, o, tmp):
    a("L_final:")
    a("s_load_dwordx2 s[32:33], s[0:1], 56")
    a("s_mov_b32 s34, %d" % (S * D * 2))
    a("s_mov_b32 s35, 0x20000")
    a("s_mul_i32 s17, s16, 20480")
    a("v_mul_u32_u24 %s, 1280, %s" % (tmp[0], vN))
    a("v_lshl_add_u32 %s, %s, 3, %s" % (tmp[0], vG, tmp[0]))
    a("v_add_u32 %s, s17, %s" % (tmp[0], tmp[0]))
    a("s_lshl_b32 s30, s30, 5")
    a("s_lshl_b32 s29, s29, 5")
    a("s_waitcnt lgkmcnt(0)")
    for j in range(4):
        a("buffer_store_dwordx2 %s, %s, s[32:35], s30 offen offset:%d" % (o[2 * j:2 * j + 2], tmp[0], j * 32))
    a("buffer_store_dwordx2 %s, %s, s[32:35], s29 offen" % (o[8:10], tmp[0]))
    if PROF:
        stamp(a, 5)
        a("s_waitcnt vmcnt(0)")
        stamp(a, 6)
        stamp(a, 7)
        stamp(a, 8)
        stamp_dump(a)


P4_RED = 98304
class P4:
    def __init__(self, a):
        self.a = a
        self.W = Reg("a", 0, 240)

    def pre_setup(self):
        return ["s_mul_i32 s17, %s, %d" % (sCG, 48 * 5120),
                "s_mul_i32 s19, %s, %d" % (sWAVE, 12 * 5120),
                "s_add_u32 s17, s17, s19",
                "s_add_u32 s17, s17, %d" % W4,
                "v_add_u32 %s, s17, v2" % vPRE[2],
                "v_add_u32 %s, 4096, %s" % (vPRE[3], vPRE[2]),
                "s_mul_i32 s47, %s, 5120" % sROT12]

    def wload(self, k):
        a = self.a
        def f():
            j = k % 5
            a.vmem("buffer_load_dwordx4 %s, %s, s[4:7], s47 offen offset:%d" % (self.W.q(k), vPRE[2] if j < 4 else vPRE[3], (j % 4) * 1024), ("w", k))
            if j == 4:
                wrap_add(a, "s47", 5120, 61440)
        return f

    def pre_loads(self):
        return [self.wload(k) for k in range(CFG["NW4L"] + CFG["NW4E"])]

    def drain_loads(self):
        n = CFG["NW4L"] + CFG["NW4E"]
        return [self.wload(k) for k in range(n, n + CFG["NW4D"])]

    def wait_loads(self):
        n = CFG["NW4L"] + CFG["NW4E"] + CFG["NW4D"]
        return [self.wload(k) for k in range(n, n + CFG["NW4W"])]

    def before_wait(self):
        r, a = self, self.a
        V = Alloc("v", VBASE, 240)
        r.vA = V.get(4)
        r.vW = V.get(3); r.vRd = V.get(1); r.vRes = V.get(3, 1); r.vSt = V.get(1)
        r.tmp = V.get(8)
        r.res = V.get(12)
        r.acc = [[V.get(4) for j in range(5)] for i in range(4)]
        r.ring = V.get(80)
        r.part = r.ring[0:60]
        for i in range(4):
            a("s_add_u32 s17, %s, %d" % (sWAVE, i))
            a("s_and_b32 s17, s17, 3")
            a("s_lshl_b32 s16, %s, 2" % sRB64)
            a("s_add_u32 s17, s17, s16")
            a("s_mul_i32 s17, s17, 49152")
            a("s_mul_i32 s16, %s, 12288" % sWAVE)
            a("s_add_u32 s17, s17, s16")
            a("s_add_u32 s17, s17, %s" % sLAY)
            a("s_add_u32 s17, s17, %d" % H)
            a("v_add_u32 %s, s17, v2" % r.vA[i])
        p_addr(a, r, r.tmp[0], P4_RED, XB, STA + LSTR)
        a("s_lshl_b32 s20, %s, 10" % sROT12)
        p_res_loads(a, r.res, r.vRes)

    def body(self, nxt):
        r, a = self, self.a
        acc = r.acc
        NK, RA = 12, 5
        npre = CFG["NW4L"] + CFG["NW4E"] + CFG["NW4D"] + CFG["NW4W"]
        aq = []
        for ks in range(NK):
            for i in range(4):
                def f(ks=ks, i=i):
                    a.vmem("buffer_load_dwordx4 %s, %s, s[4:7], s20 offen%s" % (r.ring.q((ks % RA) * 4 + i), r.vA[i], SC()), ("x", ks, i))
                    if i == 3:
                        wrap_add(a, "s20", 1024, 12288)
                aq.append((ks, f))
        wq = [(k // 5, self.wload(k)) for k in range(npre, 60)]
        for _ in range(14):
            aq.pop(0)[1]()
        stamp(a, 1)
        setup = list(nxt.pre_setup())
        cnt = 0
        for ks in range(NK):
            order = [0, 1, 2, 3] if ks < NK - 1 else [1, 2, 3, 0]
            while wq and wq[0][0] <= ks:
                wq.pop(0)[1]()
            for oi, i in enumerate(order):
                while aq and aq[0][0] <= ks:
                    aq.pop(0)[1]()
                a.wait_vm([("w", k) for k in range(5 * ks, 5 * ks + 5)] + [("x", ks, i)])
                if ks == 0 and oi == 0:
                    stamp(a, 2)
                for j in range(5):
                    c = "0" if ks == 0 else str(acc[i][j])
                    a("%s %s, %s, %s, %s" % (MF, acc[i][j], self.W.q(5 * ks + j), r.ring.q((ks % RA) * 4 + i), c))
                    cnt += 1
                    if cnt % CFG["SP4"] == 0:
                        ca = aq and aq[0][0] - RA < ks
                        if ca and (not wq or aq[0][0] <= wq[0][0] - 1):
                            aq.pop(0)[1]()
                        elif wq:
                            wq.pop(0)[1]()
                        elif ca:
                            aq.pop(0)[1]()
                    elif cnt % CFG["SP4"] == 1 and setup and ks >= 2:
                        a(setup.pop(0))
                if ks == NK - 1 and oi >= 1:
                    p_write(a, acc, order[oi - 1], r.vW)
        assert not aq and not wq and not setup
        pl = nxt.pre_loads(CFG["NPRE1"])
        assert len(pl) - CFG["NP1W"] <= 24
        self.rest = pl[len(pl) - CFG["NP1W"]:]
        self.drain = pl[:len(pl) - CFG["NP1W"]]
        p_epilogue(a, r, acc, r.res, r.part, r.tmp, XA + LSTR - XB, [], True)


K2_BAND = {0: [0], 1: [0, 4], 2: [0, 1, 4], 3: [1, 4], 4: [1, 4], 5: [2], 6: [2, 4], 7: [2, 3, 4], 8: [3, 4], 9: [3, 4]}
K2_ZG = [[0, 1, 4], [2, 3, 4]]
K2_WB = 23552
K2_KV0 = 96
K2_Z0 = 96 + 160 * 136 + 144
P2_RED = 102400
class P2:
    def __init__(self, a):
        self.a = a
        self.Wf = Reg("a", 0, 100)

    def pre_setup(self):
        return ["s_mul_i32 s17, %s, %d" % (sCG, 20 * 5120),
                "s_mul_i32 s19, %s, %d" % (sWAVE, 5 * 5120),
                "s_add_u32 s17, s17, s19",
                "s_add_u32 s17, s17, %d" % W2,
                "v_add_u32 %s, s17, v2" % vPRE[2],
                "s_mov_b32 s47, 0"]

    def pre_loads(self):
        a = self.a
        out = []
        for k in range(25):
            def f(k=k):
                a.vmem("buffer_load_dwordx4 %s, %s, s[4:7], s47 offen offset:%d" % (self.Wf.q(k), vPRE[2], (k % 4) * 1024), "wo")
                if k % 4 == 3:
                    a("s_add_u32 s47, s47, 4096")
            out.append(f)
        return out

    def before_wait(self):
        r, a = self, self.a
        V = Alloc("v", VBASE, 256)
        r.vW = V.get(3); r.vRd = V.get(1); r.vRes = V.get(3, 1); r.vSt = V.get(1)
        r.eps = V.get(4)
        r.tmp = V.get(8)
        r.num = [V.get(40), V.get(40)]
        r.den = [V.get(8), V.get(8), V.get(8)]
        r.dsel = V.get(8)
        r.accB = V.get(28)
        V.get(4)
        r.of = V.get(80)
        r.P = Reg("a", 100, 80); r.KVf = Reg("a", 180, 76)
        pr = r.num[1]
        r.vP = pr[0:4]; r.vKg = pr[6]; r.vKl = pr[7]; r.vZg = pr[8]; r.vZl = pr[9]
        r.bt = pr[10:20]; r.zb = pr[20:24]; r.bt4 = r.num[0][0:10]; r.vGo = pr[4]; r.vP1 = pr[5]
        t = r.den[1]
        tmp = r.tmp
        n_, g_ = vN, vG
        b = Asm()
        b("s_mul_i32 s18, %s, %d" % (sWAVE, K2_WB))
        for q in range(4):
            b("v_mov_b32 %s, 0" % tmp[q])
        b("v_add_u32 %s, s18, v2" % tmp[4])
        r.zf = [(lambda k=k: a.ds("ds_write_b128 %s, %s offset:%d" % (tmp[4], tmp[0:4], k * 1024), "z")) for k in range(K2_WB // 1024)]
        b("s_lshl_b32 s17, %s, 7" % sRB)
        b("s_add_u32 s17, s17, %d" % CNT_G)
        b("v_mov_b32 %s, s17" % r.vGo)
        b.lines.append("s_cmp_eq_u32 %s, %d\ns_cselect_b32 s17, 0, 0x%x" % (sWAVE, CFG["PW"], OOB))
        b("v_or_b32 %s, s17, %s" % (r.vP1, vPL))
        b("v_and_b32 %s, 0x%x, %s" % (t[2], OOB, r.vP1))
        b("v_or_b32 %s, %s, %s" % (r.vGo, t[2], r.vGo))
        b("s_mul_i32 s17, %s, 13440" % sWAVE)
        b("s_add_u32 s17, s17, %s" % sLAY)
        b("s_add_u32 s17, s17, %d" % KV)
        b("v_add_u32 %s, s17, v2" % r.vKg)
        b("v_mov_b32 %s, 0x%x" % (t[2], OOB))
        b("v_cmp_gt_u32 s[56:57], 50, v1")
        b("v_mul_u32_u24 %s, 52, v1" % t[0])
        b("v_lshrrev_b32 %s, 8, %s" % (t[0], t[0]))
        b("v_cndmask_b32 %s, %s, %s, s[56:57]" % (r.vKg, t[2], r.vKg))
        b("v_lshrrev_b32 %s, 1, %s" % (t[3], t[0]))
        b("v_mul_u32_u24 %s, 3200, %s" % (t[3], t[3]))
        b("v_add3_u32 %s, v2, %s, s17" % (t[3], t[3]))
        b("v_cmp_gt_u32 s[36:37], 40, v1")
        b("v_add_u32 %s, 3200, %s" % (t[3], t[3]))
        b("v_cndmask_b32 %s, %s, %s, s[36:37]" % (r.vZg, t[2], t[3]))
        r.early = b.lines
        late = Asm()
        b = late
        for i in range(4):
            b("s_add_u32 s17, %s, %d" % (sWAVE, i + 1))
            b("s_and_b32 s17, s17, 3")
            b("s_lshl_b32 s16, %s, 2" % sRB64)
            b("s_add_u32 s17, s17, s16")
            b("s_mul_i32 s17, s17, 20480")
            b("s_mul_i32 s16, %s, 5120" % sWAVE)
            b("s_add_u32 s17, s17, s16")
            b("s_add_u32 s17, s17, %s" % sLAY)
            b("s_add_u32 s17, s17, %d" % PQ)
            b("v_add_u32 %s, s17, v2" % r.vP[i])
        b("s_mov_b32 s20, 4096")
        b("v_mul_u32_u24 %s, 5, %s" % (t[1], t[0]))
        b("v_sub_u32 %s, v1, %s" % (t[1], t[1]))
        b("v_mul_u32_u24 %s, 136, %s" % (r.vKl, t[0]))
        b("v_lshl_add_u32 %s, %s, 3, %s" % (r.vKl, t[1], r.vKl))
        b("v_add_u32 %s, s18, %s" % (r.vKl, r.vKl))
        b("v_mul_u32_u24 %s, 176, %s" % (r.vZl, t[0]))
        b("v_lshl_add_u32 %s, %s, 3, %s" % (r.vZl, t[1], r.vZl))
        b("v_cndmask_b32 %s, 48, %s, s[36:37]" % (r.vZl, r.vZl))
        b("v_add_u32 %s, s18, %s" % (r.vZl, r.vZl))
        b("s_add_u32 s19, s18, %d" % K2_KV0)
        b("s_add_u32 s16, s18, %d" % K2_Z0)
        b("v_lshl_add_u32 %s, %s, 1, 1" % (t[4], g_))
        for tt in range(10):
            b("v_add_u32 %s, %d, %s" % (t[0], 16 * tt, n_))
            b("v_mul_u32_u24 %s, 205, %s" % (t[1], t[0]))
            b("v_lshrrev_b32 %s, 12, %s" % (t[1], t[1]))
            b("v_mul_u32_u24 %s, 136, %s" % (t[0], t[0]))
            b("v_add_u32 %s, s19, %s" % (t[0], t[0]))
            if 4 in K2_BAND[tt]:
                b("v_cmp_eq_u32 vcc, %s, %s" % (t[1], t[4]))
                b("v_cndmask_b32 %s, 48, 24, vcc" % t[2])
                b("v_add_u32 %s, %s, %s" % (r.bt4[tt], t[0], t[2]))
            b("v_mul_u32_u24 %s, 40, %s" % (t[1], t[1]))
            b("v_sub_u32 %s, %s, %s" % (t[0], t[0], t[1]))
            b("v_lshl_add_u32 %s, %s, 3, %s" % (r.bt[tt], g_, t[0]))
        for gi in range(2):
            b("v_and_b32 %s, 3, v1" % t[0])
            b("v_add_u32 %s, %d, %s" % (t[0], 4 * gi, t[0]))
            b("v_cmp_eq_u32 vcc, %s, %s" % (t[0], t[4]))
            b("v_mul_u32_u24 %s, 176, %s" % (t[1], t[0]))
            b("v_cndmask_b32 %s, 48, 24, vcc" % t[2])
            b("v_add3_u32 %s, %s, %s, s16" % (r.zb[2 + gi], t[1], t[2]))
            b("v_mul_u32_u24 %s, 136, %s" % (t[0], t[0]))
            b("v_lshl_add_u32 %s, %s, 3, %s" % (t[0], g_, t[0]))
            b("v_add_u32 %s, s16, %s" % (r.zb[gi], t[0]))
        for q in range(3):
            b("v_cmp_lt_u32 s[%d:%d], %d, %s" % (50 + 2 * q, 51 + 2 * q, q, g_))
        for q in range(4):
            b("v_mov_b32 %s, %s" % (r.eps[q], f32(1e-6)))
        p_addr(b, r, tmp[5], P2_RED, XA, STB)
        r.late = late.lines

    def go_load(self):
        self.a("v_mov_b32 v252, 0")
        self.a.vmem("buffer_atomic_add v252, %s, s[4:7], 0 offen sc0" % self.vGo, "go")

    def kv_stage(self):
        r, a = self, self.a
        stg = r.of
        l, d = label("gp"), label("gd")
        a("s_add_u32 s49, s49, 16")
        a("s_cmp_lg_u32 %s, %d" % (sWAVE, CFG["PW"]))
        a("s_cbranch_scc1 %s" % d)
        a("s_mov_b32 s42, %d" % CFG["TMO"])
        save = list(a.vm)
        a.wait_vm("go")
        a.vm = save
        a("%s:" % l)
        a("v_readfirstlane_b32 s43, v252")
        a("s_cmp_ge_u32 s43, s49")
        a("s_cbranch_scc1 %s" % d)
        a("v_mov_b32 v252, 0")
        a("buffer_atomic_add v252, %s, s[4:7], 0 offen sc0" % r.vGo)
        a("s_sub_u32 s42, s42, 1")
        a("s_waitcnt vmcnt(0)")
        a("s_cbranch_scc0 %s" % l)
        a("%s:" % d)
        a("s_barrier")
        stamp(a, 5)
        late = list(r.late)
        for k in range(17):
            p, q = divmod(k, 4)
            if k < 16:
                if p and q == 0:
                    a("s_mov_b32 s21, %d" % (3360 * p))
                a.vmem("buffer_load_dwordx4 %s, %s, s[4:7], %s offen offset:%d%s" % (stg.q(k), r.vKg, "s21" if p else "0", q * 800, SC()), ("kv", k))
            else:
                a.vmem("buffer_load_dwordx4 %s, %s, s[4:7], 0 offen%s" % (stg.q(16), r.vZg, SC()), ("kv", 16))
            for _ in range(len(r.late) // 16 + 1):
                if late:
                    a(late.pop(0))
            if k == CFG["KARR"]:
                arrive(a)
            if k == CFG["KPOLL"]:
                a("v_mov_b32 v255, 0")
                a.vmem("buffer_atomic_add v255, %s, s[4:7], 0 offen sc0" % r.vP1, "poll")
        assert not late
        d = label("pdone")
        a("s_cmp_lg_u32 %s, %d" % (sWAVE, CFG["PW"]))
        a("s_cbranch_scc1 %s" % d)
        save = list(a.vm)
        a.wait_vm("poll")
        a.vm = save
        a("v_readfirstlane_b32 s43, v255")
        a("s_cmp_ge_u32 s43, %s" % sTGT)
        a("s_cbranch_scc1 %s" % d)
        for k in range(CFG["NPOLL"] - 1):
            poll_issue(a, k)
        poll_loop(a, d, 0)
        a("%s:" % d)
        phase_open(a, 144)

    def stage(self):
        r, a = self, self.a
        stg = r.of
        for k in range(17):
            a.wait_vm(("kv", k))
            s4 = stg.q(k)
            a("v_cvt_pk_bf16_f32 %s, %s, %s" % (s4[0], s4[0], s4[1]))
            a("v_cvt_pk_bf16_f32 %s, %s, %s" % (s4[1], s4[2], s4[3]))
            if k < 16:
                a.ds("ds_write_b64 %s, %s offset:%d" % (r.vKl, s4[0:2], K2_KV0 + k * 1360), "s")
            else:
                a.ds("ds_write_b64 %s, %s offset:%d" % (r.vZl, s4[0:2], K2_Z0), "s")
            if k % 2 == 1 and r.later:
                r.later.pop(0)()
        r.kvi, r.zi = {}, {}
        cnt = 0
        for gi, kbs in enumerate(K2_ZG):
            for kb in kbs:
                r.zi[(gi, kb)] = r.accB.q(cnt); cnt += 1
        cnt = 0
        for tt in range(10):
            for kb in K2_BAND[tt]:
                r.kvi[(tt, kb)] = r.KVf.q(cnt) if cnt < 19 else r.accB.q(6); cnt += 1
        rds = []
        for gi, kbs in enumerate(K2_ZG):
            for kb in kbs:
                rds.append((r.zi[(gi, kb)],) + ((r.zb[gi], 10 * kb, 10 * kb + 4) if kb < 4 else (r.zb[2 + gi], 0, 1)))
        for tt in range(10):
            for kb in K2_BAND[tt]:
                rds.append((r.kvi[(tt, kb)],) + ((r.bt[tt], 10 * kb, 10 * kb + 4) if kb < 4 else (r.bt4[tt], 0, 1)))
        for n, x in enumerate(rds):
            if CFG["RD2"]:
                a.ds("ds_read2_b64 %s, %s offset0:%d offset1:%d" % x, ("k", n))
            else:
                a.ds("ds_read_b64 %s, %s offset:%d" % (x[0][0:2], x[1], 8 * x[2]), ("k", n))
                a.ds("ds_read_b64 %s, %s offset:%d" % (x[0][2:4], x[1], 8 * x[3]), ("k", n))

    def body(self, nxt):
        r, a = self, self.a
        num, den, of, accB, P, KVf, Wf, tmp = r.num, r.den, r.of, r.accB, r.P, r.KVf, self.Wf, r.tmp
        acc = [[accB.q(j) for j in range(5)]] + [[P.q(5 * i + j) for j in range(5)] for i in range(3)]
        later = []
        for i in range(4):
            for kb in range(5):
                later.append(lambda i=i, kb=kb: a.vmem("buffer_load_dwordx4 %s, %s, s[4:7], %s offen offset:%d%s" % (P.q(5 * i + kb), r.vP[i], "s20" if kb == 4 else "0", (kb % 4) * 1024, SC()), ("p", i)))
        for _ in range(7):
            later.pop(0)()
        stamp(a, 1)
        r.later = later
        self.stage()
        kvi, zi = r.kvi, r.zi

        def A_blk(i):
            out = []
            nb, db = num[i % 2], den[i % 3]
            for gi, kbs in enumerate(K2_ZG):
                for x, kb in enumerate(kbs):
                    out.append(("%s %s, %s, %s, %s" % (MF, db.q(gi), zi[(gi, kb)], P.q(5 * i + kb), r.eps if x == 0 else db.q(gi)), None))
            for tt in range(10):
                for x, kb in enumerate(K2_BAND[tt]):
                    out.append(("%s %s, %s, %s, %s" % (MF, nb.q(tt), kvi[(tt, kb)], P.q(5 * i + kb), "0" if x == 0 else nb.q(tt)), tt if x == 0 else None))
            return out

        def V_blk(i):
            out = []
            nb, db = num[i % 2], den[i % 3]
            for q in range(8):
                out.append((i, -1, "v_rcp_f32 %s, %s" % (db[q], db[q])))
            ns = 0
            for tt in range(10):
                hs = [(16 * tt + 4 * g) // 20 for g in range(4)]
                d = db[hs[0]]
                if hs[3] != hs[0]:
                    cut = hs.index(hs[3]) - 1
                    d = r.dsel[ns]; ns += 1
                    out.append((i, tt, "v_cndmask_b32 %s, %s, %s, s[%d:%d]" % (d, db[hs[0]], db[hs[3]], 50 + 2 * cut, 51 + 2 * cut)))
                for q in range(4):
                    out.append((i, tt, "v_mul_f32 %s, %s, %s" % (nb.q(tt)[q], nb.q(tt)[q], d)))
                o = of.q(5 * i + tt // 2)
                out.append((i, tt, "v_cvt_pk_bf16_f32 %s, %s, %s" % (o[2 * (tt % 2)], nb.q(tt)[0], nb.q(tt)[1])))
                out.append((i, tt, "v_cvt_pk_bf16_f32 %s, %s, %s" % (o[2 * (tt % 2) + 1], nb.q(tt)[2], nb.q(tt)[3])))
            return out

        vq = []
        st = dict(n=0)
        def need_v(i, tt):
            while vq and (vq[0][0], vq[0][1]) <= (i, tt):
                a(vq.pop(0)[2])
        def host(text):
            a(text)
            st["n"] += 1
            if st["n"] % CFG["SP2"] == 1 and later:
                later.pop(0)()
                k = 1
            else:
                k = 2
            for _ in range(k):
                if vq:
                    x = vq.pop(0)[2]
                    a(x)
                    if x.startswith("v_rcp"):
                        break

        a.wait_vm(("p", 0))
        stamp(a, 2)
        vq += [(-1, 0, x) for x in nxt.pre_setup()]
        for x, (t_, tt) in enumerate(A_blk(0)):
            a.wait_lg(("k", x))
            a(t_)
            if x % 4 == 1 and later:
                later.pop(0)()
            elif vq:
                a(vq.pop(0)[2])
        assert not later and not vq
        a("s_barrier")
        later += r.wo_rest + nxt.pre_loads()
        for i in range(1, 4):
            vq += V_blk(i - 1)
            a.wait_vm(("p", i))
            for t_, tt in A_blk(i):
                if tt is not None:
                    need_v(i - 2, tt)
                host(t_)
        vq += V_blk(3)
        a.wait_vm("wo")
        res = num[0][0:12]
        part = of[0:60]
        for i in range(4):
            ac = acc[(i + 1) % 4]
            for kb in range(5):
                need_v(i, 2 * kb + 1)
                for j in range(5):
                    host("%s %s, %s, %s, %s" % (MF, ac[j], Wf.q(5 * kb + j), of.q(5 * i + kb), "0" if kb == 0 else ac[j]))
                    if i >= 1 and j == 2:
                        a.ds("ds_write_b128 %s, %s offset:%d" % (r.vW[i - 1], acc[i][kb], kb * 1024), "rw")
                if kb == 0 and i == 3:
                    p_res_loads(a, res, r.vRes)
        assert not vq
        p_epilogue(a, r, acc, res, part, tmp, XB - XA, later, False)


def main_body():
    a = Asm()
    a("s_cmp_ge_u32 s2, 256")
    a("s_cbranch_scc1 L_end")
    a("s_load_dwordx2 s[4:5], s[0:1], 72")
    a("s_load_dwordx4 s[84:87], s[0:1], 0")
    a("s_load_dwordx2 s[88:89], s[0:1], 16")
    a("s_load_dwordx2 s[90:91], s[0:1], 32")
    a("s_load_dwordx2 s[92:93], s[0:1], 40")
    a("s_load_dwordx2 s[96:97], s[0:1], 48")
    a("s_load_dwordx2 s[94:95], s[0:1], 64")
    if PROF:
        a("s_mov_b32 %s, 0" % sPH)
        a("s_memrealtime s[80:81]")
    stamp(a, 0)
    a("v_lshrrev_b32 v1, 6, v0")
    a("s_and_b32 s16, s2, 7")
    a("v_readfirstlane_b32 %s, v1" % sWAVE)
    a("s_lshr_b32 s17, s2, 3")
    a("v_and_b32 v1, 63, v0")
    a("v_lshlrev_b32 v2, 4, v1")
    a("v_and_b32 %s, 15, v1" % vN)
    a("v_lshrrev_b32 %s, 4, v1" % vG)
    a("s_lshr_b32 %s, s16, 1" % sRB)
    a("s_lshl_b32 %s, %s, 2" % (sRB, sRB))
    a("s_and_b32 s18, s17, 3")
    a("s_add_u32 %s, %s, s18" % (sRB, sRB))
    a("s_lshr_b32 s17, s17, 2")
    a("s_and_b32 s16, s16, 1")
    a("s_lshl_b32 %s, s16, 3" % sP)
    a("s_add_u32 %s, %s, s17" % (sP, sP))
    a("s_lshl_b32 %s, %s, 1" % (sRB64, sRB))
    a("s_and_b32 s18, s17, 1")
    a("s_add_u32 %s, %s, s18" % (sRB64, sRB64))
    a("s_lshl_b32 %s, s16, 2" % sCG)
    a("s_lshr_b32 s18, s17, 1")
    a("s_add_u32 %s, %s, s18" % (sCG, sCG))
    a("s_and_b32 s18, %s, %d" % (sRB, 3 if CFG["ROT"] else 0))
    a("s_mul_i32 %s, s18, 3" % sROT12)
    a("s_mul_i32 %s, s18, 5" % sROT10)
    a("s_lshr_b32 %s, %s, 1" % (sROT10, sROT10))
    a("s_mov_b32 s6, %d" % WS_USED)
    a("s_mov_b32 s7, 0x20000")
    a("s_mov_b32 %s, 0" % sLAY)
    a("s_mov_b32 %s, 0" % sTGT)
    a("s_lshl_b32 s17, %s, 11" % sRB)
    a("s_add_u32 s17, s17, %d" % CNT)
    a("v_lshl_add_u32 %s, %s, 7, s17" % (vCNT, vN))
    a("v_mov_b32 v255, 0x%x" % OOB)
    a("v_cmp_gt_u32 vcc, 16, v1")
    a("s_lshl_b32 s18, %s, 7" % sP)
    a("s_add_u32 s17, s17, s18")
    a("v_cndmask_b32 %s, v255, %s, vcc" % (vCNT, vCNT))
    a("v_mov_b32 %s, s17" % vPL)
    a("v_cmp_eq_u32 vcc, 0, v1")
    a("v_cndmask_b32 %s, v255, %s, vcc" % (vPL, vPL))
    p1, p2, p3, p4 = P1(a), P2(a), P3(a), P4(a)
    p0_phase(a, p1)
    for f in p1.pre_loads(CFG["NPRE1A"]):
        f()
    a.vm = []
    p1.body(p2, CFG["NPRE1A"], True)
    tail_state = a.vm[a.vm.index("go"):]
    a("L_mid:")
    p2.kv_stage()
    p2.body(p3)
    stamp(a, 5); p3.before_wait(); arrive(a); wait(a, p3.wait_loads())
    p3.body(p4)
    stamp(a, 5); p4.before_wait(); arrive(a, p4.drain_loads()); wait(a, p4.wait_loads())
    p4.body(p1)
    stamp(a, 5)
    a("s_add_u32 %s, %s, %d" % (sLAY, sLAY, LSTR))
    a.weave = Weaver(a, p4.drain, 12)
    p1.before_wait(a.weave); a.weave.flush(); arrive(a); wait(a, p4.rest)
    p1.body(p2, CFG["NPRE1"])
    assert a.vm[a.vm.index("go"):] == tail_state
    a("s_branch L_mid")
    final_store(a, p4.res, p4.tmp)
    a("L_end:")
    a("s_endpgm")
    a("L_code_end:")
    return a, dict(vgpr=512, acc=256, lds=163840)


def p0_phase(a, p1):
    U1, UX, U2, UZ, U3, U4 = 160, 256, 100, 39, 480, 240
    BX = U1; B2 = BX + UX; BZ = B2 + U2; BE = BZ + UZ
    NT = " nt" if CFG["K0NT"] & 1 else ""
    n_, g_ = "v3", "v4"
    DST = [82, 83, 86, 87, 88, 89, 98, 99]

    def nat_flag(kb):
        a("s_mul_i32 s29, %s, 52" % kb)
        a("s_lshr_b32 s29, s29, 8")
        a("s_mul_i32 s29, s29, 5")
        a("s_sub_u32 s29, %s, s29" % kb)
        a("s_cmp_eq_u32 s29, 2")

    def colsum(j, frag):
        a("%s v[%d:%d], v[56:59], %s, 0" % (MF, 64 + 4 * (j % 4), 67 + 4 * (j % 4), frag))

    def colsum_keep(j):
        a("v_cndmask_b32 v%d, v%d, v%d, s[%d:%d]" % (60 + j // 4, 60 + j // 4, 64 + 4 * (j % 4), 50 + 2 * (j % 4), 51 + 2 * (j % 4)))

    def issue128(srd, rs, kb, ch, lds, v):
        a("v_mul_lo_u32 %s, %s, %s" % (v, g_, rs))
        a("v_lshl_add_u32 %s, %s, 4, %s" % (v, n_, v))
        a("s_mul_i32 s17, %s, %s" % (kb, rs))
        a("s_lshl_b32 s17, s17, 5")
        a("s_lshl_b32 s19, %s, 8" % ch)
        a("s_add_u32 s17, s17, s19")
        a("s_lshl_b32 s19, %s, 2" % rs)
        for i in range(8):
            a("s_add_u32 m0, %s, %d" % (lds, i * 1024))
            a("s_nop 0")
            a("buffer_load_dwordx4 %s, %s, s17 offen%s lds" % (v, srd, NT))
            a("s_add_u32 s17, s17, s19")

    def rdaddr128(lds):
        a("v_lshrrev_b32 v230, 2, %s" % n_)
        a("v_lshl_add_u32 v230, %s, s29, v230" % g_)
        a("v_lshlrev_b32 v230, 8, v230")
        a("v_and_b32 v231, 3, %s" % n_)
        a("v_lshl_add_u32 v230, v231, 3, v230")
        a("v_add_u32 v230, %s, v230" % lds)
        a("v_add_u32 v231, s30, v230")

    def dst640(kb, ch, nkb, base):
        for i in range(8):
            a("s_lshl_b32 s17, %s, 3" % ch)
            a("s_add_u32 s17, s17, %d" % i)
            a("s_mul_i32 s19, s17, 52")
            a("s_lshr_b32 s19, s19, 8")
            a("s_mul_i32 s28, s19, 5")
            a("s_sub_u32 s17, s17, s28")
            a("s_and_b32 s28, s19, 1")
            a("s_sub_u32 s17, s17, s28")
            a("s_cselect_b32 s17, 4, s17")
            a("s_mul_i32 s19, s19, %d" % nkb)
            a("s_add_u32 s19, s19, %s" % kb)
            a("s_mul_i32 s19, s19, 5")
            a("s_add_u32 s19, s19, s17")
            a("s_lshl_b32 s19, s19, 10")
            a("s_add_u32 s%d, s19, %d" % (DST[i], base))

    def move128():
        for t in range(8):
            for h in range(2):
                a.ds("ds_read_b64_tr_b16 v[%d:%d], v%d offset:%d" % (96 + 4 * t + 2 * h, 97 + 4 * t + 2 * h, 230 + h, t * 32), ("t", t))
        for t in range(8):
            a.wait_lg(("t", t))
            a("buffer_store_dwordx4 v[%d:%d], v2, s[4:7], s%d offen sc1" % (96 + 4 * t, 99 + 4 * t, DST[t]))

    a("s_lshl_b32 s38, %s, 8" % sWAVE)
    a("s_add_u32 s38, s38, s2")
    a("s_sub_u32 s16, s38, 160")
    a("s_cmp_lt_u32 s2, 160")
    a("s_cselect_b32 s16, s2, s16")
    a("s_cmp_eq_u32 %s, 2" % sWAVE)
    a("s_cselect_b32 s38, s16, s38")
    a("s_add_u32 s39, s2, 256")
    a("s_sub_u32 s16, 767, s2")
    a("s_cmp_eq_u32 %s, 2" % sWAVE)
    a("s_cselect_b32 s39, s16, s39")
    a("s_cmp_eq_u32 %s, 3" % sWAVE)
    a("s_cselect_b32 s39, s2, s39")
    a("s_cmp_eq_u32 %s, 0" % sWAVE)
    a("s_cselect_b32 s39, 0x1000, s39")
    a("s_lshl_b32 s18, %s, 14" % sWAVE)
    a("s_lshl_b32 s37, %s, 13" % sWAVE)
    a("s_add_u32 s37, s37, 0x20000")
    a("s_mov_b32 s23, 0x20000\ns_mov_b32 s35, 0x20000")
    a("s_cmp_lt_u32 s38, %d" % BX)
    a("s_cbranch_scc1 L_i_w1")
    a("s_cmp_lt_u32 s38, %d" % B2)
    a("s_cbranch_scc1 L_i_x")
    a("s_cmp_lt_u32 s38, %d" % BZ)
    a("s_cbranch_scc1 L_i_w2")
    a("s_waitcnt lgkmcnt(0)")
    a("s_cmp_lt_u32 s38, %d" % BE)
    a("s_cbranch_scc0 L_i_b")
    a("s_sub_u32 s16, s38, %d" % BZ)
    a("s_cmp_ge_u32 s16, 14")
    a("s_cselect_b32 s17, %d, 0" % (LSTR - 14 * 4096))
    a("s_cmp_ge_u32 s16, 28")
    a("s_cselect_b32 s17, 0x%x, s17" % ((CS3F - KV - 28 * 4096) & 0xffffffff))
    a("s_cmp_ge_u32 s16, 31")
    a("s_cselect_b32 s17, 0x%x, s17" % ((CNT - KV - 31 * 4096) & 0xffffffff))
    a("s_add_u32 s17, s17, %d" % KV)
    a("s_lshl_b32 s16, s16, 12")
    a("s_add_u32 s17, s17, s16")
    for q in range(4):
        a("v_mov_b32 v%d, 0" % (16 + q))
    for q in range(4):
        a("buffer_store_dwordx4 v[16:19], v2, s[4:7], s17 offen offset:%d sc1" % (q * 1024))
    a("s_branch L_i_b")

    a("L_i_w1:")
    a("s_lshr_b32 s24, s38, 3")
    a("s_and_b32 s25, s38, 7")
    a("v_mul_u32_u24 v12, 205, v1")
    a("v_lshrrev_b32 v12, 11, v12")
    a("v_mul_u32_u24 v13, 10, v12")
    a("v_sub_u32 v13, v1, v13")
    a("v_cmp_le_u32 vcc, 3, v12")
    a("v_cndmask_b32 v14, 0, 1, vcc")
    a("v_mul_u32_u24 v15, 3, v14")
    a("v_sub_u32 v12, v12, v15")
    a("v_add_u32 v12, 1, v12")
    a("v_cmp_eq_u32 vcc, 3, v12")
    a("v_cndmask_b32 v12, v12, 0, vcc")
    a("v_mul_u32_u24 v12, 1280, v12")
    a("v_lshl_add_u32 v12, v13, 4, v12")
    a("v_mul_u32_u24 v14, 3840, v14")
    a("s_mul_i32 s17, s24, %d" % (32 * 3840))
    a("s_mul_i32 s19, s25, 160")
    a("s_add_u32 s17, s17, s19")
    a("s_mul_i32 s19, %s, %d" % (sWAVE, 8 * 3840))
    a("s_add_u32 s17, s17, s19")
    a("s_lshl_b32 s18, %s, 12" % sWAVE)
    a("v_add3_u32 v12, v12, v14, s17")
    a("v_mov_b32 v13, 0x%x" % OOB)
    a("v_cmp_gt_u32 vcc, 60, v1")
    a("v_cndmask_b32 v12, v13, v12, vcc")
    a("s_mov_b32 s22, %d" % (640 * 1920 * 2))
    a("s_waitcnt lgkmcnt(0)")
    a("s_mov_b32 s20, s86\ns_mov_b32 s21, s87")
    for i in range(8):
        a("s_add_u32 m0, s18, %d" % (i * 1024))
        a("s_mov_b32 s19, %d" % (i * 7680))
        a("buffer_load_dwordx4 v12, s[20:23], s19 offen%s lds" % (" nt" if CFG["K0NT"] & 2 else ""))
    a("s_branch L_i_b")

    a("L_i_x:")
    a("s_sub_u32 s16, s38, %d" % BX)
    a("s_lshr_b32 s24, s16, 1")
    a("s_and_b32 s25, s16, 1")
    a("s_mul_i32 s17, s24, 20480")
    a("s_mul_i32 s19, s25, 640")
    a("s_add_u32 s19, s19, s17")
    a("v_mul_u32_u24 v12, 1280, %s" % n_)
    a("v_lshl_add_u32 v13, %s, 4, v12" % g_)
    a("s_mov_b32 s22, %d" % (S * D * 2))
    a("s_waitcnt lgkmcnt(0)")
    a("s_mov_b32 s20, s84\ns_mov_b32 s21, s85")
    for kb in range(10):
        a("buffer_load_dwordx4 v[%d:%d], v13, s[20:23], s19 offen offset:%d%s" % (96 + 4 * kb, 99 + 4 * kb, kb * 64, " nt" if CFG["K0NT"] & 4 else ""))
    a("s_branch L_i_b")

    a("L_i_w2:")
    a("s_sub_u32 s16, s38, %d" % B2)
    a("s_mul_i32 s24, s16, 52429")
    a("s_lshr_b32 s24, s24, 18")
    a("s_mul_i32 s17, s24, 5")
    a("s_sub_u32 s25, s16, s17")
    a("s_mov_b32 s22, %d\ns_mov_b32 s16, 1280" % (640 * 640 * 2))
    a("s_waitcnt lgkmcnt(0)")
    a("s_mov_b32 s20, s88\ns_mov_b32 s21, s89")
    issue128("s[20:23]", "s16", "s24", "s25", "s18", "v12")

    a("L_i_b:")
    a("s_cmp_eq_u32 %s, 3" % sWAVE)
    a("s_cbranch_scc0 L_i_c")
    a("s_cmp_eq_u32 %s, 0" % sP)
    a("s_cbranch_scc0 L_i_c")
    for q in range(4):
        a("v_mov_b32 v%d, 0" % (16 + q))
    a("s_lshl_b32 s17, %s, 7" % sRB)
    a("s_add_u32 s17, s17, %d" % CNT_C)
    a("s_mov_b64 exec, 0xff")
    a("buffer_store_dwordx4 v[16:19], v2, s[4:7], s17 offen sc1")
    a("buffer_store_dwordx4 v[16:19], v2, s[4:7], s17 offen offset:%d sc1" % (CNT_G - CNT_C))
    a("s_mov_b64 exec, -1")
    a("L_i_c:")
    a("s_barrier")
    a("s_cmp_eq_u32 %s, 3" % sWAVE)
    a("s_cbranch_scc0 L_i_b1")
    a("s_cmp_eq_u32 %s, 0" % sP)
    a("s_cbranch_scc0 L_i_b0")
    a("s_mov_b64 exec, 1")
    a("v_mov_b32 v16, 1")
    a("s_waitcnt vmcnt(0)")
    a("global_atomic_add v2, v16, s[94:95]")
    a("s_mov_b64 exec, -1")
    a("L_i_b0:")
    if CFG["CPF"]:
        a("s_getpc_b64 s[32:33]")
        a("L_pc:")
        a("s_lshr_b32 s17, s2, 3")
        a("s_lshl_b32 s17, s17, 11")
        a("v_add_u32 v12, s17, v2")
        a("v_min_u32 v12, L_code_end-L_pc-1040, v12")
        a("v_mov_b32 v15, s33")
        a("v_add_co_u32 v14, vcc, s32, v12")
        a("v_addc_co_u32 v15, vcc, 0, v15, vcc")
        a("global_load_dwordx4 v[236:239], v[14:15], off")
        a("global_load_dwordx4 v[236:239], v[14:15], off offset:1024")
    a("L_i_b1:")

    a("L_p_a:")
    stamp(a, 1)
    for q in range(4):
        a("v_cmp_eq_u32 s[%d:%d], %d, %s" % (50 + 2 * q, 51 + 2 * q, q, g_))
        a("v_mov_b32 v%d, 0x3f803f80" % (56 + q))

    def wait_a():
        a("s_waitcnt vmcnt(0)")
        stamp(a, 2)
        a("s_barrier")
    a("s_cmp_lt_u32 s38, %d" % BX)
    a("s_cbranch_scc1 L_p_w1")
    a("s_cmp_lt_u32 s38, %d" % B2)
    a("s_cbranch_scc1 L_p_x")
    a("s_cmp_lt_u32 s38, %d" % BZ)
    a("s_cbranch_scc1 L_p_w2")
    a("s_barrier")
    a("s_branch L_drain")

    a("L_p_w1:")
    a("s_mov_b32 s29, 2\ns_mov_b32 s30, 2048")
    a("v_lshrrev_b32 v12, 3, %s" % n_)
    a("v_lshl_add_u32 v12, %s, s29, v12" % g_)
    a("v_lshlrev_b32 v12, 10, v12")
    a("v_bfe_u32 v14, %s, 2, 1" % n_)
    a("v_mul_u32_u24 v14, 480, v14")
    a("s_mul_i32 s18, %s, 40" % sWAVE)
    a("v_add3_u32 v12, v12, v14, s18")
    a("v_and_b32 v14, 3, %s" % n_)
    a("v_lshlrev_b32 v14, 2, v14")
    for j in range(8):
        a("v_add_u32 v15, %d, v14" % (16 * j))
        a("v_mul_u32_u24 v32, 205, v15")
        a("v_lshrrev_b32 v32, 13, v32")
        a("v_min_u32 v32, 2, v32")
        a("v_mul_u32_u24 v32, 80, v32")
        a("v_lshl_add_u32 v32, v15, 1, v32")
        a("v_add_u32 v%d, v12, v32" % (16 + j))
        a("v_add_u32 v%d, s30, v%d" % (24 + j, 16 + j))
    a("s_lshl_b32 s17, s25, 1")
    a("s_lshr_b32 s19, %s, 1" % sWAVE)
    a("s_add_u32 s17, s17, s19")
    a("s_mul_i32 s17, s17, 163840")
    a("s_add_u32 s17, s17, %d" % W1)
    a("s_mul_i32 s19, s24, 6144")
    a("s_add_u32 s19, s19, s17")
    a("v_add_u32 v33, s19, v2")
    a("s_lshl_b32 s19, s24, 11")
    a("s_add_u32 s19, s19, s17")
    a("s_add_u32 s19, s19, %d" % (120 * 1024))
    a("v_add_u32 v34, s19, v2")
    a("s_lshl_b32 s17, s24, 13")
    a("s_lshl_b32 s19, s25, 10")
    a("s_add_u32 s17, s17, s19")
    a("s_lshl_b32 s19, %s, 8" % sWAVE)
    a("s_add_u32 s17, s17, s19")
    a("s_add_u32 s17, s17, %d" % CSP1)
    a("v_lshl_add_u32 v35, v1, 2, s17")
    a("s_mov_b32 s82, 4096")
    wait_a()
    for j in range(8):
        for h in range(2):
            a.ds("ds_read_b64_tr_b16 v[%d:%d], v%d" % (96 + 4 * j + 2 * h, 97 + 4 * j + 2 * h, 16 + j + 8 * h), ("t", j))
    for j in range(8):
        a.wait_lg(("t", j))
        fr = "v[%d:%d]" % (96 + 4 * j, 99 + 4 * j)
        if j < 6:
            a("buffer_store_dwordx4 %s, v33, s[4:7], %s offen offset:%d sc1" % (fr, ["0", "s82"][j // 4], (j % 4) * 1024))
        else:
            a("buffer_store_dwordx4 %s, v34, s[4:7], 0 offen offset:%d sc1" % (fr, (j - 6) * 1024))
        colsum(j, fr)
        if j >= 2:
            colsum_keep(j - 2)
    colsum_keep(6); colsum_keep(7)
    for q in range(2):
        a("buffer_store_dword v%d, v35, s[4:7], 0 offen offset:%d sc1" % (60 + q, q * 256))
    a("s_branch L_drain")

    a("L_p_x:")
    a("s_mul_i32 s17, s24, 20480")
    a("s_mul_i32 s19, s25, 10240")
    a("s_add_u32 s17, s17, s19")
    a("s_add_u32 s17, s17, %d" % XA)
    a("v_add_u32 v12, s17, v2")
    a("s_mov_b32 s82, 4096\ns_mov_b32 s83, 8192")
    for q in range(4):
        a("v_mov_b32 v%d, 0" % (16 + q))
    a("s_mov_b32 s28, 0x3f803f80")
    a("s_lshl_b32 s17, s24, 10")
    a("s_lshl_b32 s19, s25, 7")
    a("s_add_u32 s17, s17, s19")
    a("s_add_u32 s17, s17, %d" % STA)
    a("v_lshlrev_b32 v14, 3, %s" % n_)
    a("v_lshl_add_u32 v14, %s, 8, v14" % g_)
    wait_a()
    for kb in range(10):
        a("buffer_store_dwordx4 v[%d:%d], v12, s[4:7], %s offen offset:%d sc1" % (96 + 4 * kb, 99 + 4 * kb, ["0", "s82", "s83"][kb // 4], (kb % 4) * 1024))
    for kb in range(10):
        for d in range(4):
            a("v_dot2c_f32_bf16 v%d, s28, v%d" % (16 + 2 * (d % 2), 96 + 4 * kb + d))
            a("v_dot2c_f32_bf16 v%d, v%d, v%d" % (17 + 2 * (d % 2), 96 + 4 * kb + d, 96 + 4 * kb + d))
    a(pk("add", Reg("v", 16, 2), Reg("v", 16, 2), Reg("v", 18, 2)))
    a("buffer_store_dwordx2 v[16:17], v14, s[4:7], s17 offen sc1")
    a("s_branch L_drain")

    a("L_p_w2:")
    a("s_mov_b32 s29, 2\ns_mov_b32 s30, 4096")
    rdaddr128("s18")
    dst640("s24", "s25", 20, W2)
    wait_a()
    move128()

    a("L_drain:")
    stamp(a, 3)
    a("v_mov_b32 v226, 0x%x\nv_mov_b32 v227, 0x%x\nv_mov_b32 v228, 0x%x" % (OOB, OOB, OOB))
    for t in range(8):
        a("s_mov_b32 s%d, 0" % DST[t])
    a("s_mov_b32 s31, 0")
    a("s_cmp_lt_u32 s39, %d" % U3)
    a("s_cbranch_scc1 L_d_w3")
    a("s_cmp_lt_u32 s39, %d" % (U3 + U4))
    a("s_cbranch_scc0 L_d_done")
    a("s_sub_u32 s16, s39, %d" % U3)
    a("s_mul_i32 s36, s16, 52429")
    a("s_lshr_b32 s36, s36, 18")
    a("s_mul_i32 s17, s36, 5")
    a("s_sub_u32 s58, s16, s17")
    a("s_mov_b32 s31, 3\ns_mov_b32 s34, %d\ns_mov_b32 s48, 1280" % (1536 * 640 * 2))
    a("s_mov_b32 s32, s96\ns_mov_b32 s33, s97")
    dst640("s36", "s58", 48, W4)
    a("s_mov_b32 s29, 2\ns_mov_b32 s30, 4096")
    a("s_branch L_d_rd")
    a("L_d_w3:")
    a("s_mul_i32 s36, s39, 43691")
    a("s_lshr_b32 s36, s36, 20")
    a("s_mul_i32 s17, s36, 24")
    a("s_sub_u32 s58, s39, s17")
    a("s_and_b32 s31, s58, 1")
    a("s_lshr_b32 s58, s58, 1")
    a("s_mov_b32 s34, %d\ns_mov_b32 s48, 3072" % (640 * 1536 * 2))
    a("s_cmp_eq_u32 s31, 1")
    a("s_cselect_b32 s32, s92, s90")
    a("s_cselect_b32 s33, s93, s91")
    a("s_add_u32 s31, s31, 1")
    for i in range(8):
        a("s_lshl_b32 s17, s58, 3")
        a("s_add_u32 s17, s17, %d" % i)
        a("s_mul_i32 s19, s17, 43")
        a("s_lshr_b32 s19, s19, 8")
        a("s_mul_i32 s28, s19, 6")
        a("s_sub_u32 s17, s17, s28")
        a("s_lshl_b32 s17, s17, 1")
        a("s_add_u32 s17, s17, s31")
        a("s_sub_u32 s17, s17, 1")
        a("s_mul_i32 s28, s19, 12")
        a("s_add_u32 s28, s28, s17")
        a("s_lshl_b32 s28, s28, 6")
        a("s_add_u32 s28, s28, %d" % CS3F)
        a("v_lshl_add_u32 v232, %s, 2, s28" % n_)
        a("v_cndmask_b32 v%d, v%d, v232, s[%d:%d]" % (226 + i // 4, 226 + i // 4, 50 + 2 * (i % 4), 51 + 2 * (i % 4)))
        a("s_mul_i32 s19, s19, 20")
        a("s_add_u32 s19, s19, s36")
        a("s_mul_i32 s19, s19, 12")
        a("s_add_u32 s19, s19, s17")
        a("s_lshl_b32 s19, s19, 10")
        a("s_add_u32 s%d, s19, %d" % (DST[i], W3))
    a("s_mov_b32 s29, 3\ns_mov_b32 s30, 1024")
    a("L_d_rd:")
    rdaddr128("s37")
    a("L_d_done:")
    for l in p1.pre_setup():
        a(l)
    p1.before_wait()
    a("s_cmp_eq_u32 %s, 3" % sWAVE)
    a("s_cbranch_scc0 L_clr_ok")
    a("s_mov_b32 s42, %d" % CFG["TMO"])
    a("v_mov_b32 v232, 0")
    a("L_clr:")
    a("global_load_dword v233, v232, s[94:95] sc1")
    a("s_waitcnt vmcnt(0)")
    a("v_readfirstlane_b32 s43, v233")
    a("s_cmp_ge_u32 s43, 16")
    a("s_cbranch_scc1 L_clr_ok")
    a("s_sleep 8")
    a("s_sub_u32 s42, s42, 1")
    a("s_cbranch_scc0 L_clr")
    a("L_clr_ok:")
    a("s_waitcnt vmcnt(0)")
    stamp(a, 4)
    a("s_barrier")
    a("s_cmp_lg_u32 %s, 0" % sWAVE)
    a("s_cbranch_scc1 L_p_b")
    a("s_lshl_b32 s17, %s, 7" % sRB)
    a("s_add_u32 s17, s17, %d" % CNT_C)
    a("s_mov_b64 exec, 1")
    a("v_mov_b32 v232, 1")
    a("buffer_atomic_add v232, v2, s[4:7], s17 offen sc0")
    a("s_add_u32 s17, s17, %d" % (CNT_G - CNT_C))
    a("s_waitcnt vmcnt(0)")
    a("v_readfirstlane_b32 s43, v232")
    a("s_cmp_eq_u32 s43, 15")
    a("s_cbranch_scc0 L_arr2")
    a("s_mov_b64 exec, 0xffff")
    a("v_mov_b32 v232, 1")
    a("v_lshlrev_b32 v233, 7, v1")
    a("s_mov_b32 s19, %d" % CNT_G)
    a("buffer_atomic_add v232, v233, s[4:7], s19 offen")
    a("s_mov_b64 exec, 1")
    a("L_arr2:")
    stamp(a, 5)
    a("s_mov_b32 s42, %d" % CFG["TMO"])
    a("L_gop:")
    a("v_mov_b32 v255, 0")
    a("buffer_atomic_add v255, v2, s[4:7], s17 offen sc0")
    a("s_waitcnt vmcnt(0)")
    a("v_readfirstlane_b32 s43, v255")
    a("s_cmp_ge_u32 s43, 16")
    a("s_cbranch_scc1 L_go0")
    a("s_sub_u32 s42, s42, 1")
    a("s_cbranch_scc0 L_gop")
    a("L_go0:")
    a("s_mov_b64 exec, -1")
    a("s_branch L_go")
    a("L_p_b:")
    a("s_cmp_eq_u32 s31, 0")
    a("s_cbranch_scc1 L_go")
    issue128("s[32:35]", "s48", "s36", "s58", "s37", "v232")
    stamp(a, 5)
    a("s_waitcnt vmcnt(0)")
    stamp(a, 6)
    a("v_mov_b32 v228, v2")
    for t in range(8):
        for h in range(2):
            a.ds("ds_read_b64_tr_b16 a[%d:%d], v%d offset:%d" % (192 + 4 * t + 2 * h, 193 + 4 * t + 2 * h, 230 + h, t * 32), ("t", t))
    p1.bstores = [(lambda t=t: a.vmem("buffer_store_dwordx4 a[%d:%d], v228, s[4:7], s%d offen sc1" % (192 + 4 * t, 195 + 4 * t, DST[t]), "bst")) for t in range(8)]
    if not CFG["BST"]:
        for t in range(8):
            a.wait_lg(("t", t))
            p1.bstores[t]()
        p1.bstores = []
    for t in range(8):
        a.wait_lg(("t", t))
        colsum(t, "a[%d:%d]" % (192 + 4 * t, 195 + 4 * t))
        if t >= 2:
            colsum_keep(t - 2)
    colsum_keep(6); colsum_keep(7)
    a("L_go:")
    stamp(a, 7)
    a("s_mov_b32 s49, 16")
    phase_open(a)
    a("buffer_atomic_add_f32 v60, v226, s[4:7], 0 offen")
    a("buffer_atomic_add_f32 v61, v227, s[4:7], 0 offen")


def build_all():
    _lbl[0] = 0
    a, info = main_body()
    k = NAME + "_kernel"
    out = "; @launch grid=(256,1,1) block=(256,1,1) lds=%d\n" % info["lds"]
    out += '.amdgcn_target "amdgcn-amd-amdhsa--gfx950"\n'
    st = {}
    txt = a.text(stats=st)
    sys.stderr.write("%d lines, pad states %d\n" % (txt.count("\n"), st["pad"]))
    return out + entry(k) + txt + kd(k, info["vgpr"], 100, info["acc"])


if __name__ == "__main__":
    import argparse
    ap = argparse.ArgumentParser()
    ap.add_argument("-o", default="cdna_kernels/%s.s" % NAME)
    ap.add_argument("--cfg", default="")
    args = ap.parse_args()
    for kv in args.cfg.split(","):
        if kv:
            k, v = kv.split("="); CFG[k] = int(v)
    txt = build_all()
    open(args.o, "w").write(txt)
```

```python
import sys, struct
from asmlib import *

S, D, F = 2048, 640, 1536
NAME = "interleave_layers__linear_attn_block__geglu_ffn__prompt"

_off = 0
def ws(n):
    global _off
    o = _off
    _off += (n + 4095) // 4096 * 4096
    return o
W1 = ws(16 * 20 * 8 * 1024)
W2 = ws(8 * 20 * 5 * 1024)
W3 = ws(16 * 20 * 12 * 1024)
W4 = ws(8 * 48 * 5 * 1024)
CSP1 = ws(20 * 2048 * 4)
CS3F = ws(3072 * 4)
CSW = ws(256 * 512)
CNT = ws(256 * 128 + 16 * 128 + 16 * 128)
CNT_C = CNT + 256 * 128
CNT_G = CNT_C + 16 * 128
XA = ws(128 * 20 * 1024); STA = ws(2048 * 64); KV = ws(14 * 4096); PQ = ws(128 * 20 * 1024)
XB = ws(128 * 20 * 1024); STB = ws(2048 * 64); H = ws(128 * 48 * 1024)
LSTR = _off - XA
ws(LSTR)
PROFO = ws(9 * 256 * 4 * 64)
WS_USED = _off
OOB = 0x40000000
PROF = False
CFG = dict(NPRE1=7, NPRE3=5, NW4L=24, NW4E=18, NW4D=8, NW4W=6, NP1W=8, NW2D=8, NW2L=6, SP4=4, HOT=0, LEAD=26, RATE=10, RA1=6, CPF=1, NPRE1A=2, ARRK=9, ZF1=2, SP2=6, DBG=0, KARR=6, KPOLL=11, RD2=0, ZFP=4, NWQ=5, TLB=0, K0NT=7, BST=1, DBGT=0, B2O=0, SC=1, PD1=6, PD3=6, P1=8, P3=8, TMO=30000, ROT=0, NPOLL=3, EW3=16, PW=1, PSL=0)

def f32(x):
    return "0x%08x" % struct.unpack("<I", struct.pack("<f", x))[0]
LOG2E = 1.4426950408889634
MF = "v_mfma_f32_16x16x32_bf16"
H2 = [slice(0, 2), slice(2, 4)]

sWAVE, sRB, sP, sRB64, sCG, sLAY, sTGT, sPH = "s10", "s11", "s12", "s13", "s14", "s15", "s40", "s41"
sROT10, sROT12 = "s8", "s9"
vN, vG = Reg("v", 3, 1), Reg("v", 4, 1)
vCNT, vPL, vPG = Reg("v", 5, 1), Reg("v", 6, 1), Reg("v", 7, 1)
vPRE = Reg("v", 8, 4)
VBASE = 12

def SC():
    return " sc1" if CFG["SC"] else ""


def stamp(a, i):
    if PROF:
        a("s_memtime s[%d:%d]" % (60 + 2 * i, 61 + 2 * i))

def stamp_dump(a, vb=240):
    if not PROF:
        return
    a("s_memrealtime s[78:79]")
    a("s_lshl_b32 s59, %s, 8" % sPH)
    a("s_add_u32 s59, s59, s2")
    a("s_lshl_b32 s59, s59, 2")
    a("s_add_u32 s59, s59, s10")
    a("s_lshl_b32 s59, s59, 6")
    a("s_add_u32 s59, s59, %d" % PROFO)
    a("s_waitcnt lgkmcnt(0)")
    a.lg = []
    a("s_mov_b64 exec, 1")
    for i in range(10):
        a("v_mov_b32 v%d, s%d" % (vb + i, 60 + 2 * i))
    a("v_mov_b32 v%d, s80" % (vb + 11))
    a("v_mov_b32 v%d, s59" % (vb + 10))
    a("buffer_store_dwordx4 v[%d:%d], v%d, s[4:7], 0 offen" % (vb, vb + 3, vb + 10))
    a("buffer_store_dwordx4 v[%d:%d], v%d, s[4:7], 0 offen offset:16" % (vb + 4, vb + 7, vb + 10))
    a("buffer_store_dwordx4 v[%d:%d], v%d, s[4:7], 0 offen offset:32" % (vb + 8, vb + 11, vb + 10))
    a("s_mov_b64 exec, -1")
    a("s_add_u32 %s, %s, 1" % (sPH, sPH))


_lbl = [0]
def label(p):
    _lbl[0] += 1
    return "L_%s_%d" % (p, _lbl[0])


def arrive(a, loads=()):
    for f in loads:
        f()
    stamp(a, 6)
    a.wait_vm("out")
    a.wait_all(vm=False)
    stamp(a, 7)
    a("s_add_u32 %s, %s, 16" % (sTGT, sTGT))
    a("s_barrier")
    l = label("arr")
    a("s_cmp_lg_u32 %s, 0" % sWAVE)
    a("s_cbranch_scc1 %s" % l)
    a("v_mov_b32 v255, 1")
    a("buffer_atomic_add v255, %s, s[4:7], 0 offen" % vCNT)
    a("%s:" % l)


def poll_issue(a, k):
    a("v_mov_b32 v%d, 0" % (255 - k))
    a("buffer_atomic_add v%d, %s, s[4:7], 0 offen sc0" % (255 - k, vPL))


def poll_loop(a, d, first):
    NP = CFG["NPOLL"]
    l = label("poll")
    a("s_mov_b32 s42, %d" % CFG["TMO"])
    a("%s:" % l)
    for k0 in range(NP):
        k = (k0 + first) % NP
        poll_issue(a, (k + NP - 1) % NP)
        a("s_waitcnt vmcnt(%d)" % (NP - 1))
        a("v_readfirstlane_b32 s43, v%d" % (255 - k))
        a("s_cmp_ge_u32 s43, %s" % sTGT)
        a("s_cbranch_scc1 %s" % d)
    a("s_sub_u32 s42, s42, 1")
    a("s_cbranch_scc0 %s" % l)


def dbg_time(a):
    if not CFG["DBGT"]:
        return
    l = label("dt")
    a("s_or_b32 s59, s2, %s" % sWAVE)
    a("s_cbranch_scc1 %s" % l)
    a("s_memrealtime s[60:61]")
    a("s_mov_b64 exec, 1")
    a("s_waitcnt lgkmcnt(0)")
    a("s_sub_u32 s60, s60, s80")
    a("v_mov_b32 v251, s60")
    a("v_mov_b32 v250, s62")
    a("global_store_dword v250, v251, s[94:95]")
    a("s_add_u32 s62, s62, 4")
    a("s_mov_b64 exec, -1")
    a("%s:" % l)


def phase_open(a, vb=240):
    a("s_barrier")
    dbg_time(a)
    stamp(a, 8)
    stamp_dump(a, vb)
    stamp(a, 0)


def wait(a, loads=()):
    d, o = label("pdone"), label("other")
    NP = CFG["NPOLL"]
    loads = list(loads)
    a("s_cmp_lg_u32 %s, %d" % (sWAVE, CFG["PW"]))
    a("s_cbranch_scc1 %s" % o)
    save = list(a.vm)
    per = (len(loads) + NP - 2) // (NP - 1)
    after = []
    for k in range(NP - 1):
        poll_issue(a, k)
        chunk = loads[k * per:(k + 1) * per]
        for f in chunk:
            f()
        if len(chunk) < 2:
            a("s_sleep %d" % (10 // NP))
        after.append(len(chunk))
    a.vm = save
    for k in range(NP - 1):
        poll_issue(a, (k + NP - 1) % NP)
        a("s_waitcnt vmcnt(%d)" % (NP - 1 + sum(after[k:])))
        a("v_readfirstlane_b32 s43, v%d" % (255 - k))
        a("s_cmp_ge_u32 s43, %s" % sTGT)
        a("s_cbranch_scc1 %s" % d)
    poll_loop(a, d, NP - 1)
    a("s_branch %s" % d)
    a("%s:" % o)
    for f in loads:
        f()
    a("%s:" % d)
    phase_open(a)


def wrap_add(a, r, step, end):
    if (CFG["HOT"] & 1 and r == "s20") or (CFG["HOT"] & 2 and r != "s20"):
        return
    if not CFG["ROT"]:
        a("s_add_u32 %s, %s, %d" % (r, r, step))
        return
    a("s_add_u32 %s, %s, %d" % (r, r, step))
    a("s_cmp_eq_u32 %s, %d" % (r, end))
    a("s_cselect_b32 %s, 0, %s" % (r, r))


def xsum4(a, v, t):
    a("v_mov_b32 %s, %s" % (t, v))
    a("v_permlane16_swap_b32 %s, %s" % (v, t))
    a("v_add_f32 %s, %s, %s" % (v, v, t))
    a("v_mov_b32 %s, %s" % (t, v))
    a("v_permlane32_swap_b32 %s, %s" % (v, t))
    a("v_add_f32 %s, %s, %s" % (v, v, t))


def stats_finish(a, q, mean, rstd, t):
    a("v_add_f32 %s, %s, %s" % (q[0], q[0], q[2]))
    a("v_add_f32 %s, %s, %s" % (q[1], q[1], q[3]))
    xsum4(a, q[0], t)
    xsum4(a, q[1], t)
    a("v_mul_f32 %s, %s, %s" % (mean, f32(1.0 / D), q[0]))
    a("v_mul_f32 %s, %s, %s" % (q[1], f32(1.0 / D), q[1]))
    a("v_fma_f32 %s, -%s, %s, %s" % (q[1], mean, mean, q[1]))
    a("v_max_f32 %s, 0, %s" % (q[1], q[1]))
    a("v_add_f32 %s, %s, %s" % (q[1], f32(1e-5), q[1]))
    a("v_rsq_f32 %s, %s" % (rstd, q[1]))


def pk(op, d, *src, neg=None):
    ops, lo, hi = [], [], []
    for x in src:
        if isinstance(x, str):
            n = int(x[1:])
            ops.append("s[%d:%d]" % (n & ~1, (n & ~1) + 1)); lo.append(n & 1); hi.append(n & 1)
        elif x.n == 2:
            assert x.base % 2 == 0
            ops.append(str(x)); lo.append(0); hi.append(1)
        else:
            b = x.base & ~1
            ops.append("v[%d:%d]" % (b, b + 1)); lo.append(x.base & 1); hi.append(x.base & 1)
    t = "v_pk_%s_f32 %s, %s op_sel:[%s] op_sel_hi:[%s]" % (op, d, ", ".join(ops), ",".join(map(str, lo)), ",".join(map(str, hi)))
    if neg is not None:
        m = ",".join("1" if i == neg else "0" for i in range(len(src)))
        t += " neg_lo:[%s] neg_hi:[%s]" % (m, m)
    return t


class Weaver:
    def __init__(self, a, items, period):
        self.a, self.items, self.period, self.n = a, list(items), period, 0
    def __call__(self, line):
        self.a(line)
        self.n += 1
        if self.n % self.period == 0 and self.items:
            self.items.pop(0)()
    def flush(self):
        while self.items:
            self.items.pop(0)()


class Ring:
    def __init__(self, a, NT, R, vB, vBlast, sL, sB, sB2):
        self.a, self.NT, self.R = a, NT, R
        self.vB, self.vBlast, self.sL, self.sB, self.sB2 = vB, vBlast, sL, sB, sB2
        self.FPS = 2 * NT
        self.SB = self.FPS * 1024
        self.per = self.FPS // 4

    def init_lines(self):
        return ["s_mul_i32 %s, %s, %d" % (self.sB, sROT10, self.SB)] + (["s_add_u32 %s, %s, 3072" % (self.sB2, self.sB)] if self.per > 4 else [])

    def loads(self, s):
        a, per, SB = self.a, self.per, self.SB
        grp = 4 if per == 4 else 3
        out = []
        for i in range(per):
            def f(i=i):
                if i % grp == 0:
                    a("s_add_u32 m0, %s, %d" % (self.sL, (s % self.R) * SB + i * 1024))
                so = self.sB if i < grp else self.sB2
                vb = self.vBlast if i == per - 1 else self.vB
                a.vmem("buffer_load_dwordx4 %s, s[4:7], %s offen offset:%d lds" % (vb, so, (i % grp) * 1024), ("st", s))
                if i == per - 1:
                    wrap_add(a, self.sB, SB, 10 * SB)
                    if per > grp:
                        a("s_add_u32 %s, %s, 3072" % (self.sB2, self.sB))
            out.append(f)
        return out


def gemm_s(a, ring, NPRE, vA, vL, acc, Aring, Bregs, transposed, sA, RA, tail_loads=(), fill=(), nsetup=0, PD=6, P=12, first_barrier=False, NTAIL=99, early=()):
    NST = 10
    NT, R, FPS, SB = ring.NT, ring.R, ring.FPS, ring.SB
    NB = Bregs.n // 4
    BPOS = FPS - PD

    def a_loads(s):
        out = []
        ar = Aring[((s % RA) * 16):((s % RA) * 16 + 16)]
        for ks in range(2):
            for rt in range(2):
                def f(ks=ks, rt=rt):
                    a.vmem("buffer_load_dwordx4 %s, %s, s[4:7], %s offen offset:%d%s" % (ar.q(ks * 2 + rt), vA[rt], sA, ks * 1024, SC()), ("a", s, ks))
                    if ks == 1 and rt == 1:
                        wrap_add(a, sA, 2048, 20480)
                out.append(("a", s, f))
        return out
    bq = [("b", s, f) for s in range(NPRE, NST) for f in ring.loads(s)]
    aq = [x for s in range(NST) for x in a_loads(s)]
    tail = [("t", -1, f) for f in tail_loads]
    fill = list(fill)
    nfill0 = len(fill)
    for k in range(P):
        aq.pop(0)[2]()
    for f in early:
        f()
    stamp(a, 1)
    a.wait_vm(("a", 0, 0))
    if first_barrier:
        a("s_barrier")
    stamp(a, 2)

    def rd(n):
        s, i = divmod(n, FPS)
        addr = (s % R) * SB + i * 1024
        a.ds("ds_read_b128 %s, %s offset:%d" % (Bregs.q(n % NB), vL[addr >> 16], addr & 0xffff), ("f", n))

    NF = NST * FPS
    for n in range(PD):
        rd(n)
    passed = -1

    def next_load(s):
        ca = aq[0] if aq and aq[0][1] - RA < s else None
        cb = bq[0] if bq and (bq[0][1] < R or bq[0][1] - R + 1 <= passed) else None
        ct = len(tail) > keep and len(fill) <= nfill0 - nsetup
        da = ca[1] - s if ca else 99
        db = cb[1] - s - 0.5 if cb else 99
        if min(da, db) > LEAD and ct:
            tail.pop(0)[2]()
        elif ca and da <= db:
            aq.pop(0)[2]()
        elif cb:
            bq.pop(0)[2]()
        elif ct:
            tail.pop(0)[2]()
        else:
            return False
        return True

    nload = len(aq) + len(bq) + min(len(tail), NTAIL)
    LEAD = CFG["LEAD"] / 10.0
    keep = max(0, len(tail) - NTAIL)
    span = FPS * (NST - 1)
    credit = 0.0
    for n in range(NF):
        s, i = divmod(n, FPS)
        ks, j = divmod(i, NT)
        if i == BPOS and s + 1 < NST and s >= 1 and (bq or s + 1 >= NPRE):
            while bq and bq[0][1] <= s + 1:
                sys.stderr.write("late ring load at stage %d\n" % s)
                bq.pop(0)[2]()
            a.wait_vm(("st", s + 1))
            a("s_barrier")
            passed = s
        if j == 0:
            while aq and aq[0][1] <= s:
                sys.stderr.write("late activation load at stage %d\n" % s)
                aq.pop(0)[2]()
            a.wait_vm(("a", s, ks))
        if n + PD < NF:
            rd(n + PD)
        a.wait_lg(("f", n))
        ar = Aring[((s % RA) * 16):((s % RA) * 16 + 16)]
        credit += nload / span * CFG["RATE"] / 10.0
        did = False
        for rt in range(2):
            c = "0" if (s == 0 and ks == 0) else str(acc[rt][j])
            w, x = Bregs.q(n % NB), ar.q(ks * 2 + rt)
            if transposed[j]:
                a("%s %s, %s, %s, %s" % (MF, acc[rt][j], w, x, c))
            else:
                a("%s %s, %s, %s, %s" % (MF, acc[rt][j], x, w, c))
            if rt == 0 and credit >= 1.0:
                did = next_load(s)
                if did:
                    credit -= 1.0
                credit = min(credit, 1.5)
            if rt == 0 and not did and n > FPS:
                for _ in range(2):
                    if fill:
                        x = fill.pop(0)
                        x() if callable(x) else a(x)
    assert not aq and not bq and not fill, (len(aq), len(bq), len(fill))
    stamp(a, 3)
    return [t[2] for t in tail]


K1_RED = 0
K1_TRASH = K1_RED + 4 * 3584 + 1024
K1_PAIRS = [(0, 2), (0, 3), (1, 2), (1, 3), (1, 4), (2, 2), (2, 3), (2, 4)]

class P1:
    def __init__(self, a):
        self.a = a

    def pre_setup(self):
        return ["s_mul_i32 s17, %s, 163840" % sP,
                "s_lshl_b32 s44, %s, 12" % sWAVE,
                "s_add_u32 s17, s17, s44",
                "s_add_u32 s17, s17, %d" % W1,
                "v_add_u32 %s, s17, v2" % vPRE[0],
                "s_mov_b32 s45, 0"]

    def round_loads(self, rho):
        a = self.a
        out = []
        for i in range(4):
            def f(i=i):
                if i == 0:
                    a("s_add_u32 m0, s44, s45")
                    a("s_nop 0")
                a.vmem("buffer_load_dwordx4 %s, s[4:7], s45 offen offset:%d lds" % (vPRE[0], i * 1024), ("st", rho))
                if i == 3:
                    a("s_add_u32 s45, s45, 16384")
            out.append(f)
        return out

    def pre_loads(self, n):
        return [f for rho in range(n) for f in self.round_loads(rho)]

    def alloc(self):
        V = Alloc("v", VBASE, 240)
        r = self
        r.vA = [V.get(1), V.get(1)]
        r.vL = [Reg("v", 2, 1), V.get(1), V.get(1)]
        r.vS = V.get(1); r.vCn = V.get(1); r.vCt = V.get(1)
        r.vQ = V.get(2, 1); r.vKa = V.get(8); r.vGl = V.get(1); r.vR = V.get(1); r.vC1 = V.get(1); r.ret = V.get(1)
        r.mean = [V.get(1), V.get(1)]; r.rstd = [V.get(1), V.get(1)]; r.rl = [V.get(1), V.get(1)]
        r.meanN = [V.get(4), V.get(4)]; r.rstdN = [V.get(4), V.get(4)]; r.rlN = [V.get(4), V.get(4)]
        r.tmp = V.get(16)
        r.acc = [[V.get(4) for j in range(8)] for rt in range(2)]
        r.csn = V.get(8); r.cst = V.get(12)
        r.Xf = V.get(24)
        r.kvd = V.get(32)
        r.A = Reg("a", 0, 160)
        r.Bregs = Reg("a", 160, 32)

    def before_wait(self, emit=None):
        self.alloc()
        r, b = self, (emit or self.a)
        n_, g_ = vN, vG
        t = r.kvd
        b("s_lshl_b32 s16, %s, 3" % sRB)
        b("s_lshl_b32 s17, %s, 1" % sWAVE)
        b("s_add_u32 s16, s16, s17")
        b("s_mul_i32 s19, s16, 20480")
        b("s_add_u32 s19, s19, %s" % sLAY)
        b("s_add_u32 s17, s19, %d" % XA)
        b("v_add_u32 %s, s17, v2" % r.vA[0])
        b("v_add_u32 %s, 20480, %s" % (r.vA[1], r.vA[0]))
        b("v_add_u32 %s, 0x10000, v2" % r.vL[1])
        b("v_lshlrev_b32 %s, 3, %s" % (t[0], n_))
        b("v_lshl_add_u32 %s, %s, 8, %s" % (t[0], g_, t[0]))
        b("s_lshl_b32 s17, s16, 10")
        b("s_add_u32 s17, s17, %s" % sLAY)
        b("s_add_u32 s17, s17, %d" % STA)
        b("v_add_u32 %s, s17, %s" % (r.vS, t[0]))
        b("v_cmp_lt_u32 s[26:27], %s, 8" % n_)
        b("v_add_u32 %s, 0x20000, v2" % r.vL[2])
        b("s_lshr_b32 s17, %s, 2" % sP)
        b("s_mul_i32 s17, s17, 5120")
        b("s_add_u32 s19, s19, s17")
        b("s_add_u32 s19, s19, %d" % PQ)
        b("s_and_b32 s17, %s, 3" % sP)
        b("s_lshl_b32 s18, s17, 10")
        b("s_add_u32 s18, s18, s19")
        b("v_add_u32 %s, s18, v2" % r.vQ[0])
        b("s_lshl_b32 s17, s17, 8")
        b("s_add_u32 s17, s17, s19")
        b("s_add_u32 s17, s17, 4096")
        b("v_add_u32 %s, s17, v2" % r.vQ[1])
        b("v_mov_b32 %s, 0x%x" % (t[2], OOB))
        b("v_cmp_gt_u32 vcc, 16, v1")
        b("v_cndmask_b32 %s, %s, %s, vcc" % (r.vQ[1], t[2], r.vQ[1]))
        b("s_lshl_b32 s17, %s, 7" % sRB)
        b("s_add_u32 s17, s17, %d" % CNT_C)
        b("v_mov_b32 %s, s17" % r.vC1)
        b("v_cmp_eq_u32 vcc, 0, v0")
        b("v_cndmask_b32 %s, %s, %s, vcc" % (r.vC1, t[2], r.vC1))
        b("v_add_u32 %s, %d, v2" % (t[5], K1_TRASH))
        b("s_mul_i32 s19, %s, 3584" % sWAVE)
        b("s_add_u32 s19, s19, %d" % K1_RED)
        b("s_add_u32 s17, s19, 3200")
        for pi, (ka, vb) in enumerate(K1_PAIRS):
            b("v_lshl_add_u32 %s, %s, 2, %d" % (t[0], g_, 16 * ka))
            b("v_add_u32 %s, %d, %s" % (t[1], 16 * vb - 40, n_))
            b("v_cmp_le_u32 vcc, 20, %s" % t[0])
            b("v_cndmask_b32 %s, 0, 20, vcc" % t[2])
            b("v_sub_u32 %s, %s, %s" % (t[3], t[1], t[2]))
            b("v_sub_u32 %s, %s, %s" % (t[2], t[0], t[2]))
            b("v_cmp_gt_u32 vcc, 20, %s" % t[3])
            b("v_mad_i32_i24 %s, %s, 20, %s" % (t[2], t[1], t[2]))
            b("v_lshl_add_u32 %s, %s, 2, s19" % (t[2], t[2]))
            b("v_cndmask_b32 %s, %s, %s, vcc" % (r.vKa[pi], t[5], t[2]))
            if vb == 2:
                b("v_cmp_eq_u32 vcc, 0, %s" % n_)
                b("v_lshl_add_u32 %s, %s, 2, s17" % (t[2], t[0]))
                b("v_cndmask_b32 %s, %s, %s, vcc" % (r.vKa[pi], r.vKa[pi], t[2]))
            if ka == 2:
                b("v_cmp_gt_u32 vcc, 2, %s" % g_)
                b("v_cndmask_b32 %s, %s, %s, vcc" % (r.vKa[pi], t[5], r.vKa[pi]))
        b("v_lshlrev_b32 %s, 2, v0" % r.vR)
        b("s_mul_i32 s17, %s, 3360" % sP)
        b("s_add_u32 s17, s17, %s" % sLAY)
        b("s_add_u32 s17, s17, %d" % KV)
        b("v_add_u32 %s, s17, %s" % (r.vGl, r.vR))
        b("v_add_u32 %s, %d, %s" % (r.vR, K1_RED, r.vR))
        b("s_lshl_b32 s17, s2, 9")
        b("s_add_u32 s17, s17, %d" % CSW)
        b("v_lshl_add_u32 %s, %s, 2, s17" % (r.vCn, n_))
        b("v_lshl_add_u32 %s, %s, 4, s17" % (r.vCt, g_))
        b("s_mov_b32 s23, 20480")
        b("s_mov_b32 s20, 0")
        b("v_lshlrev_b32 %s, 4, %s" % (t[0], g_))
        for q in range(4):
            b("v_add_u32 %s, %d, %s" % (t[1 + q], 4 * q, t[0]))

    def body(self, nxt, NPRE, first=False):
        r, a = self, self.a
        tmp, t, acc, Xf, kvd, A, Bregs = r.tmp, r.kvd, r.acc, r.Xf, r.kvd, r.A, r.Bregs
        stat_loads = [(lambda rt=rt, h=h: a.vmem("buffer_load_dwordx2 %s, %s, s[4:7], 0 offen offset:%d%s" % (tmp.q(rt)[2 * h:2 * h + 2], r.vS, rt * 1024 + h * 128, SC()), "stats"))
                      for rt in range(2) for h in range(2)]
        b = Asm()
        for rt in range(2):
            stats_finish(b, tmp.q(rt), r.mean[rt], r.rstd[rt], tmp[8])
            b("v_mul_f32 %s, %s, %s" % (r.rl[rt], f32(LOG2E), r.rstd[rt]))
        fill = [lambda: a.wait_vm("stats")] + list(b.lines)
        for rt in range(2):
            for q in range(4):
                fill.append(lambda rt=rt, q=q: a.ds("ds_bpermute_b32 %s, %s, %s" % (r.meanN[rt][q], t[1 + q], r.mean[rt]), "bp"))
                fill.append(lambda rt=rt, q=q: a.ds("ds_bpermute_b32 %s, %s, %s" % (r.rstdN[rt][q], t[1 + q], r.rstd[rt]), "bp"))
        fill += [None] * 6
        fill.append(lambda: a.wait_lg("bp"))
        for rt in range(2):
            for q in range(4):
                fill.append("v_mul_f32 %s, %s, %s" % (r.rlN[rt][q], f32(LOG2E), r.rstdN[rt][q]))
        fill += nxt.pre_setup()
        csp = []
        if first:
            cp, ad = Reg("v", 148, 40), Reg("v", 224, 2)
            a("s_lshl_b32 s17, %s, 9" % sP)
            a("s_add_u32 s17, s17, %d" % CSP1)
            a("v_lshrrev_b32 %s, 5, v1" % ad[0])
            a("v_lshlrev_b32 %s, 13, %s" % (ad[0], ad[0]))
            a("v_and_b32 %s, 31, v1" % ad[1])
            a("v_lshlrev_b32 %s, 4, %s" % (ad[1], ad[1]))
            a("s_cmp_eq_u32 %s, 0" % sWAVE)
            a("s_cselect_b32 s19, 0, 0x%x" % OOB)
            a("v_add3_u32 %s, %s, %s, s19" % (ad[0], ad[0], ad[1]))
            a("v_or_b32 %s, s19, %s" % (ad[1], ad[1]))
            a("s_lshl_b32 s48, s2, 9")
            a("s_add_u32 s48, s48, %d" % CSW)
            a("s_mov_b32 s21, s17")
            for k in range(10):
                def f(k=k):
                    a.vmem("buffer_load_dwordx4 %s, %s, s[4:7], s21 offen%s" % (cp.q(k), ad[0], SC()), "csp")
                    a("s_add_u32 s21, s21, 16384")
                csp.append(f)
            fin = [lambda: a.wait_vm("csp")]
            for k in range(1, 10):
                for q in range(4):
                    fin.append("v_add_f32 %s, %s, %s" % (cp[q], cp[q], cp.q(k)[q]))
            for q in range(4):
                fin += ["v_mov_b32 %s, %s" % (cp[4], cp[q]), "v_permlane32_swap_b32 %s, %s" % (cp[q], cp[4]), "v_add_f32 %s, %s, %s" % (cp[q], cp[q], cp[4])]
            fin.append(lambda: a.vmem("buffer_store_dwordx4 %s, %s, s[4:7], s48 offen" % (cp[0:4], ad[1]), "csw"))
            fill = fin + fill
        cs = [(lambda j=j: a.vmem("buffer_load_dword %s, %s, s[4:7], 0 offen offset:%d" % (r.csn[j], r.vCn, j * 64), "cs")) for j in range(5)]
        cs += [(lambda j=j: a.vmem("buffer_load_dwordx4 %s, %s, s[4:7], 0 offen offset:%d" % (r.cst.q(j), r.vCt, (5 + j) * 64), "cs")) for j in range(3)]
        PD, NB = CFG["PD1"], 8
        seq = [(ks, j, 6 * ks + j) for ks in range(20) for j in range(6)] + [(ks, j, 120 + 2 * ks + j - 6) for ks in range(20) for j in (6, 7)]
        aq = []
        for ks in range(20):
            for rt in range(2):
                def f(ks=ks, rt=rt):
                    a.vmem("buffer_load_dwordx4 %s, %s, s[4:7], s20 offen offset:%d%s" % (A.q(2 * ks + rt), r.vA[rt], (ks % 4) * 1024, SC()), ("a", ks))
                    if ks % 4 == 3 and rt == 1:
                        a("s_add_u32 s20, s20, 4096")
                aq.append((6 * ks, f))
        bq = [(16 * rho - PD, f) for rho in range(NPRE, 10) for f in self.round_loads(rho)]
        for _ in range(CFG["P1"]):
            aq.pop(0)[1]()
        for f in stat_loads + csp:
            f()
        stamp(a, 1)
        a.wait_vm(("a", 0))
        a("s_barrier")
        stamp(a, 2)

        def rd(n):
            f = seq[n][2]
            if f % 16 == 0 and f // 16 >= NPRE:
                while bq and bq[0][0] <= f - PD:
                    sys.stderr.write("P1: late weight load\n")
                    bq.pop(0)[1]()
                a.wait_vm([("st", f // 16), "csw"])
                a("s_barrier")
                st["csok"] = not first or (not fill_has_store())
            a.ds("ds_read_b128 %s, %s offset:%d" % (Bregs.q(n % NB), r.vL[f >> 6], (f & 63) * 1024), ("f", n))

        def pair(n, mid):
            ks, j, f = seq[n]
            if n + PD < len(seq) and n + PD not in done_rd:
                rd(n + PD)
            if n % 2 == 0 or n == 120:
                a.wait_lg(("f", min(n + 1, len(seq) - 1) if n != 119 else n))
            else:
                a.wait_lg(("f", n))
            for rt in range(2):
                c = "0" if ks == 0 else str(acc[rt][j])
                w, x = Bregs.q(n % NB), A.q(2 * ks + rt)
                a("%s %s, %s, %s, %s" % ((MF, acc[rt][j], w, x, c) if j >= 5 else (MF, acc[rt][j], x, w, c)))
                if rt == 0:
                    mid()
        done_rd = set()
        st = dict(credit=0.0, csok=not first)
        fill_has_store = lambda: first and fin[-1] in fill
        for n in range(PD):
            rd(n)
        late = [x for x in bq if x[0] >= 120 - PD]
        nload = len(aq) + len(bq) - len(late) + len(cs)
        for n in range(120):
            ks, j, f = seq[n]
            if j == 0:
                while aq and aq[0][0] <= n:
                    sys.stderr.write("P1: late activation load\n")
                    aq.pop(0)[1]()
                a.wait_vm(("a", ks))
            def mid():
                st["credit"] += nload / 108.0
                if st["credit"] >= 1.0:
                    cb = bq and bq[0][0] < 120 - PD
                    q = None
                    if aq and (not cb or aq[0][0] <= bq[0][0]):
                        q = aq
                    elif cb:
                        q = bq
                    if q is not None:
                        q.pop(0)[1]()
                    elif cs and st["csok"]:
                        cs.pop(0)()
                    elif bq:
                        bq.pop(0)[1]()
                    st["credit"] -= 1.0
                elif n > 12:
                    for _ in range(2):
                        if fill:
                            x = fill.pop(0)
                            if x is not None:
                                x() if callable(x) else a(x)
            pair(n, mid)
        for x in fill:
            if x is not None:
                x() if callable(x) else a(x)
        assert st["csok"]
        for f in cs:
            f()
        assert not aq
        stamp(a, 3)
        a.wait_vm("cs")
        a("s_mov_b32 s24, %s" % f32(1e-6))
        e = Weaver(a, [x[1] for x in bq] + (self.bstores if first else []), 10 if first else 16)
        bq[:] = []

        def phi(x, m, c, rs, rlg, t, vraw=None):
            for h in H2:
                e(pk("fma", x[h], m(h), c(h), x[h], neg=0))
            for h in H2:
                e(pk("mul", t[h], x[h], rlg(h)))
            if vraw is not None:
                for h in H2:
                    e(pk("mul", vraw[h], x[h], rs(h)))
            for h in H2:
                e(pk("fma", x[h], x[h], rs(h), "s24"))
            for q in range(4):
                e("v_exp_f32 %s, %s clamp" % (t[q], t[q]))
            for q in range(4):
                e("v_max_f32 %s, s24, %s" % (x[q], x[q]))
            for h in H2:
                e(pk("add", x[h], x[h], t[h]))

        for j in range(5):
            for rt in range(2):
                x = acc[rt][j]
                m = lambda h, rt=rt: r.meanN[rt][h]
                rs = lambda h, rt=rt: r.rstdN[rt][h]
                rg = lambda h, rt=rt: r.rlN[rt][h]
                c = lambda h, j=j: r.csn[j]
                if j < 2:
                    phi(x, m, c, rs, rg, tmp[0:4])
                elif j == 2:
                    phi(x, m, c, rs, rg, tmp[0:4], vraw=tmp[4:8])
                    for q in range(4):
                        e("v_cndmask_b32 %s, %s, %s, s[26:27]" % (x[q], tmp[4 + q], x[q]))
                else:
                    for h in H2:
                        e(pk("fma", x[h], m(h), c(h), x[h], neg=0))
                    for h in H2:
                        e(pk("mul", x[h], x[h], rs(h)))
                e("v_cvt_pk_bf16_f32 %s, %s, %s" % (Xf.q(j)[2 * rt], x[0], x[1]))
                e("v_cvt_pk_bf16_f32 %s, %s, %s" % (Xf.q(j)[2 * rt + 1], x[2], x[3]))
        e("v_mov_b32 %s, 0x3f803f80" % tmp[0])
        for q in range(4):
            e("v_cndmask_b32 %s, %s, %s, s[26:27]" % (Xf.q(5)[q], Xf.q(2)[q], tmp[0]))
        e.flush()
        for pi, (ka, vb) in enumerate(K1_PAIRS):
            a("%s %s, %s, %s, 0" % (MF, kvd.q(pi), Xf.q(ka), Xf.q(5 if vb == 2 else vb)))
        qo = [Xf.q(0), Xf.q(1), Xf.q(2), Xf.q(3)]

        def qtile(j, rt):
            x = acc[rt][5 + j]
            phi(x, lambda h: r.mean[rt], lambda h: r.cst.q(j)[h], lambda h: r.rstd[rt], lambda h: r.rl[rt], tmp[0:4])
            o = qo[rt][2 * j:2 * j + 2] if j < 2 else qo[2 + rt][0:2]
            e("v_cvt_pk_bf16_f32 %s, %s, %s" % (o[0], x[0], x[1]))
            e("v_cvt_pk_bf16_f32 %s, %s, %s" % (o[1], x[2], x[3]))
            if j == 1:
                a.vmem("buffer_store_dwordx4 %s, %s, s[4:7], %s offen%s" % (qo[rt], r.vQ[0], "s23" if rt else "0", SC()), "out")
            if j == 2:
                z = qo[2 + rt]
                e("v_mov_b32 %s, %s" % (z[2], z[0]))
                e("v_mov_b32 %s, %s" % (z[3], z[1]))
                e("v_permlane16_swap_b32 %s, %s" % (z[0], z[2]))
                e("v_permlane16_swap_b32 %s, %s" % (z[1], z[3]))
                a.vmem("buffer_store_dwordx4 %s, %s, s[4:7], %s offen%s" % (z, r.vQ[1], "s23" if rt else "0", SC()), "out")
        if NPRE >= 8:
            a("s_barrier")
        for pi in range(8):
            a.ds("ds_write_b128 %s, %s" % (r.vKa[pi], kvd.q(pi)), "add")
        qtile(0, 0)
        a.wait_lg("add")
        a("s_barrier")
        for i in range(4):
            for w in range(4):
                a.ds("ds_read_b32 %s, %s offset:%d" % (kvd[4 * i + w], r.vR, i * 1024 + w * 3584), ("rd", i))
        a("v_mov_b32 %s, 0x%x" % (kvd[17], OOB))
        a("v_cmp_gt_u32 vcc, 72, v0")
        a("v_cndmask_b32 %s, %s, %s, vcc" % (kvd[16], kvd[17], r.vGl))
        for i in range(4):
            a.wait_lg(("rd", i))
            a(pk("add", kvd[4 * i:4 * i + 2], kvd[4 * i:4 * i + 2], kvd[4 * i + 2:4 * i + 4]))
            a("v_add_f32 %s, %s, %s" % (kvd[4 * i], kvd[4 * i], kvd[4 * i + 1]))
            a.vmem("buffer_atomic_add_f32 %s, %s, s[4:7], 0 offen offset:%d" % (kvd[4 * i], r.vGl if i < 3 else kvd[16], i * 1024), "kv")
        a("v_mov_b32 %s, 1" % r.ret)
        stamp(a, 4)
        wo = nxt.pre_loads()
        nwo = len(wo)
        nxt.before_wait()
        early, zf = list(nxt.early), list(nxt.zf)
        for n in range(120, 160):
            ks = seq[n][0]
            if n == 120 + 2 * CFG["ARRK"]:
                a.wait_vm("kv")
                a("s_barrier")
                a.vmem("buffer_atomic_add %s, %s, s[4:7], 0 offen sc0" % (r.ret, r.vC1), "ret")
            def mid():
                k = 25 - len(wo)
                if n % 3 == 2 and k < nwo and (4 * k + 3) // 8 < ks:
                    wo.pop(0)()
                elif early:
                    for _ in range(2):
                        if early:
                            a(early.pop(0))
                elif ks > CFG["ARRK"] and n % CFG["ZFP"] == 0:
                    zf.pop(0)()
            pair(n, mid)
        l = label("fan")
        if CFG["DBG"] == 2:
            stamp(a, 1)
        a.wait_vm("ret")
        a("v_readfirstlane_b32 s17, %s" % r.ret)
        a("s_and_b32 s17, s17, 15")
        a("s_cmp_eq_u32 s17, 15")
        a("s_cbranch_scc0 %s" % l)
        a("s_mov_b64 exec, 0xffff")
        a("v_mov_b32 %s, 1" % r.ret)
        a("v_lshlrev_b32 %s, 7, v1" % r.vC1)
        a("s_mov_b32 s17, %d" % CNT_G)
        a("buffer_atomic_add %s, %s, s[4:7], s17 offen" % (r.ret, r.vC1))
        a("s_mov_b64 exec, -1")
        a("%s:" % l)
        if CFG["DBG"] == 2:
            stamp(a, 2)
        assert not early
        nxt.wo_rest = wo[CFG["NWQ"]:]
        e = Weaver(a, zf + wo[:CFG["NWQ"]], 6)
        qtile(0, 1)
        qtile(1, 0)
        qtile(1, 1)
        qtile(2, 0)
        nxt.go_load()
        qtile(2, 1)
        e.flush()
        if CFG["DBG"] == 2:
            stamp(a, 3)


class P3:
    def __init__(self, a):
        self.a = a
        self.ring = Ring(a, 12, 6, vPRE[0], vPRE[0], "s44", "s45", "s46")

    def pre_setup(self):
        return ["s_mul_i32 s17, %s, 245760" % sP,
                "s_mul_i32 s44, %s, 6144" % sWAVE,
                "s_add_u32 s17, s17, s44",
                "s_add_u32 s17, s17, %d" % W3,
                "v_add_u32 %s, s17, v2" % vPRE[0]] + self.ring.init_lines()

    def pre_loads(self):
        return [f for s in range(min(4, CFG["NPRE3"])) for f in self.ring.loads(s)]

    def wait_loads(self):
        return [f for s in range(4, CFG["NPRE3"]) for f in self.ring.loads(s)]

    def before_wait(self):
        r, a = self, self.a
        V = Alloc("v", VBASE, 240)
        r.vA = [V.get(1), V.get(1)]
        r.vL = [Reg("v", 2, 1), V.get(1), V.get(1)]
        r.vS = V.get(1); r.vC = V.get(1); r.vH = V.get(1)
        r.mean = [V.get(1), V.get(1)]; r.rstd = [V.get(1), V.get(1)]; r.std = [V.get(1), V.get(1)]
        r.tmp = V.get(16)
        r.acc = [[V.get(4) for j in range(12)] for rt in range(2)]
        r.cs = V.get(48)
        r.Aring = Reg("a", 160, 64)
        r.Bregs = Reg("a", 224, 32)
        tmp = r.tmp
        a("s_lshl_b32 s16, %s, 3" % sRB)
        a("s_lshl_b32 s17, %s, 1" % sWAVE)
        a("s_add_u32 s16, s16, s17")
        a("s_mul_i32 s17, s16, 20480")
        a("s_add_u32 s17, s17, %s" % sLAY)
        a("s_add_u32 s17, s17, %d" % XB)
        a("v_add_u32 %s, s17, v2" % r.vA[0])
        a("v_add_u32 %s, 20480, %s" % (r.vA[1], r.vA[0]))
        a("v_add_u32 %s, 0x10000, v2" % r.vL[1])
        a("v_add_u32 %s, 0x20000, v2" % r.vL[2])
        a("v_lshlrev_b32 %s, 3, %s" % (tmp[0], vN))
        a("v_lshl_add_u32 %s, %s, 8, %s" % (tmp[0], vG, tmp[0]))
        a("s_lshl_b32 s17, s16, 10")
        a("s_add_u32 s17, s17, %s" % sLAY)
        a("s_add_u32 s17, s17, %d" % STB)
        a("v_add_u32 %s, s17, %s" % (r.vS, tmp[0]))
        a("s_mul_i32 s17, %s, 768" % sP)
        a("s_add_u32 s17, s17, %d" % CS3F)
        a("v_lshl_add_u32 %s, %s, 4, s17" % (r.vC, vG))
        a("s_mul_i32 s17, s16, 49152")
        a("s_mul_i32 s19, %s, 3072" % sP)
        a("s_add_u32 s17, s17, s19")
        a("s_add_u32 s17, s17, %s" % sLAY)
        a("s_add_u32 s17, s17, %d" % H)
        a("v_add_u32 %s, s17, v2" % r.vH)
        a("s_mov_b32 s23, 49152")
        a("s_lshl_b32 s20, %s, 11" % sROT10)
        a("s_mov_b32 s24, %s" % f32(-2.0 * 0.7978845608028654 * 0.044715 * LOG2E))
        a("v_mov_b32 %s, %s" % (tmp[15], f32(-2.0 * 0.7978845608028654 * LOG2E)))
        for j in range(12):
            a.vmem("buffer_load_dwordx4 %s, %s, s[4:7], 0 offen offset:%d%s" % (r.cs.q(j), r.vC, j * 64, SC()), "cs")

    def body(self, nxt):
        r, a = self, self.a
        tmp, acc, cs, mean, rstd, std = r.tmp, r.acc, r.cs, r.mean, r.rstd, r.std
        stat_loads = [(lambda rt=rt, h=h: a.vmem("buffer_load_dwordx2 %s, %s, s[4:7], 0 offen offset:%d%s" % (tmp.q(rt)[2 * h:2 * h + 2], r.vS, rt * 1024 + h * 128, SC()), "stats"))
                      for rt in range(2) for h in range(2)]
        b = Asm()
        for rt in range(2):
            stats_finish(b, tmp.q(rt), mean[rt], rstd[rt], tmp[8])
            b("v_rcp_f32 %s, %s" % (std[rt], rstd[rt]))
        fill = nxt.pre_setup() + [lambda: a.wait_vm("stats")] + list(b.lines)
        pre = nxt.pre_loads()
        nl = CFG["NW4L"]
        rest = gemm_s(a, self.ring, CFG["NPRE3"], r.vA, r.vL, acc, r.Aring, r.Bregs, [True] * 12, "s20", 4,
                      pre[:nl], fill, len(nxt.pre_setup()), PD=CFG["PD3"], P=CFG["P3"], first_barrier=True, early=stat_loads)
        e = Weaver(a, rest + pre[nl:], CFG["EW3"])
        out = tmp[0:8]
        for rt in range(2):
            for m in range(3):
                o = out.q((rt * 3 + m) % 2)
                for hh in range(2):
                    jp = 2 * m + hh
                    g, u = acc[rt][2 * jp], acc[rt][2 * jp + 1]
                    cg, cu = cs.q(2 * jp), cs.q(2 * jp + 1)
                    t = tmp[8:12]
                    for h in H2:
                        e(pk("fma", g[h], cg[h], mean[rt], g[h], neg=1))
                    for h in H2:
                        e(pk("fma", u[h], cu[h], mean[rt], u[h], neg=1))
                    for h in H2:
                        e(pk("mul", g[h], g[h], rstd[rt]))
                    for h in H2:
                        e(pk("mul", t[h], g[h], g[h]))
                    for h in H2:
                        e(pk("fma", t[h], t[h], "s24", tmp[15]))
                    for h in H2:
                        e(pk("mul", t[h], g[h], t[h]))
                    for h in H2:
                        e(pk("mul", u[h], g[h], u[h]))
                    for q in range(4):
                        e("v_exp_f32 %s, %s" % (t[q], t[q]))
                    for h in H2:
                        e(pk("fma", t[h], t[h], std[rt], std[rt]))
                    for q in range(4):
                        e("v_rcp_f32 %s, %s" % (t[q], t[q]))
                    for h in H2:
                        e(pk("mul", u[h], u[h], t[h]))
                    e("v_cvt_pk_bf16_f32 %s, %s, %s" % (o[2 * hh], u[0], u[1]))
                    e("v_cvt_pk_bf16_f32 %s, %s, %s" % (o[2 * hh + 1], u[2], u[3]))
                a.vmem("buffer_store_dwordx4 %s, %s, s[4:7], %s offen offset:%d%s" % (o, r.vH, "s23" if rt else "0", m * 1024, SC()), "out")
        e.flush()


def p_addr(a, r, t, red_base, xres, stout, from_x=False):
    for i in range(1, 4):
        a("s_add_u32 s17, %s, %d" % (sWAVE, i))
        a("s_and_b32 s17, s17, 3")
        a("s_mul_i32 s17, s17, 15360")
        a("s_add_u32 s17, s17, %d" % (red_base + (i - 1) * 5120))
        a("v_add_u32 %s, s17, v2" % r.vW[i - 1])
    a("s_mul_i32 s17, %s, 15360" % sWAVE)
    a("s_add_u32 s17, s17, %d" % red_base)
    a("v_add_u32 %s, s17, v2" % r.vRd)
    a("s_lshl_b32 s16, %s, 2" % sRB64)
    a("s_add_u32 s16, s16, %s" % sWAVE)
    a("s_and_b32 s19, %s, 1" % sCG)
    a("s_mul_i32 s29, %s, 5" % sCG)
    a("s_add_u32 s30, s29, s19")
    a("s_xor_b32 s19, s19, 1")
    a("s_lshl_b32 s19, s19, 2")
    a("s_add_u32 s29, s29, s19")
    a("s_mul_i32 s17, s16, 20480")
    a("s_add_u32 s17, s17, %s" % sLAY)
    a("s_add_u32 s17, s17, %d" % xres)
    a("s_lshl_b32 s19, s30, 9")
    a("s_add_u32 s19, s19, s17")
    a("v_add_u32 %s, s19, v2" % r.vRes[0])
    a("v_lshrrev_b32 %s, 1, %s" % (t, vG))
    a("v_lshlrev_b32 %s, 8, %s" % (t, t))
    a("v_lshl_add_u32 %s, %s, 4, %s" % (t, vN, t))
    a("s_lshl_b32 s19, s29, 9")
    a("s_add_u32 s19, s19, s17")
    a("v_add_u32 %s, s19, %s" % (r.vRes[2], t))
    a("v_add_u32 %s, s17, %s" % (r.vRes[1], t))
    a("v_and_b32 %s, 1, %s" % (t, vG))
    a("v_lshl_add_u32 %s, %s, 3, %s" % (r.vRes[1], t, r.vRes[1]))
    a("v_lshl_add_u32 %s, %s, 30, %s" % (r.vRes[2], t, r.vRes[2]))
    a("s_mov_b32 s32, s4\ns_mov_b32 s33, s5\ns_mov_b32 s34, s6\ns_mov_b32 s35, 0x20000\ns_mov_b32 s31, 512")
    if from_x:
        a("v_mul_u32_u24 %s, 1280, %s" % (t, vN))
        a("v_lshl_add_u32 %s, %s, 3, %s" % (t, vG, t))
        a("s_mul_i32 s19, s16, 20480")
        a("v_add_u32 %s, s19, %s" % (t, t))
        one = ["s_cmp_eq_u32 %s, 0" % sLAY, "s_cselect_b32 s32, s84, s32", "s_cselect_b32 s33, s85, s33",
               "s_cselect_b32 s34, %d, s34" % (S * D * 2), "s_cselect_b32 s31, 32, s31", "s_cselect_b64 vcc, -1, 0"]
        a.lines.append("\n".join(one))
        a("v_cndmask_b32 %s, %s, %s, vcc" % (r.vRes[1], r.vRes[1], t))
    a("s_mul_i32 s38, s30, s31")
    a("s_mul_i32 s39, s29, s31")
    a("s_lshl_b32 s17, s16, 10")
    a("s_add_u32 s17, s17, %s" % sLAY)
    a("s_add_u32 s17, s17, %d" % stout)
    a("s_lshl_b32 s19, %s, 7" % sCG)
    a("s_add_u32 s17, s17, s19")
    a("v_lshl_add_u32 %s, %s, 3, s17" % (r.vSt, vN))
    a("v_mov_b32 %s, 0x%x" % (t, OOB))
    a("v_cmp_gt_u32 vcc, 16, v1")
    a("v_cndmask_b32 %s, %s, %s, vcc" % (r.vSt, t, r.vSt))


def p_res_loads(a, res, vRes):
    for j in range(4):
        a.vmem("buffer_load_dwordx2 %s, %s, s[32:35], s38 offen%s" % (res[2 * j:2 * j + 2], vRes[1], SC()), "res")
        if j < 3:
            a("s_add_u32 s38, s38, s31")
    a.vmem("buffer_load_dwordx2 %s, %s, s[32:35], s39 offen%s" % (res[8:10], vRes[1], SC()), "res")


def p_write(a, acc, i, vW):
    for j in range(5):
        a.ds("ds_write_b128 %s, %s offset:%d" % (vW[i - 1], acc[i][j], j * 1024), "rw")


def p_epilogue(a, r, acc, res, part, tmp, xdelta, pre, final):
    stamp(a, 3)
    a.wait_all(vm=False)
    a("s_barrier")
    stamp(a, 4)
    for m in range(15):
        a.ds("ds_read_b128 %s, %s offset:%d" % (part.q(m), r.vRd, m * 1024), ("p", m))
    a("s_mov_b32 s28, %d" % xdelta)
    a.wait_vm("res")
    y = acc[0]
    for j in range(5):
        for h in range(2):
            d = res[2 * j + h]
            a("v_lshlrev_b32 %s, 16, %s" % (tmp[2 * h], d))
            a("v_and_b32 %s, 0xffff0000, %s" % (tmp[2 * h + 1], d))
        for h in H2:
            a(pk("add", y[j][h], y[j][h], tmp[h]))
    for i in range(3):
        for j in range(5):
            a.wait_lg(("p", 5 * i + j))
            for h in H2:
                a(pk("add", y[j][h], y[j][h], part.q(5 * i + j)[h]))
    o = res
    for j in range(5):
        a("v_cvt_pk_bf16_f32 %s, %s, %s" % (o[2 * j], y[j][0], y[j][1]))
        a("v_cvt_pk_bf16_f32 %s, %s, %s" % (o[2 * j + 1], y[j][2], y[j][3]))
    if final:
        a("s_cmp_lg_u32 %s, 0" % sLAY)
        a("s_cbranch_scc1 L_final")
    for b in (0, 4):
        for d in range(2):
            a("v_permlane32_swap_b32 %s, %s" % (o[b + d], o[b + 2 + d]))
    for b in (0, 4):
        for d in range(2):
            a("v_permlane16_swap_b32 %s, %s" % (o[b + d], o[b + 2 + d]))
    a.vmem("buffer_store_dwordx4 %s, %s, s[4:7], s28 offen%s" % (o[0:4], r.vRes[0], SC()), "out")
    a.vmem("buffer_store_dwordx4 %s, %s, s[4:7], s28 offen offset:1024%s" % (o[4:8], r.vRes[0], SC()), "out")
    a("v_mov_b32 %s, %s" % (tmp[4], o[8]))
    a("v_mov_b32 %s, %s" % (tmp[5], o[9]))
    a("v_mov_b32 %s, %s" % (tmp[6], o[8]))
    a("v_mov_b32 %s, %s" % (tmp[7], o[9]))
    a("v_permlane16_swap_b32 %s, %s" % (tmp[4], tmp[6]))
    a("v_permlane16_swap_b32 %s, %s" % (tmp[5], tmp[7]))
    a.vmem("buffer_store_dwordx4 %s, %s, s[4:7], s28 offen%s" % (tmp[4:8], r.vRes[2], SC()), "out")
    sq = tmp[2:4]
    a("s_mov_b32 s24, 0x3f803f80")
    for q in range(4):
        a("v_mov_b32 %s, 0" % tmp[q])
    for k in range(10):
        a("v_dot2c_f32_bf16 %s, s24, %s" % (tmp[2 * (k % 2)], o[k]))
        a("v_dot2c_f32_bf16 %s, %s, %s" % (tmp[1 + 2 * (k % 2)], o[k], o[k]))
    a(pk("add", sq, sq, tmp[0:2]))
    xsum4(a, sq[0], tmp[0])
    xsum4(a, sq[1], tmp[0])
    a.vmem("buffer_store_dwordx2 %s, %s, s[4:7], 0 offen%s" % (sq, r.vSt, SC()), "out")
    for f in pre:
        f()


def final_store(a, o, tmp):
    a("L_final:")
    a("s_load_dwordx2 s[32:33], s[0:1], 56")
    a("s_mov_b32 s34, %d" % (S * D * 2))
    a("s_mov_b32 s35, 0x20000")
    a("s_mul_i32 s17, s16, 20480")
    a("v_mul_u32_u24 %s, 1280, %s" % (tmp[0], vN))
    a("v_lshl_add_u32 %s, %s, 3, %s" % (tmp[0], vG, tmp[0]))
    a("v_add_u32 %s, s17, %s" % (tmp[0], tmp[0]))
    a("s_lshl_b32 s30, s30, 5")
    a("s_lshl_b32 s29, s29, 5")
    a("s_waitcnt lgkmcnt(0)")
    for j in range(4):
        a("buffer_store_dwordx2 %s, %s, s[32:35], s30 offen offset:%d" % (o[2 * j:2 * j + 2], tmp[0], j * 32))
    a("buffer_store_dwordx2 %s, %s, s[32:35], s29 offen" % (o[8:10], tmp[0]))
    dbg_time(a)
    if PROF:
        stamp(a, 5)
        a("s_waitcnt vmcnt(0)")
        stamp(a, 6)
        stamp(a, 7)
        stamp(a, 8)
        stamp_dump(a)


P4_RED = 98304
class P4:
    def __init__(self, a):
        self.a = a
        self.W = Reg("a", 0, 240)

    def pre_setup(self):
        return ["s_mul_i32 s17, %s, %d" % (sCG, 48 * 5120),
                "s_mul_i32 s19, %s, %d" % (sWAVE, 12 * 5120),
                "s_add_u32 s17, s17, s19",
                "s_add_u32 s17, s17, %d" % W4,
                "v_add_u32 %s, s17, v2" % vPRE[2],
                "v_add_u32 %s, 4096, %s" % (vPRE[3], vPRE[2]),
                "s_mul_i32 s47, %s, 5120" % sROT12]

    def wload(self, k):
        a = self.a
        def f():
            j = k % 5
            a.vmem("buffer_load_dwordx4 %s, %s, s[4:7], s47 offen offset:%d" % (self.W.q(k), vPRE[2] if j < 4 else vPRE[3], (j % 4) * 1024), ("w", k))
            if j == 4:
                wrap_add(a, "s47", 5120, 61440)
        return f

    def pre_loads(self):
        return [self.wload(k) for k in range(CFG["NW4L"] + CFG["NW4E"])]

    def drain_loads(self):
        n = CFG["NW4L"] + CFG["NW4E"]
        return [self.wload(k) for k in range(n, n + CFG["NW4D"])]

    def wait_loads(self):
        n = CFG["NW4L"] + CFG["NW4E"] + CFG["NW4D"]
        return [self.wload(k) for k in range(n, n + CFG["NW4W"])]

    def before_wait(self):
        r, a = self, self.a
        V = Alloc("v", VBASE, 240)
        r.vA = V.get(4)
        r.vW = V.get(3); r.vRd = V.get(1); r.vRes = V.get(3, 1); r.vSt = V.get(1)
        r.tmp = V.get(8)
        r.res = V.get(12)
        r.acc = [[V.get(4) for j in range(5)] for i in range(4)]
        r.ring = V.get(80)
        r.part = r.ring[0:60]
        for i in range(4):
            a("s_add_u32 s17, %s, %d" % (sWAVE, i))
            a("s_and_b32 s17, s17, 3")
            a("s_lshl_b32 s16, %s, 2" % sRB64)
            a("s_add_u32 s17, s17, s16")
            a("s_mul_i32 s17, s17, 49152")
            a("s_mul_i32 s16, %s, 12288" % sWAVE)
            a("s_add_u32 s17, s17, s16")
            a("s_add_u32 s17, s17, %s" % sLAY)
            a("s_add_u32 s17, s17, %d" % H)
            a("v_add_u32 %s, s17, v2" % r.vA[i])
        p_addr(a, r, r.tmp[0], P4_RED, XB, STA + LSTR)
        a("s_lshl_b32 s20, %s, 10" % sROT12)
        p_res_loads(a, r.res, r.vRes)

    def body(self, nxt):
        r, a = self, self.a
        acc = r.acc
        NK, RA = 12, 5
        npre = CFG["NW4L"] + CFG["NW4E"] + CFG["NW4D"] + CFG["NW4W"]
        aq = []
        for ks in range(NK):
            for i in range(4):
                def f(ks=ks, i=i):
                    a.vmem("buffer_load_dwordx4 %s, %s, s[4:7], s20 offen%s" % (r.ring.q((ks % RA) * 4 + i), r.vA[i], SC()), ("x", ks, i))
                    if i == 3:
                        wrap_add(a, "s20", 1024, 12288)
                aq.append((ks, f))
        wq = [(k // 5, self.wload(k)) for k in range(npre, 60)]
        for _ in range(14):
            aq.pop(0)[1]()
        stamp(a, 1)
        setup = list(nxt.pre_setup())
        cnt = 0
        for ks in range(NK):
            order = [0, 1, 2, 3] if ks < NK - 1 else [1, 2, 3, 0]
            while wq and wq[0][0] <= ks:
                wq.pop(0)[1]()
            for oi, i in enumerate(order):
                while aq and aq[0][0] <= ks:
                    aq.pop(0)[1]()
                a.wait_vm([("w", k) for k in range(5 * ks, 5 * ks + 5)] + [("x", ks, i)])
                if ks == 0 and oi == 0:
                    stamp(a, 2)
                for j in range(5):
                    c = "0" if ks == 0 else str(acc[i][j])
                    a("%s %s, %s, %s, %s" % (MF, acc[i][j], self.W.q(5 * ks + j), r.ring.q((ks % RA) * 4 + i), c))
                    cnt += 1
                    if cnt % CFG["SP4"] == 0:
                        ca = aq and aq[0][0] - RA < ks
                        if ca and (not wq or aq[0][0] <= wq[0][0] - 1):
                            aq.pop(0)[1]()
                        elif wq:
                            wq.pop(0)[1]()
                        elif ca:
                            aq.pop(0)[1]()
                    elif cnt % CFG["SP4"] == 1 and setup and ks >= 2:
                        a(setup.pop(0))
                if ks == NK - 1 and oi >= 1:
                    p_write(a, acc, order[oi - 1], r.vW)
        assert not aq and not wq and not setup
        pl = nxt.pre_loads(CFG["NPRE1"])
        assert len(pl) - CFG["NP1W"] <= 24
        self.rest = pl[len(pl) - CFG["NP1W"]:]
        self.drain = pl[:len(pl) - CFG["NP1W"]]
        p_epilogue(a, r, acc, r.res, r.part, r.tmp, XA + LSTR - XB, [], True)


K2_BAND = {0: [0], 1: [0, 4], 2: [0, 1, 4], 3: [1, 4], 4: [1, 4], 5: [2], 6: [2, 4], 7: [2, 3, 4], 8: [3, 4], 9: [3, 4]}
K2_ZG = [[0, 1, 4], [2, 3, 4]]
K2_WB = 23552
K2_KV0 = 96
K2_Z0 = 96 + 160 * 136 + 144
P2_RED = 102400
class P2:
    def __init__(self, a):
        self.a = a
        self.Wf = Reg("a", 0, 100)

    def pre_setup(self):
        return ["s_mul_i32 s17, %s, %d" % (sCG, 20 * 5120),
                "s_mul_i32 s19, %s, %d" % (sWAVE, 5 * 5120),
                "s_add_u32 s17, s17, s19",
                "s_add_u32 s17, s17, %d" % W2,
                "v_add_u32 %s, s17, v2" % vPRE[2],
                "s_mov_b32 s47, 0"]

    def pre_loads(self):
        a = self.a
        out = []
        for k in range(25):
            def f(k=k):
                a.vmem("buffer_load_dwordx4 %s, %s, s[4:7], s47 offen offset:%d" % (self.Wf.q(k), vPRE[2], (k % 4) * 1024), "wo")
                if k % 4 == 3:
                    a("s_add_u32 s47, s47, 4096")
            out.append(f)
        return out

    def before_wait(self):
        r, a = self, self.a
        V = Alloc("v", VBASE, 256)
        r.vW = V.get(3); r.vRd = V.get(1); r.vRes = V.get(3, 1); r.vSt = V.get(1)
        r.eps = V.get(4)
        r.tmp = V.get(8)
        r.num = [V.get(40), V.get(40)]
        r.den = [V.get(8), V.get(8), V.get(8)]
        r.dsel = V.get(8)
        r.accB = V.get(28)
        V.get(4)
        r.of = V.get(80)
        r.P = Reg("a", 100, 80); r.KVf = Reg("a", 180, 76)
        pr = r.num[1]
        r.vP = pr[0:4]; r.vKg = pr[6]; r.vKl = pr[7]; r.vZg = pr[8]; r.vZl = pr[9]
        r.bt = pr[10:20]; r.zb = pr[20:24]; r.bt4 = r.num[0][0:10]; r.vGo = pr[4]; r.vP1 = pr[5]
        t = r.den[1]
        tmp = r.tmp
        n_, g_ = vN, vG
        b = Asm()
        b("s_mul_i32 s18, %s, %d" % (sWAVE, K2_WB))
        for q in range(4):
            b("v_mov_b32 %s, 0" % tmp[q])
        b("v_add_u32 %s, s18, v2" % tmp[4])
        r.zf = [(lambda k=k: a.ds("ds_write_b128 %s, %s offset:%d" % (tmp[4], tmp[0:4], k * 1024), "z")) for k in range(K2_WB // 1024)]
        b("s_lshl_b32 s17, %s, 7" % sRB)
        b("s_add_u32 s17, s17, %d" % CNT_G)
        b("v_mov_b32 %s, s17" % r.vGo)
        b.lines.append("s_cmp_eq_u32 %s, %d\ns_cselect_b32 s17, 0, 0x%x" % (sWAVE, CFG["PW"], OOB))
        b("v_or_b32 %s, s17, %s" % (r.vP1, vPL))
        b("v_and_b32 %s, 0x%x, %s" % (t[2], OOB, r.vP1))
        b("v_or_b32 %s, %s, %s" % (r.vGo, t[2], r.vGo))
        b("s_mul_i32 s17, %s, 13440" % sWAVE)
        b("s_add_u32 s17, s17, %s" % sLAY)
        b("s_add_u32 s17, s17, %d" % KV)
        b("v_add_u32 %s, s17, v2" % r.vKg)
        b("v_mov_b32 %s, 0x%x" % (t[2], OOB))
        b("v_cmp_gt_u32 s[56:57], 50, v1")
        b("v_mul_u32_u24 %s, 52, v1" % t[0])
        b("v_lshrrev_b32 %s, 8, %s" % (t[0], t[0]))
        b("v_cndmask_b32 %s, %s, %s, s[56:57]" % (r.vKg, t[2], r.vKg))
        b("v_lshrrev_b32 %s, 1, %s" % (t[3], t[0]))
        b("v_mul_u32_u24 %s, 3200, %s" % (t[3], t[3]))
        b("v_add3_u32 %s, v2, %s, s17" % (t[3], t[3]))
        b("v_cmp_gt_u32 s[36:37], 40, v1")
        b("v_add_u32 %s, 3200, %s" % (t[3], t[3]))
        b("v_cndmask_b32 %s, %s, %s, s[36:37]" % (r.vZg, t[2], t[3]))
        r.early = b.lines
        late = Asm()
        b = late
        for i in range(4):
            b("s_add_u32 s17, %s, %d" % (sWAVE, i + 1))
            b("s_and_b32 s17, s17, 3")
            b("s_lshl_b32 s16, %s, 2" % sRB64)
            b("s_add_u32 s17, s17, s16")
            b("s_mul_i32 s17, s17, 20480")
            b("s_mul_i32 s16, %s, 5120" % sWAVE)
            b("s_add_u32 s17, s17, s16")
            b("s_add_u32 s17, s17, %s" % sLAY)
            b("s_add_u32 s17, s17, %d" % PQ)
            b("v_add_u32 %s, s17, v2" % r.vP[i])
        b("s_mov_b32 s20, 4096")
        b("v_mul_u32_u24 %s, 5, %s" % (t[1], t[0]))
        b("v_sub_u32 %s, v1, %s" % (t[1], t[1]))
        b("v_mul_u32_u24 %s, 136, %s" % (r.vKl, t[0]))
        b("v_lshl_add_u32 %s, %s, 3, %s" % (r.vKl, t[1], r.vKl))
        b("v_add_u32 %s, s18, %s" % (r.vKl, r.vKl))
        b("v_mul_u32_u24 %s, 176, %s" % (r.vZl, t[0]))
        b("v_lshl_add_u32 %s, %s, 3, %s" % (r.vZl, t[1], r.vZl))
        b("v_cndmask_b32 %s, 48, %s, s[36:37]" % (r.vZl, r.vZl))
        b("v_add_u32 %s, s18, %s" % (r.vZl, r.vZl))
        b("s_add_u32 s19, s18, %d" % K2_KV0)
        b("s_add_u32 s16, s18, %d" % K2_Z0)
        b("v_lshl_add_u32 %s, %s, 1, 1" % (t[4], g_))
        for tt in range(10):
            b("v_add_u32 %s, %d, %s" % (t[0], 16 * tt, n_))
            b("v_mul_u32_u24 %s, 205, %s" % (t[1], t[0]))
            b("v_lshrrev_b32 %s, 12, %s" % (t[1], t[1]))
            b("v_mul_u32_u24 %s, 136, %s" % (t[0], t[0]))
            b("v_add_u32 %s, s19, %s" % (t[0], t[0]))
            if 4 in K2_BAND[tt]:
                b("v_cmp_eq_u32 vcc, %s, %s" % (t[1], t[4]))
                b("v_cndmask_b32 %s, 48, 24, vcc" % t[2])
                b("v_add_u32 %s, %s, %s" % (r.bt4[tt], t[0], t[2]))
            b("v_mul_u32_u24 %s, 40, %s" % (t[1], t[1]))
            b("v_sub_u32 %s, %s, %s" % (t[0], t[0], t[1]))
            b("v_lshl_add_u32 %s, %s, 3, %s" % (r.bt[tt], g_, t[0]))
        for gi in range(2):
            b("v_and_b32 %s, 3, v1" % t[0])
            b("v_add_u32 %s, %d, %s" % (t[0], 4 * gi, t[0]))
            b("v_cmp_eq_u32 vcc, %s, %s" % (t[0], t[4]))
            b("v_mul_u32_u24 %s, 176, %s" % (t[1], t[0]))
            b("v_cndmask_b32 %s, 48, 24, vcc" % t[2])
            b("v_add3_u32 %s, %s, %s, s16" % (r.zb[2 + gi], t[1], t[2]))
            b("v_mul_u32_u24 %s, 136, %s" % (t[0], t[0]))
            b("v_lshl_add_u32 %s, %s, 3, %s" % (t[0], g_, t[0]))
            b("v_add_u32 %s, s16, %s" % (r.zb[gi], t[0]))
        for q in range(3):
            b("v_cmp_lt_u32 s[%d:%d], %d, %s" % (50 + 2 * q, 51 + 2 * q, q, g_))
        for q in range(4):
            b("v_mov_b32 %s, %s" % (r.eps[q], f32(1e-6)))
        p_addr(b, r, tmp[5], P2_RED, XA, STB)
        r.late = late.lines

    def go_load(self):
        self.a("v_mov_b32 v252, 0")
        self.a.vmem("buffer_atomic_add v252, %s, s[4:7], 0 offen sc0" % self.vGo, "go")

    def kv_stage(self):
        r, a = self, self.a
        stg = r.of
        l, d = label("gp"), label("gd")
        a("s_add_u32 s49, s49, 16")
        a("s_cmp_lg_u32 %s, %d" % (sWAVE, CFG["PW"]))
        a("s_cbranch_scc1 %s" % d)
        a("s_mov_b32 s42, %d" % CFG["TMO"])
        save = list(a.vm)
        a.wait_vm("go")
        a.vm = save
        a("%s:" % l)
        a("v_readfirstlane_b32 s43, v252")
        a("s_cmp_ge_u32 s43, s49")
        a("s_cbranch_scc1 %s" % d)
        a("v_mov_b32 v252, 0")
        a("buffer_atomic_add v252, %s, s[4:7], 0 offen sc0" % r.vGo)
        a("s_sub_u32 s42, s42, 1")
        a("s_waitcnt vmcnt(0)")
        a("s_cbranch_scc0 %s" % l)
        a("%s:" % d)
        a("s_barrier")
        stamp(a, 5)
        late = list(r.late)
        for k in range(17):
            p, q = divmod(k, 4)
            if k < 16:
                if p and q == 0:
                    a("s_mov_b32 s21, %d" % (3360 * p))
                a.vmem("buffer_load_dwordx4 %s, %s, s[4:7], %s offen offset:%d%s" % (stg.q(k), r.vKg, "s21" if p else "0", q * 800, SC()), ("kv", k))
            else:
                a.vmem("buffer_load_dwordx4 %s, %s, s[4:7], 0 offen%s" % (stg.q(16), r.vZg, SC()), ("kv", 16))
            for _ in range(len(r.late) // 16 + 1):
                if late:
                    a(late.pop(0))
            if k == CFG["KARR"]:
                arrive(a)
            if k == CFG["KPOLL"]:
                a("v_mov_b32 v255, 0")
                a.vmem("buffer_atomic_add v255, %s, s[4:7], 0 offen sc0" % r.vP1, "poll")
        assert not late
        d = label("pdone")
        a("s_cmp_lg_u32 %s, %d" % (sWAVE, CFG["PW"]))
        a("s_cbranch_scc1 %s" % d)
        save = list(a.vm)
        a.wait_vm("poll")
        a.vm = save
        a("v_readfirstlane_b32 s43, v255")
        a("s_cmp_ge_u32 s43, %s" % sTGT)
        a("s_cbranch_scc1 %s" % d)
        for k in range(CFG["NPOLL"] - 1):
            poll_issue(a, k)
        poll_loop(a, d, 0)
        a("%s:" % d)
        phase_open(a, 144)

    def stage(self):
        r, a = self, self.a
        stg = r.of
        for k in range(17):
            a.wait_vm(("kv", k))
            s4 = stg.q(k)
            a("v_cvt_pk_bf16_f32 %s, %s, %s" % (s4[0], s4[0], s4[1]))
            a("v_cvt_pk_bf16_f32 %s, %s, %s" % (s4[1], s4[2], s4[3]))
            if k < 16:
                a.ds("ds_write_b64 %s, %s offset:%d" % (r.vKl, s4[0:2], K2_KV0 + k * 1360), "s")
            else:
                a.ds("ds_write_b64 %s, %s offset:%d" % (r.vZl, s4[0:2], K2_Z0), "s")
            if k % 2 == 1 and r.later:
                r.later.pop(0)()
        r.kvi, r.zi = {}, {}
        cnt = 0
        for gi, kbs in enumerate(K2_ZG):
            for kb in kbs:
                r.zi[(gi, kb)] = r.accB.q(cnt); cnt += 1
        cnt = 0
        for tt in range(10):
            for kb in K2_BAND[tt]:
                r.kvi[(tt, kb)] = r.KVf.q(cnt) if cnt < 19 else r.accB.q(6); cnt += 1
        rds = []
        for gi, kbs in enumerate(K2_ZG):
            for kb in kbs:
                rds.append((r.zi[(gi, kb)],) + ((r.zb[gi], 10 * kb, 10 * kb + 4) if kb < 4 else (r.zb[2 + gi], 0, 1)))
        for tt in range(10):
            for kb in K2_BAND[tt]:
                rds.append((r.kvi[(tt, kb)],) + ((r.bt[tt], 10 * kb, 10 * kb + 4) if kb < 4 else (r.bt4[tt], 0, 1)))
        for n, x in enumerate(rds):
            if CFG["RD2"]:
                a.ds("ds_read2_b64 %s, %s offset0:%d offset1:%d" % x, ("k", n))
            else:
                a.ds("ds_read_b64 %s, %s offset:%d" % (x[0][0:2], x[1], 8 * x[2]), ("k", n))
                a.ds("ds_read_b64 %s, %s offset:%d" % (x[0][2:4], x[1], 8 * x[3]), ("k", n))

    def body(self, nxt):
        r, a = self, self.a
        num, den, of, accB, P, KVf, Wf, tmp = r.num, r.den, r.of, r.accB, r.P, r.KVf, self.Wf, r.tmp
        acc = [[accB.q(j) for j in range(5)]] + [[P.q(5 * i + j) for j in range(5)] for i in range(3)]
        later = []
        for i in range(4):
            for kb in range(5):
                later.append(lambda i=i, kb=kb: a.vmem("buffer_load_dwordx4 %s, %s, s[4:7], %s offen offset:%d%s" % (P.q(5 * i + kb), r.vP[i], "s20" if kb == 4 else "0", (kb % 4) * 1024, SC()), ("p", i)))
        for _ in range(7):
            later.pop(0)()
        stamp(a, 1)
        r.later = later
        self.stage()
        kvi, zi = r.kvi, r.zi

        def A_blk(i):
            out = []
            nb, db = num[i % 2], den[i % 3]
            for gi, kbs in enumerate(K2_ZG):
                for x, kb in enumerate(kbs):
                    out.append(("%s %s, %s, %s, %s" % (MF, db.q(gi), zi[(gi, kb)], P.q(5 * i + kb), r.eps if x == 0 else db.q(gi)), None))
            for tt in range(10):
                for x, kb in enumerate(K2_BAND[tt]):
                    out.append(("%s %s, %s, %s, %s" % (MF, nb.q(tt), kvi[(tt, kb)], P.q(5 * i + kb), "0" if x == 0 else nb.q(tt)), tt if x == 0 else None))
            return out

        def V_blk(i):
            out = []
            nb, db = num[i % 2], den[i % 3]
            for q in range(8):
                out.append((i, -1, "v_rcp_f32 %s, %s" % (db[q], db[q])))
            ns = 0
            for tt in range(10):
                hs = [(16 * tt + 4 * g) // 20 for g in range(4)]
                d = db[hs[0]]
                if hs[3] != hs[0]:
                    cut = hs.index(hs[3]) - 1
                    d = r.dsel[ns]; ns += 1
                    out.append((i, tt, "v_cndmask_b32 %s, %s, %s, s[%d:%d]" % (d, db[hs[0]], db[hs[3]], 50 + 2 * cut, 51 + 2 * cut)))
                for q in range(4):
                    out.append((i, tt, "v_mul_f32 %s, %s, %s" % (nb.q(tt)[q], nb.q(tt)[q], d)))
                o = of.q(5 * i + tt // 2)
                out.append((i, tt, "v_cvt_pk_bf16_f32 %s, %s, %s" % (o[2 * (tt % 2)], nb.q(tt)[0], nb.q(tt)[1])))
                out.append((i, tt, "v_cvt_pk_bf16_f32 %s, %s, %s" % (o[2 * (tt % 2) + 1], nb.q(tt)[2], nb.q(tt)[3])))
            return out

        vq = []
        st = dict(n=0)
        def need_v(i, tt):
            while vq and (vq[0][0], vq[0][1]) <= (i, tt):
                a(vq.pop(0)[2])
        def host(text):
            a(text)
            st["n"] += 1
            if st["n"] % CFG["SP2"] == 1 and later:
                later.pop(0)()
                k = 1
            else:
                k = 2
            for _ in range(k):
                if vq:
                    x = vq.pop(0)[2]
                    a(x)
                    if x.startswith("v_rcp"):
                        break

        a.wait_vm(("p", 0))
        stamp(a, 2)
        vq += [(-1, 0, x) for x in nxt.pre_setup()]
        for x, (t_, tt) in enumerate(A_blk(0)):
            a.wait_lg(("k", x))
            a(t_)
            if x % 4 == 1 and later:
                later.pop(0)()
            elif vq:
                a(vq.pop(0)[2])
        assert not later and not vq
        a("s_barrier")
        later += r.wo_rest + nxt.pre_loads()
        for i in range(1, 4):
            vq += V_blk(i - 1)
            a.wait_vm(("p", i))
            for t_, tt in A_blk(i):
                if tt is not None:
                    need_v(i - 2, tt)
                host(t_)
        vq += V_blk(3)
        a.wait_vm("wo")
        res = num[0][0:12]
        part = of[0:60]
        for i in range(4):
            ac = acc[(i + 1) % 4]
            for kb in range(5):
                need_v(i, 2 * kb + 1)
                for j in range(5):
                    host("%s %s, %s, %s, %s" % (MF, ac[j], Wf.q(5 * kb + j), of.q(5 * i + kb), "0" if kb == 0 else ac[j]))
                    if i >= 1 and j == 2:
                        a.ds("ds_write_b128 %s, %s offset:%d" % (r.vW[i - 1], acc[i][kb], kb * 1024), "rw")
                if kb == 0 and i == 3:
                    p_res_loads(a, res, r.vRes)
        assert not vq
        p_epilogue(a, r, acc, res, part, tmp, XB - XA, later, False)


def main_body():
    a = Asm()
    a("s_cmp_ge_u32 s2, 256")
    a("s_cbranch_scc1 L_end")
    a("s_load_dwordx2 s[4:5], s[0:1], 72")
    a("s_load_dwordx4 s[84:87], s[0:1], 0")
    a("s_load_dwordx2 s[88:89], s[0:1], 16")
    a("s_load_dwordx2 s[90:91], s[0:1], 32")
    a("s_load_dwordx2 s[92:93], s[0:1], 40")
    a("s_load_dwordx2 s[96:97], s[0:1], 48")
    a("s_load_dwordx2 s[94:95], s[0:1], 64")
    if CFG["DBGT"]:
        a("s_memrealtime s[80:81]")
        a("s_mov_b32 s62, 4")
    if PROF:
        a("s_mov_b32 %s, 0" % sPH)
        a("s_memrealtime s[80:81]")
    stamp(a, 0)
    a("v_lshrrev_b32 v1, 6, v0")
    a("s_and_b32 s16, s2, 7")
    a("v_readfirstlane_b32 %s, v1" % sWAVE)
    a("s_lshr_b32 s17, s2, 3")
    a("v_and_b32 v1, 63, v0")
    a("v_lshlrev_b32 v2, 4, v1")
    a("v_and_b32 %s, 15, v1" % vN)
    a("v_lshrrev_b32 %s, 4, v1" % vG)
    a("s_lshr_b32 %s, s16, 1" % sRB)
    a("s_lshl_b32 %s, %s, 2" % (sRB, sRB))
    a("s_and_b32 s18, s17, 3")
    a("s_add_u32 %s, %s, s18" % (sRB, sRB))
    a("s_lshr_b32 s17, s17, 2")
    a("s_and_b32 s16, s16, 1")
    a("s_lshl_b32 %s, s16, 3" % sP)
    a("s_add_u32 %s, %s, s17" % (sP, sP))
    a("s_lshl_b32 %s, %s, 1" % (sRB64, sRB))
    a("s_and_b32 s18, s17, 1")
    a("s_add_u32 %s, %s, s18" % (sRB64, sRB64))
    a("s_lshl_b32 %s, s16, 2" % sCG)
    a("s_lshr_b32 s18, s17, 1")
    a("s_add_u32 %s, %s, s18" % (sCG, sCG))
    a("s_and_b32 s18, %s, %d" % (sRB, 3 if CFG["ROT"] else 0))
    a("s_mul_i32 %s, s18, 3" % sROT12)
    a("s_mul_i32 %s, s18, 5" % sROT10)
    a("s_lshr_b32 %s, %s, 1" % (sROT10, sROT10))
    a("s_mov_b32 s6, %d" % WS_USED)
    a("s_mov_b32 s7, 0x20000")
    a("s_mov_b32 %s, 0" % sLAY)
    a("s_mov_b32 %s, 0" % sTGT)
    a("s_lshl_b32 s17, %s, 11" % sRB)
    a("s_add_u32 s17, s17, %d" % CNT)
    a("v_lshl_add_u32 %s, %s, 7, s17" % (vCNT, vN))
    a("v_mov_b32 v255, 0x%x" % OOB)
    a("v_cmp_gt_u32 vcc, 16, v1")
    a("s_lshl_b32 s18, %s, 7" % sP)
    a("s_add_u32 s17, s17, s18")
    a("v_cndmask_b32 %s, v255, %s, vcc" % (vCNT, vCNT))
    a("v_mov_b32 %s, s17" % vPL)
    a("v_cmp_eq_u32 vcc, 0, v1")
    a("v_cndmask_b32 %s, v255, %s, vcc" % (vPL, vPL))
    p1, p2, p3, p4 = P1(a), P2(a), P3(a), P4(a)
    p0_phase(a, p1)
    for f in p1.pre_loads(CFG["NPRE1A"]):
        f()
    a.vm = []
    p1.body(p2, CFG["NPRE1A"], True)
    tail_state = a.vm[a.vm.index("go"):]
    a("L_mid:")
    p2.kv_stage()
    p2.body(p3)
    stamp(a, 5); p3.before_wait(); arrive(a); wait(a, p3.wait_loads())
    p3.body(p4)
    stamp(a, 5); p4.before_wait(); arrive(a, p4.drain_loads()); wait(a, p4.wait_loads())
    p4.body(p1)
    stamp(a, 5)
    a("s_add_u32 %s, %s, %d" % (sLAY, sLAY, LSTR))
    a.weave = Weaver(a, p4.drain, 12)
    p1.before_wait(a.weave); a.weave.flush(); arrive(a); wait(a, p4.rest)
    p1.body(p2, CFG["NPRE1"])
    assert a.vm[a.vm.index("go"):] == tail_state
    a("s_branch L_mid")
    final_store(a, p4.res, p4.tmp)
    a("L_end:")
    a("s_endpgm")
    a("L_code_end:")
    return a, dict(vgpr=512, acc=256, lds=163840)


def p0_phase(a, p1):
    U1, UX, U2, UZ, U3, U4 = 160, 256, 100, 39, 480, 240
    BX = U1; B2 = BX + UX; BZ = B2 + U2; BE = BZ + UZ
    NT = " nt" if CFG["K0NT"] & 1 else ""
    n_, g_ = "v3", "v4"
    DST = [82, 83, 86, 87, 88, 89, 98, 99]

    def nat_flag(kb):
        a("s_mul_i32 s29, %s, 52" % kb)
        a("s_lshr_b32 s29, s29, 8")
        a("s_mul_i32 s29, s29, 5")
        a("s_sub_u32 s29, %s, s29" % kb)
        a("s_cmp_eq_u32 s29, 2")

    def colsum(j, frag):
        a("%s v[%d:%d], v[56:59], %s, 0" % (MF, 64 + 4 * (j % 4), 67 + 4 * (j % 4), frag))

    def colsum_keep(j):
        a("v_cndmask_b32 v%d, v%d, v%d, s[%d:%d]" % (60 + j // 4, 60 + j // 4, 64 + 4 * (j % 4), 50 + 2 * (j % 4), 51 + 2 * (j % 4)))

    def issue128(srd, rs, kb, ch, lds, v):
        a("v_mul_lo_u32 %s, %s, %s" % (v, g_, rs))
        a("v_lshl_add_u32 %s, %s, 4, %s" % (v, n_, v))
        a("s_mul_i32 s17, %s, %s" % (kb, rs))
        a("s_lshl_b32 s17, s17, 5")
        a("s_lshl_b32 s19, %s, 8" % ch)
        a("s_add_u32 s17, s17, s19")
        a("s_lshl_b32 s19, %s, 2" % rs)
        for i in range(8):
            a("s_add_u32 m0, %s, %d" % (lds, i * 1024))
            a("s_nop 0")
            a("buffer_load_dwordx4 %s, %s, s17 offen%s lds" % (v, srd, NT))
            a("s_add_u32 s17, s17, s19")

    def rdaddr128(lds):
        a("v_lshrrev_b32 v230, 2, %s" % n_)
        a("v_lshl_add_u32 v230, %s, s29, v230" % g_)
        a("v_lshlrev_b32 v230, 8, v230")
        a("v_and_b32 v231, 3, %s" % n_)
        a("v_lshl_add_u32 v230, v231, 3, v230")
        a("v_add_u32 v230, %s, v230" % lds)
        a("v_add_u32 v231, s30, v230")

    def dst640(kb, ch, nkb, base):
        for i in range(8):
            a("s_lshl_b32 s17, %s, 3" % ch)
            a("s_add_u32 s17, s17, %d" % i)
            a("s_mul_i32 s19, s17, 52")
            a("s_lshr_b32 s19, s19, 8")
            a("s_mul_i32 s28, s19, 5")
            a("s_sub_u32 s17, s17, s28")
            a("s_and_b32 s28, s19, 1")
            a("s_sub_u32 s17, s17, s28")
            a("s_cselect_b32 s17, 4, s17")
            a("s_mul_i32 s19, s19, %d" % nkb)
            a("s_add_u32 s19, s19, %s" % kb)
            a("s_mul_i32 s19, s19, 5")
            a("s_add_u32 s19, s19, s17")
            a("s_lshl_b32 s19, s19, 10")
            a("s_add_u32 s%d, s19, %d" % (DST[i], base))

    def move128():
        for t in range(8):
            for h in range(2):
                a.ds("ds_read_b64_tr_b16 v[%d:%d], v%d offset:%d" % (96 + 4 * t + 2 * h, 97 + 4 * t + 2 * h, 230 + h, t * 32), ("t", t))
        for t in range(8):
            a.wait_lg(("t", t))
            a("buffer_store_dwordx4 v[%d:%d], v2, s[4:7], s%d offen sc1" % (96 + 4 * t, 99 + 4 * t, DST[t]))

    a("s_lshl_b32 s38, %s, 8" % sWAVE)
    a("s_add_u32 s38, s38, s2")
    a("s_sub_u32 s16, s38, 160")
    a("s_cmp_lt_u32 s2, 160")
    a("s_cselect_b32 s16, s2, s16")
    a("s_cmp_eq_u32 %s, 2" % sWAVE)
    a("s_cselect_b32 s38, s16, s38")
    a("s_add_u32 s39, s2, 256")
    a("s_sub_u32 s16, 767, s2")
    a("s_cmp_eq_u32 %s, 2" % sWAVE)
    a("s_cselect_b32 s39, s16, s39")
    a("s_cmp_eq_u32 %s, 3" % sWAVE)
    a("s_cselect_b32 s39, s2, s39")
    a("s_cmp_eq_u32 %s, 0" % sWAVE)
    a("s_cselect_b32 s39, 0x1000, s39")
    a("s_lshl_b32 s18, %s, 14" % sWAVE)
    a("s_lshl_b32 s37, %s, 13" % sWAVE)
    a("s_add_u32 s37, s37, 0x20000")
    a("s_mov_b32 s23, 0x20000\ns_mov_b32 s35, 0x20000")
    a("s_cmp_lt_u32 s38, %d" % BX)
    a("s_cbranch_scc1 L_i_w1")
    a("s_cmp_lt_u32 s38, %d" % B2)
    a("s_cbranch_scc1 L_i_x")
    a("s_cmp_lt_u32 s38, %d" % BZ)
    a("s_cbranch_scc1 L_i_w2")
    a("s_waitcnt lgkmcnt(0)")
    a("s_cmp_lt_u32 s38, %d" % BE)
    a("s_cbranch_scc0 L_i_b")
    a("s_sub_u32 s16, s38, %d" % BZ)
    a("s_cmp_ge_u32 s16, 14")
    a("s_cselect_b32 s17, %d, 0" % (LSTR - 14 * 4096))
    a("s_cmp_ge_u32 s16, 28")
    a("s_cselect_b32 s17, 0x%x, s17" % ((CS3F - KV - 28 * 4096) & 0xffffffff))
    a("s_cmp_ge_u32 s16, 31")
    a("s_cselect_b32 s17, 0x%x, s17" % ((CNT - KV - 31 * 4096) & 0xffffffff))
    a("s_add_u32 s17, s17, %d" % KV)
    a("s_lshl_b32 s16, s16, 12")
    a("s_add_u32 s17, s17, s16")
    for q in range(4):
        a("v_mov_b32 v%d, 0" % (16 + q))
    for q in range(4):
        a("buffer_store_dwordx4 v[16:19], v2, s[4:7], s17 offen offset:%d sc1" % (q * 1024))
    a("s_branch L_i_b")

    a("L_i_w1:")
    a("s_lshr_b32 s24, s38, 3")
    a("s_and_b32 s25, s38, 7")
    a("v_mul_u32_u24 v12, 205, v1")
    a("v_lshrrev_b32 v12, 11, v12")
    a("v_mul_u32_u24 v13, 10, v12")
    a("v_sub_u32 v13, v1, v13")
    a("v_cmp_le_u32 vcc, 3, v12")
    a("v_cndmask_b32 v14, 0, 1, vcc")
    a("v_mul_u32_u24 v15, 3, v14")
    a("v_sub_u32 v12, v12, v15")
    a("v_add_u32 v12, 1, v12")
    a("v_cmp_eq_u32 vcc, 3, v12")
    a("v_cndmask_b32 v12, v12, 0, vcc")
    a("v_mul_u32_u24 v12, 1280, v12")
    a("v_lshl_add_u32 v12, v13, 4, v12")
    a("v_mul_u32_u24 v14, 3840, v14")
    a("s_mul_i32 s17, s24, %d" % (32 * 3840))
    a("s_mul_i32 s19, s25, 160")
    a("s_add_u32 s17, s17, s19")
    a("s_mul_i32 s19, %s, %d" % (sWAVE, 8 * 3840))
    a("s_add_u32 s17, s17, s19")
    a("s_lshl_b32 s18, %s, 12" % sWAVE)
    a("v_add3_u32 v12, v12, v14, s17")
    a("v_mov_b32 v13, 0x%x" % OOB)
    a("v_cmp_gt_u32 vcc, 60, v1")
    a("v_cndmask_b32 v12, v13, v12, vcc")
    a("s_mov_b32 s22, %d" % (640 * 1920 * 2))
    a("s_waitcnt lgkmcnt(0)")
    a("s_mov_b32 s20, s86\ns_mov_b32 s21, s87")
    for i in range(8):
        a("s_add_u32 m0, s18, %d" % (i * 1024))
        a("s_mov_b32 s19, %d" % (i * 7680))
        a("buffer_load_dwordx4 v12, s[20:23], s19 offen%s lds" % (" nt" if CFG["K0NT"] & 2 else ""))
    a("s_branch L_i_b")

    a("L_i_x:")
    a("s_sub_u32 s16, s38, %d" % BX)
    a("s_lshr_b32 s24, s16, 1")
    a("s_and_b32 s25, s16, 1")
    a("s_mul_i32 s17, s24, 20480")
    a("s_mul_i32 s19, s25, 640")
    a("s_add_u32 s19, s19, s17")
    a("v_mul_u32_u24 v12, 1280, %s" % n_)
    a("v_lshl_add_u32 v13, %s, 4, v12" % g_)
    a("s_mov_b32 s22, %d" % (S * D * 2))
    a("s_waitcnt lgkmcnt(0)")
    a("s_mov_b32 s20, s84\ns_mov_b32 s21, s85")
    for kb in range(10):
        a("buffer_load_dwordx4 v[%d:%d], v13, s[20:23], s19 offen offset:%d%s" % (96 + 4 * kb, 99 + 4 * kb, kb * 64, " nt" if CFG["K0NT"] & 4 else ""))
    a("s_branch L_i_b")

    a("L_i_w2:")
    a("s_sub_u32 s16, s38, %d" % B2)
    a("s_mul_i32 s24, s16, 52429")
    a("s_lshr_b32 s24, s24, 18")
    a("s_mul_i32 s17, s24, 5")
    a("s_sub_u32 s25, s16, s17")
    a("s_mov_b32 s22, %d\ns_mov_b32 s16, 1280" % (640 * 640 * 2))
    a("s_waitcnt lgkmcnt(0)")
    a("s_mov_b32 s20, s88\ns_mov_b32 s21, s89")
    issue128("s[20:23]", "s16", "s24", "s25", "s18", "v12")

    a("L_i_b:")
    a("s_cmp_eq_u32 %s, 3" % sWAVE)
    a("s_cbranch_scc0 L_i_c")
    a("s_cmp_eq_u32 %s, 0" % sP)
    a("s_cbranch_scc0 L_i_c")
    for q in range(4):
        a("v_mov_b32 v%d, 0" % (16 + q))
    a("s_lshl_b32 s17, %s, 7" % sRB)
    a("s_add_u32 s17, s17, %d" % CNT_C)
    a("s_mov_b64 exec, 0xff")
    a("buffer_store_dwordx4 v[16:19], v2, s[4:7], s17 offen sc1")
    a("buffer_store_dwordx4 v[16:19], v2, s[4:7], s17 offen offset:%d sc1" % (CNT_G - CNT_C))
    a("s_mov_b64 exec, -1")
    a("L_i_c:")
    a("s_barrier")
    a("s_cmp_eq_u32 %s, 3" % sWAVE)
    a("s_cbranch_scc0 L_i_b1")
    a("s_cmp_eq_u32 %s, 0" % sP)
    a("s_cbranch_scc0 L_i_b0")
    a("s_mov_b64 exec, 1")
    a("v_mov_b32 v16, 1")
    a("s_waitcnt vmcnt(0)")
    a("global_atomic_add v2, v16, s[94:95]")
    a("s_mov_b64 exec, -1")
    a("L_i_b0:")
    if CFG["CPF"]:
        a("s_getpc_b64 s[32:33]")
        a("L_pc:")
        a("s_lshr_b32 s17, s2, 3")
        a("s_lshl_b32 s17, s17, 11")
        a("v_add_u32 v12, s17, v2")
        a("v_min_u32 v12, L_code_end-L_pc-1040, v12")
        a("v_mov_b32 v15, s33")
        a("v_add_co_u32 v14, vcc, s32, v12")
        a("v_addc_co_u32 v15, vcc, 0, v15, vcc")
        a("global_load_dwordx4 v[236:239], v[14:15], off")
        a("global_load_dwordx4 v[236:239], v[14:15], off offset:1024")
    a("L_i_b1:")

    a("L_p_a:")
    stamp(a, 1)
    for q in range(4):
        a("v_cmp_eq_u32 s[%d:%d], %d, %s" % (50 + 2 * q, 51 + 2 * q, q, g_))
        a("v_mov_b32 v%d, 0x3f803f80" % (56 + q))

    def wait_a():
        a("s_waitcnt vmcnt(0)")
        stamp(a, 2)
        a("s_barrier")
    a("s_cmp_lt_u32 s38, %d" % BX)
    a("s_cbranch_scc1 L_p_w1")
    a("s_cmp_lt_u32 s38, %d" % B2)
    a("s_cbranch_scc1 L_p_x")
    a("s_cmp_lt_u32 s38, %d" % BZ)
    a("s_cbranch_scc1 L_p_w2")
    a("s_barrier")
    a("s_branch L_drain")

    a("L_p_w1:")
    a("s_mov_b32 s29, 2\ns_mov_b32 s30, 2048")
    a("v_lshrrev_b32 v12, 3, %s" % n_)
    a("v_lshl_add_u32 v12, %s, s29, v12" % g_)
    a("v_lshlrev_b32 v12, 10, v12")
    a("v_bfe_u32 v14, %s, 2, 1" % n_)
    a("v_mul_u32_u24 v14, 480, v14")
    a("s_mul_i32 s18, %s, 40" % sWAVE)
    a("v_add3_u32 v12, v12, v14, s18")
    a("v_and_b32 v14, 3, %s" % n_)
    a("v_lshlrev_b32 v14, 2, v14")
    for j in range(8):
        a("v_add_u32 v15, %d, v14" % (16 * j))
        a("v_mul_u32_u24 v32, 205, v15")
        a("v_lshrrev_b32 v32, 13, v32")
        a("v_min_u32 v32, 2, v32")
        a("v_mul_u32_u24 v32, 80, v32")
        a("v_lshl_add_u32 v32, v15, 1, v32")
        a("v_add_u32 v%d, v12, v32" % (16 + j))
        a("v_add_u32 v%d, s30, v%d" % (24 + j, 16 + j))
    a("s_lshl_b32 s17, s25, 1")
    a("s_lshr_b32 s19, %s, 1" % sWAVE)
    a("s_add_u32 s17, s17, s19")
    a("s_mul_i32 s17, s17, 163840")
    a("s_add_u32 s17, s17, %d" % W1)
    a("s_mul_i32 s19, s24, 6144")
    a("s_add_u32 s19, s19, s17")
    a("v_add_u32 v33, s19, v2")
    a("s_lshl_b32 s19, s24, 11")
    a("s_add_u32 s19, s19, s17")
    a("s_add_u32 s19, s19, %d" % (120 * 1024))
    a("v_add_u32 v34, s19, v2")
    a("s_lshl_b32 s17, s24, 13")
    a("s_lshl_b32 s19, s25, 10")
    a("s_add_u32 s17, s17, s19")
    a("s_lshl_b32 s19, %s, 8" % sWAVE)
    a("s_add_u32 s17, s17, s19")
    a("s_add_u32 s17, s17, %d" % CSP1)
    a("v_lshl_add_u32 v35, v1, 2, s17")
    a("s_mov_b32 s82, 4096")
    wait_a()
    for j in range(8):
        for h in range(2):
            a.ds("ds_read_b64_tr_b16 v[%d:%d], v%d" % (96 + 4 * j + 2 * h, 97 + 4 * j + 2 * h, 16 + j + 8 * h), ("t", j))
    for j in range(8):
        a.wait_lg(("t", j))
        fr = "v[%d:%d]" % (96 + 4 * j, 99 + 4 * j)
        if j < 6:
            a("buffer_store_dwordx4 %s, v33, s[4:7], %s offen offset:%d sc1" % (fr, ["0", "s82"][j // 4], (j % 4) * 1024))
        else:
            a("buffer_store_dwordx4 %s, v34, s[4:7], 0 offen offset:%d sc1" % (fr, (j - 6) * 1024))
        colsum(j, fr)
        if j >= 2:
            colsum_keep(j - 2)
    colsum_keep(6); colsum_keep(7)
    for q in range(2):
        a("buffer_store_dword v%d, v35, s[4:7], 0 offen offset:%d sc1" % (60 + q, q * 256))
    a("s_branch L_drain")

    a("L_p_x:")
    a("s_mul_i32 s17, s24, 20480")
    a("s_mul_i32 s19, s25, 10240")
    a("s_add_u32 s17, s17, s19")
    a("s_add_u32 s17, s17, %d" % XA)
    a("v_add_u32 v12, s17, v2")
    a("s_mov_b32 s82, 4096\ns_mov_b32 s83, 8192")
    for q in range(4):
        a("v_mov_b32 v%d, 0" % (16 + q))
    a("s_mov_b32 s28, 0x3f803f80")
    a("s_lshl_b32 s17, s24, 10")
    a("s_lshl_b32 s19, s25, 7")
    a("s_add_u32 s17, s17, s19")
    a("s_add_u32 s17, s17, %d" % STA)
    a("v_lshlrev_b32 v14, 3, %s" % n_)
    a("v_lshl_add_u32 v14, %s, 8, v14" % g_)
    wait_a()
    for kb in range(10):
        a("buffer_store_dwordx4 v[%d:%d], v12, s[4:7], %s offen offset:%d sc1" % (96 + 4 * kb, 99 + 4 * kb, ["0", "s82", "s83"][kb // 4], (kb % 4) * 1024))
    for kb in range(10):
        for d in range(4):
            a("v_dot2c_f32_bf16 v%d, s28, v%d" % (16 + 2 * (d % 2), 96 + 4 * kb + d))
            a("v_dot2c_f32_bf16 v%d, v%d, v%d" % (17 + 2 * (d % 2), 96 + 4 * kb + d, 96 + 4 * kb + d))
    a(pk("add", Reg("v", 16, 2), Reg("v", 16, 2), Reg("v", 18, 2)))
    a("buffer_store_dwordx2 v[16:17], v14, s[4:7], s17 offen sc1")
    a("s_branch L_drain")

    a("L_p_w2:")
    a("s_mov_b32 s29, 2\ns_mov_b32 s30, 4096")
    rdaddr128("s18")
    dst640("s24", "s25", 20, W2)
    wait_a()
    move128()

    a("L_drain:")
    stamp(a, 3)
    a("v_mov_b32 v226, 0x%x\nv_mov_b32 v227, 0x%x\nv_mov_b32 v228, 0x%x" % (OOB, OOB, OOB))
    for t in range(8):
        a("s_mov_b32 s%d, 0" % DST[t])
    a("s_mov_b32 s31, 0")
    a("s_cmp_lt_u32 s39, %d" % U3)
    a("s_cbranch_scc1 L_d_w3")
    a("s_cmp_lt_u32 s39, %d" % (U3 + U4))
    a("s_cbranch_scc0 L_d_done")
    a("s_sub_u32 s16, s39, %d" % U3)
    a("s_mul_i32 s36, s16, 52429")
    a("s_lshr_b32 s36, s36, 18")
    a("s_mul_i32 s17, s36, 5")
    a("s_sub_u32 s58, s16, s17")
    a("s_mov_b32 s31, 3\ns_mov_b32 s34, %d\ns_mov_b32 s48, 1280" % (1536 * 640 * 2))
    a("s_mov_b32 s32, s96\ns_mov_b32 s33, s97")
    dst640("s36", "s58", 48, W4)
    a("s_mov_b32 s29, 2\ns_mov_b32 s30, 4096")
    a("s_branch L_d_rd")
    a("L_d_w3:")
    a("s_mul_i32 s36, s39, 43691")
    a("s_lshr_b32 s36, s36, 20")
    a("s_mul_i32 s17, s36, 24")
    a("s_sub_u32 s58, s39, s17")
    a("s_and_b32 s31, s58, 1")
    a("s_lshr_b32 s58, s58, 1")
    a("s_mov_b32 s34, %d\ns_mov_b32 s48, 3072" % (640 * 1536 * 2))
    a("s_cmp_eq_u32 s31, 1")
    a("s_cselect_b32 s32, s92, s90")
    a("s_cselect_b32 s33, s93, s91")
    a("s_add_u32 s31, s31, 1")
    for i in range(8):
        a("s_lshl_b32 s17, s58, 3")
        a("s_add_u32 s17, s17, %d" % i)
        a("s_mul_i32 s19, s17, 43")
        a("s_lshr_b32 s19, s19, 8")
        a("s_mul_i32 s28, s19, 6")
        a("s_sub_u32 s17, s17, s28")
        a("s_lshl_b32 s17, s17, 1")
        a("s_add_u32 s17, s17, s31")
        a("s_sub_u32 s17, s17, 1")
        a("s_mul_i32 s28, s19, 12")
        a("s_add_u32 s28, s28, s17")
        a("s_lshl_b32 s28, s28, 6")
        a("s_add_u32 s28, s28, %d" % CS3F)
        a("v_lshl_add_u32 v232, %s, 2, s28" % n_)
        a("v_cndmask_b32 v%d, v%d, v232, s[%d:%d]" % (226 + i // 4, 226 + i // 4, 50 + 2 * (i % 4), 51 + 2 * (i % 4)))
        a("s_mul_i32 s19, s19, 20")
        a("s_add_u32 s19, s19, s36")
        a("s_mul_i32 s19, s19, 12")
        a("s_add_u32 s19, s19, s17")
        a("s_lshl_b32 s19, s19, 10")
        a("s_add_u32 s%d, s19, %d" % (DST[i], W3))
    a("s_mov_b32 s29, 3\ns_mov_b32 s30, 1024")
    a("L_d_rd:")
    rdaddr128("s37")
    a("L_d_done:")
    for l in p1.pre_setup():
        a(l)
    p1.before_wait()
    a("s_cmp_eq_u32 %s, 3" % sWAVE)
    a("s_cbranch_scc0 L_clr_ok")
    a("s_mov_b32 s42, %d" % CFG["TMO"])
    a("v_mov_b32 v232, 0")
    a("L_clr:")
    a("global_load_dword v233, v232, s[94:95] sc1")
    a("s_waitcnt vmcnt(0)")
    a("v_readfirstlane_b32 s43, v233")
    a("s_cmp_ge_u32 s43, 16")
    a("s_cbranch_scc1 L_clr_ok")
    a("s_sleep 8")
    a("s_sub_u32 s42, s42, 1")
    a("s_cbranch_scc0 L_clr")
    a("L_clr_ok:")
    a("s_waitcnt vmcnt(0)")
    stamp(a, 4)
    a("s_barrier")
    a("s_cmp_lg_u32 %s, 0" % sWAVE)
    a("s_cbranch_scc1 L_p_b")
    a("s_lshl_b32 s17, %s, 7" % sRB)
    a("s_add_u32 s17, s17, %d" % CNT_C)
    a("s_mov_b64 exec, 1")
    a("v_mov_b32 v232, 1")
    a("buffer_atomic_add v232, v2, s[4:7], s17 offen sc0")
    a("s_add_u32 s17, s17, %d" % (CNT_G - CNT_C))
    a("s_waitcnt vmcnt(0)")
    a("v_readfirstlane_b32 s43, v232")
    a("s_cmp_eq_u32 s43, 15")
    a("s_cbranch_scc0 L_arr2")
    a("s_mov_b64 exec, 0xffff")
    a("v_mov_b32 v232, 1")
    a("v_lshlrev_b32 v233, 7, v1")
    a("s_mov_b32 s19, %d" % CNT_G)
    a("buffer_atomic_add v232, v233, s[4:7], s19 offen")
    a("s_mov_b64 exec, 1")
    a("L_arr2:")
    stamp(a, 5)
    a("s_mov_b32 s42, %d" % CFG["TMO"])
    a("L_gop:")
    a("v_mov_b32 v255, 0")
    a("buffer_atomic_add v255, v2, s[4:7], s17 offen sc0")
    a("s_waitcnt vmcnt(0)")
    a("v_readfirstlane_b32 s43, v255")
    a("s_cmp_ge_u32 s43, 16")
    a("s_cbranch_scc1 L_go0")
    a("s_sub_u32 s42, s42, 1")
    a("s_cbranch_scc0 L_gop")
    a("L_go0:")
    a("s_mov_b64 exec, -1")
    a("s_branch L_go")
    a("L_p_b:")
    a("s_cmp_eq_u32 s31, 0")
    a("s_cbranch_scc1 L_go")
    issue128("s[32:35]", "s48", "s36", "s58", "s37", "v232")
    stamp(a, 5)
    a("s_waitcnt vmcnt(0)")
    stamp(a, 6)
    a("v_mov_b32 v228, v2")
    for t in range(8):
        for h in range(2):
            a.ds("ds_read_b64_tr_b16 a[%d:%d], v%d offset:%d" % (192 + 4 * t + 2 * h, 193 + 4 * t + 2 * h, 230 + h, t * 32), ("t", t))
    p1.bstores = [(lambda t=t: a.vmem("buffer_store_dwordx4 a[%d:%d], v228, s[4:7], s%d offen sc1" % (192 + 4 * t, 195 + 4 * t, DST[t]), "bst")) for t in range(8)]
    if not CFG["BST"]:
        for t in range(8):
            a.wait_lg(("t", t))
            p1.bstores[t]()
        p1.bstores = []
    for t in range(8):
        a.wait_lg(("t", t))
        colsum(t, "a[%d:%d]" % (192 + 4 * t, 195 + 4 * t))
        if t >= 2:
            colsum_keep(t - 2)
    colsum_keep(6); colsum_keep(7)
    a("L_go:")
    stamp(a, 7)
    a("s_mov_b32 s49, 16")
    phase_open(a)
    a("buffer_atomic_add_f32 v60, v226, s[4:7], 0 offen")
    a("buffer_atomic_add_f32 v61, v227, s[4:7], 0 offen")


def build_all():
    _lbl[0] = 0
    a, info = main_body()
    k = NAME + "_kernel"
    out = "; @launch grid=(256,1,1) block=(256,1,1) lds=%d\n" % info["lds"]
    out += '.amdgcn_target "amdgcn-amd-amdhsa--gfx950"\n'
    st = {}
    txt = a.text(stats=st)
    sys.stderr.write("%d lines, pad states %d\n" % (txt.count("\n"), st["pad"]))
    return out + entry(k) + txt + kd(k, info["vgpr"], 100, info["acc"])


if __name__ == "__main__":
    import argparse
    ap = argparse.ArgumentParser()
    ap.add_argument("-o", default="cdna_kernels/%s.s" % NAME)
    ap.add_argument("--cfg", default="")
    args = ap.parse_args()
    for kv in args.cfg.split(","):
        if kv:
            k, v = kv.split("="); CFG[k] = int(v)
    txt = build_all()
    open(args.o, "w").write(txt)
```

```python
import sys, struct
from asmlib import *

S, D, F = 2048, 640, 1536
NAME = "interleave_layers__linear_attn_block__geglu_ffn__prompt"

_off = 0
def ws(n):
    global _off
    o = _off
    _off += (n + 4095) // 4096 * 4096
    return o
W1 = ws(16 * 20 * 8 * 1024)
W2 = ws(8 * 20 * 5 * 1024)
W3 = ws(16 * 20 * 12 * 1024)
W4 = ws(8 * 48 * 5 * 1024)
CSP1 = ws(20 * 2048 * 4)
CS3F = ws(3072 * 4)
CSW = ws(256 * 512)
CNT = ws(3 * 256 * 128)
CNT_G = CNT + 2 * 256 * 128
XA = ws(128 * 20 * 1024); STA = ws(2048 * 64); KV = ws(14 * 4096); PQ = ws(128 * 20 * 1024)
XB = ws(128 * 20 * 1024); STB = ws(2048 * 64); H = ws(128 * 48 * 1024)
LSTR = _off - XA
ws(LSTR)
PROFO = ws(9 * 256 * 4 * 64)
WS_USED = _off
OOB = 0x40000000
PROF = False
CFG = dict(NPRE1=7, NPRE3=5, NW4P=10, SPX=4, NW4L=24, NW4E=18, NW4D=7, NW4W=6, NP1W=8, NW2D=8, NW2L=6, SP4=4, HOT=0, LEAD=26, RATE=10, RA1=6, CPF=1, NPRE1A=2, P1A=8, XPRE=0, SLK=14, SPAN1A=108, SPAN1=108, BPOS=1, ARRK=10, ZF1=2, SP2=6, DBG=0, KARR=5, KPOLL=10, RD2=0, ZFP=3, NWQ=8, ZFQ=0, ZFK=2, KSTG=10, EW1=12, NX1=7, NX2=4, NX3=5, PP=10, PP4=12, BARR=5, BPOLL=13, F1=48, SPLIT=0, XW=8, NE3=4, NW4Q=0, SATOM=0, W1O=32768, TLB=0, K0NT=0, BST=1, DBGT=0, RT=0, SPAN=0, NODS=0, B2O=0, SC=1, PD1=6, PD3=6, P1=8, P3=8, TMO=30000, ROT=0, NPOLL=3, EW3=16, PW=1, PSL=0)

def f32(x):
    return "0x%08x" % struct.unpack("<I", struct.pack("<f", x))[0]
LOG2E = 1.4426950408889634
MF = "v_mfma_f32_16x16x32_bf16"
H2 = [slice(0, 2), slice(2, 4)]

sWAVE, sRB, sP, sRB64, sCG, sLAY, sTGT, sPH = "s10", "s11", "s12", "s13", "s14", "s15", "s40", "s41"
sROT10, sROT12 = "s8", "s9"
vN, vG = Reg("v", 3, 1), Reg("v", 4, 1)
vCNT, vPL, vPG = Reg("v", 5, 1), Reg("v", 6, 1), Reg("v", 7, 1)
vPRE = Reg("v", 8, 4)
VBASE = 12

KORD = [0, 3, 5, 8, 10, 13, 15, 18, 1, 2, 4, 6, 7, 9, 11, 12, 14, 16, 17, 19]
KPOS = [KORD.index(k) for k in range(20)]

def kpos_scalar(a, dst, kb):
    a("s_mul_i32 s28, %s, 52" % kb)
    a("s_lshr_b32 s28, s28, 8")
    a("s_mul_i32 s17, s28, 5")
    a("s_sub_u32 s17, %s, s17" % kb)
    a("s_lshl_b32 s17, s17, 2")
    a("s_lshr_b32 s19, 0xa1980, s17")
    a("s_and_b32 s19, s19, 15")
    a("s_cmp_ge_u32 s19, 8")
    a("s_cselect_b32 s17, 3, 2")
    a("s_mul_i32 s17, s17, s28")
    a("s_add_u32 %s, s17, s19" % dst)


def SC():
    return " sc1" if CFG["SC"] else ""


def stamp(a, i):
    if PROF:
        a("%s s[%d:%d]" % ("s_memrealtime" if CFG["RT"] else "s_memtime", 60 + 2 * i, 61 + 2 * i))

def stamp_dump(a, vb=240):
    if not PROF:
        return
    a("s_memrealtime s[78:79]")
    a("s_lshl_b32 s59, %s, 8" % sPH)
    a("s_add_u32 s59, s59, s2")
    a("s_lshl_b32 s59, s59, 2")
    a("s_add_u32 s59, s59, s10")
    a("s_lshl_b32 s59, s59, 6")
    a("s_add_u32 s59, s59, %d" % PROFO)
    a("s_waitcnt lgkmcnt(0)")
    a.lg = []
    a("s_mov_b64 exec, 1")
    for i in range(10):
        a("v_mov_b32 v%d, s%d" % (vb + i, 60 + 2 * i))
    a("v_mov_b32 v%d, s80" % (vb + 11))
    a("v_mov_b32 v%d, s59" % (vb + 10))
    a("buffer_store_dwordx4 v[%d:%d], v%d, s[4:7], 0 offen" % (vb, vb + 3, vb + 10))
    a("buffer_store_dwordx4 v[%d:%d], v%d, s[4:7], 0 offen offset:16" % (vb + 4, vb + 7, vb + 10))
    a("buffer_store_dwordx4 v[%d:%d], v%d, s[4:7], 0 offen offset:32" % (vb + 8, vb + 11, vb + 10))
    a("s_mov_b64 exec, -1")
    a("s_add_u32 %s, %s, 1" % (sPH, sPH))


_lbl = [0]
def label(p):
    _lbl[0] += 1
    return "L_%s_%d" % (p, _lbl[0])


def arrive(a, loads=()):
    for f in loads:
        f()
    if CFG["DBG"] != 4:
        stamp(a, 6)
    a.wait_vm("out")
    a.wait_all(vm=False)
    stamp(a, 7)
    a("s_add_u32 %s, %s, 16" % (sTGT, sTGT))
    a("s_barrier")
    l = label("arr")
    a("s_cmp_lg_u32 %s, 0" % sWAVE)
    a("s_cbranch_scc1 %s" % l)
    a("v_mov_b32 v255, 1")
    a("buffer_atomic_add v255, %s, s[4:7], 0 offen" % vCNT)
    a("%s:" % l)


def poll_issue(a, k):
    a("v_mov_b32 v%d, 0" % (255 - k))
    a("buffer_atomic_add v%d, %s, s[4:7], 0 offen sc0" % (255 - k, vPL))


def poll_loop(a, d, first):
    NP = CFG["NPOLL"]
    l = label("poll")
    a("s_mov_b32 s42, %d" % CFG["TMO"])
    a("%s:" % l)
    for k0 in range(NP):
        k = (k0 + first) % NP
        poll_issue(a, (k + NP - 1) % NP)
        a("s_waitcnt vmcnt(%d)" % (NP - 1))
        a("v_readfirstlane_b32 s43, v%d" % (255 - k))
        a("s_cmp_ge_u32 s43, %s" % sTGT)
        a("s_cbranch_scc1 %s" % d)
    a("s_sub_u32 s42, s42, 1")
    a("s_cbranch_scc0 %s" % l)


def dbg_time(a):
    if not CFG["DBGT"]:
        return
    l = label("dt")
    a("s_or_b32 s59, s2, %s" % sWAVE)
    a("s_cbranch_scc1 %s" % l)
    a("s_memrealtime s[60:61]")
    a("s_mov_b64 exec, 1")
    a("s_waitcnt lgkmcnt(0)")
    a("s_sub_u32 s60, s60, s80")
    a("v_mov_b32 v251, s60")
    a("v_mov_b32 v250, s62")
    a("global_store_dword v250, v251, s[94:95]")
    a("s_add_u32 s62, s62, 4")
    a("s_mov_b64 exec, -1")
    a("%s:" % l)


def phase_open(a, vb=240):
    a("s_barrier")
    dbg_time(a)
    stamp(a, 8)
    stamp_dump(a, vb)
    stamp(a, 0)


def wait(a, loads=()):
    d, o = label("pdone"), label("other")
    NP = CFG["NPOLL"]
    loads = list(loads)
    a("s_cmp_lg_u32 %s, %d" % (sWAVE, CFG["PW"]))
    a("s_cbranch_scc1 %s" % o)
    save = list(a.vm)
    per = (len(loads) + NP - 2) // (NP - 1)
    after = []
    for k in range(NP - 1):
        poll_issue(a, k)
        chunk = loads[k * per:(k + 1) * per]
        for f in chunk:
            f()
        if len(chunk) < 2:
            a("s_sleep %d" % (10 // NP))
        after.append(len(chunk))
    a.vm = save
    for k in range(NP - 1):
        poll_issue(a, (k + NP - 1) % NP)
        a("s_waitcnt vmcnt(%d)" % (NP - 1 + sum(after[k:])))
        a("v_readfirstlane_b32 s43, v%d" % (255 - k))
        a("s_cmp_ge_u32 s43, %s" % sTGT)
        a("s_cbranch_scc1 %s" % d)
    poll_loop(a, d, NP - 1)
    a("s_branch %s" % d)
    a("%s:" % o)
    for f in loads:
        f()
    a("%s:" % d)
    phase_open(a)


def spoll_issue(a, word):
    if CFG["SATOM"]:
        a("s_mov_b32 s43, 0")
        a("s_atomic_add s43, s[100:101], 0x%x glc" % (CFG["W1O"] * word))
    else:
        a("s_load_dword s43, s[100:101], 0x%x glc" % (CFG["W1O"] * word))


def spoll_wait(a, word, target):
    l, d = label("sp"), label("spd")
    a("s_mov_b32 s42, %d" % CFG["TMO"])
    a("%s:" % l)
    a("s_waitcnt lgkmcnt(0)")
    a("s_cmp_ge_u32 s43, %s" % target)
    a("s_cbranch_scc1 %s" % d)
    spoll_issue(a, word)
    a("s_sub_u32 s42, s42, 1")
    a("s_cbranch_scc0 %s" % l)
    a("s_waitcnt lgkmcnt(0)")
    a("%s:" % d)
    a.lg = []


def signal(a, word):
    l = label("arr")
    a("s_barrier")
    a("s_cmp_lg_u32 %s, 0" % sWAVE)
    a("s_cbranch_scc1 %s" % l)
    a("v_mov_b32 v255, 1")
    a("s_mov_b32 s42, %d" % (CFG["W1O"] * word))
    a("buffer_atomic_add v255, %s, s[4:7], s42 offen" % vCNT)
    a("%s:" % l)


def wrap_add(a, r, step, end):
    if (CFG["HOT"] & 1 and r == "s20") or (CFG["HOT"] & 2 and r != "s20"):
        return
    if not CFG["ROT"]:
        a("s_add_u32 %s, %s, %d" % (r, r, step))
        return
    a("s_add_u32 %s, %s, %d" % (r, r, step))
    a("s_cmp_eq_u32 %s, %d" % (r, end))
    a("s_cselect_b32 %s, 0, %s" % (r, r))


def xsum4(a, v, t):
    a("v_mov_b32 %s, %s" % (t, v))
    a("v_permlane16_swap_b32 %s, %s" % (v, t))
    a("v_add_f32 %s, %s, %s" % (v, v, t))
    a("v_mov_b32 %s, %s" % (t, v))
    a("v_permlane32_swap_b32 %s, %s" % (v, t))
    a("v_add_f32 %s, %s, %s" % (v, v, t))


def stats_finish(a, q, mean, rstd, t):
    a("v_add_f32 %s, %s, %s" % (q[0], q[0], q[2]))
    a("v_add_f32 %s, %s, %s" % (q[1], q[1], q[3]))
    xsum4(a, q[0], t)
    xsum4(a, q[1], t)
    a("v_mul_f32 %s, %s, %s" % (mean, f32(1.0 / D), q[0]))
    a("v_mul_f32 %s, %s, %s" % (q[1], f32(1.0 / D), q[1]))
    a("v_fma_f32 %s, -%s, %s, %s" % (q[1], mean, mean, q[1]))
    a("v_max_f32 %s, 0, %s" % (q[1], q[1]))
    a("v_add_f32 %s, %s, %s" % (q[1], f32(1e-5), q[1]))
    a("v_rsq_f32 %s, %s" % (rstd, q[1]))


def pk(op, d, *src, neg=None):
    ops, lo, hi = [], [], []
    for x in src:
        if isinstance(x, str):
            n = int(x[1:])
            ops.append("s[%d:%d]" % (n & ~1, (n & ~1) + 1)); lo.append(n & 1); hi.append(n & 1)
        elif x.n == 2:
            assert x.base % 2 == 0
            ops.append(str(x)); lo.append(0); hi.append(1)
        else:
            b = x.base & ~1
            ops.append("v[%d:%d]" % (b, b + 1)); lo.append(x.base & 1); hi.append(x.base & 1)
    t = "v_pk_%s_f32 %s, %s op_sel:[%s] op_sel_hi:[%s]" % (op, d, ", ".join(ops), ",".join(map(str, lo)), ",".join(map(str, hi)))
    if neg is not None:
        m = ",".join("1" if i == neg else "0" for i in range(len(src)))
        t += " neg_lo:[%s] neg_hi:[%s]" % (m, m)
    return t


class Weaver:
    def __init__(self, a, items, period):
        self.a, self.items, self.period, self.n = a, list(items), period, 0
    def __call__(self, line):
        self.a(line)
        self.n += 1
        if self.n % self.period == 0 and self.items:
            self.items.pop(0)()
    def flush(self):
        while self.items:
            self.items.pop(0)()


def x_load(a, dst, v, step, rt, check, tag, then):
    kb = KORD[step]
    if check and not CFG["SPLIT"]:
        check = False
        if rt == 0 and step == 4:
            for f in then:
                f()
            a.late_ok = True
    if check and rt == 0 and step == 7:
        spoll_issue(a, 0)
    if check and rt == 0 and step == 8:
        keep = list(a.lg)
        spoll_wait(a, 0, sTGT)
        for f in then:
            f()
    if rt == 0 and (step == 0 or KORD[step - 1] // 4 != kb // 4):
        a("s_mov_b32 s20, %d" % (kb // 4 * 4096))
    a.vmem("buffer_load_dwordx4 %s, %s, s[4:7], s20 offen offset:%d%s" % (dst, v, (kb % 4) * 1024, SC()), tag)
    if check and rt == 1 and step == 8:
        a.late_ok = True


class Ring:
    def __init__(self, a, NT, R, vB, vBlast, sL, sB, sB2):
        self.a, self.NT, self.R = a, NT, R
        self.vB, self.vBlast, self.sL, self.sB, self.sB2 = vB, vBlast, sL, sB, sB2
        self.FPS = 2 * NT
        self.SB = self.FPS * 1024
        self.per = self.FPS // 4

    def init_lines(self):
        return ["s_mul_i32 %s, %s, %d" % (self.sB, sROT10, self.SB)] + (["s_add_u32 %s, %s, 3072" % (self.sB2, self.sB)] if self.per > 4 else [])

    def loads(self, s):
        a, per, SB = self.a, self.per, self.SB
        grp = 4 if per == 4 else 3
        out = []
        for i in range(per):
            def f(i=i):
                if i % grp == 0:
                    a("s_add_u32 m0, %s, %d" % (self.sL, (s % self.R) * SB + i * 1024))
                so = self.sB if i < grp else self.sB2
                vb = self.vBlast if i == per - 1 else self.vB
                a.vmem("buffer_load_dwordx4 %s, s[4:7], %s offen offset:%d lds" % (vb, so, (i % grp) * 1024), ("st", s))
                if i == per - 1:
                    wrap_add(a, self.sB, SB, 10 * SB)
                    if per > grp:
                        a("s_add_u32 %s, %s, 3072" % (self.sB2, self.sB))
            out.append(f)
        return out


def gemm_s(a, ring, NPRE, vA, vL, acc, Aring, Bregs, transposed, sA, RA, tail_loads=(), fill=(), nsetup=0, PD=6, P=12, first_barrier=False, NTAIL=99, early=()):
    NST = 10
    NT, R, FPS, SB = ring.NT, ring.R, ring.FPS, ring.SB
    NB = Bregs.n // 4
    BPOS = FPS - PD

    def a_loads(s):
        out = []
        ar = Aring[((s % RA) * 16):((s % RA) * 16 + 16)]
        for ks in range(2):
            for rt in range(2):
                def f(ks=ks, rt=rt):
                    x_load(a, ar.q(ks * 2 + rt), vA[rt], 2 * s + ks, rt, True, ("a", s, ks), early)
                out.append(("a", s, f))
        return out
    bq = [("b", s, f) for s in range(NPRE, NST) for f in ring.loads(s)]
    aq = [x for s in range(NST) for x in a_loads(s)]
    tail = [("t", -1, f) for f in tail_loads]
    fill = list(fill)
    nfill0 = len(fill)
    for k in range(P):
        aq.pop(0)[2]()
    a.late_ok = False
    stamp(a, 1)
    a.wait_vm(("a", 0, 0))
    if first_barrier:
        a("s_barrier")
    stamp(a, 2)

    def rd(n):
        if CFG["NODS"] and n >= NB and n % CFG["NODS"]:
            return
        s, i = divmod(n, FPS)
        addr = (s % R) * SB + i * 1024
        a.ds("ds_read_b128 %s, %s offset:%d" % (Bregs.q(n % NB), vL[addr >> 16], addr & 0xffff), ("f", n))

    NF = NST * FPS
    for n in range(PD):
        rd(n)
    passed = -1

    def next_load(s):
        ca = aq[0] if aq and aq[0][1] - RA < s else None
        cb = bq[0] if bq and (bq[0][1] < R or bq[0][1] - R + 1 <= passed) else None
        ct = len(tail) > keep and len(fill) <= nfill0 - nsetup
        da = ca[1] - s if ca else 99
        db = cb[1] - s - 0.5 if cb else 99
        if min(da, db) > LEAD and ct:
            tail.pop(0)[2]()
        elif ca and da <= db:
            aq.pop(0)[2]()
        elif cb:
            bq.pop(0)[2]()
        elif ct:
            tail.pop(0)[2]()
        else:
            return False
        return True

    nload = len(aq) + len(bq) + min(len(tail), NTAIL)
    LEAD = CFG["LEAD"] / 10.0
    keep = max(0, len(tail) - NTAIL)
    span = FPS * (NST - 1)
    credit = 0.0
    for n in range(NF):
        s, i = divmod(n, FPS)
        ks, j = divmod(i, NT)
        if i == BPOS and s + 1 < NST and s >= 1 and (bq or s + 1 >= NPRE):
            while bq and bq[0][1] <= s + 1:
                sys.stderr.write("late ring load at stage %d\n" % s)
                bq.pop(0)[2]()
            a.wait_vm(("st", s + 1))
            a("s_barrier")
            passed = s
        if j == 0:
            while aq and aq[0][1] <= s:
                sys.stderr.write("late activation load at stage %d\n" % s)
                aq.pop(0)[2]()
            a.wait_vm(("a", s, ks))
        if n + PD < NF:
            rd(n + PD)
        a.wait_lg(("f", n + 1 if n % 2 == 0 else n))
        ar = Aring[((s % RA) * 16):((s % RA) * 16 + 16)]
        credit += nload / span * CFG["RATE"] / 10.0
        did = False
        for rt in range(2):
            c = "0" if (s == 0 and ks == 0) else str(acc[rt][j])
            w, x = Bregs.q(n % NB), ar.q(ks * 2 + rt)
            if transposed[j]:
                a("%s %s, %s, %s, %s" % (MF, acc[rt][j], w, x, c))
            else:
                a("%s %s, %s, %s, %s" % (MF, acc[rt][j], x, w, c))
            if rt == 0 and credit >= 1.0:
                did = next_load(s)
                if did:
                    credit -= 1.0
                credit = min(credit, 1.5)
            if rt == 0 and not did and a.late_ok and n > 4 * FPS:
                for _ in range(2):
                    if fill:
                        x = fill.pop(0)
                        x() if callable(x) else a(x)
    assert not aq and not bq and not fill, (len(aq), len(bq), len(fill))
    stamp(a, 3)
    return [t[2] for t in tail]


K1_RED = 0
K1_TRASH = K1_RED + 4 * 3584 + 1024
K1_FR = 122880
K1_PAIRS = [(0, 2), (0, 3), (1, 2), (1, 3), (1, 4), (2, 2), (2, 3), (2, 4)]

class P1:
    def __init__(self, a):
        self.a = a

    def pre_setup(self):
        return ["s_mul_i32 s17, %s, 163840" % sP,
                "s_lshl_b32 s44, %s, 12" % sWAVE,
                "s_add_u32 s17, s17, s44",
                "s_add_u32 s17, s17, %d" % W1,
                "v_add_u32 %s, s17, v2" % vPRE[0],
                "s_mov_b32 s45, 0"]

    def round_loads(self, rho):
        a = self.a
        out = []
        for i in range(4):
            def f(i=i):
                if i == 0:
                    a("s_add_u32 m0, s44, s45")
                    a("s_nop 0")
                a.vmem("buffer_load_dwordx4 %s, s[4:7], s45 offen offset:%d lds" % (vPRE[0], i * 1024), ("st", rho))
                if i == 3:
                    a("s_add_u32 s45, s45, 16384")
            out.append(f)
        return out

    def pre_loads(self, n):
        return [f for rho in range(n) for f in self.round_loads(rho)]

    def alloc(self):
        V = Alloc("v", VBASE, 240)
        r = self
        r.vA = [V.get(1), V.get(1)]
        r.vL = [Reg("v", 2, 1), V.get(1), V.get(1)]
        r.vS = V.get(1); r.vCn = V.get(1); r.vCt = V.get(1)
        r.vQ = V.get(2, 1); r.vKa = V.get(8); r.vGl = V.get(1); r.vR = V.get(1); r.vC1 = V.get(1); r.ret = V.get(1)
        r.mean = [V.get(1), V.get(1)]; r.rstd = [V.get(1), V.get(1)]; r.rl = [V.get(1), V.get(1)]
        r.meanN = [V.get(4), V.get(4)]; r.rstdN = [V.get(4), V.get(4)]; r.rlN = [V.get(4), V.get(4)]
        r.tmp = V.get(16)
        r.acc = [[V.get(4) for j in range(8)] for rt in range(2)]
        r.csn = V.get(8); r.cst = V.get(12)
        r.Xf = V.get(24)
        r.kvd = V.get(32)
        r.fa = Reg("v", 224, 4); r.vGo = r.csn[5]; r.vX = r.csn[6:8]
        r.A = Reg("a", 0, 160)
        r.Bregs = Reg("a", 160, 32)

    def before_wait(self, emit=None):
        self.alloc()
        r, b = self, (emit or self.a)
        n_, g_ = vN, vG
        t = r.kvd[4:12]
        b("s_lshl_b32 s16, %s, 3" % sRB)
        b("s_lshl_b32 s17, %s, 1" % sWAVE)
        b("s_add_u32 s16, s16, s17")
        b("s_mul_i32 s19, s16, 20480")
        b("s_add_u32 s19, s19, %s" % sLAY)
        b("s_add_u32 s17, s19, %d" % XA)
        b("v_add_u32 %s, s17, v2" % r.vA[0])
        b("v_add_u32 %s, 20480, %s" % (r.vA[1], r.vA[0]))
        b("v_add_u32 %s, 0x10000, v2" % r.vL[1])
        b("v_lshlrev_b32 %s, 3, %s" % (t[0], n_))
        b("v_lshl_add_u32 %s, %s, 8, %s" % (t[0], g_, t[0]))
        b("s_lshl_b32 s17, s16, 10")
        b("s_add_u32 s17, s17, %s" % sLAY)
        b("s_add_u32 s17, s17, %d" % STA)
        b("v_add_u32 %s, s17, %s" % (r.vS, t[0]))
        b("v_cmp_lt_u32 s[26:27], %s, 8" % n_)
        b("v_add_u32 %s, 0x20000, v2" % r.vL[2])
        b("s_lshr_b32 s17, %s, 2" % sP)
        b("s_mul_i32 s17, s17, 5120")
        b("s_add_u32 s19, s19, s17")
        b("s_add_u32 s19, s19, %d" % PQ)
        b("s_and_b32 s17, %s, 3" % sP)
        b("s_lshl_b32 s18, s17, 10")
        b("s_add_u32 s18, s18, s19")
        b("v_add_u32 %s, s18, v2" % r.vQ[0])
        b("s_lshl_b32 s17, s17, 8")
        b("s_add_u32 s17, s17, s19")
        b("s_add_u32 s17, s17, 4096")
        b("v_add_u32 %s, s17, v2" % r.vQ[1])
        b("v_mov_b32 %s, 0x%x" % (t[2], OOB))
        b("v_cmp_gt_u32 vcc, 16, v1")
        b("v_cndmask_b32 %s, %s, %s, vcc" % (r.vQ[1], t[2], r.vQ[1]))
        b("s_lshl_b32 s17, %s, 7" % sP)
        b("s_add_u32 s17, s17, %d" % CNT_G)
        b("v_lshl_add_u32 %s, v0, 11, s17" % r.vC1)
        b("v_cmp_gt_u32 vcc, 16, v0")
        b("v_cndmask_b32 %s, %s, %s, vcc" % (r.vC1, t[2], r.vC1))
        b("v_add_u32 %s, %d, v2" % (t[5], K1_TRASH))
        b("s_mul_i32 s19, %s, 3584" % sWAVE)
        b("s_add_u32 s19, s19, %d" % K1_RED)
        b("s_add_u32 s17, s19, 3200")
        for pi, (ka, vb) in enumerate(K1_PAIRS):
            b("v_lshl_add_u32 %s, %s, 2, %d" % (t[0], g_, 16 * ka))
            b("v_add_u32 %s, %d, %s" % (t[1], 16 * vb - 40, n_))
            b("v_cmp_le_u32 vcc, 20, %s" % t[0])
            b("v_cndmask_b32 %s, 0, 20, vcc" % t[2])
            b("v_sub_u32 %s, %s, %s" % (t[3], t[1], t[2]))
            b("v_sub_u32 %s, %s, %s" % (t[2], t[0], t[2]))
            b("v_cmp_gt_u32 vcc, 20, %s" % t[3])
            b("v_mad_i32_i24 %s, %s, 20, %s" % (t[2], t[1], t[2]))
            b("v_lshl_add_u32 %s, %s, 2, s19" % (t[2], t[2]))
            b("v_cndmask_b32 %s, %s, %s, vcc" % (r.vKa[pi], t[5], t[2]))
            if vb == 2:
                b("v_cmp_eq_u32 vcc, 0, %s" % n_)
                b("v_lshl_add_u32 %s, %s, 2, s17" % (t[2], t[0]))
                b("v_cndmask_b32 %s, %s, %s, vcc" % (r.vKa[pi], r.vKa[pi], t[2]))
            if ka == 2:
                b("v_cmp_gt_u32 vcc, 2, %s" % g_)
                b("v_cndmask_b32 %s, %s, %s, vcc" % (r.vKa[pi], t[5], r.vKa[pi]))
        b("v_lshlrev_b32 %s, 2, v0" % r.vR)
        b("s_mul_i32 s17, %s, 3360" % sP)
        b("s_add_u32 s17, s17, %s" % sLAY)
        b("s_add_u32 s17, s17, %d" % KV)
        b("v_add_u32 %s, s17, %s" % (r.vGl, r.vR))
        b("v_add_u32 %s, %d, %s" % (r.vR, K1_RED, r.vR))
        b("s_lshl_b32 s17, s2, 9")
        b("s_add_u32 s17, s17, %d" % CSW)
        b("v_lshl_add_u32 %s, %s, 2, s17" % (r.vCn, n_))
        b("v_lshl_add_u32 %s, %s, 4, s17" % (r.vCt, g_))
        b("s_mov_b32 s23, 20480")
        b("s_mov_b32 s20, 0")
        b("v_lshlrev_b32 %s, 4, %s" % (t[0], g_))
        for q in range(4):
            b("v_add_u32 %s, %d, %s" % (t[1 + q], 4 * q, t[0]))
        fa, u, vGo, vX = r.fa, r.kvd[12:16], r.vGo, r.vX
        raw = (lambda x: b(x))
        b("s_mul_i32 s3, %s, 3360" % sP)
        b("s_add_u32 s3, s3, %s" % sLAY)
        b("s_add_u32 s3, s3, %d" % KV)
        b("v_mov_b32 %s, 0x%x" % (u[3], OOB))
        for i in range(2):
            b("s_lshl_b32 s17, %s, 1" % sWAVE)
            b("s_add_u32 s17, s17, %d" % (i + 1))
            b("s_lshr_b32 s19, s17, 1")
            b("s_lshl_b32 s19, s19, 4")
            b("v_add_u32 %s, s19, %s" % (u[0], vN))
            b("v_cmp_le_u32 vcc, 20, %s" % u[0])
            b("v_cndmask_b32 %s, 0, 20, vcc" % u[1])
            b("v_mul_u32_u24 %s, 20, %s" % (u[2], u[0]))
            b("v_sub_u32 %s, %s, %s" % (u[2], u[2], u[1]))
            b("v_cmp_gt_u32 vcc, 40, %s" % u[0])
            b("v_cndmask_b32 %s, 63, %s, vcc" % (u[1], u[1]))
            raw("s_cmp_eq_u32 s19, 48\ns_cselect_b64 vcc, -1, 0")
            b("v_and_b32 %s, 3, v1" % u[0])
            b("v_mul_u32_u24 %s, 20, %s" % (u[0], u[0]))
            b("v_cndmask_b32 %s, %s, %s, vcc" % (u[1], u[1], u[0]))
            b("v_mov_b32 %s, 800" % u[0])
            b("v_cndmask_b32 %s, %s, %s, vcc" % (u[2], u[2], u[0]))
            raw("s_cmp_eq_u32 %s, %d\ns_cselect_b32 s19, %d, %d" % ((sWAVE, 0, 0, 32) if i == 0 else (sWAVE, 3, 64, 0)))
            for h in range(2):
                b("v_lshl_add_u32 %s, %s, 2, s19" % (u[0], vG))
                if h:
                    b("v_add_u32 %s, 16, %s" % (u[0], u[0]))
                b("v_cmp_gt_u32 s[38:39], 40, %s" % u[0])
                b("v_add_lshl_u32 %s, %s, %s, 2" % (fa[2 * i + h], u[0], u[2]))
                b("v_sub_u32 %s, %s, %s" % (u[0], u[0], u[1]))
                b("v_cmp_gt_u32 vcc, 20, %s" % u[0])
                b("s_and_b64 vcc, vcc, s[38:39]")
                b("v_cndmask_b32 %s, %s, %s, vcc" % (fa[2 * i + h], u[3], fa[2 * i + h]))
        b("s_lshl_b32 s17, %s, 11" % sRB)
        b("s_add_u32 s17, s17, %d" % CNT_G)
        b("v_lshl_add_u32 %s, v1, 7, s17" % vGo)
        raw("s_cmp_eq_u32 %s, %d\ns_cselect_b32 s17, 0, 0x%x" % (sWAVE, CFG["PW"], OOB))
        b("v_and_b32 %s, 0x%x, %s" % (u[0], OOB, vCNT))
        b("v_or3_b32 %s, %s, s17, %s" % (vGo, u[0], vGo))
        b("s_lshl_b32 s17, %s, 11" % sWAVE)
        b("s_add_u32 s17, s17, %d" % K1_FR)
        b("v_add_u32 %s, s17, v2" % vX[0])
        b("v_add_u32 %s, %d, v2" % (vX[1], K1_FR))

    def body(self, nxt, p3, p4, NPRE, first=False):
        r, a = self, self.a
        tmp, t, acc, Xf, kvd, A, Bregs = r.tmp, r.kvd[4:12], r.acc, r.Xf, r.kvd, r.A, r.Bregs
        stat_loads = [(lambda rt=rt, h=h: a.vmem("buffer_load_dwordx2 %s, %s, s[4:7], 0 offen offset:%d%s" % (tmp.q(rt)[2 * h:2 * h + 2], r.vS, rt * 1024 + h * 128, SC()), "stats"))
                      for rt in range(2) for h in range(2)]
        b = Asm()
        for rt in range(2):
            stats_finish(b, tmp.q(rt), r.mean[rt], r.rstd[rt], tmp[8])
            b("v_mul_f32 %s, %s, %s" % (r.rl[rt], f32(LOG2E), r.rstd[rt]))
        fill = [lambda: a.wait_vm("stats")] + list(b.lines)
        for rt in range(2):
            for q in range(4):
                fill.append(lambda rt=rt, q=q: a.ds("ds_bpermute_b32 %s, %s, %s" % (r.meanN[rt][q], t[1 + q], r.mean[rt]), "bp"))
                fill.append(lambda rt=rt, q=q: a.ds("ds_bpermute_b32 %s, %s, %s" % (r.rstdN[rt][q], t[1 + q], r.rstd[rt]), "bp"))
        fill += [None] * 6
        fill.append(lambda: a.wait_lg("bp"))
        for rt in range(2):
            for q in range(4):
                fill.append("v_mul_f32 %s, %s, %s" % (r.rlN[rt][q], f32(LOG2E), r.rstdN[rt][q]))
        fill += nxt.pre_setup()
        csp = []
        if first:
            cp, ad = Reg("v", 156, 40), Reg("v", 232, 2)
            a("s_lshl_b32 s17, %s, 9" % sP)
            a("s_add_u32 s17, s17, %d" % CSP1)
            a("v_lshrrev_b32 %s, 5, v1" % ad[0])
            a("v_lshlrev_b32 %s, 13, %s" % (ad[0], ad[0]))
            a("v_and_b32 %s, 31, v1" % ad[1])
            a("v_lshlrev_b32 %s, 4, %s" % (ad[1], ad[1]))
            a("s_cmp_eq_u32 %s, 0" % sWAVE)
            a("s_cselect_b32 s19, 0, 0x%x" % OOB)
            a("v_add3_u32 %s, %s, %s, s19" % (ad[0], ad[0], ad[1]))
            a("v_or_b32 %s, s19, %s" % (ad[1], ad[1]))
            a("s_lshl_b32 s48, s2, 9")
            a("s_add_u32 s48, s48, %d" % CSW)
            a("s_mov_b32 s21, s17")
            for k in range(10):
                def f(k=k):
                    a.vmem("buffer_load_dwordx4 %s, %s, s[4:7], s21 offen%s" % (cp.q(k), ad[0], SC()), "csp")
                    a("s_add_u32 s21, s21, 16384")
                csp.append(f)
            fin = [lambda: a.wait_vm("csp")]
            for k in range(1, 10):
                for q in range(4):
                    fin.append("v_add_f32 %s, %s, %s" % (cp[q], cp[q], cp.q(k)[q]))
            for q in range(4):
                fin += ["v_mov_b32 %s, %s" % (cp[4], cp[q]), "v_permlane32_swap_b32 %s, %s" % (cp[q], cp[4]), "v_add_f32 %s, %s, %s" % (cp[q], cp[q], cp[4])]
            fin.append(lambda: a.vmem("buffer_store_dwordx4 %s, %s, s[4:7], s48 offen" % (cp[0:4], ad[1]), "csw"))
            fill = fin + fill
        cs = [(lambda j=j: a.vmem("buffer_load_dword %s, %s, s[4:7], 0 offen offset:%d" % (r.csn[j], r.vCn, j * 64), "cs")) for j in range(5)]
        cs += [(lambda j=j: a.vmem("buffer_load_dwordx4 %s, %s, s[4:7], 0 offen offset:%d" % (r.cst.q(j), r.vCt, (5 + j) * 64), "cs")) for j in range(3)]
        PD, NB = CFG["PD1"], 8
        seq = [(ks, j, 6 * ks + j) for ks in range(20) for j in range(6)] + [(ks, j, 120 + 2 * ks + j - 6) for ks in range(20) for j in (6, 7)]
        aq = []
        for ks in range(20):
            for rt in range(2):
                def f(ks=ks, rt=rt):
                    x_load(a, A.q(2 * ks + rt), r.vA[rt], ks, rt, not first, ("a", ks), [] if first else stat_loads)
                aq.append((6 * ks, f))
        bq = [(16 * rho - PD, f) for rho in range(NPRE, 10) for f in self.round_loads(rho)]
        if first and CFG["XPRE"]:
            aq = []
            for f in [bq.pop(0)[1] for _ in range(CFG["P1A"])]:
                f()
        for _ in range(0 if not aq else CFG["P1A"] if first else CFG["P1"]):
            aq.pop(0)[1]()
        small = []
        if first:
            small = csp + stat_loads
            fill.insert(0, "small")
        a.late_ok = first
        stamp(a, 1)
        a.wait_vm([("a", 0), ("st", NPRE - 1)])
        a("s_barrier")
        stamp(a, 2)

        def rd(n):
            f = seq[n][2]
            if f % 16 == 0 and f // 16 >= NPRE:
                while bq and bq[0][0] <= f - PD:
                    sys.stderr.write("P1: late weight load\n")
                    bq.pop(0)[1]()
                a.wait_vm([("st", f // 16), "csw"])
                a("s_barrier")
                st["csok"] = not first or (not fill_has_store())
            a.ds("ds_read_b128 %s, %s offset:%d" % (Bregs.q(n % NB), r.vL[f >> 6], (f & 63) * 1024), ("f", n))

        def pair(n, mid):
            ks, j, f = seq[n]
            if n + PD < len(seq) and n + PD not in done_rd:
                rd(n + PD)
            if n % 2 == 0 or n == 120:
                a.wait_lg(("f", min(n + 1, len(seq) - 1) if n != 119 else n))
            else:
                a.wait_lg(("f", n))
            for rt in range(2):
                c = "0" if ks == 0 else str(acc[rt][j])
                w, x = Bregs.q(n % NB), A.q(2 * ks + rt)
                a("%s %s, %s, %s, %s" % ((MF, acc[rt][j], w, x, c) if j >= 5 else (MF, acc[rt][j], x, w, c)))
                if rt == 0:
                    mid()
        done_rd = set()
        st = dict(credit=0.0, csok=not first)
        fill_has_store = lambda: first and fin[-1] in fill
        for n in range(PD):
            rd(n)
        late = [x for x in bq if x[0] >= 120 - PD]
        nload = len(aq) + len(bq) - len(late) + len(cs) + len(small) // 2
        for n in range(120):
            ks, j, f = seq[n]
            if j == 0:
                while aq and aq[0][0] <= n:
                    sys.stderr.write("P1: late activation load\n")
                    aq.pop(0)[1]()
                a.wait_vm(("a", ks))
            def mid():
                st["credit"] += nload / float(CFG["SPAN1A"] if first else CFG["SPAN1"])
                if st["credit"] >= 1.0:
                    cb = bq and bq[0][0] < 120 - PD
                    q = None
                    if aq and (not cb or aq[0][0] <= bq[0][0]):
                        q = aq
                    elif cb:
                        q = bq
                    if small and q is not None and q[0][0] - n > CFG["SLK"]:
                        small.pop(0)(); small.pop(0)()
                    elif q is not None:
                        q.pop(0)[1]()
                    elif cs and st["csok"]:
                        cs.pop(0)()
                    elif bq and not first:
                        bq.pop(0)[1]()
                    else:
                        q = "none"
                    st["credit"] -= 1.0
                    if (not first or CFG["XPRE"]) and q != "none":
                        return
                if n > (12 if first else CFG["F1"]) and a.late_ok:
                    if fill and fill[0] == "small":
                        if not small:
                            fill[0:1] = [None] * 16
                        return
                    for _ in range(2):
                        if fill:
                            x = fill.pop(0)
                            if x is not None:
                                x() if callable(x) else a(x)
            pair(n, mid)
        if fill:
            sys.stderr.write("P1: %d fill items left after the first pass\n" % len(fill))
        for x in fill:
            if x is not None:
                x() if callable(x) else a(x)
        assert st["csok"]
        for f in cs:
            f()
        assert not aq
        stamp(a, 3)
        a.wait_vm("cs")
        a("s_mov_b32 s24, %s" % f32(1e-6))
        e = Weaver(a, [x[1] for x in bq] + (self.bstores if first else []), 10 if first else CFG["EW1"])
        bq[:] = []

        def phi(x, m, c, rs, rlg, t, vraw=None):
            for h in H2:
                e(pk("fma", x[h], m(h), c(h), x[h], neg=0))
            for h in H2:
                e(pk("mul", t[h], x[h], rlg(h)))
            if vraw is not None:
                for h in H2:
                    e(pk("mul", vraw[h], x[h], rs(h)))
            for h in H2:
                e(pk("fma", x[h], x[h], rs(h), "s24"))
            for q in range(4):
                e("v_exp_f32 %s, %s clamp" % (t[q], t[q]))
            for q in range(4):
                e("v_max_f32 %s, s24, %s" % (x[q], x[q]))
            for h in H2:
                e(pk("add", x[h], x[h], t[h]))

        for j in range(5):
            for rt in range(2):
                x = acc[rt][j]
                m = lambda h, rt=rt: r.meanN[rt][h]
                rs = lambda h, rt=rt: r.rstdN[rt][h]
                rg = lambda h, rt=rt: r.rlN[rt][h]
                c = lambda h, j=j: r.csn[j]
                if j < 2:
                    phi(x, m, c, rs, rg, tmp[0:4])
                elif j == 2:
                    phi(x, m, c, rs, rg, tmp[0:4], vraw=tmp[4:8])
                    for q in range(4):
                        e("v_cndmask_b32 %s, %s, %s, s[26:27]" % (x[q], tmp[4 + q], x[q]))
                else:
                    for h in H2:
                        e(pk("fma", x[h], m(h), c(h), x[h], neg=0))
                    for h in H2:
                        e(pk("mul", x[h], x[h], rs(h)))
                e("v_cvt_pk_bf16_f32 %s, %s, %s" % (Xf.q(j)[2 * rt], x[0], x[1]))
                e("v_cvt_pk_bf16_f32 %s, %s, %s" % (Xf.q(j)[2 * rt + 1], x[2], x[3]))
        e("v_mov_b32 %s, 0x3f803f80" % tmp[0])
        for q in range(4):
            e("v_cndmask_b32 %s, %s, %s, s[26:27]" % (Xf.q(5)[q], Xf.q(2)[q], tmp[0]))
        e.flush()
        for pi, (ka, vb) in enumerate(K1_PAIRS):
            a("%s %s, %s, %s, 0" % (MF, kvd.q(pi), Xf.q(ka), Xf.q(5 if vb == 2 else vb)))
        qo = [Xf.q(0), Xf.q(1), Xf.q(2), Xf.q(3)]

        def qtile(j, rt):
            x = acc[rt][5 + j]
            phi(x, lambda h: r.mean[rt], lambda h: r.cst.q(j)[h], lambda h: r.rstd[rt], lambda h: r.rl[rt], tmp[0:4])
            o = qo[rt][2 * j:2 * j + 2] if j < 2 else qo[2 + rt][0:2]
            e("v_cvt_pk_bf16_f32 %s, %s, %s" % (o[0], x[0], x[1]))
            e("v_cvt_pk_bf16_f32 %s, %s, %s" % (o[1], x[2], x[3]))
        if NPRE >= 8:
            a("s_barrier")
        for pi in range(8):
            a.ds("ds_write_b128 %s, %s" % (r.vKa[pi], kvd.q(pi)), "add")
        qtile(0, 0)
        a.wait_lg("add")
        a("s_barrier")
        for i in range(4):
            for w in range(4):
                a.ds("ds_read_b32 %s, %s offset:%d" % (kvd[4 * i + w], r.vR, i * 1024 + w * 3584), ("rd", i))
        a("v_mov_b32 %s, 0x%x" % (kvd[17], OOB))
        a("v_cmp_gt_u32 vcc, 72, v0")
        a("v_cndmask_b32 %s, %s, %s, vcc" % (kvd[16], kvd[17], r.vGl))
        for i in range(4):
            a.wait_lg(("rd", i))
            a(pk("add", kvd[4 * i:4 * i + 2], kvd[4 * i:4 * i + 2], kvd[4 * i + 2:4 * i + 4]))
            a("v_add_f32 %s, %s, %s" % (kvd[4 * i], kvd[4 * i], kvd[4 * i + 1]))
            a.vmem("buffer_atomic_add_f32 %s, %s, s[4:7], 0 offen offset:%d" % (kvd[4 * i], r.vGl if i < 3 else kvd[16], i * 1024), "kv")
        a("v_mov_b32 %s, 1" % r.ret)
        stamp(a, 4)
        wo = nxt.take(25)
        fa, vGo, vX = r.fa, r.vGo, r.vX
        b = Asm()
        b("v_cmp_lt_u32 s[36:37], 0, %s" % vG)
        eps = acc[1][1]
        for q in range(4):
            b("v_mov_b32 %s, s24" % eps[q])
        early = list(b.lines)
        for n in range(120, 160):
            ks = seq[n][0]
            if n == 120 + 2 * CFG["ARRK"]:
                if CFG["DBG"] == 4:
                    stamp(a, 1)
                a.wait_vm("kv")
                a("s_barrier")
                if CFG["DBG"] == 4:
                    stamp(a, 2)
                a.vmem("buffer_atomic_add %s, %s, s[4:7], 0 offen" % (r.ret, r.vC1), "arr")
            def mid():
                if n % 3 == 2 and wo and wo[0].k < 16:
                    wo.pop(0)()
                else:
                    for _ in range(2):
                        if early:
                            a(early.pop(0))
            pair(n, mid)
        if CFG["DBG"] == 4:
            stamp(a, 3)
        e = Weaver(a, [(lambda x=x: a(x)) for x in early] + wo[:CFG["NWQ"]], 3 if early else 16)
        wo = wo[CFG["NWQ"]:]
        a("v_mov_b32 v252, 0")
        a("v_mov_b32 v253, 0")
        a.vmem("buffer_atomic_add v253, %s, s[4:7], 0 offen sc0" % vGo, "go0")
        qtile(0, 1)
        qtile(1, 0)
        a.vmem("buffer_atomic_add v252, %s, s[4:7], 0 offen sc0" % vGo, "go")
        qtile(1, 1)
        qtile(2, 0)
        qtile(2, 1)
        e.flush()
        for rt in range(2):
            a("v_mov_b32 %s, 0" % qo[2 + rt][2])
            a("v_mov_b32 %s, 0" % qo[2 + rt][3])
        if CFG["DBG"] == 4:
            stamp(a, 6)
        l, d = label("gp"), label("gd")
        a("s_add_u32 s49, s49, 16")
        a("s_cmp_lg_u32 %s, %d" % (sWAVE, CFG["PW"]))
        a("s_cbranch_scc1 %s" % d)
        a("s_mov_b32 s42, %d" % CFG["TMO"])
        save = list(a.vm)
        a.wait_vm("go0")
        a("v_cmp_le_u32 vcc, s49, v253")
        a("s_cmp_eq_u32 vcc_lo, 0xffff")
        a("s_cbranch_scc1 %s" % d)
        a.wait_vm("go")
        a.vm = save
        a("%s:" % l)
        a("v_cmp_le_u32 vcc, s49, v252")
        a("s_cmp_eq_u32 vcc_lo, 0xffff")
        a("s_cbranch_scc1 %s" % d)
        a("v_mov_b32 v252, 0")
        a("buffer_atomic_add v252, %s, s[4:7], 0 offen sc0" % vGo)
        a("s_sub_u32 s42, s42, 1")
        a("s_waitcnt vmcnt(0)")
        a("s_cbranch_scc0 %s" % l)
        a("%s:" % d)
        a("s_barrier")
        stamp(a, 5)
        stg, fr = kvd[0:16], [kvd.q(k) for k in range(7)]
        for k in range(4):
            a.vmem("buffer_load_dwordx4 %s, %s, s[4:7], s3 offen%s" % (stg.q(k), fa[k], SC()), "kvl")
        for x in p3.pre_setup() + p4.pre_setup():
            a(x)
        extra = wo + p3.pre_loads() + p4.take(CFG["NW4P"])
        for _ in range(CFG["NX1"]):
            extra.pop(0)()
        if CFG["DBG"] == 3:
            stamp(a, 1)
        a.wait_vm("kvl")
        if CFG["DBG"] == 3:
            stamp(a, 2)
        for i in range(2):
            o = tmp.q(1 + i)
            for k in range(4):
                a("v_cvt_pk_bf16_f32 %s, %s, %s" % (o[k], stg[8 * i + 2 * k], stg[8 * i + 2 * k + 1]))
            a.ds("ds_write_b128 %s, %s offset:%d" % (vX[0], o, i * 1024), "fw")
        a.wait_lg("fw")
        a("s_barrier")
        extra.pop(0)()
        for k in (5, 6, 0, 1, 2, 3, 4):
            a.ds("ds_read_b128 %s, %s offset:%d" % (fr[k], vX[1], k * 1024), ("fr", k))
        if CFG["DBG"] == 3:
            stamp(a, 3)
        num = [[acc[rt][2 + t_] for t_ in range(3)] for rt in range(2)]
        den = [acc[0][5], acc[1][5]]
        for k, (t_, kb) in ((5, (3, 0)), (6, (3, 1)), (0, (0, 0)), (1, (1, 0)), (2, (1, 1)), (3, (2, 0)), (4, (2, 1))):
            a.wait_lg(("fr", k))
            for rt in range(2):
                dst = den[rt] if t_ == 3 else num[rt][t_]
                c = dst if kb else (eps if t_ == 3 else "0")
                a("%s %s, %s, %s, %s" % (MF, dst, fr[k], qo[rt] if kb == 0 else qo[2 + rt], c))
        extra.pop(0)()
        extra.pop(0)()
        for rt in range(2):
            a("v_rcp_f32 %s, %s" % (den[rt][0], den[rt][0]))
            a("v_rcp_f32 %s, %s" % (den[rt][1], den[rt][1]))
        for rt in range(2):
            a("v_cndmask_b32 %s, %s, %s, s[36:37]" % (den[rt][2], den[rt][0], den[rt][1]))
        for rt in range(2):
            for t_, dd in ((0, den[rt][0]), (1, den[rt][2])):
                for h in H2:
                    a(pk("mul", num[rt][t_][h], num[rt][t_][h], dd))
                a("v_cvt_pk_bf16_f32 %s, %s, %s" % (qo[rt][2 * t_], num[rt][t_][0], num[rt][t_][1]))
                a("v_cvt_pk_bf16_f32 %s, %s, %s" % (qo[rt][2 * t_ + 1], num[rt][t_][2], num[rt][t_][3]))
            a.vmem("buffer_store_dwordx4 %s, %s, s[4:7], %s offen%s" % (qo[rt], r.vQ[0], "s23" if rt else "0", SC()), "out")
        for rt in range(2):
            z = qo[2 + rt]
            for h in H2:
                a(pk("mul", num[rt][2][h], num[rt][2][h], den[rt][1]))
            a("v_cvt_pk_bf16_f32 %s, %s, %s" % (z[0], num[rt][2][0], num[rt][2][1]))
            a("v_cvt_pk_bf16_f32 %s, %s, %s" % (z[1], num[rt][2][2], num[rt][2][3]))
            a("v_mov_b32 %s, %s" % (z[2], z[0]))
            a("v_mov_b32 %s, %s" % (z[3], z[1]))
            a("v_permlane16_swap_b32 %s, %s" % (z[0], z[2]))
            a("v_permlane16_swap_b32 %s, %s" % (z[1], z[3]))
            a.vmem("buffer_store_dwordx4 %s, %s, s[4:7], %s offen%s" % (z, r.vQ[1], "s23" if rt else "0", SC()), "out")
        if CFG["DBG"] == 3:
            stamp(a, 4)
        self.extra = extra


class P3:
    def __init__(self, a):
        self.a = a
        self.ring = Ring(a, 12, 6, vPRE[0], vPRE[0], "s44", "s45", "s46")

    def pre_setup(self):
        return ["s_mul_i32 s17, %s, 245760" % sP,
                "s_mul_i32 s44, %s, 6144" % sWAVE,
                "s_add_u32 s17, s17, s44",
                "s_add_u32 s17, s17, %d" % W3,
                "v_add_u32 %s, s17, v2" % vPRE[0]] + self.ring.init_lines()

    def pre_loads(self):
        return [f for s in range(min(CFG["NE3"], CFG["NPRE3"])) for f in self.ring.loads(s)]

    def wait_loads(self):
        return [f for s in range(CFG["NE3"], CFG["NPRE3"]) for f in self.ring.loads(s)]

    def before_wait(self, emit=None):
        r, a = self, (emit or self.a)
        V = Alloc("v", VBASE, 240)
        r.vA = [V.get(1), V.get(1)]
        r.vL = [Reg("v", 2, 1), V.get(1), V.get(1)]
        r.vS = V.get(1); r.vC = V.get(1); r.vH = V.get(1)
        r.mean = [V.get(1), V.get(1)]; r.rstd = [V.get(1), V.get(1)]; r.std = [V.get(1), V.get(1)]; r.c1 = [V.get(1), V.get(1)]
        r.tmp = V.get(16)
        r.acc = [[V.get(4) for j in range(12)] for rt in range(2)]
        r.cs = V.get(48)
        r.Aring = Reg("a", 160, 64)
        r.Bregs = Reg("a", 224, 32)
        tmp = r.tmp
        a("s_lshl_b32 s16, %s, 3" % sRB)
        a("s_lshl_b32 s17, %s, 1" % sWAVE)
        a("s_add_u32 s16, s16, s17")
        a("s_mul_i32 s17, s16, 20480")
        a("s_add_u32 s17, s17, %s" % sLAY)
        a("s_add_u32 s17, s17, %d" % XB)
        a("v_add_u32 %s, s17, v2" % r.vA[0])
        a("v_add_u32 %s, 20480, %s" % (r.vA[1], r.vA[0]))
        a("v_add_u32 %s, 0x10000, v2" % r.vL[1])
        a("v_add_u32 %s, 0x20000, v2" % r.vL[2])
        a("v_lshlrev_b32 %s, 3, %s" % (tmp[0], vN))
        a("v_lshl_add_u32 %s, %s, 8, %s" % (tmp[0], vG, tmp[0]))
        a("s_lshl_b32 s17, s16, 10")
        a("s_add_u32 s17, s17, %s" % sLAY)
        a("s_add_u32 s17, s17, %d" % STB)
        a("v_add_u32 %s, s17, %s" % (r.vS, tmp[0]))
        a("s_mul_i32 s17, %s, 768" % sP)
        a("s_add_u32 s17, s17, %d" % CS3F)
        a("v_lshl_add_u32 %s, %s, 4, s17" % (r.vC, vG))
        a("s_mul_i32 s17, s16, 49152")
        a("s_mul_i32 s19, %s, 3072" % sP)
        a("s_add_u32 s17, s17, s19")
        a("s_add_u32 s17, s17, %s" % sLAY)
        a("s_add_u32 s17, s17, %d" % H)
        a("v_add_u32 %s, s17, v2" % r.vH)
        a("s_mov_b32 s23, 49152")
        a("s_lshl_b32 s20, %s, 11" % sROT10)
        a("s_mov_b32 s24, %s" % f32(-2.0 * 0.7978845608028654 * 0.044715 * LOG2E))
        a("v_mov_b32 %s, %s" % (tmp[15], f32(-2.0 * 0.7978845608028654 * LOG2E)))

    def body(self, nxt):
        r, a = self, self.a
        tmp, acc, cs, mean, rstd, std = r.tmp, r.acc, r.cs, r.mean, r.rstd, r.std
        stat_loads = [(lambda rt=rt, h=h: a.vmem("buffer_load_dwordx2 %s, %s, s[4:7], 0 offen offset:%d%s" % (tmp.q(rt)[2 * h:2 * h + 2], r.vS, rt * 1024 + h * 128, SC()), "stats"))
                      for rt in range(2) for h in range(2)]
        b = Asm()
        for rt in range(2):
            stats_finish(b, tmp.q(rt), mean[rt], rstd[rt], tmp[8])
            b("v_mul_f32 %s, %s, %s" % (std[rt], rstd[rt], rstd[rt]))
            b("v_mul_f32 %s, %s, %s" % (r.c1[rt], tmp[15], rstd[rt]))
            b("v_mul_f32 %s, %s, %s" % (rstd[rt], std[rt], rstd[rt]))
            b("v_rcp_f32 %s, %s" % (std[rt], std[rt]))
            b("v_mul_f32 %s, s24, %s" % (rstd[rt], rstd[rt]))
        fill = [lambda: a.wait_vm("stats")] + list(b.lines)
        nl = CFG["NW4L"]
        csl = [(lambda j=j: a.vmem("buffer_load_dwordx4 %s, %s, s[4:7], 0 offen offset:%d%s" % (r.cs.q(j), r.vC, j * 64, SC()), "cs")) for j in range(12)]
        pre = nxt.take(nl + CFG["NW4E"])
        assert all(f.k < 39 for f in pre[:nl])
        rest = gemm_s(a, self.ring, CFG["NPRE3"], r.vA, r.vL, acc, r.Aring, r.Bregs, [True] * 12, "s20", 4,
                      csl + pre[:nl], fill, 0, PD=CFG["PD3"], P=CFG["P3"], first_barrier=True, early=stat_loads)
        assert len(rest) <= nl
        a.wait_vm("cs")
        e = Weaver(a, rest + pre[nl:], CFG["EW3"])
        out = tmp[0:8]
        for m in range(3):
            for rt in range(2):
                o = out.q(rt)
                for hh in range(2):
                    jp = 2 * m + hh
                    g, u = acc[rt][2 * jp], acc[rt][2 * jp + 1]
                    cg, cu = cs.q(2 * jp), cs.q(2 * jp + 1)
                    t = tmp[8:12]
                    for h in H2:
                        e(pk("fma", g[h], cg[h], mean[rt], g[h], neg=1))
                    for h in H2:
                        e(pk("fma", u[h], cu[h], mean[rt], u[h], neg=1))
                    for h in H2:
                        e(pk("mul", t[h], g[h], g[h]))
                    for h in H2:
                        e(pk("fma", t[h], t[h], rstd[rt], r.c1[rt]))
                    for h in H2:
                        e(pk("mul", t[h], g[h], t[h]))
                    for h in H2:
                        e(pk("mul", u[h], g[h], u[h]))
                    for q in range(4):
                        e("v_exp_f32 %s, %s" % (t[q], t[q]))
                    for h in H2:
                        e(pk("fma", t[h], t[h], std[rt], std[rt]))
                    for q in range(4):
                        e("v_rcp_f32 %s, %s" % (t[q], t[q]))
                    for h in H2:
                        e(pk("mul", u[h], u[h], t[h]))
                    e("v_cvt_pk_bf16_f32 %s, %s, %s" % (o[2 * hh], u[0], u[1]))
                    e("v_cvt_pk_bf16_f32 %s, %s, %s" % (o[2 * hh + 1], u[2], u[3]))
                a.vmem("buffer_store_dwordx4 %s, %s, s[4:7], %s offen offset:%d%s" % (o, r.vH, "s23" if rt else "0", m * 1024, SC()), "out0" if m == 0 else "out")
            if m == 1:
                a.wait_vm("out0")
                a("s_add_u32 s22, s22, 16")
                signal(a, 1)
        e.flush()


def p_addr(a, r, t, red_base, xres, stout, from_x=False):
    a("s_add_u32 s17, %s, 3" % sWAVE)
    a("s_and_b32 s17, s17, 3")
    a("s_mul_i32 s17, s17, 10240")
    a("s_add_u32 s17, s17, %d" % red_base)
    a("v_add_u32 %s, s17, v2" % r.vW)
    a("s_mul_i32 s17, %s, 10240" % sWAVE)
    a("s_add_u32 s17, s17, %d" % red_base)
    a("v_add_u32 %s, s17, v2" % r.vRd)
    a("s_lshl_b32 s16, %s, 2" % sRB64)
    a("s_add_u32 s16, s16, %s" % sWAVE)
    a("s_and_b32 s19, %s, 1" % sCG)
    a("s_mul_i32 s29, %s, 5" % sCG)
    a("s_add_u32 s30, s29, s19")
    a("s_xor_b32 s19, s19, 1")
    a("s_lshl_b32 s19, s19, 2")
    a("s_add_u32 s29, s29, s19")
    a("s_mul_i32 s17, s16, 20480")
    a("s_add_u32 s17, s17, %s" % sLAY)
    a("s_add_u32 s17, s17, %d" % xres)
    a("s_lshl_b32 s19, s30, 9")
    a("s_add_u32 s19, s19, s17")
    a("v_add_u32 %s, s19, v2" % r.vRes[0])
    a("v_lshrrev_b32 %s, 1, %s" % (t, vG))
    a("v_lshlrev_b32 %s, 8, %s" % (t, t))
    a("v_lshl_add_u32 %s, %s, 4, %s" % (t, vN, t))
    a("s_lshl_b32 s19, s29, 9")
    a("s_add_u32 s19, s19, s17")
    a("v_add_u32 %s, s19, %s" % (r.vRes[2], t))
    a("v_add_u32 %s, s17, %s" % (r.vRes[1], t))
    a("v_and_b32 %s, 1, %s" % (t, vG))
    a("v_lshl_add_u32 %s, %s, 3, %s" % (r.vRes[1], t, r.vRes[1]))
    a("v_lshl_add_u32 %s, %s, 30, %s" % (r.vRes[2], t, r.vRes[2]))
    a("s_mov_b32 s32, s4\ns_mov_b32 s33, s5\ns_mov_b32 s34, s6\ns_mov_b32 s35, 0x20000\ns_mov_b32 s31, 512")
    if from_x:
        a("v_mul_u32_u24 %s, 1280, %s" % (t, vN))
        a("v_lshl_add_u32 %s, %s, 3, %s" % (t, vG, t))
        a("s_mul_i32 s19, s16, 20480")
        a("v_add_u32 %s, s19, %s" % (t, t))
        one = ["s_cmp_eq_u32 %s, 0" % sLAY, "s_cselect_b32 s32, s84, s32", "s_cselect_b32 s33, s85, s33",
               "s_cselect_b32 s34, %d, s34" % (S * D * 2), "s_cselect_b32 s31, 32, s31", "s_cselect_b64 vcc, -1, 0"]
        a.lines.append("\n".join(one))
        a("v_cndmask_b32 %s, %s, %s, vcc" % (r.vRes[1], r.vRes[1], t))
    a("s_mul_i32 s38, s30, s31")
    a("s_mul_i32 s39, s29, s31")
    a("s_lshl_b32 s17, s16, 10")
    a("s_add_u32 s17, s17, %s" % sLAY)
    a("s_add_u32 s17, s17, %d" % stout)
    a("s_lshl_b32 s19, %s, 7" % sCG)
    a("s_add_u32 s17, s17, s19")
    a("v_lshl_add_u32 %s, %s, 3, s17" % (r.vSt, vN))
    a("v_mov_b32 %s, 0x%x" % (t, OOB))
    a("v_cmp_gt_u32 vcc, 16, v1")
    a("v_cndmask_b32 %s, %s, %s, vcc" % (r.vSt, t, r.vSt))


def p_res_loads(a, res, vRes):
    for j in range(4):
        a.vmem("buffer_load_dwordx2 %s, %s, s[32:35], s38 offen%s" % (res[2 * j:2 * j + 2], vRes[1], SC()), "res")
        if j < 3:
            a("s_add_u32 s38, s38, s31")
    a.vmem("buffer_load_dwordx2 %s, %s, s[32:35], s39 offen%s" % (res[8:10], vRes[1], SC()), "res")


def p_write(a, acc, i, vW):
    for j in range(5):
        a.ds("ds_write_b128 %s, %s offset:%d" % (vW[i - 1], acc[i][j], j * 1024), "rw")


def p_epilogue(a, r, acc, res, part, tmp, xdelta, pre, final):
    stamp(a, 3)
    y, o = acc[0], r.keep
    a("s_mov_b32 s28, %d" % xdelta)
    def swaps(b):
        for d in range(2):
            a("v_permlane32_swap_b32 %s, %s" % (o[b + d], o[b + 2 + d]))
        for d in range(2):
            a("v_permlane16_swap_b32 %s, %s" % (o[b + d], o[b + 2 + d]))
    for j in range(5):
        a.wait_lg(("p", j))
        for h in H2:
            a(pk("add", y[j][h], y[j][h], part.q(j)[h]))
    stamp(a, 4)
    for j in range(5):
        a("v_cvt_pk_bf16_f32 %s, %s, %s" % (o[2 * j], y[j][0], y[j][1]))
        a("v_cvt_pk_bf16_f32 %s, %s, %s" % (o[2 * j + 1], y[j][2], y[j][3]))
    if final:
        a("s_cmp_lg_u32 %s, 0" % sLAY)
        a("s_cbranch_scc1 L_final")
    a("v_mov_b32 %s, %s" % (tmp[4], o[8]))
    a("v_mov_b32 %s, %s" % (tmp[5], o[9]))
    a("v_mov_b32 %s, %s" % (tmp[6], o[8]))
    a("v_mov_b32 %s, %s" % (tmp[7], o[9]))
    swaps(0)
    a.vmem("buffer_store_dwordx4 %s, %s, s[4:7], s28 offen%s" % (o[0:4], r.vRes[0], SC()), "out")
    swaps(4)
    a("v_permlane16_swap_b32 %s, %s" % (tmp[4], tmp[6]))
    a("v_permlane16_swap_b32 %s, %s" % (tmp[5], tmp[7]))
    a.vmem("buffer_store_dwordx4 %s, %s, s[4:7], s28 offen offset:1024%s" % (o[4:8], r.vRes[0], SC()), "out")
    a.vmem("buffer_store_dwordx4 %s, %s, s[4:7], s28 offen%s" % (tmp[4:8], r.vRes[2], SC()), "out")
    sq = tmp[2:4]
    a("s_mov_b32 s24, 0x3f803f80")
    for q in range(4):
        a("v_mov_b32 %s, 0" % tmp[q])
    for k in range(10):
        a("v_dot2c_f32_bf16 %s, s24, %s" % (tmp[2 * (k % 2)], o[k]))
        a("v_dot2c_f32_bf16 %s, %s, %s" % (tmp[1 + 2 * (k % 2)], o[k], o[k]))
    a(pk("add", sq, sq, tmp[0:2]))
    for sw in ("v_permlane16_swap_b32", "v_permlane32_swap_b32"):
        a("v_mov_b32 %s, %s" % (tmp[0], sq[0]))
        a("v_mov_b32 %s, %s" % (tmp[1], sq[1]))
        a("%s %s, %s" % (sw, sq[0], tmp[0]))
        a("%s %s, %s" % (sw, sq[1], tmp[1]))
        a(pk("add", sq, sq, tmp[0:2]))
    a.vmem("buffer_store_dwordx2 %s, %s, s[4:7], 0 offen%s" % (sq, r.vSt, SC()), "out")


def wait_first(a, loads=()):
    arrive(a)
    if not CFG["SPLIT"]:
        wait(a, loads)
        return
    spoll_issue(a, 1)
    for f in loads:
        f()
    spoll_wait(a, 1, "s22")
    stamp(a, 8); stamp_dump(a); stamp(a, 0); dbg_time(a)


def final_store(a, o, tmp):
    a("L_final:")
    a("s_mov_b32 s32, s90")
    a("s_mov_b32 s33, s91")
    a("s_mov_b32 s34, %d" % (S * D * 2))
    a("s_mov_b32 s35, 0x20000")
    a("s_mul_i32 s17, s16, 20480")
    a("v_mul_u32_u24 %s, 1280, %s" % (tmp[0], vN))
    a("v_lshl_add_u32 %s, %s, 3, %s" % (tmp[0], vG, tmp[0]))
    a("v_add_u32 %s, s17, %s" % (tmp[0], tmp[0]))
    a("s_lshl_b32 s30, s30, 5")
    a("s_lshl_b32 s29, s29, 5")
    for j in range(4):
        a("buffer_store_dwordx2 %s, %s, s[32:35], s30 offen offset:%d" % (o[2 * j:2 * j + 2], tmp[0], j * 32))
    a("buffer_store_dwordx2 %s, %s, s[32:35], s29 offen" % (o[8:10], tmp[0]))
    dbg_time(a)
    if CFG["SPAN"]:
        a("s_waitcnt vmcnt(0)")
        a("s_memrealtime s[60:61]")
        a("s_lshl_b32 s59, s2, 2")
        a("s_add_u32 s59, s59, s10")
        a("s_lshl_b32 s59, s59, 3")
        a("s_add_u32 s59, s59, %d" % PROFO)
        a("s_mov_b64 exec, 1")
        a("s_waitcnt lgkmcnt(0)")
        a("v_mov_b32 v240, s80\nv_mov_b32 v241, s60\nv_mov_b32 v242, s59")
        a("buffer_store_dwordx2 v[240:241], v242, s[4:7], 0 offen")
    if PROF:
        stamp(a, 5)
        a("s_waitcnt vmcnt(0)")
        stamp(a, 6)
        stamp(a, 7)
        stamp(a, 8)
        stamp_dump(a)


class PK:
    def __init__(self, a, NK, wbase, abase, xres, xout, stout, red, final, wreg, vW_, sW_):
        self.a, self.NK, self.wbase, self.abase = a, NK, wbase, abase
        self.vw, self.sw = vW_, sW_
        self.xres, self.xout, self.stout, self.red, self.final = xres, xout, stout, red, final
        self.W = wreg
        self.todo = None

    def pre_setup(self):
        self.todo = list(range(5 * self.NK))
        return ["s_mul_i32 s17, %s, %d" % (sCG, 4 * self.NK * 5120),
                "s_mul_i32 s19, %s, %d" % (sWAVE, self.NK * 5120),
                "s_add_u32 s17, s17, s19",
                "s_add_u32 s17, s17, %d" % self.wbase,
                "v_add_u32 %s, s17, v2" % self.vw]

    def kmap(self, st):
        return 3 * (st % 4) + st // 4 if self.final else st

    def take(self, n):
        a = self.a
        ks, self.todo = self.todo[:n], self.todo[n:]
        def mk(k):
            def f():
                st, j = divmod(k, 5)
                if j in (0, 4):
                    a("s_mov_b32 %s, %d" % (self.sw, self.kmap(st) * 5120 + (j // 4) * 4096))
                a.vmem("buffer_load_dwordx4 %s, %s, s[4:7], %s offen offset:%d" % (self.W(k), self.vw, self.sw, (j % 4) * 1024), ("w", self.NK, k))
            f.k = k
            return f
        return [mk(k) for k in ks]

    def before_wait(self, emit=None):
        r, a = self, (emit or self.a)
        V = Alloc("v", VBASE, 240)
        r.vA = V.get(4)
        r.vW = V.get(1); r.vRd = V.get(1); r.vRes = V.get(3, 1); r.vSt = V.get(1)
        r.tmp = V.get(8)
        r.res = V.get(12)
        r.acc = [[V.get(4) for j in range(5)] for i in range(4)]
        r.ring = V.get(80)
        r.part = V.get(20)
        tts = 4 * self.NK * 1024
        a("s_lshl_b32 s16, %s, 2" % sRB64)
        a("s_mul_i32 s16, s16, %d" % tts)
        a("s_mul_i32 s19, %s, %d" % (sWAVE, self.NK * 1024))
        a("s_add_u32 s16, s16, s19")
        a("s_add_u32 s16, s16, %s" % sLAY)
        a("s_add_u32 s16, s16, %d" % self.abase)
        for i in range(4):
            a("s_add_u32 s17, %s, %d" % (sWAVE, i))
            a("s_and_b32 s17, s17, 3")
            a("s_mul_i32 s17, s17, %d" % tts)
            a("s_add_u32 s17, s17, s16")
            a("v_add_u32 %s, s17, v2" % r.vA[i])
        p_addr(a, r, r.tmp[0], self.red, self.xres, self.stout)
        r.keep = Reg("v", 228, 10)
        if not self.final:
            l = label("res")
            flush = getattr(a, "flush", None)
            if flush:
                flush()
            self.a("s_cmp_lg_u32 %s, 0" % sLAY)
            self.a("s_cbranch_scc1 %s" % l)
            n = len(self.a.vm)
            p_res_loads(self.a, r.keep, r.vRes)
            self.a.vm = self.a.vm[:n]
            self.a("%s:" % l)

    def body(self, setup=(), extra=()):
        r, a = self, self.a
        acc, NK = r.acc, self.NK
        G0 = 4 if self.final else 0
        seq = [(ks, i) for ks in range(G0) for i in (1, 2, 3, 0)] + [(ks, i) for i in (1, 2, 3, 0) for ks in range(G0, NK)]
        aq = []
        for n, (ks, i) in enumerate(seq):
            def f(n=n, ks=ks, i=i):
                if self.final and n == 4 * G0:
                    spoll_wait(a, 0, sTGT)
                kb = self.kmap(ks)
                if st.get("s20") != kb // 4:
                    a("s_mov_b32 s20, %d" % (kb // 4 * 4096))
                    st["s20"] = kb // 4
                if self.final and n == CFG["BPOLL"]:
                    spoll_issue(a, 0)
                a.vmem("buffer_load_dwordx4 %s, %s, s[4:7], s20 offen offset:%d%s" % (r.ring.q(n % 20), r.vA[i], (kb % 4) * 1024, SC()), ("x", n))
            aq.append((n, f))
        st = {}
        wq = [(f.k // 5, f) for f in self.take(99)]
        for k in range(CFG["PP4"] if self.final else CFG["PP"]):
            aq.pop(0)[1]()
            if self.final and k == CFG["BARR"]:
                a.wait_vm("out")
                a("s_add_u32 %s, %s, 16" % (sTGT, sTGT))
                signal(a, 0)
        stamp(a, 1)
        def unpack():
            l = label("unsw")
            if not self.final:
                a("s_cmp_eq_u32 %s, 0" % sLAY)
                a("s_cbranch_scc1 %s" % l)
            for sw in ("v_permlane16_swap_b32", "v_permlane32_swap_b32"):
                for b in (0, 4):
                    for d in range(2):
                        a("%s %s, %s" % (sw, r.keep[b + d], r.keep[b + 2 + d]))
            a("%s:" % l)
            a("s_nop 0")
            for j in range(5):
                for h in range(2):
                    a("v_lshlrev_b32 %s, 16, %s" % (acc[0][j][2 * h], r.keep[2 * j + h]))
                    a("v_and_b32 %s, 0xffff0000, %s" % (acc[0][j][2 * h + 1], r.keep[2 * j + h]))
        if self.final:
            unpack()
        setup = list(setup)
        extra = list(extra)
        first_use = {}
        for n, (ks, i) in enumerate(seq):
            first_use.setdefault(ks, n)
        wq = [(first_use[ks], f) for ks, f in wq]
        side = []
        cnt, tau, started = 0, 0, set()
        for n, (ks, i) in enumerate(seq):
            while wq and wq[0][0] <= n:
                wq.pop(0)[1]()
            while aq and aq[0][0] <= n:
                aq.pop(0)[1]()
            a.wait_vm([("w", NK, k) for k in range(5 * ks, 5 * ks + 5)] + [("x", n)])
            if n == 0:
                stamp(a, 2)
            if n == 1 and not self.final:
                unpack()
            for j in range(5):
                c = str(acc[i][j]) if (i == 0 or i in started) else "0"
                a("%s %s, %s, %s, %s" % (MF, acc[i][j], self.W(5 * ks + j), r.ring.q(n % 20), c))
                cnt += 1
                if cnt % CFG["SP4"] == 0 and (aq or wq):
                    ca = aq and aq[0][0] - 20 < n
                    if ca and (not wq or aq[0][0] <= wq[0][0] - 4):
                        aq.pop(0)[1]()
                    elif wq:
                        wq.pop(0)[1]()
                    elif ca:
                        aq.pop(0)[1]()
                elif cnt % CFG["SPX"] == 0 and extra and not aq and not wq and not setup:
                    extra.pop(0)()
                elif side:
                    for _ in range(2):
                        if side:
                            x = side.pop(0)
                            if x is not None:
                                x() if callable(x) else a(x)
                elif cnt % CFG["SP4"] == 1 and setup and n >= 8:
                    a(setup.pop(0))
            started.add(i)
            if ks == NK - 1 and i:
                for x in side:
                    if x is not None:
                        x() if callable(x) else a(x)
                side = [None] * 4
                par = (tau % 2) * 5120
                for j in range(5):
                    if tau:
                        side.append(lambda j=j: a.wait_lg(("p", j)))
                        side += ["v_add_f32 %s, %s, %s" % (acc[i][j][q], acc[i][j][q], r.part.q(j)[q]) for q in range(4)]
                    side.append(lambda i=i, j=j, par=par: a.ds("ds_write_b128 %s, %s offset:%d" % (r.vW, acc[i][j], par + j * 1024), "rw"))
                side += [None] * CFG["XW"]
                def swap(par=par):
                    a.wait_lg("rw")
                    a("s_barrier")
                    for j in range(5):
                        a.ds("ds_read_b128 %s, %s offset:%d" % (r.part.q(j), r.vRd, par + j * 1024), ("p", j))
                side.append(swap)
                tau += 1
        for x in side:
            if x is not None:
                x() if callable(x) else a(x)
        assert not aq and not wq and not setup
        p_epilogue(a, r, acc, r.res, r.part, r.tmp, self.xout - self.xres, extra, self.final)
        self.left = extra


def main_body():
    a = Asm()
    a("s_cmp_ge_u32 s2, 256")
    a("s_cbranch_scc1 L_end")
    a("s_load_dwordx2 s[4:5], s[0:1], 72")
    a("s_load_dwordx4 s[84:87], s[0:1], 0")
    a("s_load_dwordx2 s[88:89], s[0:1], 16")
    a("s_load_dwordx2 s[90:91], s[0:1], 32")
    a("s_load_dwordx2 s[92:93], s[0:1], 40")
    a("s_load_dwordx2 s[96:97], s[0:1], 48")
    a("s_load_dwordx2 s[94:95], s[0:1], 64")
    if CFG["SPAN"]:
        a("s_memrealtime s[80:81]")
    if CFG["DBGT"]:
        a("s_memrealtime s[80:81]")
        a("s_mov_b32 s62, 4")
    if PROF:
        a("s_mov_b32 %s, 0" % sPH)
        a("s_memrealtime s[80:81]")
    stamp(a, 0)
    a("v_lshrrev_b32 v1, 6, v0")
    a("v_readfirstlane_b32 %s, v1" % sWAVE)
    a("v_and_b32 v1, 63, v0")
    a("v_lshlrev_b32 v2, 4, v1")
    a("v_and_b32 %s, 15, v1" % vN)
    a("v_lshrrev_b32 %s, 4, v1" % vG)
    a("s_mov_b32 s6, %d" % WS_USED)
    a("s_mov_b32 s7, 0x20000")

    def late_setup():
        a("s_and_b32 s16, s2, 7")
        a("s_lshr_b32 s17, s2, 3")
        a("s_lshr_b32 %s, s16, 1" % sRB)
        a("s_lshl_b32 %s, %s, 2" % (sRB, sRB))
        a("s_and_b32 s18, s17, 3")
        a("s_add_u32 %s, %s, s18" % (sRB, sRB))
        a("s_lshr_b32 s17, s17, 2")
        a("s_and_b32 s16, s16, 1")
        a("s_lshl_b32 %s, s16, 3" % sP)
        a("s_add_u32 %s, %s, s17" % (sP, sP))
        a("s_lshl_b32 %s, %s, 1" % (sRB64, sRB))
        a("s_and_b32 s18, s17, 1")
        a("s_add_u32 %s, %s, s18" % (sRB64, sRB64))
        a("s_lshl_b32 %s, s16, 2" % sCG)
        a("s_lshr_b32 s18, s17, 1")
        a("s_add_u32 %s, %s, s18" % (sCG, sCG))
        a("s_and_b32 s18, %s, %d" % (sRB, 3 if CFG["ROT"] else 0))
        a("s_mul_i32 %s, s18, 3" % sROT12)
        a("s_mul_i32 %s, s18, 5" % sROT10)
        a("s_lshr_b32 %s, %s, 1" % (sROT10, sROT10))
        a("s_mov_b32 %s, 0" % sLAY)
        a("s_mov_b32 %s, 0" % sTGT)
        a("s_lshl_b32 s17, %s, 11" % sRB)
        a("s_add_u32 s17, s17, %d" % CNT)
        a("v_lshl_add_u32 %s, %s, 7, s17" % (vCNT, vN))
        a("v_mov_b32 v255, 0x%x" % OOB)
        a("v_cmp_gt_u32 vcc, 16, v1")
        a("s_lshl_b32 s18, %s, 7" % sP)
        a("s_add_u32 s17, s17, s18")
        a("v_cndmask_b32 %s, v255, %s, vcc" % (vCNT, vCNT))
        a("v_mov_b32 %s, s17" % vPL)
        a("s_add_u32 s100, s4, s17")
        a("s_addc_u32 s101, s5, 0")
        a("v_cmp_eq_u32 vcc, 0, v1")
        a("v_cndmask_b32 %s, v255, %s, vcc" % (vPL, vPL))
    p1, p3 = P1(a), P3(a)
    p2 = PK(a, 5, W2, PQ, XA, XB, STB, 122880, False, lambda k: Reg("a", 192 + 4 * k if k < 16 else 156 + 4 * (k - 16), 4), vPRE[2], "s47")
    p4 = PK(a, 12, W4, H, XB, XA + LSTR, STA + LSTR, 122880, True, lambda k: Reg("a", 4 * k, 4), vPRE[3], "s58")
    p0_phase(a, p1, late_setup)
    a.vm = []
    for f in p1.pre_loads(CFG["NPRE1A"]):
        f()
    p1.body(p2, p3, p4, CFG["NPRE1A"], True)
    tail_state = list(a.vm[a.vm.index("out"):])
    a("L_mid:")
    ex = p1.extra
    w = Weaver(a, ex[:CFG["NX2"]], 8)
    p2.before_wait(w); w.flush(); arrive(a); wait(a, ex[CFG["NX2"]:CFG["NX2"] + CFG["NX3"]])
    rest = ex[CFG["NX2"] + CFG["NX3"]:]
    assert len(ex) - len(rest) >= len(ex) - 6 * CFG["NE3"] - CFG["NW4P"]
    p2.body((), rest)
    stamp(a, 5)
    w = Weaver(a, p2.left, 6)
    p3.before_wait(w); w.flush(); wait_first(a, p3.wait_loads() + p4.take(CFG["NW4Q"]))
    p3.body(p4)
    stamp(a, 5)
    spoll_issue(a, 1)
    p4.before_wait()
    stamp(a, 6); stamp(a, 7)
    spoll_wait(a, 1, "s22")
    stamp(a, 8); stamp_dump(a); stamp(a, 0); dbg_time(a)
    p4.body(p1.pre_setup())
    stamp(a, 5)
    a("s_add_u32 %s, %s, %d" % (sLAY, sLAY, LSTR))
    pl = p1.pre_loads(CFG["NPRE1"])
    assert len(pl) - CFG["NP1W"] <= 28
    w = Weaver(a, pl[:len(pl) - CFG["NP1W"]], 12)
    p1.before_wait(w); w.flush(); wait_first(a, pl[len(pl) - CFG["NP1W"]:])
    p1.body(p2, p3, p4, CFG["NPRE1"])
    assert a.vm[a.vm.index("out"):] == tail_state
    a("s_branch L_mid")
    final_store(a, p4.keep, p4.tmp)
    a("L_end:")
    a("s_endpgm")
    a("L_code_end:")
    return a, dict(vgpr=512, acc=256, lds=163840)


def p0_phase(a, p1, late_setup):
    U1, UX, U2, UZ, U3, U4 = 160, 256, 100, 47, 480, 240
    BX = U1; B2 = BX + UX; BZ = B2 + U2; BE = BZ + UZ
    NT = " nt" if CFG["K0NT"] & 1 else ""
    n_, g_ = "v3", "v4"
    DST = [82, 83, 86, 87, 88, 89, 98, 99]

    def nat_flag(kb):
        a("s_mul_i32 s29, %s, 52" % kb)
        a("s_lshr_b32 s29, s29, 8")
        a("s_mul_i32 s29, s29, 5")
        a("s_sub_u32 s29, %s, s29" % kb)
        a("s_cmp_eq_u32 s29, 2")

    def colsum(j, frag):
        a("%s v[%d:%d], v[56:59], %s, 0" % (MF, 64 + 4 * (j % 4), 67 + 4 * (j % 4), frag))

    def colsum_keep(j):
        a("v_cndmask_b32 v%d, v%d, v%d, s[%d:%d]" % (60 + j // 4, 60 + j // 4, 64 + 4 * (j % 4), 50 + 2 * (j % 4), 51 + 2 * (j % 4)))

    def issue128(srd, rs, kb, ch, lds, v):
        a("v_mul_lo_u32 %s, %s, %s" % (v, g_, rs))
        a("v_lshl_add_u32 %s, %s, 4, %s" % (v, n_, v))
        a("s_mul_i32 s17, %s, %s" % (kb, rs))
        a("s_lshl_b32 s17, s17, 5")
        a("s_lshl_b32 s19, %s, 8" % ch)
        a("s_add_u32 s17, s17, s19")
        a("s_lshl_b32 s19, %s, 2" % rs)
        for i in range(8):
            a("s_add_u32 m0, %s, %d" % (lds, i * 1024))
            a("s_nop 0")
            a("buffer_load_dwordx4 %s, %s, s17 offen%s lds" % (v, srd, NT))
            a("s_add_u32 s17, s17, s19")

    def rdaddr128(lds):
        a("v_lshrrev_b32 v230, 2, %s" % n_)
        a("v_lshl_add_u32 v230, %s, s29, v230" % g_)
        a("v_lshlrev_b32 v230, 8, v230")
        a("v_and_b32 v231, 3, %s" % n_)
        a("v_lshl_add_u32 v230, v231, 3, v230")
        a("v_add_u32 v230, %s, v230" % lds)
        a("v_add_u32 v231, s30, v230")

    def dst640(kb, ch, nkb, base):
        for i in range(8):
            a("s_lshl_b32 s17, %s, 3" % ch)
            a("s_add_u32 s17, s17, %d" % i)
            a("s_mul_i32 s19, s17, 52")
            a("s_lshr_b32 s19, s19, 8")
            a("s_mul_i32 s28, s19, 5")
            a("s_sub_u32 s17, s17, s28")
            a("s_and_b32 s28, s19, 1")
            a("s_sub_u32 s17, s17, s28")
            a("s_cselect_b32 s17, 4, s17")
            a("s_mul_i32 s19, s19, %d" % nkb)
            a("s_add_u32 s19, s19, %s" % kb)
            a("s_mul_i32 s19, s19, 5")
            a("s_add_u32 s19, s19, s17")
            a("s_lshl_b32 s19, s19, 10")
            a("s_add_u32 s%d, s19, %d" % (DST[i], base))

    def move128():
        for t in range(8):
            for h in range(2):
                a.ds("ds_read_b64_tr_b16 v[%d:%d], v%d offset:%d" % (96 + 4 * t + 2 * h, 97 + 4 * t + 2 * h, 230 + h, t * 32), ("t", t))
        for t in range(8):
            a.wait_lg(("t", t))
            a("buffer_store_dwordx4 v[%d:%d], v2, s[4:7], s%d offen sc1" % (96 + 4 * t, 99 + 4 * t, DST[t]))

    a("s_lshl_b32 s38, %s, 8" % sWAVE)
    a("s_add_u32 s38, s38, s2")
    a("s_sub_u32 s16, s38, 160")
    a("s_cmp_lt_u32 s2, 160")
    a("s_cselect_b32 s16, s2, s16")
    a("s_cmp_eq_u32 %s, 2" % sWAVE)
    a("s_cselect_b32 s38, s16, s38")
    a("s_add_u32 s39, s2, 256")
    a("s_sub_u32 s16, 767, s2")
    a("s_cmp_eq_u32 %s, 2" % sWAVE)
    a("s_cselect_b32 s39, s16, s39")
    a("s_cmp_eq_u32 %s, 3" % sWAVE)
    a("s_cselect_b32 s39, s2, s39")
    a("s_cmp_eq_u32 %s, 0" % sWAVE)
    a("s_cselect_b32 s39, 0x1000, s39")
    a("s_lshl_b32 s18, %s, 14" % sWAVE)
    a("s_lshl_b32 s37, %s, 13" % sWAVE)
    a("s_add_u32 s37, s37, 0x20000")
    a("s_mov_b32 s23, 0x20000\ns_mov_b32 s35, 0x20000")
    a("s_cmp_lt_u32 s38, %d" % BX)
    a("s_cbranch_scc1 L_i_w1")
    a("s_cmp_lt_u32 s38, %d" % B2)
    a("s_cbranch_scc1 L_i_x")
    a("s_cmp_lt_u32 s38, %d" % BZ)
    a("s_cbranch_scc1 L_i_w2")
    a("s_waitcnt lgkmcnt(0)")
    a("s_cmp_lt_u32 s38, %d" % BE)
    a("s_cbranch_scc0 L_i_b")
    a("s_sub_u32 s16, s38, %d" % BZ)
    a("s_cmp_ge_u32 s16, 14")
    a("s_cselect_b32 s17, %d, 0" % (LSTR - 14 * 4096))
    a("s_cmp_ge_u32 s16, 28")
    a("s_cselect_b32 s17, 0x%x, s17" % ((CS3F - KV - 28 * 4096) & 0xffffffff))
    a("s_cmp_ge_u32 s16, 31")
    a("s_cselect_b32 s17, 0x%x, s17" % ((CNT - KV - 31 * 4096) & 0xffffffff))
    a("s_add_u32 s17, s17, %d" % KV)
    a("s_lshl_b32 s16, s16, 12")
    a("s_add_u32 s17, s17, s16")
    for q in range(4):
        a("v_mov_b32 v%d, 0" % (16 + q))
    for q in range(4):
        a("buffer_store_dwordx4 v[16:19], v2, s[4:7], s17 offen offset:%d sc1" % (q * 1024))
    a("s_branch L_i_b")

    a("L_i_w1:")
    a("s_lshr_b32 s24, s38, 3")
    a("s_and_b32 s25, s38, 7")
    a("v_mul_u32_u24 v12, 205, v1")
    a("v_lshrrev_b32 v12, 11, v12")
    a("v_mul_u32_u24 v13, 10, v12")
    a("v_sub_u32 v13, v1, v13")
    a("v_cmp_le_u32 vcc, 3, v12")
    a("v_cndmask_b32 v14, 0, 1, vcc")
    a("v_mul_u32_u24 v15, 3, v14")
    a("v_sub_u32 v12, v12, v15")
    a("v_add_u32 v12, 1, v12")
    a("v_cmp_eq_u32 vcc, 3, v12")
    a("v_cndmask_b32 v12, v12, 0, vcc")
    a("v_mul_u32_u24 v12, 1280, v12")
    a("v_lshl_add_u32 v12, v13, 4, v12")
    a("v_mul_u32_u24 v14, 3840, v14")
    a("s_mul_i32 s17, s24, %d" % (32 * 3840))
    a("s_mul_i32 s19, s25, 160")
    a("s_add_u32 s17, s17, s19")
    a("s_mul_i32 s19, %s, %d" % (sWAVE, 8 * 3840))
    a("s_add_u32 s17, s17, s19")
    a("s_lshl_b32 s18, %s, 12" % sWAVE)
    a("v_add3_u32 v12, v12, v14, s17")
    a("v_mov_b32 v13, 0x%x" % OOB)
    a("v_cmp_gt_u32 vcc, 60, v1")
    a("v_cndmask_b32 v12, v13, v12, vcc")
    a("s_mov_b32 s22, %d" % (640 * 1920 * 2))
    a("s_waitcnt lgkmcnt(0)")
    a("s_mov_b32 s20, s86\ns_mov_b32 s21, s87")
    for i in range(8):
        a("s_add_u32 m0, s18, %d" % (i * 1024))
        a("s_mov_b32 s19, %d" % (i * 7680))
        a("buffer_load_dwordx4 v12, s[20:23], s19 offen%s lds" % (" nt" if CFG["K0NT"] & 2 else ""))
    a("s_branch L_i_b")

    a("L_i_x:")
    a("s_sub_u32 s16, s38, %d" % BX)
    a("s_lshr_b32 s24, s16, 1")
    a("s_and_b32 s25, s16, 1")
    a("s_mul_i32 s17, s24, 20480")
    a("s_mul_i32 s19, s25, 640")
    a("s_add_u32 s19, s19, s17")
    a("v_mul_u32_u24 v12, 1280, %s" % n_)
    a("v_lshl_add_u32 v13, %s, 4, v12" % g_)
    a("s_mov_b32 s22, %d" % (S * D * 2))
    a("s_waitcnt lgkmcnt(0)")
    a("s_mov_b32 s20, s84\ns_mov_b32 s21, s85")
    for kb in range(10):
        a("buffer_load_dwordx4 v[%d:%d], v13, s[20:23], s19 offen offset:%d%s" % (96 + 4 * kb, 99 + 4 * kb, kb * 64, " nt" if CFG["K0NT"] & 4 else ""))
    a("s_branch L_i_b")

    a("L_i_w2:")
    a("s_sub_u32 s16, s38, %d" % B2)
    a("s_mul_i32 s24, s16, 52429")
    a("s_lshr_b32 s24, s24, 18")
    a("s_mul_i32 s17, s24, 5")
    a("s_sub_u32 s25, s16, s17")
    a("s_mov_b32 s22, %d\ns_mov_b32 s16, 1280" % (640 * 640 * 2))
    a("s_waitcnt lgkmcnt(0)")
    a("s_mov_b32 s20, s88\ns_mov_b32 s21, s89")
    a("s_mul_i32 s28, s24, 52")
    a("s_lshr_b32 s28, s28, 8")
    a("s_mul_i32 s17, s28, 5")
    a("s_sub_u32 s26, s24, s17")
    a("s_mul_i32 s17, s28, 160")
    a("s_mul_i32 s19, s26, 40")
    a("s_cmp_eq_u32 s26, 4")
    a("s_cselect_b32 s19, 32, s19")
    a("s_cselect_b32 s27, %d, %d" % (36 * 1280, 0))
    a("s_max_u32 s27, s27, %d" % (4 * 1280))
    a("s_add_u32 s17, s17, s19")
    a("s_mul_i32 s17, s17, 1280")
    a("s_lshl_b32 s19, s25, 8")
    a("s_add_u32 s17, s17, s19")
    a("v_mul_u32_u24 v12, 1280, %s" % g_)
    a("v_lshl_add_u32 v12, %s, 4, v12" % n_)
    for i in range(8):
        a("s_add_u32 m0, s18, %d" % (i * 1024))
        a("s_nop 0")
        a("buffer_load_dwordx4 v12, s[20:23], s17 offen%s lds" % NT)
        a("s_add_u32 s17, s17, %s" % ("s27" if i % 2 else str(4 * 1280)))

    a("L_i_b:")
    a("s_mov_b32 s28, s18")
    late_setup()
    a("s_mov_b32 s18, s28")
    a("s_cmp_eq_u32 %s, 3" % sWAVE)
    a("s_cbranch_scc0 L_i_c")
    a("s_cmp_eq_u32 %s, 0" % sP)
    a("s_cbranch_scc0 L_i_c")
    for q in range(4):
        a("v_mov_b32 v%d, 0" % (16 + q))
    a("s_lshl_b32 s17, %s, 11" % sRB)
    a("s_add_u32 s17, s17, %d" % CNT_G)
    a("buffer_store_dwordx4 v[16:19], v2, s[4:7], s17 offen sc1")
    a("buffer_store_dwordx4 v[16:19], v2, s[4:7], s17 offen offset:1024 sc1")
    a("L_i_c:")
    a("s_barrier")
    a("s_cmp_eq_u32 %s, 3" % sWAVE)
    a("s_cbranch_scc0 L_i_b1")
    a("s_cmp_eq_u32 %s, 0" % sP)
    a("s_cbranch_scc0 L_i_b0")
    a("s_mov_b64 exec, 1")
    a("v_mov_b32 v16, 1")
    a("s_waitcnt vmcnt(0)")
    a("global_atomic_add v2, v16, s[94:95]")
    a("s_mov_b64 exec, -1")
    a("L_i_b0:")
    if CFG["CPF"]:
        a("s_getpc_b64 s[32:33]")
        a("L_pc:")
        a("s_lshr_b32 s17, s2, 3")
        a("s_lshl_b32 s17, s17, 11")
        a("v_add_u32 v12, s17, v2")
        a("v_min_u32 v12, L_code_end-L_pc-1040, v12")
        a("v_mov_b32 v15, s33")
        a("v_add_co_u32 v14, vcc, s32, v12")
        a("v_addc_co_u32 v15, vcc, 0, v15, vcc")
        a("global_load_dwordx4 a[252:255], v[14:15], off")
        a("global_load_dwordx4 a[252:255], v[14:15], off offset:1024")
    a("L_i_b1:")

    a("L_p_a:")
    stamp(a, 1)
    for q in range(4):
        a("v_cmp_eq_u32 s[%d:%d], %d, %s" % (50 + 2 * q, 51 + 2 * q, q, g_))
        a("v_mov_b32 v%d, 0x3f803f80" % (56 + q))

    def wait_a():
        a("s_waitcnt vmcnt(0)")
        stamp(a, 2)
        a("s_barrier")
    a("s_cmp_lt_u32 s38, %d" % BX)
    a("s_cbranch_scc1 L_p_w1")
    a("s_cmp_lt_u32 s38, %d" % B2)
    a("s_cbranch_scc1 L_p_x")
    a("s_cmp_lt_u32 s38, %d" % BZ)
    a("s_cbranch_scc1 L_p_w2")
    a("s_barrier")
    a("s_branch L_drain")

    a("L_p_w1:")
    a("s_mov_b32 s29, 2\ns_mov_b32 s30, 2048")
    a("v_lshrrev_b32 v12, 3, %s" % n_)
    a("v_lshl_add_u32 v12, %s, s29, v12" % g_)
    a("v_lshlrev_b32 v12, 10, v12")
    a("v_bfe_u32 v14, %s, 2, 1" % n_)
    a("v_mul_u32_u24 v14, 480, v14")
    a("s_mul_i32 s18, %s, 40" % sWAVE)
    a("v_add3_u32 v12, v12, v14, s18")
    a("v_and_b32 v14, 3, %s" % n_)
    a("v_lshlrev_b32 v14, 2, v14")
    for j in range(8):
        a("v_add_u32 v15, %d, v14" % (16 * j))
        a("v_mul_u32_u24 v32, 205, v15")
        a("v_lshrrev_b32 v32, 13, v32")
        a("v_min_u32 v32, 2, v32")
        a("v_mul_u32_u24 v32, 80, v32")
        a("v_lshl_add_u32 v32, v15, 1, v32")
        a("v_add_u32 v%d, v12, v32" % (16 + j))
        a("v_add_u32 v%d, s30, v%d" % (24 + j, 16 + j))
    kpos_scalar(a, "s27", "s24")
    a("s_lshl_b32 s17, s25, 1")
    a("s_lshr_b32 s19, %s, 1" % sWAVE)
    a("s_add_u32 s17, s17, s19")
    a("s_mul_i32 s17, s17, 163840")
    a("s_add_u32 s17, s17, %d" % W1)
    a("s_mul_i32 s19, s27, 6144")
    a("s_add_u32 s19, s19, s17")
    a("v_add_u32 v33, s19, v2")
    a("s_lshl_b32 s19, s27, 11")
    a("s_add_u32 s19, s19, s17")
    a("s_add_u32 s19, s19, %d" % (120 * 1024))
    a("v_add_u32 v34, s19, v2")
    a("s_lshl_b32 s17, s24, 13")
    a("s_lshl_b32 s19, s25, 10")
    a("s_add_u32 s17, s17, s19")
    a("s_lshl_b32 s19, %s, 8" % sWAVE)
    a("s_add_u32 s17, s17, s19")
    a("s_add_u32 s17, s17, %d" % CSP1)
    a("v_lshl_add_u32 v35, v1, 2, s17")
    a("s_mov_b32 s82, 4096")
    wait_a()
    for j in range(8):
        for h in range(2):
            a.ds("ds_read_b64_tr_b16 v[%d:%d], v%d" % (96 + 4 * j + 2 * h, 97 + 4 * j + 2 * h, 16 + j + 8 * h), ("t", j))
    for j in range(8):
        a.wait_lg(("t", j))
        fr = "v[%d:%d]" % (96 + 4 * j, 99 + 4 * j)
        if j < 6:
            a("buffer_store_dwordx4 %s, v33, s[4:7], %s offen offset:%d sc1" % (fr, ["0", "s82"][j // 4], (j % 4) * 1024))
        else:
            a("buffer_store_dwordx4 %s, v34, s[4:7], 0 offen offset:%d sc1" % (fr, (j - 6) * 1024))
        colsum(j, fr)
        if j >= 2:
            colsum_keep(j - 2)
    colsum_keep(6); colsum_keep(7)
    for q in range(2):
        a("buffer_store_dword v%d, v35, s[4:7], 0 offen offset:%d sc1" % (60 + q, q * 256))
    a("s_branch L_drain")

    a("L_p_x:")
    a("s_mul_i32 s17, s24, 20480")
    a("s_mul_i32 s19, s25, 10240")
    a("s_add_u32 s17, s17, s19")
    a("s_add_u32 s17, s17, %d" % XA)
    a("v_add_u32 v12, s17, v2")
    a("s_mov_b32 s82, 4096\ns_mov_b32 s83, 8192")
    for q in range(4):
        a("v_mov_b32 v%d, 0" % (16 + q))
    a("s_mov_b32 s28, 0x3f803f80")
    a("s_lshl_b32 s17, s24, 10")
    a("s_lshl_b32 s19, s25, 7")
    a("s_add_u32 s17, s17, s19")
    a("s_add_u32 s17, s17, %d" % STA)
    a("v_lshlrev_b32 v14, 3, %s" % n_)
    a("v_lshl_add_u32 v14, %s, 8, v14" % g_)
    wait_a()
    for kb in range(10):
        a("buffer_store_dwordx4 v[%d:%d], v12, s[4:7], %s offen offset:%d sc1" % (96 + 4 * kb, 99 + 4 * kb, ["0", "s82", "s83"][kb // 4], (kb % 4) * 1024))
    for kb in range(10):
        for d in range(4):
            a("v_dot2c_f32_bf16 v%d, s28, v%d" % (16 + 2 * (d % 2), 96 + 4 * kb + d))
            a("v_dot2c_f32_bf16 v%d, v%d, v%d" % (17 + 2 * (d % 2), 96 + 4 * kb + d, 96 + 4 * kb + d))
    a(pk("add", Reg("v", 16, 2), Reg("v", 16, 2), Reg("v", 18, 2)))
    a("buffer_store_dwordx2 v[16:17], v14, s[4:7], s17 offen sc1")
    a("s_branch L_drain")

    a("L_p_w2:")
    a("s_cmp_eq_u32 s26, 4")
    a("s_cselect_b32 s29, 3, 2")
    a("s_cselect_b32 s30, 1, 4")
    a("s_lshl_b32 s30, s30, 10")
    rdaddr128("s18")
    dst640("s24", "s25", 20, W2)
    wait_a()
    move128()

    a("L_drain:")
    stamp(a, 3)
    a("v_mov_b32 v236, 0x%x\nv_mov_b32 v237, 0x%x\nv_mov_b32 v238, 0x%x" % (OOB, OOB, OOB))
    for t in range(8):
        a("s_mov_b32 s%d, 0" % DST[t])
    a("s_mov_b32 s31, 0")
    a("s_cmp_lt_u32 s39, %d" % U3)
    a("s_cbranch_scc1 L_d_w3")
    a("s_cmp_lt_u32 s39, %d" % (U3 + U4))
    a("s_cbranch_scc0 L_d_done")
    a("s_sub_u32 s16, s39, %d" % U3)
    a("s_mul_i32 s36, s16, 52429")
    a("s_lshr_b32 s36, s36, 18")
    a("s_mul_i32 s17, s36, 5")
    a("s_sub_u32 s58, s16, s17")
    a("s_mov_b32 s31, 3\ns_mov_b32 s34, %d\ns_mov_b32 s48, 1280" % (1536 * 640 * 2))
    a("s_mov_b32 s32, s96\ns_mov_b32 s33, s97")
    dst640("s36", "s58", 48, W4)
    a("s_mov_b32 s29, 2\ns_mov_b32 s30, 4096")
    a("s_branch L_d_rd")
    a("L_d_w3:")
    a("s_mul_i32 s36, s39, 43691")
    a("s_lshr_b32 s36, s36, 20")
    a("s_mul_i32 s17, s36, 24")
    a("s_sub_u32 s58, s39, s17")
    a("s_and_b32 s31, s58, 1")
    a("s_lshr_b32 s58, s58, 1")
    a("s_mov_b32 s34, %d\ns_mov_b32 s48, 3072" % (640 * 1536 * 2))
    a("s_cmp_eq_u32 s31, 1")
    a("s_cselect_b32 s32, s92, s90")
    a("s_cselect_b32 s33, s93, s91")
    a("s_add_u32 s31, s31, 1")
    kpos_scalar(a, "s27", "s36")
    for i in range(8):
        a("s_lshl_b32 s17, s58, 3")
        a("s_add_u32 s17, s17, %d" % i)
        a("s_mul_i32 s19, s17, 43")
        a("s_lshr_b32 s19, s19, 8")
        a("s_mul_i32 s28, s19, 6")
        a("s_sub_u32 s17, s17, s28")
        a("s_lshl_b32 s17, s17, 1")
        a("s_add_u32 s17, s17, s31")
        a("s_sub_u32 s17, s17, 1")
        a("s_mul_i32 s28, s19, 12")
        a("s_add_u32 s28, s28, s17")
        a("s_lshl_b32 s28, s28, 6")
        a("s_add_u32 s28, s28, %d" % CS3F)
        a("v_lshl_add_u32 v232, %s, 2, s28" % n_)
        a("v_cndmask_b32 v%d, v%d, v232, s[%d:%d]" % (236 + i // 4, 236 + i // 4, 50 + 2 * (i % 4), 51 + 2 * (i % 4)))
        a("s_mul_i32 s19, s19, 20")
        a("s_add_u32 s19, s19, s27")
        a("s_mul_i32 s19, s19, 12")
        a("s_add_u32 s19, s19, s17")
        a("s_lshl_b32 s19, s19, 10")
        a("s_add_u32 s%d, s19, %d" % (DST[i], W3))
    a("s_mov_b32 s29, 3\ns_mov_b32 s30, 1024")
    a("L_d_rd:")
    rdaddr128("s37")
    if CFG["BPOS"] == 0:
        issue128("s[32:35]", "s48", "s36", "s58", "s37", "v232")
    a("L_d_done:")
    for l in p1.pre_setup():
        a(l)
    p1.before_wait()
    XL = 49152
    def x_dma(c):
        for i in range(4):
            a("s_add_u32 m0, s24, %d" % ((c % 5) * 4096 + i * 1024))
            a("s_mov_b32 s19, %d" % (i * 10240 + c * 128))
            a("buffer_load_dwordx4 v235, s[88:91], s19 offen lds")
    def x_read(c):
        for ks in range(2):
            for rt in range(2):
                k = 2 * (2 * c + ks) + rt
                a("ds_read_b128 a[%d:%d], v%d offset:%d" % (4 * k, 4 * k + 3, 240 + ks, (c % 5) * 4096 + rt * 2048))
    if CFG["XPRE"]:
        a("s_mov_b32 s25, s88\ns_mov_b32 s22, s89")
        a("s_mov_b32 s88, s84\ns_mov_b32 s89, s85\ns_mov_b32 s90, %d\ns_mov_b32 s91, 0x20000" % (S * D * 2))
        a("s_mul_i32 s24, %s, 20480" % sWAVE)
        a("s_add_u32 s24, s24, %d" % XL)
        a("v_lshrrev_b32 v235, 3, v1")
        a("v_and_b32 v240, 7, v1")
        a("v_xor_b32 v240, v240, v235")
        a("v_mul_u32_u24 v235, 1280, v235")
        a("v_lshl_add_u32 v235, v240, 4, v235")
        a("s_mul_i32 s17, s16, 20480")
        a("v_add_u32 v235, s17, v235")
        a("v_and_b32 v240, 7, %s" % n_)
        a("v_xor_b32 v241, %s, v240" % g_)
        a("v_lshlrev_b32 v241, 4, v241")
        a("v_lshl_add_u32 v240, %s, 7, v241" % n_)
        a("v_add_u32 v240, s24, v240")
        a("v_xor_b32 v241, 64, v240")
    a("v_mov_b32 v229, 0")
    a("s_cmp_eq_u32 %s, 3" % sWAVE)
    a("s_cbranch_scc0 L_clr0")
    a("global_load_dword v233, v229, s[94:95] sc1")
    a("L_clr0:")
    NXD = 20 if CFG["XPRE"] else 0
    for c in range(NXD // 4):
        x_dma(c)
    a("s_cmp_eq_u32 %s, 3" % sWAVE)
    a("s_cbranch_scc0 L_clr_ok")
    a("s_mov_b32 s42, %d" % CFG["TMO"])
    a("s_waitcnt vmcnt(%d)" % NXD)
    a("L_clr:")
    a("v_readfirstlane_b32 s43, v233")
    a("s_cmp_ge_u32 s43, 16")
    a("s_cbranch_scc1 L_clr_ok")
    a("global_load_dword v233, v229, s[94:95] sc1")
    a("s_sub_u32 s42, s42, 1")
    a("s_waitcnt vmcnt(0)")
    a("s_cbranch_scc0 L_clr")
    a("L_clr_ok:")
    if CFG["BPOS"] == 0:
        a("s_cmp_eq_u32 s31, 0")
        a("s_waitcnt vmcnt(%d)" % (8 + NXD))
        a("s_cbranch_scc0 L_drained")
    a("s_waitcnt vmcnt(%d)" % NXD)
    a("L_drained:")
    stamp(a, 4)
    a("s_barrier")
    a("s_cmp_lg_u32 %s, 0" % sWAVE)
    a("s_cbranch_scc1 L_p_b")
    a("v_mov_b32 v232, 1")
    a("buffer_atomic_add v232, %s, s[4:7], 0 offen" % p1.vC1)
    a("L_p_b:")
    stamp(a, 5)
    if CFG["BPOS"] == 2:
        a("s_cmp_eq_u32 s31, 0")
        a("s_cbranch_scc1 L_p_b2")
        issue128("s[32:35]", "s48", "s36", "s58", "s37", "v232")
        a("L_p_b2:")
    if CFG["XPRE"]:
        for c in range(5):
            a("s_waitcnt vmcnt(16)")
            x_read(c)
            a("s_waitcnt lgkmcnt(0)")
            x_dma(c + 5)
    a("s_cmp_eq_u32 s31, 0")
    a("s_cbranch_scc1 L_p_x2")
    if CFG["BPOS"] == 1:
        issue128("s[32:35]", "s48", "s36", "s58", "s37", "v232")
    if CFG["BPOS"] == 1 or not CFG["XPRE"]:
        a("s_waitcnt vmcnt(0)")
    a("v_mov_b32 v238, v2")
    for t in range(8):
        for h in range(2):
            a.ds("ds_read_b64_tr_b16 a[%d:%d], v%d offset:%d" % (192 + 4 * t + 2 * h, 193 + 4 * t + 2 * h, 230 + h, t * 32), ("t", t))
    p1.bstores = [(lambda t=t: a.vmem("buffer_store_dwordx4 a[%d:%d], v238, s[4:7], s%d offen sc1" % (192 + 4 * t, 195 + 4 * t, DST[t]), "bst")) for t in range(8)]
    if not CFG["BST"]:
        for t in range(8):
            a.wait_lg(("t", t))
            p1.bstores[t]()
        p1.bstores = []
    for t in range(8):
        a.wait_lg(("t", t))
        colsum(t, "a[%d:%d]" % (192 + 4 * t, 195 + 4 * t))
        if t >= 2:
            colsum_keep(t - 2)
    colsum_keep(6); colsum_keep(7)
    a("v_mov_b32 v234, v60\nv_mov_b32 v239, v61")
    a("L_p_x2:")
    stamp(a, 6)
    if CFG["XPRE"]:
        for c in range(5, 10):
            a("s_waitcnt vmcnt(%d)" % (4 * (9 - c)))
            x_read(c)
        a("s_mov_b32 s88, s25\ns_mov_b32 s89, s22")
    a("s_cmp_lg_u32 %s, 0" % sWAVE)
    a("s_cbranch_scc1 L_go")
    a("s_lshl_b32 s17, %s, 11" % sRB)
    a("s_add_u32 s17, s17, %d" % CNT_G)
    a("s_mov_b64 exec, 0xffff")
    a("v_lshlrev_b32 v233, 7, v1")
    a("s_mov_b32 s42, %d" % CFG["TMO"])
    a("L_gop:")
    a("v_mov_b32 v255, 0")
    a("buffer_atomic_add v255, v233, s[4:7], s17 offen sc0")
    a("s_waitcnt vmcnt(0)")
    a("v_cmp_le_u32 vcc, 16, v255")
    a("s_cmp_eq_u32 vcc_lo, 0xffff")
    a("s_cbranch_scc1 L_go0")
    a("s_sleep 2")
    a("s_sub_u32 s42, s42, 1")
    a("s_cbranch_scc0 L_gop")
    a("L_go0:")
    a("s_mov_b64 exec, -1")
    a("L_go:")
    a("s_waitcnt lgkmcnt(0)")
    stamp(a, 7)
    a("s_mov_b32 s49, 16")
    a("s_mov_b32 s22, 0")
    a("s_load_dwordx2 s[90:91], s[0:1], 56")
    phase_open(a)
    p1.bstores += [lambda: a.vmem("buffer_atomic_add_f32 v234, v236, s[4:7], 0 offen", "bst"),
                   lambda: a.vmem("buffer_atomic_add_f32 v239, v237, s[4:7], 0 offen", "bst")]


def build_all():
    _lbl[0] = 0
    a, info = main_body()
    k = NAME + "_kernel"
    out = "; @launch grid=(256,1,1) block=(256,1,1) lds=%d\n" % info["lds"]
    out += '.amdgcn_target "amdgcn-amd-amdhsa--gfx950"\n'
    st = {}
    txt = a.text(stats=st)
    sys.stderr.write("%d lines, pad states %d\n" % (txt.count("\n"), st["pad"]))
    return out + entry(k) + txt + kd(k, info["vgpr"], 102, info["acc"])


if __name__ == "__main__":
    import argparse
    ap = argparse.ArgumentParser()
    ap.add_argument("-o", default="cdna_kernels/%s.s" % NAME)
    ap.add_argument("--cfg", default="")
    args = ap.parse_args()
    for kv in args.cfg.split(","):
        if kv:
            k, v = kv.split("="); CFG[k] = int(v)
    txt = build_all()
    open(args.o, "w").write(txt)
```

```python
import re

TRANS = ("v_exp_f32", "v_log_f32", "v_rcp_f32", "v_rsq_f32", "v_sqrt_f32", "v_sin_f32", "v_cos_f32")


def regs_of(tok):
    tok = tok.strip()
    neg = tok.startswith("-")
    if neg:
        tok = tok[1:]
    m = re.fullmatch(r"abs\((.*)\)", tok)
    if m:
        tok = m.group(1)
    m = re.fullmatch(r"\|(.*)\|", tok)
    if m:
        tok = m.group(1)
    m = re.fullmatch(r"([vas])(\d+)", tok)
    if m:
        return [tok]
    m = re.fullmatch(r"([vas])\[(\d+):(\d+)\]", tok)
    if m:
        return ["%s%d" % (m.group(1), i) for i in range(int(m.group(2)), int(m.group(3)) + 1)]
    if tok in ("vcc", "exec"):
        return [tok]
    if tok in ("vcc_lo", "vcc_hi"):
        return ["vcc"]
    if tok in ("exec_lo", "exec_hi"):
        return ["exec"]
    if tok == "m0":
        return ["m0"]
    return []


def split_ops(s):
    out, depth, cur = [], 0, ""
    for ch in s:
        if ch in "[(":
            depth += 1
        if ch in "])":
            depth -= 1
        if ch == "," and depth == 0:
            out.append(cur.strip())
            cur = ""
        else:
            cur += ch
    if cur.strip():
        out.append(cur.strip())
    return out


class Ins:
    __slots__ = ("text", "mn", "kind", "w", "r", "passes", "cregs", "abregs", "storedata", "lds_dma", "states")

    def __init__(self, text):
        self.text = text
        t = text.split(";")[0].strip()
        self.w, self.r = set(), set()
        self.passes = 0
        self.cregs, self.abregs, self.storedata = [], set(), set()
        self.lds_dma = False
        self.states = 1
        if t.endswith(":") or t.startswith(".") or not t:
            self.mn, self.kind = "", "label" if t.endswith(":") else "dir"
            self.states = 0
            return
        parts = t.split(None, 1)
        mn = parts[0]
        rest = parts[1] if len(parts) > 1 else ""
        self.mn = mn
        ops = split_ops(rest)
        mods = ""
        if ops:
            last = ops[-1].split(None, 1)
            if len(last) > 1 and not mn.startswith("s_waitcnt"):
                ops[-1] = last[0]
                mods = last[1]
        R = lambda i: regs_of(ops[i]) if i < len(ops) else []
        base = re.sub(r"_(e32|e64|dpp|sdwa)$", "", mn)
        if mn.startswith("v_mfma"):
            self.kind = "mfma"
            self.passes = 8 if "32x32" in mn else 4
            self.w = set(R(0))
            self.abregs = set(R(1)) | set(R(2))
            self.cregs = R(3)
            self.r = self.abregs | set(self.cregs)
        elif mn.startswith("v_"):
            self.kind = "trans" if base in TRANS else "valu"
            if base.startswith("v_cmp"):
                self.w = set(R(0))
                self.r = set(R(1)) | set(R(2))
            elif base in ("v_readfirstlane_b32", "v_readlane_b32"):
                self.w = set(R(0))
                self.r = set(R(1)) | set(R(2))
                self.kind = "rdlane"
            elif base.startswith("v_permlane"):
                self.w = set(R(0)) | set(R(1))
                self.r = set(self.w)
                self.kind = "permlane"
            elif base in ("v_add_co_u32", "v_sub_co_u32", "v_addc_co_u32"):
                self.w = set(R(0)) | set(R(1))
                self.r = set().union(*[set(R(i)) for i in range(2, len(ops))])
            else:
                self.w = set(R(0))
                self.r = set().union(*[set(R(i)) for i in range(1, len(ops))]) if len(ops) > 1 else set()
                if base in ("v_fmac_f32", "v_dot2c_f32_bf16"):
                    self.r |= self.w
                if base == "v_cndmask_b32" and len(ops) == 3:
                    self.r.add("vcc")
                if base.startswith("v_dot2"):
                    self.kind = "dot"
                if mn.endswith("_dpp"):
                    self.kind = "dpp"
                    self.r |= self.w
        elif mn.startswith("buffer_") or mn.startswith("global_"):
            self.kind = "vmem"
            if mn in ("buffer_inv", "buffer_wbl2"):
                pass
            elif "lds" in mods.split() or "_lds_" in mn:
                self.lds_dma = True
                self.r = set().union(*[set(R(i)) for i in range(len(ops))]) | {"m0"}
            elif "load" in mn:
                self.w = set(R(0))
                self.r = set().union(*[set(R(i)) for i in range(1, len(ops))])
            else:
                self.r = set().union(*[set(R(i)) for i in range(len(ops))])
                di = 0 if mn.startswith("buffer_") else 1
                if "x4" in mn or "x3" in mn:
                    self.storedata = set(R(di))
                if "atomic" in mn and "sc0" in mods.split():
                    self.w = set(R(0))
        elif mn.startswith("ds_"):
            self.kind = "ds"
            if mn.startswith("ds_read") or "permute" in mn or "swizzle" in mn:
                self.w = set(R(0))
                self.r = set().union(*[set(R(i)) for i in range(1, len(ops))])
            else:
                self.r = set().union(*[set(R(i)) for i in range(len(ops))])
        elif mn.startswith("s_"):
            self.kind = "salu"
            if mn == "s_nop":
                self.states = int(ops[0], 0) + 1
                self.kind = "nop"
            elif mn.startswith("s_waitcnt") or mn in ("s_barrier", "s_endpgm", "s_setprio", "s_sleep"):
                self.kind = "ctl"
            elif mn.startswith("s_cbranch") or mn == "s_branch":
                self.kind = "branch"
            elif mn.startswith("s_cmp") or mn.startswith("s_bitcmp"):
                self.r = set(R(0)) | set(R(1))
            elif mn.startswith("s_load") or mn.startswith("s_memtime") or mn.startswith("s_memrealtime") or mn.startswith("s_atomic"):
                self.kind = "smem"
                self.w = set(R(0))
                self.r = set(R(1)) | set(R(2))
            else:
                self.w = set(R(0))
                self.r = set().union(*[set(R(i)) for i in range(1, len(ops))]) if len(ops) > 1 else set()
                if "saveexec" in mn:
                    self.w.add("exec")
                    self.r.add("exec")
        else:
            raise ValueError("unknown instruction: " + text)


VALUISH = ("valu", "trans", "rdlane", "permlane", "dot", "dpp")


def need(p, c):
    n = 0
    pw = p.w
    if p.kind in VALUISH:
        vw = {x for x in pw if x[0] in "va" and x != "vcc"}
        sw = {x for x in pw if x[0] == "s" or x == "vcc"}
        if c.kind == "mfma" and vw & c.r:
            n = max(n, 3 if p.kind == "dot" else 2)
        if c.kind == "vmem" and sw & c.r:
            n = max(n, 5)
        if c.kind in VALUISH and sw & c.r:
            n = max(n, 4 if c.kind == "rdlane" else 2)
        if c.kind == "rdlane" and vw & c.r:
            n = max(n, 1)
        if c.kind in ("permlane", "dpp") and vw & c.r:
            n = max(n, 2)
        if p.kind == "trans" and c.kind in VALUISH and c.kind != "trans" and vw & c.r:
            n = max(n, 1)
        if p.kind == "trans" and c.kind in ("vmem", "ds", "trans") and vw & c.r:
            n = max(n, 1)
        if p.kind == "dot":
            if c.kind == "dot" and c.mn == p.mn:
                if (vw & c.r) and not (vw & c.w):
                    n = max(n, 3)
            elif vw & (c.r | c.w):
                n = max(n, 3)
        if "exec" in pw and c.kind in ("mfma", "dpp", "rdlane", "permlane"):
            n = max(n, 5)
    if p.kind == "mfma":
        big = {4: 8, 8: 12}[p.passes]
        if c.kind == "mfma":
            if pw & c.abregs:
                n = max(n, big)
            if pw & set(c.cregs):
                if not (set(c.cregs) == pw and c.passes == p.passes):
                    n = max(n, p.passes + 2)
            elif pw & c.w:
                n = max(n, big)
        elif c.kind in VALUISH or c.kind in ("vmem", "ds"):
            if pw & (c.r | c.w):
                n = max(n, big)
            if c.kind in VALUISH and set(p.cregs) & c.w:
                n = max(n, p.passes - 1)
    if p.kind == "salu" and "m0" in pw and c.lds_dma:
        n = max(n, 1)
    if p.kind == "vmem" and p.storedata and (p.storedata & c.w):
        n = max(n, 2 if c.kind in VALUISH else 1)
    return n


class Asm:
    def __init__(self):
        self.lines = []
        self.vm = []
        self.lg = []
        self.smem_out = False

    def __call__(self, text):
        for l in text.split("\n"):
            l = l.strip()
            if l:
                self.lines.append(l)

    def vmem(self, text, tag=None):
        self(text)
        self.vm.append(tag)
        assert len(self.vm) <= 63, "too many outstanding vmem"

    def ds(self, text, tag=None):
        self(text)
        self.lg.append(tag)

    def _count(self, q, tags):
        if not isinstance(tags, (list, set)):
            tags = [tags]
        last = -1
        for i, t in enumerate(q):
            if t in tags:
                last = i
        return last

    def wait_vm(self, tags, extra=""):
        last = self._count(self.vm, tags)
        if last < 0:
            return
        n = len(self.vm) - 1 - last
        n = min(n, 63)
        self("s_waitcnt vmcnt(%d)%s" % (n, extra))
        self.vm = self.vm[len(self.vm) - n:] if n else []

    def wait_lg(self, tags):
        last = self._count(self.lg, tags)
        if last < 0:
            return
        n = len(self.lg) - 1 - last
        n = min(n, 15)
        self("s_waitcnt lgkmcnt(%d)" % n)
        self.lg = self.lg[len(self.lg) - n:] if n else []

    def wait_all(self, vm=True, lg=True):
        s = []
        if vm:
            s.append("vmcnt(0)")
            self.vm = []
        if lg:
            s.append("lgkmcnt(0)")
            self.lg = []
        self("s_waitcnt " + " ".join(s))

    def text(self, pad=True, stats=None):
        out = []
        hist = []
        nopad = 0
        for l in self.lines:
            ins = Ins(l)
            if ins.kind == "dir":
                out.append(l)
                continue
            if ins.kind == "label":
                out.append(l)
                continue
            req = 0
            dist = 0
            for p in reversed(hist):
                k = need(p, ins)
                if k > dist:
                    req = max(req, k - dist)
                dist += p.states
                if dist >= 20:
                    break
            if req > 0 and pad:
                nopad += req
                n = Ins("s_nop %d" % (req - 1))
                out.append(n.text)
                hist.append(n)
            out.append(l)
            hist.append(ins)
            if len(hist) > 40:
                hist = hist[-40:]
        if stats is not None:
            stats["pad"] = nopad
        return "\n".join(out) + "\n"


KD = """.section .rodata,"a"
.p2align 6
.amdhsa_kernel {name}
  .amdhsa_next_free_vgpr {vgpr}
  .amdhsa_next_free_sgpr {sgpr}
  .amdhsa_accum_offset {acc}
  .amdhsa_group_segment_fixed_size 0
  .amdhsa_kernarg_size 80
  .amdhsa_user_sgpr_count 2
  .amdhsa_user_sgpr_kernarg_segment_ptr 1
  .amdhsa_system_sgpr_workgroup_id_x 1
.end_amdhsa_kernel
.text
"""


def kd(name, vgpr, sgpr, acc):
    return KD.format(name=name, vgpr=vgpr, sgpr=sgpr, acc=acc)


def entry(name):
    return ".text\n.globl %s\n.p2align 8\n.type %s,@function\n%s:\n" % (name, name, name)


def vr(base, n=1, kind="v"):
    return "%s%d" % (kind, base) if n == 1 else "%s[%d:%d]" % (kind, base, base + n - 1)


class Reg:
    def __init__(self, kind, base, n):
        self.kind, self.base, self.n = kind, base, n

    def __getitem__(self, i):
        if isinstance(i, slice):
            s = i.start or 0
            e = self.n if i.stop is None else i.stop
            return Reg(self.kind, self.base + s, e - s)
        return Reg(self.kind, self.base + i, 1)

    def q(self, i, w=4):
        return Reg(self.kind, self.base + i * w, w)

    def __str__(self):
        return vr(self.base, self.n, self.kind)

    __repr__ = __str__


class Alloc:
    def __init__(self, kind, start, limit):
        self.kind, self.p, self.limit = kind, start, limit

    def get(self, n, align=None):
        if align is None:
            align = 1 if n == 1 else 2 if self.kind != "s" or n == 2 else 4
            if self.kind in "va" and n >= 4:
                align = 4
        self.p = (self.p + align - 1) // align * align
        r = Reg(self.kind, self.p, n)
        self.p += n
        assert self.p <= self.limit, "out of %s regs" % self.kind
        return r


import subprocess, tempfile, os
_WIDEN = ("v_exp_f32", "v_rcp_f32", "v_rsq_f32", "v_max_f32", "v_min_f32", "v_mov_b32", "v_add_f32", "v_mul_f32", "v_add_u32",
          "v_sub_u32", "v_lshlrev_b32", "v_lshrrev_b32", "v_and_b32", "v_or_b32", "v_xor_b32", "v_cndmask_b32", "v_mul_u32_u24", "v_min_u32")


def _sizes(lines):
    src = '.amdgcn_target "amdgcn-amd-amdhsa--gfx950"\n.text\n' + "\n".join(lines) + "\n"
    with tempfile.TemporaryDirectory() as d:
        open(d + "/a.s", "w").write(src)
        subprocess.run(["clang", "-x", "assembler", "-target", "amdgcn-amd-amdhsa", "-mcpu=gfx950", "-c", d + "/a.s", "-o", d + "/a.o"], check=True)
        out = subprocess.run(["llvm-objdump", "-d", "--mcpu=gfx950", d + "/a.o"], capture_output=True, text=True, check=True).stdout
    sz = []
    for l in out.split("\n"):
        m = re.search(r"//\s*[0-9A-F]{12}:((?: [0-9A-F]{8})+)", l)
        if m:
            sz.append(4 * len(m.group(1).split()))
    return sz


def align8(text, min_wide=1, min_run=6):
    lines = text.rstrip("\n").split("\n")
    isins = [not (l.endswith(":") or l.startswith(".")) for l in lines]
    sz = _sizes(lines)
    assert len(sz) == sum(isins), (len(sz), sum(isins))
    it = iter(sz)
    size = [next(it) if i else 0 for i in isins]
    out, off, cand, widened, nops = [], 0, None, 0, 0
    n = len(lines)
    for k, l in enumerate(lines):
        if not isins[k]:
            out.append(l)
            continue
        if size[k] == 8 and off % 8 == 4:
            run, j = 0, k
            while j < n and (not isins[j] or (size[j] == 8 and lines[j].startswith("v_") and not lines[j].startswith("v_mfma"))):
                run += isins[j]; j += 1
            if run < min_wide:
                pass
            elif cand is not None:
                mn, rest = out[cand].split(None, 1)
                out[cand] = mn + "_e64 " + rest
                off += 4; widened += 1
            elif run >= min_run:
                out.append("s_nop 0"); off += 4; nops += 1
        if size[k] == 4:
            if l.split()[0] in _WIDEN:
                cand = len(out)
        else:
            cand = None
        out.append(l)
        off += size[k]
    return "\n".join(out) + "\n", widened, nops
```

```python
import sys, struct
from asmlib import *

S, D, F = 2048, 640, 1536
NAME = "interleave_layers__linear_attn_block__geglu_ffn__prompt"

_off = 0
def ws(n):
    global _off
    o = _off
    _off += (n + 4095) // 4096 * 4096
    return o
W1 = ws(16 * 20 * 8 * 1024)
W2 = ws(8 * 20 * 5 * 1024)
W3 = ws(16 * 20 * 12 * 1024)
W4 = ws(8 * 48 * 5 * 1024)
CSP1 = ws(20 * 2048 * 4)
CS3F = ws(3072 * 4)
CSW = ws(256 * 512)
CNT = ws(3 * 256 * 128)
CNT_G = CNT + 2 * 256 * 128
XA = ws(128 * 20 * 1024); STA = ws(2048 * 64); KV = ws(14 * 4096); PQ = ws(128 * 20 * 1024)
XB = ws(128 * 20 * 1024); STB = ws(2048 * 64); H = ws(128 * 48 * 1024)
LSTR = _off - XA
ws(LSTR)
PROFO = ws(9 * 256 * 4 * 64)
WS_USED = _off
OOB = 0x40000000
PROF = False
CFG = dict(NPRE1=7, NPRE3=5, NW4P=10, SPX=4, NW4L=24, NW4E=18, NW4D=7, NW4W=6, NP1W=6, NW2D=8, NW2L=6, SP4=4, HOT=0, LEAD=26, RATE=10, RA1=6, CPF=1, NPRE1A=2, P1A=8, XPRE=0, SLK=14, SPAN1A=108, SPAN1=108, BPOS=1, ARRK=10, ZF1=2, SP2=6, DBG=0, KARR=5, KPOLL=10, RD2=0, ZFP=3, NWQ=8, ZFQ=0, ZFK=2, KSTG=10, EW1=12, NX1=7, NX2=4, NX3=5, PP=10, PP4=12, BARR=5, BPOLL=13, F1=48, SPLIT=0, XW=8, NE3=4, XC=2, RB=0, WS=0, WSC=1, BSKIP=0, AE=2, AL8=2, BWL=1, BSP=99, BS0=0, WSK=3, NW4Q=0, SATOM=0, W1O=32768, TLB=0, K0NT=0, BST=1, DBGT=0, RT=0, SPAN=0, NODS=0, B2O=0, SC=1, PD1=6, PD3=6, P1=8, P3=8, TMO=200000, ROT=0, NPOLL=3, EW3=16, PW=1, PSL=0)

def f32(x):
    return "0x%08x" % struct.unpack("<I", struct.pack("<f", x))[0]
LOG2E = 1.4426950408889634
MF = "v_mfma_f32_16x16x32_bf16"
H2 = [slice(0, 2), slice(2, 4)]

sWAVE, sRB, sP, sRB64, sCG, sLAY, sTGT, sPH = "s10", "s11", "s12", "s13", "s14", "s15", "s40", "s41"
sROT10, sROT12 = "s8", "s9"
vN, vG = Reg("v", 3, 1), Reg("v", 4, 1)
vCNT, vPL, vPG = Reg("v", 5, 1), Reg("v", 6, 1), Reg("v", 7, 1)
vPRE = Reg("v", 8, 4)
VBASE = 12

KORD = [0, 3, 5, 8, 10, 13, 15, 18, 1, 2, 4, 6, 7, 9, 11, 12, 14, 16, 17, 19]
KPOS = [KORD.index(k) for k in range(20)]

def kpos_scalar(a, dst, kb):
    a("s_mul_i32 s28, %s, 52" % kb)
    a("s_lshr_b32 s28, s28, 8")
    a("s_mul_i32 s17, s28, 5")
    a("s_sub_u32 s17, %s, s17" % kb)
    a("s_lshl_b32 s17, s17, 2")
    a("s_lshr_b32 s19, 0xa1980, s17")
    a("s_and_b32 s19, s19, 15")
    a("s_cmp_ge_u32 s19, 8")
    a("s_cselect_b32 s17, 3, 2")
    a("s_mul_i32 s17, s17, s28")
    a("s_add_u32 %s, s17, s19" % dst)


def WSC():
    return " sc1" if CFG["WSC"] else ""


def SC():
    return " sc1" if CFG["SC"] else ""


def stamp(a, i):
    if PROF:
        a("%s s[%d:%d]" % ("s_memrealtime" if CFG["RT"] else "s_memtime", 60 + 2 * i, 61 + 2 * i))

def stamp_dump(a, vb=100):
    if not PROF:
        return
    a("s_memrealtime s[78:79]")
    a("s_lshl_b32 s59, %s, 8" % sPH)
    a("s_add_u32 s59, s59, s2")
    a("s_lshl_b32 s59, s59, 2")
    a("s_add_u32 s59, s59, s10")
    a("s_lshl_b32 s59, s59, 6")
    a("s_add_u32 s59, s59, %d" % PROFO)
    a("s_waitcnt lgkmcnt(0)")
    a.lg = []
    a("s_mov_b64 exec, 1")
    for i in range(10):
        a("v_mov_b32 v%d, s%d" % (vb + i, 60 + 2 * i))
    a("v_mov_b32 v%d, s80" % (vb + 11))
    a("v_mov_b32 v%d, s59" % (vb + 10))
    a("buffer_store_dwordx4 v[%d:%d], v%d, s[4:7], 0 offen" % (vb, vb + 3, vb + 10))
    a("buffer_store_dwordx4 v[%d:%d], v%d, s[4:7], 0 offen offset:16" % (vb + 4, vb + 7, vb + 10))
    a("buffer_store_dwordx4 v[%d:%d], v%d, s[4:7], 0 offen offset:32" % (vb + 8, vb + 11, vb + 10))
    a("s_mov_b64 exec, -1")
    a("s_add_u32 %s, %s, 1" % (sPH, sPH))


_lbl = [0]
def label(p):
    _lbl[0] += 1
    return "L_%s_%d" % (p, _lbl[0])


def arrive(a, loads=()):
    for f in loads:
        f()
    if CFG["DBG"] != 4:
        stamp(a, 6)
    a.wait_vm("out")
    a.wait_all(vm=False)
    stamp(a, 7)
    a("s_add_u32 %s, %s, 16" % (sTGT, sTGT))
    a("s_barrier")
    l = label("arr")
    a("s_cmp_lg_u32 %s, 0" % sWAVE)
    a("s_cbranch_scc1 %s" % l)
    a("v_mov_b32 v255, 1")
    a("buffer_atomic_add v255, %s, s[4:7], 0 offen" % vCNT)
    a("%s:" % l)
    read_back(a, a.rb)
    a.rb = []


def poll_issue(a, k):
    a("v_mov_b32 v%d, 0" % (255 - k))
    a("buffer_atomic_add v%d, %s, s[4:7], 0 offen sc0" % (255 - k, vPL))


def poll_loop(a, d, first):
    NP = CFG["NPOLL"]
    l = label("poll")
    a("s_mov_b32 s42, %d" % CFG["TMO"])
    a("%s:" % l)
    for k0 in range(NP):
        k = (k0 + first) % NP
        poll_issue(a, (k + NP - 1) % NP)
        a("s_waitcnt vmcnt(%d)" % (NP - 1))
        a("v_readfirstlane_b32 s43, v%d" % (255 - k))
        a("s_cmp_ge_u32 s43, %s" % sTGT)
        a("s_cbranch_scc1 %s" % d)
    a("s_sub_u32 s42, s42, 1")
    a("s_cbranch_scc0 %s" % l)


def dbg_time(a):
    if not CFG["DBGT"]:
        return
    l = label("dt")
    a("s_or_b32 s59, s2, %s" % sWAVE)
    a("s_cbranch_scc1 %s" % l)
    a("s_memrealtime s[60:61]")
    a("s_mov_b64 exec, 1")
    a("s_waitcnt lgkmcnt(0)")
    a("s_sub_u32 s60, s60, s80")
    a("v_mov_b32 v254, s60")
    a("v_mov_b32 v251, s62")
    a("global_store_dword v251, v254, s[94:95]")
    a("s_add_u32 s62, s62, 4")
    a("s_mov_b64 exec, -1")
    a("%s:" % l)


def phase_open(a, vb=100):
    a("s_barrier")
    dbg_time(a)
    stamp(a, 8)
    stamp_dump(a, vb)
    stamp(a, 0)


def wait(a, loads=()):
    if CFG["WS"]:
        d = label("pdone")
        loads = list(loads)
        k = min(len(loads), CFG["WSK"])
        for f in loads[:k]:
            f()
        if CFG["WS"] == 2:
            for f in loads[k:]:
                f()
            a("s_cmp_lg_u32 %s, %d" % (sWAVE, CFG["PW"]))
            a("s_cbranch_scc1 %s" % d)
            spoll_issue(a, 0)
            spoll_wait(a, 0, sTGT)
            a("%s:" % d)
            phase_open(a)
            return
        spoll_issue(a, 0)
        for f in loads[k:]:
            f()
        spoll_wait(a, 0, sTGT)
        stamp(a, 8); stamp_dump(a); stamp(a, 0); dbg_time(a)
        return
    d, o = label("pdone"), label("other")
    NP = CFG["NPOLL"]
    loads = list(loads)
    a("s_cmp_lg_u32 %s, %d" % (sWAVE, CFG["PW"]))
    a("s_cbranch_scc1 %s" % o)
    save = list(a.vm)
    per = (len(loads) + NP - 2) // (NP - 1)
    after = []
    for k in range(NP - 1):
        poll_issue(a, k)
        chunk = loads[k * per:(k + 1) * per]
        for f in chunk:
            f()
        if len(chunk) < 2:
            a("s_sleep %d" % (10 // NP))
        after.append(len(chunk))
    a.vm = save
    for k in range(NP - 1):
        poll_issue(a, (k + NP - 1) % NP)
        a("s_waitcnt vmcnt(%d)" % (NP - 1 + sum(after[k:])))
        a("v_readfirstlane_b32 s43, v%d" % (255 - k))
        a("s_cmp_ge_u32 s43, %s" % sTGT)
        a("s_cbranch_scc1 %s" % d)
    poll_loop(a, d, NP - 1)
    a("s_branch %s" % d)
    a("%s:" % o)
    for f in loads:
        f()
    a("%s:" % d)
    phase_open(a)


vRB = [Reg("v", 7, 1), Reg("v", 238, 1), Reg("v", 239, 1)]
def read_back(a, items):
    for v, so, im in (items if CFG["RB"] else []):
        a.vmem("buffer_load_dwordx4 v[244:247], %s, s[4:7], %s offen offset:%d sc1" % (v, so, im), "rb")


def spoll_issue(a, word):
    if CFG["SATOM"]:
        a("s_mov_b32 s43, 0")
        a("s_atomic_add s43, s[100:101], 0x%x glc" % (CFG["W1O"] * word))
    else:
        a("s_load_dword s43, s[100:101], 0x%x glc" % (CFG["W1O"] * word))


def spoll_wait(a, word, target):
    l, d = label("sp"), label("spd")
    a("s_mov_b32 s42, %d" % CFG["TMO"])
    a("%s:" % l)
    a("s_waitcnt lgkmcnt(0)")
    a("s_cmp_ge_u32 s43, %s" % target)
    a("s_cbranch_scc1 %s" % d)
    spoll_issue(a, word)
    a("s_sub_u32 s42, s42, 1")
    a("s_cbranch_scc0 %s" % l)
    a("s_waitcnt lgkmcnt(0)")
    a("%s:" % d)
    a.lg = []


def signal(a, word):
    l = label("arr")
    a("s_barrier")
    a("s_cmp_lg_u32 %s, 0" % sWAVE)
    a("s_cbranch_scc1 %s" % l)
    a("v_mov_b32 v255, 1")
    a("s_mov_b32 s42, %d" % (CFG["W1O"] * word))
    a("buffer_atomic_add v255, %s, s[4:7], s42 offen" % vCNT)
    a("%s:" % l)


def wrap_add(a, r, step, end):
    if (CFG["HOT"] & 1 and r == "s20") or (CFG["HOT"] & 2 and r != "s20"):
        return
    if not CFG["ROT"]:
        a("s_add_u32 %s, %s, %d" % (r, r, step))
        return
    a("s_add_u32 %s, %s, %d" % (r, r, step))
    a("s_cmp_eq_u32 %s, %d" % (r, end))
    a("s_cselect_b32 %s, 0, %s" % (r, r))


def xsum4(a, v, t):
    a("v_mov_b32 %s, %s" % (t, v))
    a("v_permlane16_swap_b32 %s, %s" % (v, t))
    a("v_add_f32 %s, %s, %s" % (v, v, t))
    a("v_mov_b32 %s, %s" % (t, v))
    a("v_permlane32_swap_b32 %s, %s" % (v, t))
    a("v_add_f32 %s, %s, %s" % (v, v, t))


def stats_finish(a, q, mean, rstd, t):
    a("v_add_f32 %s, %s, %s" % (q[0], q[0], q[2]))
    a("v_add_f32 %s, %s, %s" % (q[1], q[1], q[3]))
    xsum4(a, q[0], t)
    xsum4(a, q[1], t)
    a("v_mul_f32 %s, %s, %s" % (mean, f32(1.0 / D), q[0]))
    a("v_mul_f32 %s, %s, %s" % (q[1], f32(1.0 / D), q[1]))
    a("v_fma_f32 %s, -%s, %s, %s" % (q[1], mean, mean, q[1]))
    a("v_max_f32 %s, 0, %s" % (q[1], q[1]))
    a("v_add_f32 %s, %s, %s" % (q[1], f32(1e-5), q[1]))
    a("v_rsq_f32 %s, %s" % (rstd, q[1]))


def pk(op, d, *src, neg=None):
    ops, lo, hi = [], [], []
    for x in src:
        if isinstance(x, str):
            n = int(x[1:])
            ops.append("s[%d:%d]" % (n & ~1, (n & ~1) + 1)); lo.append(n & 1); hi.append(n & 1)
        elif x.n == 2:
            assert x.base % 2 == 0
            ops.append(str(x)); lo.append(0); hi.append(1)
        else:
            b = x.base & ~1
            ops.append("v[%d:%d]" % (b, b + 1)); lo.append(x.base & 1); hi.append(x.base & 1)
    t = "v_pk_%s_f32 %s, %s op_sel:[%s] op_sel_hi:[%s]" % (op, d, ", ".join(ops), ",".join(map(str, lo)), ",".join(map(str, hi)))
    if neg is not None:
        m = ",".join("1" if i == neg else "0" for i in range(len(src)))
        t += " neg_lo:[%s] neg_hi:[%s]" % (m, m)
    return t


class Weaver:
    def __init__(self, a, items, period):
        self.a, self.items, self.period, self.n = a, list(items), period, 0
    def __call__(self, line):
        self.a(line)
        self.n += 1
        if self.n % self.period == 0 and self.items:
            self.items.pop(0)()
    def flush(self):
        while self.items:
            self.items.pop(0)()


def x_load(a, dst, v, step, rt, check, tag, then):
    kb = KORD[step]
    if check and not CFG["SPLIT"]:
        check = False
        if rt == 0 and step == 4:
            for f in then:
                f()
            a.late_ok = True
    if check and rt == 0 and step == 7:
        spoll_issue(a, 0)
    if check and rt == 0 and step == 8:
        keep = list(a.lg)
        spoll_wait(a, 0, sTGT)
        for f in then:
            f()
    if rt == 0 and (step == 0 or KORD[step - 1] // 4 != kb // 4):
        a("s_mov_b32 s20, %d" % (kb // 4 * 4096))
    a.vmem("buffer_load_dwordx4 %s, %s, s[4:7], s20 offen offset:%d%s" % (dst, v, (kb % 4) * 1024, SC()), tag)
    if check and rt == 1 and step == 8:
        a.late_ok = True


class Ring:
    def __init__(self, a, NT, R, vB, vBlast, sL, sB, sB2):
        self.a, self.NT, self.R = a, NT, R
        self.vB, self.vBlast, self.sL, self.sB, self.sB2 = vB, vBlast, sL, sB, sB2
        self.FPS = 2 * NT
        self.SB = self.FPS * 1024
        self.per = self.FPS // 4

    def init_lines(self):
        return ["s_mul_i32 %s, %s, %d" % (self.sB, sROT10, self.SB)] + (["s_add_u32 %s, %s, 3072" % (self.sB2, self.sB)] if self.per > 4 else [])

    def loads(self, s):
        a, per, SB = self.a, self.per, self.SB
        grp = 4 if per == 4 else 3
        out = []
        for i in range(per):
            def f(i=i):
                if i % grp == 0:
                    a("s_add_u32 m0, %s, %d" % (self.sL, (s % self.R) * SB + i * 1024))
                so = self.sB if i < grp else self.sB2
                vb = self.vBlast if i == per - 1 else self.vB
                a.vmem("buffer_load_dwordx4 %s, s[4:7], %s offen offset:%d%s lds" % (vb, so, (i % grp) * 1024, WSC()), ("st", s))
                if i == per - 1:
                    wrap_add(a, self.sB, SB, 10 * SB)
                    if per > grp:
                        a("s_add_u32 %s, %s, 3072" % (self.sB2, self.sB))
            out.append(f)
        return out


def gemm_s(a, ring, NPRE, vA, vL, acc, Aring, Bregs, transposed, sA, RA, tail_loads=(), fill=(), nsetup=0, PD=6, P=12, first_barrier=False, NTAIL=99, early=()):
    NST = 10
    NT, R, FPS, SB = ring.NT, ring.R, ring.FPS, ring.SB
    NB = Bregs.n // 4
    BPOS = FPS - PD

    def a_loads(s):
        out = []
        ar = Aring[((s % RA) * 16):((s % RA) * 16 + 16)]
        for ks in range(2):
            for rt in range(2):
                def f(ks=ks, rt=rt):
                    x_load(a, ar.q(ks * 2 + rt), vA[rt], 2 * s + ks, rt, True, ("a", s, ks), early)
                out.append(("a", s, f))
        return out
    bq = [("b", s, f) for s in range(NPRE, NST) for f in ring.loads(s)]
    aq = [x for s in range(NST) for x in a_loads(s)]
    tail = [("t", -1, f) for f in tail_loads]
    fill = list(fill)
    nfill0 = len(fill)
    for k in range(P):
        aq.pop(0)[2]()
    a.late_ok = False
    stamp(a, 1)
    a.wait_vm(("a", 0, 0))
    if first_barrier:
        a("s_barrier")
    stamp(a, 2)

    def rd(n):
        if CFG["NODS"] and n >= NB and n % CFG["NODS"]:
            return
        s, i = divmod(n, FPS)
        addr = (s % R) * SB + i * 1024
        a.ds("ds_read_b128 %s, %s offset:%d" % (Bregs.q(n % NB), vL[addr >> 16], addr & 0xffff), ("f", n))

    NF = NST * FPS
    for n in range(PD):
        rd(n)
    passed = -1

    def next_load(s):
        ca = aq[0] if aq and aq[0][1] - RA < s else None
        cb = bq[0] if bq and (bq[0][1] < R or bq[0][1] - R + 1 <= passed) else None
        ct = len(tail) > keep and len(fill) <= nfill0 - nsetup
        da = ca[1] - s if ca else 99
        db = cb[1] - s - 0.5 if cb else 99
        if min(da, db) > LEAD and ct:
            tail.pop(0)[2]()
        elif ca and da <= db:
            aq.pop(0)[2]()
        elif cb:
            bq.pop(0)[2]()
        elif ct:
            tail.pop(0)[2]()
        else:
            return False
        return True

    nload = len(aq) + len(bq) + min(len(tail), NTAIL)
    LEAD = CFG["LEAD"] / 10.0
    keep = max(0, len(tail) - NTAIL)
    span = FPS * (NST - 1)
    credit = 0.0
    for n in range(NF):
        s, i = divmod(n, FPS)
        ks, j = divmod(i, NT)
        if i == BPOS and s + 1 < NST and s >= 1 and (bq or s + 1 >= NPRE) and not (CFG["BSKIP"] >> s & 1):
            while bq and bq[0][1] <= s + 1:
                sys.stderr.write("late ring load at stage %d\n" % s)
                bq.pop(0)[2]()
            a.wait_vm(("st", s + 1))
            a("s_barrier")
            passed = s
        if j == 0:
            while aq and aq[0][1] <= s:
                sys.stderr.write("late activation load at stage %d\n" % s)
                aq.pop(0)[2]()
            a.wait_vm(("a", s, ks))
        if n + PD < NF:
            rd(n + PD)
        a.wait_lg(("f", n + 1 if n % 2 == 0 else n))
        ar = Aring[((s % RA) * 16):((s % RA) * 16 + 16)]
        credit += nload / span * CFG["RATE"] / 10.0
        did = False
        for rt in range(2):
            c = "0" if (s == 0 and ks == 0) else str(acc[rt][j])
            w, x = Bregs.q(n % NB), ar.q(ks * 2 + rt)
            if transposed[j]:
                a("%s %s, %s, %s, %s" % (MF, acc[rt][j], w, x, c))
            else:
                a("%s %s, %s, %s, %s" % (MF, acc[rt][j], x, w, c))
            if rt == 0 and credit >= 1.0:
                did = next_load(s)
                if did:
                    credit -= 1.0
                credit = min(credit, 1.5)
            if rt == 0 and not did and a.late_ok and n > 4 * FPS:
                for _ in range(2):
                    if fill:
                        x = fill.pop(0)
                        x() if callable(x) else a(x)
    assert not aq and not bq and not fill, (len(aq), len(bq), len(fill))
    stamp(a, 3)
    return [t[2] for t in tail]


K1_RED = 0
K1_TRASH = K1_RED + 4 * 3584 + 1024
K1_FR = 122880
K1_PAIRS = [(0, 2), (0, 3), (1, 2), (1, 3), (1, 4), (2, 2), (2, 3), (2, 4)]

class P1:
    def __init__(self, a):
        self.a = a

    def pre_setup(self):
        return ["s_mul_i32 s17, %s, 163840" % sP,
                "s_lshl_b32 s44, %s, 12" % sWAVE,
                "s_add_u32 s17, s17, s44",
                "s_add_u32 s17, s17, %d" % W1,
                "v_add_u32 %s, s17, v2" % vPRE[0],
                "s_mov_b32 s45, 0"]

    def round_loads(self, rho):
        a = self.a
        out = []
        for i in range(4):
            def f(i=i):
                if i == 0:
                    a("s_add_u32 m0, s44, s45")
                    a("s_nop 0")
                a.vmem("buffer_load_dwordx4 %s, s[4:7], s45 offen offset:%d%s lds" % (vPRE[0], i * 1024, WSC()), ("st", rho))
                if i == 3:
                    a("s_add_u32 s45, s45, 16384")
            out.append(f)
        return out

    def pre_loads(self, n):
        return [f for rho in range(n) for f in self.round_loads(rho)]

    def alloc(self):
        V = Alloc("v", VBASE, 240)
        r = self
        r.vA = [V.get(1), V.get(1)]
        r.vL = [Reg("v", 2, 1), V.get(1), V.get(1)]
        r.vS = V.get(1); r.vCn = V.get(1); r.vCt = V.get(1)
        r.vQ = V.get(2, 1); r.vKa = V.get(8); r.vGl = V.get(1); r.vR = V.get(1); r.vC1 = V.get(1); r.ret = V.get(1)
        r.mean = [V.get(1), V.get(1)]; r.rstd = [V.get(1), V.get(1)]; r.rl = [V.get(1), V.get(1)]
        r.meanN = [V.get(4), V.get(4)]; r.rstdN = [V.get(4), V.get(4)]; r.rlN = [V.get(4), V.get(4)]
        r.tmp = V.get(16)
        r.acc = [[V.get(4) for j in range(8)] for rt in range(2)]
        r.csn = V.get(8); r.cst = V.get(12)
        r.Xf = V.get(24)
        r.kvd = V.get(32)
        r.fa = Reg("v", 224, 4); r.vGo = r.csn[5]; r.vX = r.csn[6:8]
        r.A = Reg("a", 0, 160)
        r.Bregs = Reg("a", 160, 32)

    def before_wait(self, emit=None):
        self.alloc()
        r, b = self, (emit or self.a)
        n_, g_ = vN, vG
        t = r.kvd[4:12]
        b("s_lshl_b32 s16, %s, 3" % sRB)
        b("s_lshl_b32 s17, %s, 1" % sWAVE)
        b("s_add_u32 s16, s16, s17")
        b("s_mul_i32 s19, s16, 20480")
        b("s_add_u32 s19, s19, %s" % sLAY)
        b("s_add_u32 s17, s19, %d" % XA)
        b("v_add_u32 %s, s17, v2" % r.vA[0])
        b("v_add_u32 %s, 20480, %s" % (r.vA[1], r.vA[0]))
        b("v_add_u32 %s, 0x10000, v2" % r.vL[1])
        b("v_lshlrev_b32 %s, 3, %s" % (t[0], n_))
        b("v_lshl_add_u32 %s, %s, 8, %s" % (t[0], g_, t[0]))
        b("s_lshl_b32 s17, s16, 10")
        b("s_add_u32 s17, s17, %s" % sLAY)
        b("s_add_u32 s17, s17, %d" % STA)
        b("v_add_u32 %s, s17, %s" % (r.vS, t[0]))
        b("v_cmp_lt_u32 s[26:27], %s, 8" % n_)
        b("v_add_u32 %s, 0x20000, v2" % r.vL[2])
        b("s_lshr_b32 s17, %s, 2" % sP)
        b("s_mul_i32 s17, s17, 5120")
        b("s_add_u32 s19, s19, s17")
        b("s_add_u32 s19, s19, %d" % PQ)
        b("s_and_b32 s17, %s, 3" % sP)
        b("s_lshl_b32 s18, s17, 10")
        b("s_add_u32 s18, s18, s19")
        b("v_add_u32 %s, s18, v2" % r.vQ[0])
        b("s_lshl_b32 s17, s17, 8")
        b("s_add_u32 s17, s17, s19")
        b("s_add_u32 s17, s17, 4096")
        b("v_add_u32 %s, s17, v2" % r.vQ[1])
        b("v_mov_b32 %s, 0x%x" % (t[2], OOB))
        b("v_cmp_gt_u32 vcc, 16, v1")
        b("v_cndmask_b32 %s, %s, %s, vcc" % (r.vQ[1], t[2], r.vQ[1]))
        b("s_lshl_b32 s17, %s, 7" % sP)
        b("s_add_u32 s17, s17, %d" % CNT_G)
        b("v_lshl_add_u32 %s, v0, 11, s17" % r.vC1)
        b("v_cmp_gt_u32 vcc, 16, v0")
        b("v_cndmask_b32 %s, %s, %s, vcc" % (r.vC1, t[2], r.vC1))
        b("v_add_u32 %s, %d, v2" % (t[5], K1_TRASH))
        b("s_mul_i32 s19, %s, 3584" % sWAVE)
        b("s_add_u32 s19, s19, %d" % K1_RED)
        b("s_add_u32 s17, s19, 3200")
        for pi, (ka, vb) in enumerate(K1_PAIRS):
            b("v_lshl_add_u32 %s, %s, 2, %d" % (t[0], g_, 16 * ka))
            b("v_add_u32 %s, %d, %s" % (t[1], 16 * vb - 40, n_))
            b("v_cmp_le_u32 vcc, 20, %s" % t[0])
            b("v_cndmask_b32 %s, 0, 20, vcc" % t[2])
            b("v_sub_u32 %s, %s, %s" % (t[3], t[1], t[2]))
            b("v_sub_u32 %s, %s, %s" % (t[2], t[0], t[2]))
            b("v_cmp_gt_u32 vcc, 20, %s" % t[3])
            b("v_mad_i32_i24 %s, %s, 20, %s" % (t[2], t[1], t[2]))
            b("v_lshl_add_u32 %s, %s, 2, s19" % (t[2], t[2]))
            b("v_cndmask_b32 %s, %s, %s, vcc" % (r.vKa[pi], t[5], t[2]))
            if vb == 2:
                b("v_cmp_eq_u32 vcc, 0, %s" % n_)
                b("v_lshl_add_u32 %s, %s, 2, s17" % (t[2], t[0]))
                b("v_cndmask_b32 %s, %s, %s, vcc" % (r.vKa[pi], r.vKa[pi], t[2]))
            if ka == 2:
                b("v_cmp_gt_u32 vcc, 2, %s" % g_)
                b("v_cndmask_b32 %s, %s, %s, vcc" % (r.vKa[pi], t[5], r.vKa[pi]))
        b("v_lshlrev_b32 %s, 2, v0" % r.vR)
        b("s_mul_i32 s17, %s, 3360" % sP)
        b("s_add_u32 s17, s17, %s" % sLAY)
        b("s_add_u32 s17, s17, %d" % KV)
        b("v_add_u32 %s, s17, %s" % (r.vGl, r.vR))
        b("v_add_u32 %s, %d, %s" % (r.vR, K1_RED, r.vR))
        b("s_lshl_b32 s17, s2, 9")
        b("s_add_u32 s17, s17, %d" % CSW)
        b("v_lshl_add_u32 %s, %s, 2, s17" % (r.vCn, n_))
        b("v_lshl_add_u32 %s, %s, 4, s17" % (r.vCt, g_))
        b("s_mov_b32 s23, 20480")
        b("s_mov_b32 s20, 0")
        b("v_lshlrev_b32 %s, 4, %s" % (t[0], g_))
        for q in range(4):
            b("v_add_u32 %s, %d, %s" % (t[1 + q], 4 * q, t[0]))
        fa, u, vGo, vX = r.fa, r.kvd[12:16], r.vGo, r.vX
        raw = (lambda x: b(x))
        b("s_mul_i32 s3, %s, 3360" % sP)
        b("s_add_u32 s3, s3, %s" % sLAY)
        b("s_add_u32 s3, s3, %d" % KV)
        b("v_mov_b32 %s, 0x%x" % (u[3], OOB))
        for i in range(2):
            b("s_lshl_b32 s17, %s, 1" % sWAVE)
            b("s_add_u32 s17, s17, %d" % (i + 1))
            b("s_lshr_b32 s19, s17, 1")
            b("s_lshl_b32 s19, s19, 4")
            b("v_add_u32 %s, s19, %s" % (u[0], vN))
            b("v_cmp_le_u32 vcc, 20, %s" % u[0])
            b("v_cndmask_b32 %s, 0, 20, vcc" % u[1])
            b("v_mul_u32_u24 %s, 20, %s" % (u[2], u[0]))
            b("v_sub_u32 %s, %s, %s" % (u[2], u[2], u[1]))
            b("v_cmp_gt_u32 vcc, 40, %s" % u[0])
            b("v_cndmask_b32 %s, 63, %s, vcc" % (u[1], u[1]))
            raw("s_cmp_eq_u32 s19, 48\ns_cselect_b64 vcc, -1, 0")
            b("v_and_b32 %s, 3, v1" % u[0])
            b("v_mul_u32_u24 %s, 20, %s" % (u[0], u[0]))
            b("v_cndmask_b32 %s, %s, %s, vcc" % (u[1], u[1], u[0]))
            b("v_mov_b32 %s, 800" % u[0])
            b("v_cndmask_b32 %s, %s, %s, vcc" % (u[2], u[2], u[0]))
            raw("s_cmp_eq_u32 %s, %d\ns_cselect_b32 s19, %d, %d" % ((sWAVE, 0, 0, 32) if i == 0 else (sWAVE, 3, 64, 0)))
            for h in range(2):
                b("v_lshl_add_u32 %s, %s, 2, s19" % (u[0], vG))
                if h:
                    b("v_add_u32 %s, 16, %s" % (u[0], u[0]))
                b("v_cmp_gt_u32 s[38:39], 40, %s" % u[0])
                b("v_add_lshl_u32 %s, %s, %s, 2" % (fa[2 * i + h], u[0], u[2]))
                b("v_sub_u32 %s, %s, %s" % (u[0], u[0], u[1]))
                b("v_cmp_gt_u32 vcc, 20, %s" % u[0])
                b("s_and_b64 vcc, vcc, s[38:39]")
                b("v_cndmask_b32 %s, %s, %s, vcc" % (fa[2 * i + h], u[3], fa[2 * i + h]))
        b("s_lshl_b32 s17, %s, 11" % sRB)
        b("s_add_u32 s17, s17, %d" % CNT_G)
        b("v_lshl_add_u32 %s, v1, 7, s17" % vGo)
        raw("s_cmp_eq_u32 %s, %d\ns_cselect_b32 s17, 0, 0x%x" % (sWAVE, CFG["PW"], OOB))
        b("v_and_b32 %s, 0x%x, %s" % (u[0], OOB, vCNT))
        b("v_or3_b32 %s, %s, s17, %s" % (vGo, u[0], vGo))
        b("s_lshl_b32 s17, %s, 11" % sWAVE)
        b("s_add_u32 s17, s17, %d" % K1_FR)
        b("v_add_u32 %s, s17, v2" % vX[0])
        b("v_add_u32 %s, %d, v2" % (vX[1], K1_FR))

    def body(self, nxt, p3, p4, NPRE, first=False):
        r, a = self, self.a
        tmp, t, acc, Xf, kvd, A, Bregs = r.tmp, r.kvd[4:12], r.acc, r.Xf, r.kvd, r.A, r.Bregs
        stat_loads = [(lambda rt=rt, h=h: a.vmem("buffer_load_dwordx2 %s, %s, s[4:7], 0 offen offset:%d%s" % (tmp.q(rt)[2 * h:2 * h + 2], r.vS, rt * 1024 + h * 128, SC()), "stats"))
                      for rt in range(2) for h in range(2)]
        b = Asm()
        for rt in range(2):
            stats_finish(b, tmp.q(rt), r.mean[rt], r.rstd[rt], tmp[8])
            b("v_mul_f32 %s, %s, %s" % (r.rl[rt], f32(LOG2E), r.rstd[rt]))
        fill = [lambda: a.wait_vm("stats")] + list(b.lines)
        for rt in range(2):
            for q in range(4):
                fill.append(lambda rt=rt, q=q: a.ds("ds_bpermute_b32 %s, %s, %s" % (r.meanN[rt][q], t[1 + q], r.mean[rt]), "bp"))
                fill.append(lambda rt=rt, q=q: a.ds("ds_bpermute_b32 %s, %s, %s" % (r.rstdN[rt][q], t[1 + q], r.rstd[rt]), "bp"))
        fill += [None] * 6
        fill.append(lambda: a.wait_lg("bp"))
        for rt in range(2):
            for q in range(4):
                fill.append("v_mul_f32 %s, %s, %s" % (r.rlN[rt][q], f32(LOG2E), r.rstdN[rt][q]))
        fill += nxt.pre_setup()
        csp = []
        if first:
            cp, ad = Reg("v", 156, 40), Reg("v", 232, 2)
            a("s_lshl_b32 s17, %s, 9" % sP)
            a("s_add_u32 s17, s17, %d" % CSP1)
            a("v_lshrrev_b32 %s, 5, v1" % ad[0])
            a("v_lshlrev_b32 %s, 13, %s" % (ad[0], ad[0]))
            a("v_and_b32 %s, 31, v1" % ad[1])
            a("v_lshlrev_b32 %s, 4, %s" % (ad[1], ad[1]))
            a("s_cmp_eq_u32 %s, 0" % sWAVE)
            a("s_cselect_b32 s19, 0, 0x%x" % OOB)
            a("v_add3_u32 %s, %s, %s, s19" % (ad[0], ad[0], ad[1]))
            a("v_or_b32 %s, s19, %s" % (ad[1], ad[1]))
            a("s_lshl_b32 s48, s2, 9")
            a("s_add_u32 s48, s48, %d" % CSW)
            a("s_mov_b32 s21, s17")
            for k in range(10):
                def f(k=k):
                    a.vmem("buffer_load_dwordx4 %s, %s, s[4:7], s21 offen%s" % (cp.q(k), ad[0], SC()), "csp")
                    a("s_add_u32 s21, s21, 16384")
                csp.append(f)
            fin = [lambda: a.wait_vm("csp")]
            for k in range(1, 10):
                for q in range(4):
                    fin.append("v_add_f32 %s, %s, %s" % (cp[q], cp[q], cp.q(k)[q]))
            for q in range(4):
                fin += ["v_mov_b32 %s, %s" % (cp[4], cp[q]), "v_permlane32_swap_b32 %s, %s" % (cp[q], cp[4]), "v_add_f32 %s, %s, %s" % (cp[q], cp[q], cp[4])]
            fin.append(lambda: a.vmem("buffer_store_dwordx4 %s, %s, s[4:7], s48 offen" % (cp[0:4], ad[1]), "csw"))
            fill = fin + fill
        cs = [(lambda j=j: a.vmem("buffer_load_dword %s, %s, s[4:7], 0 offen offset:%d" % (r.csn[j], r.vCn, j * 64), "cs")) for j in range(5)]
        cs += [(lambda j=j: a.vmem("buffer_load_dwordx4 %s, %s, s[4:7], 0 offen offset:%d" % (r.cst.q(j), r.vCt, (5 + j) * 64), "cs")) for j in range(3)]
        PD, NB = CFG["PD1"], 8
        seq = [(ks, j, 6 * ks + j) for ks in range(20) for j in range(6)] + [(ks, j, 120 + 2 * ks + j - 6) for ks in range(20) for j in (6, 7)]
        aq = []
        for ks in range(20):
            for rt in range(2):
                def f(ks=ks, rt=rt):
                    x_load(a, A.q(2 * ks + rt), r.vA[rt], ks, rt, not first, ("a", ks), [] if first else stat_loads)
                aq.append((6 * ks, f))
        bq = [(16 * rho - PD, f) for rho in range(NPRE, 10) for f in self.round_loads(rho)]
        if first and CFG["XPRE"]:
            aq = []
            for f in [bq.pop(0)[1] for _ in range(CFG["P1A"])]:
                f()
        for _ in range(0 if not aq else CFG["P1A"] if first else CFG["P1"]):
            aq.pop(0)[1]()
        small = []
        if first:
            small = csp + stat_loads
            fill.insert(0, "small")
        a.late_ok = first
        stamp(a, 1)
        a.wait_vm([("a", 0), ("st", NPRE - 1)])
        a("s_barrier")
        stamp(a, 2)

        def rd(n):
            f = seq[n][2]
            if f % 16 == 0 and f // 16 >= NPRE:
                while bq and bq[0][0] <= f - PD:
                    sys.stderr.write("P1: late weight load\n")
                    bq.pop(0)[1]()
                a.wait_vm([("st", f // 16), "csw"])
                a("s_barrier")
                st["csok"] = not first or (not fill_has_store())
            a.ds("ds_read_b128 %s, %s offset:%d" % (Bregs.q(n % NB), r.vL[f >> 6], (f & 63) * 1024), ("f", n))

        def pair(n, mid):
            ks, j, f = seq[n]
            if n + PD < len(seq) and n + PD not in done_rd:
                rd(n + PD)
            if n % 2 == 0 or n == 120:
                a.wait_lg(("f", min(n + 1, len(seq) - 1) if n != 119 else n))
            else:
                a.wait_lg(("f", n))
            for rt in range(2):
                c = "0" if ks == 0 else str(acc[rt][j])
                w, x = Bregs.q(n % NB), A.q(2 * ks + rt)
                a("%s %s, %s, %s, %s" % ((MF, acc[rt][j], w, x, c) if j >= 5 else (MF, acc[rt][j], x, w, c)))
                if rt == 0:
                    mid()
        done_rd = set()
        st = dict(credit=0.0, csok=not first)
        fill_has_store = lambda: first and fin[-1] in fill
        for n in range(PD):
            rd(n)
        late = [x for x in bq if x[0] >= 120 - PD]
        nload = len(aq) + len(bq) - len(late) + len(cs) + len(small) // 2
        for n in range(120):
            ks, j, f = seq[n]
            if j == 0:
                while aq and aq[0][0] <= n:
                    sys.stderr.write("P1: late activation load\n")
                    aq.pop(0)[1]()
                a.wait_vm(("a", ks))
            def mid():
                if first and CFG["BSP"] < 99 and n % CFG["BSP"] == CFG["BSP"] - 1 and n >= CFG["BS0"] and self.bstores:
                    self.bstores.pop(0)()
                    return
                st["credit"] += nload / float(CFG["SPAN1A"] if first else CFG["SPAN1"])
                if st["credit"] >= 1.0:
                    cb = bq and bq[0][0] < 120 - PD
                    q = None
                    if aq and (not cb or aq[0][0] <= bq[0][0]):
                        q = aq
                    elif cb:
                        q = bq
                    if small and q is not None and q[0][0] - n > CFG["SLK"]:
                        small.pop(0)(); small.pop(0)()
                    elif q is not None:
                        q.pop(0)[1]()
                    elif cs and st["csok"]:
                        cs.pop(0)()
                    elif bq and not first:
                        bq.pop(0)[1]()
                    else:
                        q = "none"
                    st["credit"] -= 1.0
                    if (not first or CFG["XPRE"]) and q != "none":
                        return
                if n > (12 if first else CFG["F1"]) and a.late_ok:
                    if fill and fill[0] == "small":
                        if not small:
                            fill[0:1] = [None] * 16
                        return
                    for _ in range(2):
                        if fill:
                            x = fill.pop(0)
                            if x is not None:
                                x() if callable(x) else a(x)
            pair(n, mid)
        if fill:
            sys.stderr.write("P1: %d fill items left after the first pass\n" % len(fill))
        for x in fill:
            if x is not None:
                x() if callable(x) else a(x)
        assert st["csok"]
        for f in cs:
            f()
        assert not aq
        stamp(a, 3)
        a.wait_vm("cs")
        a("s_mov_b32 s24, %s" % f32(1e-6))
        e = Weaver(a, [x[1] for x in bq] + (self.bstores if first else []), 10 if first else CFG["EW1"])
        bq[:] = []

        def phi(x, m, c, rs, rlg, t, vraw=None):
            for h in H2:
                e(pk("fma", x[h], m(h), c(h), x[h], neg=0))
            for h in H2:
                e(pk("mul", t[h], x[h], rlg(h)))
            if vraw is not None:
                for h in H2:
                    e(pk("mul", vraw[h], x[h], rs(h)))
            for h in H2:
                e(pk("fma", x[h], x[h], rs(h), "s24"))
            for q in range(4):
                e("v_exp_f32 %s, %s clamp" % (t[q], t[q]))
            for q in range(4):
                e("v_max_f32 %s, s24, %s" % (x[q], x[q]))
            for h in H2:
                e(pk("add", x[h], x[h], t[h]))

        for j in range(5):
            for rt in range(2):
                x = acc[rt][j]
                m = lambda h, rt=rt: r.meanN[rt][h]
                rs = lambda h, rt=rt: r.rstdN[rt][h]
                rg = lambda h, rt=rt: r.rlN[rt][h]
                c = lambda h, j=j: r.csn[j]
                if j < 2:
                    phi(x, m, c, rs, rg, tmp[0:4])
                elif j == 2:
                    phi(x, m, c, rs, rg, tmp[0:4], vraw=tmp[4:8])
                    for q in range(4):
                        e("v_cndmask_b32 %s, %s, %s, s[26:27]" % (x[q], tmp[4 + q], x[q]))
                else:
                    for h in H2:
                        e(pk("fma", x[h], m(h), c(h), x[h], neg=0))
                    for h in H2:
                        e(pk("mul", x[h], x[h], rs(h)))
                e("v_cvt_pk_bf16_f32 %s, %s, %s" % (Xf.q(j)[2 * rt], x[0], x[1]))
                e("v_cvt_pk_bf16_f32 %s, %s, %s" % (Xf.q(j)[2 * rt + 1], x[2], x[3]))
        e("v_mov_b32 %s, 0x3f803f80" % tmp[0])
        for q in range(4):
            e("v_cndmask_b32 %s, %s, %s, s[26:27]" % (Xf.q(5)[q], Xf.q(2)[q], tmp[0]))
        e.flush()
        for pi, (ka, vb) in enumerate(K1_PAIRS):
            a("%s %s, %s, %s, 0" % (MF, kvd.q(pi), Xf.q(ka), Xf.q(5 if vb == 2 else vb)))
        qo = [Xf.q(0), Xf.q(1), Xf.q(2), Xf.q(3)]

        def qtile(j, rt):
            x = acc[rt][5 + j]
            phi(x, lambda h: r.mean[rt], lambda h: r.cst.q(j)[h], lambda h: r.rstd[rt], lambda h: r.rl[rt], tmp[0:4])
            o = qo[rt][2 * j:2 * j + 2] if j < 2 else qo[2 + rt][0:2]
            e("v_cvt_pk_bf16_f32 %s, %s, %s" % (o[0], x[0], x[1]))
            e("v_cvt_pk_bf16_f32 %s, %s, %s" % (o[1], x[2], x[3]))
        if NPRE >= 8:
            a("s_barrier")
        for pi in range(8):
            a.ds("ds_write_b128 %s, %s" % (r.vKa[pi], kvd.q(pi)), "add")
        qtile(0, 0)
        a.wait_lg("add")
        a("s_barrier")
        for i in range(4):
            for w in range(4):
                a.ds("ds_read_b32 %s, %s offset:%d" % (kvd[4 * i + w], r.vR, i * 1024 + w * 3584), ("rd", i))
        a("v_mov_b32 %s, 0x%x" % (kvd[17], OOB))
        a("v_cmp_gt_u32 vcc, 72, v0")
        a("v_cndmask_b32 %s, %s, %s, vcc" % (kvd[16], kvd[17], r.vGl))
        for i in range(4):
            a.wait_lg(("rd", i))
            a(pk("add", kvd[4 * i:4 * i + 2], kvd[4 * i:4 * i + 2], kvd[4 * i + 2:4 * i + 4]))
            a("v_add_f32 %s, %s, %s" % (kvd[4 * i], kvd[4 * i], kvd[4 * i + 1]))
            a.vmem("buffer_atomic_add_f32 %s, %s, s[4:7], 0 offen offset:%d" % (kvd[4 * i], r.vGl if i < 3 else kvd[16], i * 1024), "kv")
        a("v_mov_b32 %s, 1" % r.ret)
        stamp(a, 4)
        wo = nxt.take(25)
        fa, vGo, vX = r.fa, r.vGo, r.vX
        b = Asm()
        b("v_cmp_lt_u32 s[36:37], 0, %s" % vG)
        eps = acc[1][1]
        for q in range(4):
            b("v_mov_b32 %s, s24" % eps[q])
        early = list(b.lines) + (nxt.addr_lines() if CFG["AE"] & 1 else [])
        for n in range(120, 160):
            ks = seq[n][0]
            if n == 120 + 2 * CFG["ARRK"]:
                if CFG["DBG"] == 4:
                    stamp(a, 1)
                a.wait_vm("kv")
                a("s_barrier")
                if CFG["DBG"] == 4:
                    stamp(a, 2)
                a.vmem("buffer_atomic_add %s, %s, s[4:7], 0 offen" % (r.ret, r.vC1), "arr")
            def mid():
                if n % 3 == 2 and wo and wo[0].k < 16:
                    wo.pop(0)()
                else:
                    for _ in range(2):
                        if early:
                            a(early.pop(0))
            pair(n, mid)
        if CFG["DBG"] == 4:
            stamp(a, 3)
        e = Weaver(a, [(lambda x=x: a(x)) for x in early] + wo[:CFG["NWQ"]], 3 if early else 16)
        wo = wo[CFG["NWQ"]:]
        a("v_mov_b32 v252, 0")
        a("v_mov_b32 v253, 0")
        a.vmem("buffer_atomic_add v253, %s, s[4:7], 0 offen sc0" % vGo, "go0")
        qtile(0, 1)
        qtile(1, 0)
        a.vmem("buffer_atomic_add v252, %s, s[4:7], 0 offen sc0" % vGo, "go")
        qtile(1, 1)
        qtile(2, 0)
        qtile(2, 1)
        e.flush()
        for rt in range(2):
            a("v_mov_b32 %s, 0" % qo[2 + rt][2])
            a("v_mov_b32 %s, 0" % qo[2 + rt][3])
        if CFG["DBG"] == 4:
            stamp(a, 6)
        l, d = label("gp"), label("gd")
        a("s_add_u32 s49, s49, 16")
        a("s_cmp_lg_u32 %s, %d" % (sWAVE, CFG["PW"]))
        a("s_cbranch_scc1 %s" % d)
        a("s_mov_b32 s42, %d" % CFG["TMO"])
        save = list(a.vm)
        a.wait_vm("go0")
        a("v_cmp_le_u32 vcc, s49, v253")
        a("s_cmp_eq_u32 vcc_lo, 0xffff")
        a("s_cbranch_scc1 %s" % d)
        a.wait_vm("go")
        a.vm = save
        a("%s:" % l)
        a("v_cmp_le_u32 vcc, s49, v252")
        a("s_cmp_eq_u32 vcc_lo, 0xffff")
        a("s_cbranch_scc1 %s" % d)
        a("v_mov_b32 v252, 0")
        a("buffer_atomic_add v252, %s, s[4:7], 0 offen sc0" % vGo)
        a("s_sub_u32 s42, s42, 1")
        a("s_waitcnt vmcnt(0)")
        a("s_cbranch_scc0 %s" % l)
        a("%s:" % d)
        a("s_barrier")
        stamp(a, 5)
        stg, fr = kvd[0:16], [kvd.q(k) for k in range(7)]
        for k in range(4):
            a.vmem("buffer_load_dwordx4 %s, %s, s[4:7], s3 offen%s" % (stg.q(k), fa[k], SC()), "kvl")
        for x in p3.pre_setup() + p4.pre_setup():
            a(x)
        extra = wo + p3.pre_loads() + p4.take(CFG["NW4P"])
        for _ in range(CFG["NX1"]):
            extra.pop(0)()
        if CFG["DBG"] == 3:
            stamp(a, 1)
        a.wait_vm("kvl")
        if CFG["DBG"] == 3:
            stamp(a, 2)
        for i in range(2):
            o = tmp.q(1 + i)
            for k in range(4):
                a("v_cvt_pk_bf16_f32 %s, %s, %s" % (o[k], stg[8 * i + 2 * k], stg[8 * i + 2 * k + 1]))
            a.ds("ds_write_b128 %s, %s offset:%d" % (vX[0], o, i * 1024), "fw")
        a.wait_lg("fw")
        a("s_barrier")
        extra.pop(0)()
        for k in (5, 6, 0, 1, 2, 3, 4):
            a.ds("ds_read_b128 %s, %s offset:%d" % (fr[k], vX[1], k * 1024), ("fr", k))
        if CFG["DBG"] == 3:
            stamp(a, 3)
        num = [[acc[rt][2 + t_] for t_ in range(3)] for rt in range(2)]
        den = [acc[0][5], acc[1][5]]
        for k, (t_, kb) in ((5, (3, 0)), (6, (3, 1)), (0, (0, 0)), (1, (1, 0)), (2, (1, 1)), (3, (2, 0)), (4, (2, 1))):
            a.wait_lg(("fr", k))
            for rt in range(2):
                dst = den[rt] if t_ == 3 else num[rt][t_]
                c = dst if kb else (eps if t_ == 3 else "0")
                a("%s %s, %s, %s, %s" % (MF, dst, fr[k], qo[rt] if kb == 0 else qo[2 + rt], c))
        extra.pop(0)()
        extra.pop(0)()
        for rt in range(2):
            a("v_rcp_f32 %s, %s" % (den[rt][0], den[rt][0]))
            a("v_rcp_f32 %s, %s" % (den[rt][1], den[rt][1]))
        for rt in range(2):
            a("v_cndmask_b32 %s, %s, %s, s[36:37]" % (den[rt][2], den[rt][0], den[rt][1]))
        for rt in range(2):
            for t_, dd in ((0, den[rt][0]), (1, den[rt][2])):
                for h in H2:
                    a(pk("mul", num[rt][t_][h], num[rt][t_][h], dd))
                a("v_cvt_pk_bf16_f32 %s, %s, %s" % (qo[rt][2 * t_], num[rt][t_][0], num[rt][t_][1]))
                a("v_cvt_pk_bf16_f32 %s, %s, %s" % (qo[rt][2 * t_ + 1], num[rt][t_][2], num[rt][t_][3]))
            a.vmem("buffer_store_dwordx4 %s, %s, s[4:7], %s offen%s" % (qo[rt], r.vQ[0], "s23" if rt else "0", SC()), "out")
        for rt in range(2):
            z = qo[2 + rt]
            for h in H2:
                a(pk("mul", num[rt][2][h], num[rt][2][h], den[rt][1]))
            a("v_cvt_pk_bf16_f32 %s, %s, %s" % (z[0], num[rt][2][0], num[rt][2][1]))
            a("v_cvt_pk_bf16_f32 %s, %s, %s" % (z[1], num[rt][2][2], num[rt][2][3]))
            a("v_mov_b32 %s, %s" % (z[2], z[0]))
            a("v_mov_b32 %s, %s" % (z[3], z[1]))
            a("v_permlane16_swap_b32 %s, %s" % (z[0], z[2]))
            a("v_permlane16_swap_b32 %s, %s" % (z[1], z[3]))
            a.vmem("buffer_store_dwordx4 %s, %s, s[4:7], %s offen%s" % (z, r.vQ[1], "s23" if rt else "0", SC()), "out")
        if CFG["RB"]:
            a("v_mov_b32 %s, %s" % (vRB[0], r.vQ[0]))
            a("v_mov_b32 %s, %s" % (vRB[1], r.vQ[1]))
        a.rb = [(vRB[0], "0", 0), (vRB[0], "s23", 0), (vRB[1], "0", 0), (vRB[1], "s23", 0)]
        self.extra = extra


class P3:
    def __init__(self, a):
        self.a = a
        self.ring = Ring(a, 12, 6, vPRE[0], vPRE[0], "s44", "s45", "s46")

    def pre_setup(self):
        return ["s_mul_i32 s17, %s, 245760" % sP,
                "s_mul_i32 s44, %s, 6144" % sWAVE,
                "s_add_u32 s17, s17, s44",
                "s_add_u32 s17, s17, %d" % W3,
                "v_add_u32 %s, s17, v2" % vPRE[0]] + self.ring.init_lines()

    def pre_loads(self):
        return [f for s in range(min(CFG["NE3"], CFG["NPRE3"])) for f in self.ring.loads(s)]

    def wait_loads(self):
        return [f for s in range(CFG["NE3"], CFG["NPRE3"]) for f in self.ring.loads(s)]

    def before_wait(self, emit=None):
        r, a = self, (emit or self.a)
        V = Alloc("v", VBASE, 240)
        r.vA = [V.get(1), V.get(1)]
        r.vL = [Reg("v", 2, 1), V.get(1), V.get(1)]
        r.vS = V.get(1); r.vC = V.get(1); r.vH = V.get(1)
        r.mean = [V.get(1), V.get(1)]; r.rstd = [V.get(1), V.get(1)]; r.std = [V.get(1), V.get(1)]; r.c1 = [V.get(1), V.get(1)]
        r.tmp = V.get(16)
        r.acc = [[V.get(4) for j in range(12)] for rt in range(2)]
        r.cs = V.get(48)
        r.Aring = Reg("a", 160, 64)
        r.Bregs = Reg("a", 224, 32)
        tmp = r.tmp
        a("s_lshl_b32 s16, %s, 3" % sRB)
        a("s_lshl_b32 s17, %s, 1" % sWAVE)
        a("s_add_u32 s16, s16, s17")
        a("s_mul_i32 s17, s16, 20480")
        a("s_add_u32 s17, s17, %s" % sLAY)
        a("s_add_u32 s17, s17, %d" % XB)
        a("v_add_u32 %s, s17, v2" % r.vA[0])
        a("v_add_u32 %s, 20480, %s" % (r.vA[1], r.vA[0]))
        a("v_add_u32 %s, 0x10000, v2" % r.vL[1])
        a("v_add_u32 %s, 0x20000, v2" % r.vL[2])
        a("v_lshlrev_b32 %s, 3, %s" % (tmp[0], vN))
        a("v_lshl_add_u32 %s, %s, 8, %s" % (tmp[0], vG, tmp[0]))
        a("s_lshl_b32 s17, s16, 10")
        a("s_add_u32 s17, s17, %s" % sLAY)
        a("s_add_u32 s17, s17, %d" % STB)
        a("v_add_u32 %s, s17, %s" % (r.vS, tmp[0]))
        a("s_mul_i32 s17, %s, 768" % sP)
        a("s_add_u32 s17, s17, %d" % CS3F)
        a("v_lshl_add_u32 %s, %s, 4, s17" % (r.vC, vG))
        a("s_mul_i32 s17, s16, 49152")
        a("s_mul_i32 s19, %s, 3072" % sP)
        a("s_add_u32 s17, s17, s19")
        a("s_add_u32 s17, s17, %s" % sLAY)
        a("s_add_u32 s17, s17, %d" % H)
        a("v_add_u32 %s, s17, v2" % r.vH)
        a("s_mov_b32 s23, 49152")
        a("s_lshl_b32 s20, %s, 11" % sROT10)
        a("s_mov_b32 s24, %s" % f32(-2.0 * 0.7978845608028654 * 0.044715 * LOG2E))
        a("v_mov_b32 %s, %s" % (tmp[15], f32(-2.0 * 0.7978845608028654 * LOG2E)))

    def body(self, nxt):
        r, a = self, self.a
        tmp, acc, cs, mean, rstd, std = r.tmp, r.acc, r.cs, r.mean, r.rstd, r.std
        stat_loads = [(lambda rt=rt, h=h: a.vmem("buffer_load_dwordx2 %s, %s, s[4:7], 0 offen offset:%d%s" % (tmp.q(rt)[2 * h:2 * h + 2], r.vS, rt * 1024 + h * 128, SC()), "stats"))
                      for rt in range(2) for h in range(2)]
        b = Asm()
        for rt in range(2):
            stats_finish(b, tmp.q(rt), mean[rt], rstd[rt], tmp[8])
            b("v_mul_f32 %s, %s, %s" % (std[rt], rstd[rt], rstd[rt]))
            b("v_mul_f32 %s, %s, %s" % (r.c1[rt], tmp[15], rstd[rt]))
            b("v_mul_f32 %s, %s, %s" % (rstd[rt], std[rt], rstd[rt]))
            b("v_rcp_f32 %s, %s" % (std[rt], std[rt]))
            b("v_mul_f32 %s, s24, %s" % (rstd[rt], rstd[rt]))
        fill = [lambda: a.wait_vm("stats")] + list(b.lines) + (nxt.addr_lines() if CFG["AE"] & 2 else [])
        nl = CFG["NW4L"]
        csl = [(lambda j=j: a.vmem("buffer_load_dwordx4 %s, %s, s[4:7], 0 offen offset:%d%s" % (r.cs.q(j), r.vC, j * 64, SC()), "cs")) for j in range(12)]
        pre = nxt.take(nl + CFG["NW4E"])
        assert all(f.k < 39 for f in pre[:nl])
        rest = gemm_s(a, self.ring, CFG["NPRE3"], r.vA, r.vL, acc, r.Aring, r.Bregs, [True] * 12, "s20", 4,
                      csl + pre[:nl], fill, 0, PD=CFG["PD3"], P=CFG["P3"], first_barrier=True, early=stat_loads)
        assert len(rest) <= nl
        a.wait_vm("cs")
        e = Weaver(a, rest + pre[nl:], CFG["EW3"])
        out = tmp[0:8]
        for m in range(3):
            for rt in range(2):
                o = out.q(rt)
                for hh in range(2):
                    jp = 2 * m + hh
                    g, u = acc[rt][2 * jp], acc[rt][2 * jp + 1]
                    cg, cu = cs.q(2 * jp), cs.q(2 * jp + 1)
                    t = tmp[8:12]
                    for h in H2:
                        e(pk("fma", g[h], cg[h], mean[rt], g[h], neg=1))
                    for h in H2:
                        e(pk("fma", u[h], cu[h], mean[rt], u[h], neg=1))
                    for h in H2:
                        e(pk("mul", t[h], g[h], g[h]))
                    for h in H2:
                        e(pk("fma", t[h], t[h], rstd[rt], r.c1[rt]))
                    for h in H2:
                        e(pk("mul", t[h], g[h], t[h]))
                    for h in H2:
                        e(pk("mul", u[h], g[h], u[h]))
                    for q in range(4):
                        e("v_exp_f32 %s, %s" % (t[q], t[q]))
                    for h in H2:
                        e(pk("fma", t[h], t[h], std[rt], std[rt]))
                    for q in range(4):
                        e("v_rcp_f32 %s, %s" % (t[q], t[q]))
                    for h in H2:
                        e(pk("mul", u[h], u[h], t[h]))
                    e("v_cvt_pk_bf16_f32 %s, %s, %s" % (o[2 * hh], u[0], u[1]))
                    e("v_cvt_pk_bf16_f32 %s, %s, %s" % (o[2 * hh + 1], u[2], u[3]))
                a.vmem("buffer_store_dwordx4 %s, %s, s[4:7], %s offen offset:%d%s" % (o, r.vH, "s23" if rt else "0", m * 1024, SC()), "out0" if m == 0 else "out")
            if m == 1:
                a.wait_vm("out0")
                a("s_add_u32 s22, s22, 16")
                signal(a, 1)
                read_back(a, [(r.vH, "0", 0), (r.vH, "s23", 0)])
        e.flush()
        if CFG["RB"]:
            a("v_mov_b32 %s, %s" % (vRB[0], r.vH))


def p_addr(a, r, t, red_base, xres, stout, from_x=False):
    a("s_add_u32 s17, %s, 3" % sWAVE)
    a("s_and_b32 s17, s17, 3")
    a("s_mul_i32 s17, s17, 10240")
    a("s_add_u32 s17, s17, %d" % red_base)
    a("v_add_u32 %s, s17, v2" % r.vW)
    a("s_mul_i32 s17, %s, 10240" % sWAVE)
    a("s_add_u32 s17, s17, %d" % red_base)
    a("v_add_u32 %s, s17, v2" % r.vRd)
    a("s_lshl_b32 s16, %s, 2" % sRB64)
    a("s_add_u32 s16, s16, %s" % sWAVE)
    a("s_and_b32 s19, %s, 1" % sCG)
    a("s_mul_i32 s29, %s, 5" % sCG)
    a("s_add_u32 s30, s29, s19")
    a("s_xor_b32 s19, s19, 1")
    a("s_lshl_b32 s19, s19, 2")
    a("s_add_u32 s29, s29, s19")
    a("s_mul_i32 s17, s16, 20480")
    a("s_add_u32 s17, s17, %s" % sLAY)
    a("s_add_u32 s17, s17, %d" % xres)
    a("s_lshl_b32 s19, s30, 9")
    a("s_add_u32 s19, s19, s17")
    a("v_add_u32 %s, s19, v2" % r.vRes[0])
    a("v_lshrrev_b32 %s, 1, %s" % (t, vG))
    a("v_lshlrev_b32 %s, 8, %s" % (t, t))
    a("v_lshl_add_u32 %s, %s, 4, %s" % (t, vN, t))
    a("s_lshl_b32 s19, s29, 9")
    a("s_add_u32 s19, s19, s17")
    a("v_add_u32 %s, s19, %s" % (r.vRes[2], t))
    a("v_add_u32 %s, s17, %s" % (r.vRes[1], t))
    a("v_and_b32 %s, 1, %s" % (t, vG))
    a("v_lshl_add_u32 %s, %s, 3, %s" % (r.vRes[1], t, r.vRes[1]))
    a("v_lshl_add_u32 %s, %s, 30, %s" % (r.vRes[2], t, r.vRes[2]))
    a("s_mov_b32 s32, s4\ns_mov_b32 s33, s5\ns_mov_b32 s34, s6\ns_mov_b32 s35, 0x20000\ns_mov_b32 s31, 512")
    if from_x:
        a("v_mul_u32_u24 %s, 1280, %s" % (t, vN))
        a("v_lshl_add_u32 %s, %s, 3, %s" % (t, vG, t))
        a("s_mul_i32 s19, s16, 20480")
        a("v_add_u32 %s, s19, %s" % (t, t))
        one = ["s_cmp_eq_u32 %s, 0" % sLAY, "s_cselect_b32 s32, s84, s32", "s_cselect_b32 s33, s85, s33",
               "s_cselect_b32 s34, %d, s34" % (S * D * 2), "s_cselect_b32 s31, 32, s31", "s_cselect_b64 vcc, -1, 0"]
        a.lines.append("\n".join(one))
        a("v_cndmask_b32 %s, %s, %s, vcc" % (r.vRes[1], r.vRes[1], t))
    a("s_mul_i32 s38, s30, s31")
    a("s_mul_i32 s39, s29, s31")
    a("s_lshl_b32 s17, s16, 10")
    a("s_add_u32 s17, s17, %s" % sLAY)
    a("s_add_u32 s17, s17, %d" % stout)
    a("s_lshl_b32 s19, %s, 7" % sCG)
    a("s_add_u32 s17, s17, s19")
    a("v_lshl_add_u32 %s, %s, 3, s17" % (r.vSt, vN))
    a("v_mov_b32 %s, 0x%x" % (t, OOB))
    a("v_and_b32 %s, %s, %s" % (t, t, vCNT))
    a("v_or_b32 %s, %s, %s" % (r.vSt, t, r.vSt))


def p_res_loads(a, res, vRes):
    for j in range(4):
        a.vmem("buffer_load_dwordx2 %s, %s, s[32:35], s38 offen%s" % (res[2 * j:2 * j + 2], vRes[1], SC()), "res")
        if j < 3:
            a("s_add_u32 s38, s38, s31")
    a.vmem("buffer_load_dwordx2 %s, %s, s[32:35], s39 offen%s" % (res[8:10], vRes[1], SC()), "res")


def p_write(a, acc, i, vW):
    for j in range(5):
        a.ds("ds_write_b128 %s, %s offset:%d" % (vW[i - 1], acc[i][j], j * 1024), "rw")


def p_epilogue(a, r, acc, res, part, tmp, xdelta, pre, final):
    stamp(a, 3)
    y, o = acc[0], r.keep
    a("s_mov_b32 s28, %d" % xdelta)
    def swaps(b):
        for d in range(2):
            a("v_permlane32_swap_b32 %s, %s" % (o[b + d], o[b + 2 + d]))
        for d in range(2):
            a("v_permlane16_swap_b32 %s, %s" % (o[b + d], o[b + 2 + d]))
    for j in range(5):
        a.wait_lg(("p", j))
        for h in H2:
            a(pk("add", y[j][h], y[j][h], part.q(j)[h]))
    stamp(a, 4)
    for j in range(5):
        a("v_cvt_pk_bf16_f32 %s, %s, %s" % (o[2 * j], y[j][0], y[j][1]))
        a("v_cvt_pk_bf16_f32 %s, %s, %s" % (o[2 * j + 1], y[j][2], y[j][3]))
    if final:
        a("s_cmp_lg_u32 %s, 0" % sLAY)
        a("s_cbranch_scc1 L_final")
    a("v_mov_b32 %s, %s" % (tmp[4], o[8]))
    a("v_mov_b32 %s, %s" % (tmp[5], o[9]))
    a("v_mov_b32 %s, %s" % (tmp[6], o[8]))
    a("v_mov_b32 %s, %s" % (tmp[7], o[9]))
    swaps(0)
    a.vmem("buffer_store_dwordx4 %s, %s, s[4:7], s28 offen%s" % (o[0:4], r.vRes[0], SC()), "out")
    swaps(4)
    a("v_permlane16_swap_b32 %s, %s" % (tmp[4], tmp[6]))
    a("v_permlane16_swap_b32 %s, %s" % (tmp[5], tmp[7]))
    a.vmem("buffer_store_dwordx4 %s, %s, s[4:7], s28 offen offset:1024%s" % (o[4:8], r.vRes[0], SC()), "out")
    a.vmem("buffer_store_dwordx4 %s, %s, s[4:7], s28 offen%s" % (tmp[4:8], r.vRes[2], SC()), "out")
    sq = tmp[2:4]
    a("s_mov_b32 s24, 0x3f803f80")
    for q in range(4):
        a("v_mov_b32 %s, 0" % tmp[q])
    for k in range(10):
        a("v_dot2c_f32_bf16 %s, s24, %s" % (tmp[2 * (k % 2)], o[k]))
        a("v_dot2c_f32_bf16 %s, %s, %s" % (tmp[1 + 2 * (k % 2)], o[k], o[k]))
    a(pk("add", sq, sq, tmp[0:2]))
    for sw in ("v_permlane16_swap_b32", "v_permlane32_swap_b32"):
        a("v_mov_b32 %s, %s" % (tmp[0], sq[0]))
        a("v_mov_b32 %s, %s" % (tmp[1], sq[1]))
        a("%s %s, %s" % (sw, sq[0], tmp[0]))
        a("%s %s, %s" % (sw, sq[1], tmp[1]))
        a(pk("add", sq, sq, tmp[0:2]))
    a.vmem("buffer_store_dwordx2 %s, %s, s[4:7], 0 offen%s" % (sq, r.vSt, SC()), "out")
    if CFG["RB"]:
        a("v_add_u32 %s, s28, %s" % (vRB[0], r.vRes[0]))
        a("v_add_u32 %s, s28, %s" % (vRB[1], r.vRes[2]))
    a.rb = [(vRB[0], "0", 0), (vRB[0], "0", 1024), (vRB[1], "0", 0)]


def wait_first(a, loads=()):
    arrive(a)
    if not CFG["SPLIT"]:
        wait(a, loads)
        return
    spoll_issue(a, 1)
    for f in loads:
        f()
    spoll_wait(a, 1, "s22")
    stamp(a, 8); stamp_dump(a); stamp(a, 0); dbg_time(a)


def final_store(a, o, tmp):
    a("L_final:")
    a("s_mov_b32 s32, s90")
    a("s_mov_b32 s33, s91")
    a("s_mov_b32 s34, %d" % (S * D * 2))
    a("s_mov_b32 s35, 0x20000")
    a("s_mul_i32 s17, s16, 20480")
    a("v_mul_u32_u24 %s, 1280, %s" % (tmp[0], vN))
    a("v_lshl_add_u32 %s, %s, 3, %s" % (tmp[0], vG, tmp[0]))
    a("v_add_u32 %s, s17, %s" % (tmp[0], tmp[0]))
    a("s_lshl_b32 s30, s30, 5")
    a("s_lshl_b32 s29, s29, 5")
    for j in range(4):
        a("buffer_store_dwordx2 %s, %s, s[32:35], s30 offen offset:%d" % (o[2 * j:2 * j + 2], tmp[0], j * 32))
    a("buffer_store_dwordx2 %s, %s, s[32:35], s29 offen" % (o[8:10], tmp[0]))
    dbg_time(a)
    if CFG["SPAN"]:
        a("s_waitcnt vmcnt(0)")
        a("s_memrealtime s[60:61]")
        a("s_lshl_b32 s59, s2, 2")
        a("s_add_u32 s59, s59, s10")
        a("s_lshl_b32 s59, s59, 3")
        a("s_add_u32 s59, s59, %d" % PROFO)
        a("s_mov_b64 exec, 1")
        a("s_waitcnt lgkmcnt(0)")
        a("v_mov_b32 v100, s80\nv_mov_b32 v101, s60\nv_mov_b32 v102, s59")
        a("buffer_store_dwordx2 v[100:101], v102, s[4:7], 0 offen")
    if PROF:
        stamp(a, 5)
        a("s_waitcnt vmcnt(0)")
        stamp(a, 6)
        stamp(a, 7)
        stamp(a, 8)
        stamp_dump(a)


class PK:
    def __init__(self, a, NK, wbase, abase, xres, xout, stout, red, final, wreg, vW_, sW_):
        self.a, self.NK, self.wbase, self.abase = a, NK, wbase, abase
        self.vw, self.sw = vW_, sW_
        self.xres, self.xout, self.stout, self.red, self.final = xres, xout, stout, red, final
        self.W = wreg
        self.todo = None

    def pre_setup(self):
        self.todo = list(range(5 * self.NK))
        return ["s_mul_i32 s17, %s, %d" % (sCG, 4 * self.NK * 5120),
                "s_mul_i32 s19, %s, %d" % (sWAVE, self.NK * 5120),
                "s_add_u32 s17, s17, s19",
                "s_add_u32 s17, s17, %d" % self.wbase,
                "v_add_u32 %s, s17, v2" % self.vw]

    def kmap(self, st):
        return 3 * (st % 4) + st // 4 if self.final else st

    def take(self, n):
        a = self.a
        ks, self.todo = self.todo[:n], self.todo[n:]
        def mk(k):
            def f():
                st, j = divmod(k, 5)
                if j in (0, 4):
                    a("s_mov_b32 %s, %d" % (self.sw, self.kmap(st) * 5120 + (j // 4) * 4096))
                a.vmem("buffer_load_dwordx4 %s, %s, s[4:7], %s offen offset:%d%s" % (self.W(k), self.vw, self.sw, (j % 4) * 1024, WSC()), ("w", self.NK, k))
            f.k = k
            return f
        return [mk(k) for k in ks]

    def addr_lines(self):
        r, a = self, Asm()
        V = Alloc("v", VBASE, 228)
        r.vA = Reg("v", 240, 4); r.vW = Reg("v", 244, 1); r.vRd = Reg("v", 245, 1); r.vRes = Reg("v", 246, 3); r.vSt = Reg("v", 249, 1)
        r.tmp = V.get(8)
        r.acc = [[V.get(4) for j in range(5)] for i in range(4)]
        r.ring = V.get(80)
        r.part = V.get(20)
        tts = 4 * self.NK * 1024
        a("s_lshl_b32 s16, %s, 2" % sRB64)
        a("s_mul_i32 s16, s16, %d" % tts)
        a("s_mul_i32 s19, %s, %d" % (sWAVE, self.NK * 1024))
        a("s_add_u32 s16, s16, s19")
        a("s_add_u32 s16, s16, %s" % sLAY)
        a("s_add_u32 s16, s16, %d" % self.abase)
        for i in range(4):
            a("s_add_u32 s17, %s, %d" % (sWAVE, i))
            a("s_and_b32 s17, s17, 3")
            a("s_mul_i32 s17, s17, %d" % tts)
            a("s_add_u32 s17, s17, s16")
            a("v_add_u32 %s, s17, v2" % r.vA[i])
        p_addr(a, r, Reg("v", 250, 1), self.red, self.xres, self.stout)
        return a.lines

    def before_wait(self, emit=None):
        r, a = self, (emit or self.a)
        r.keep = Reg("v", 228, 10)
        if not self.final:
            l = label("res")
            flush = getattr(a, "flush", None)
            if flush:
                flush()
            self.a("s_cmp_lg_u32 %s, 0" % sLAY)
            self.a("s_cbranch_scc1 %s" % l)
            n = len(self.a.vm)
            p_res_loads(self.a, r.keep, r.vRes)
            self.a.vm = self.a.vm[:n]
            self.a("%s:" % l)

    def body(self, setup=(), extra=()):
        r, a = self, self.a
        acc, NK = r.acc, self.NK
        G0 = 4 if self.final else 0
        seq = [(ks, i) for ks in range(G0) for i in (1, 2, 3, 0)] + [(ks, i) for i in (1, 2, 3, 0) for ks in range(G0, NK)]
        aq = []
        for n, (ks, i) in enumerate(seq):
            def f(n=n, ks=ks, i=i):
                if self.final and n == 4 * G0:
                    spoll_wait(a, 0, sTGT)
                kb = self.kmap(ks)
                if st.get("s20") != kb // 4:
                    a("s_mov_b32 s20, %d" % (kb // 4 * 4096))
                    st["s20"] = kb // 4
                if self.final and n == CFG["BPOLL"]:
                    spoll_issue(a, 0)
                a.vmem("buffer_load_dwordx4 %s, %s, s[4:7], s20 offen offset:%d%s" % (r.ring.q(n % 20), r.vA[i], (kb % 4) * 1024, SC()), ("x", n))
            aq.append((n, f))
        st = {}
        wq = [(f.k // 5, f) for f in self.take(99)]
        for k in range(CFG["PP4"] if self.final else CFG["PP"]):
            aq.pop(0)[1]()
            if self.final and k == CFG["BARR"]:
                a.wait_vm("out")
                a("s_add_u32 %s, %s, 16" % (sTGT, sTGT))
                signal(a, 0)
                read_back(a, [(vRB[0], so, m * 1024) for m in (1, 2) for so in ("0", "s23")])
        stamp(a, 1)
        def unpack():
            l = label("unsw")
            if not self.final:
                a("s_cmp_eq_u32 %s, 0" % sLAY)
                a("s_cbranch_scc1 %s" % l)
            for sw in ("v_permlane16_swap_b32", "v_permlane32_swap_b32"):
                for b in (0, 4):
                    for d in range(2):
                        a("%s %s, %s" % (sw, r.keep[b + d], r.keep[b + 2 + d]))
            a("%s:" % l)
            a("s_nop 0")
            for j in range(5):
                for h in range(2):
                    a("v_lshlrev_b32 %s, 16, %s" % (acc[0][j][2 * h], r.keep[2 * j + h]))
                    a("v_and_b32 %s, 0xffff0000, %s" % (acc[0][j][2 * h + 1], r.keep[2 * j + h]))
        if self.final:
            unpack()
        setup = list(setup)
        extra = list(extra)
        first_use = {}
        for n, (ks, i) in enumerate(seq):
            first_use.setdefault(ks, n)
        wq = [(first_use[ks], f) for ks, f in wq]
        side = []
        cnt, tau, started = 0, 0, set()
        for n, (ks, i) in enumerate(seq):
            while wq and wq[0][0] <= n:
                wq.pop(0)[1]()
            while aq and aq[0][0] <= n:
                aq.pop(0)[1]()
            a.wait_vm([("w", NK, k) for k in range(5 * ks, 5 * ks + 5)] + [("x", n)])
            if n == 0:
                stamp(a, 2)
            if n == 1 and not self.final:
                unpack()
            for j in range(5):
                c = str(acc[i][j]) if (i == 0 or i in started) else "0"
                a("%s %s, %s, %s, %s" % (MF, acc[i][j], self.W(5 * ks + j), r.ring.q(n % 20), c))
                cnt += 1
                if cnt % CFG["SP4"] == 0 and (aq or wq):
                    ca = aq and aq[0][0] - 20 < n
                    if ca and (not wq or aq[0][0] <= wq[0][0] - 4):
                        aq.pop(0)[1]()
                    elif wq:
                        wq.pop(0)[1]()
                    elif ca:
                        aq.pop(0)[1]()
                elif cnt % CFG["SPX"] == 0 and extra and not aq and not wq and not setup:
                    extra.pop(0)()
                elif side:
                    for _ in range(2):
                        if side:
                            x = side.pop(0)
                            if x is not None:
                                x() if callable(x) else a(x)
                elif cnt % CFG["SP4"] == 1 and setup and n >= 8:
                    a(setup.pop(0))
            started.add(i)
            if ks == NK - 1 and i:
                for x in side:
                    if x is not None:
                        x() if callable(x) else a(x)
                side = [None] * 4
                par = (tau % 2) * 5120
                for j in range(5):
                    if tau:
                        side.append(lambda j=j: a.wait_lg(("p", j)))
                        side += ["v_add_f32 %s, %s, %s" % (acc[i][j][q], acc[i][j][q], r.part.q(j)[q]) for q in range(4)]
                    side.append(lambda i=i, j=j, par=par: a.ds("ds_write_b128 %s, %s offset:%d" % (r.vW, acc[i][j], par + j * 1024), "rw"))
                side += [None] * CFG["XW"]
                def swap(par=par):
                    a.wait_lg("rw")
                    a("s_barrier")
                    for j in range(5):
                        a.ds("ds_read_b128 %s, %s offset:%d" % (r.part.q(j), r.vRd, par + j * 1024), ("p", j))
                side.append(swap)
                tau += 1
        for x in side:
            if x is not None:
                x() if callable(x) else a(x)
        assert not aq and not wq and not setup
        p_epilogue(a, r, acc, None, r.part, r.tmp, self.xout - self.xres, extra, self.final)
        self.left = extra


def main_body():
    a = Asm()
    a("s_cmp_ge_u32 s2, 256")
    a("s_cbranch_scc1 L_end")
    a("s_load_dwordx2 s[4:5], s[0:1], 72")
    a("s_load_dwordx4 s[84:87], s[0:1], 0")
    a("s_load_dwordx2 s[88:89], s[0:1], 16")
    a("s_load_dwordx2 s[90:91], s[0:1], 32")
    a("s_load_dwordx2 s[92:93], s[0:1], 40")
    a("s_load_dwordx2 s[96:97], s[0:1], 48")
    a("s_load_dwordx2 s[94:95], s[0:1], 64")
    if CFG["SPAN"]:
        a("s_memrealtime s[80:81]")
    if CFG["DBGT"]:
        a("s_memrealtime s[80:81]")
        a("s_mov_b32 s62, 4")
    if PROF:
        a("s_mov_b32 %s, 0" % sPH)
        a("s_memrealtime s[80:81]")
    stamp(a, 0)
    a("v_lshrrev_b32 v1, 6, v0")
    a("v_readfirstlane_b32 %s, v1" % sWAVE)
    a("v_and_b32 v1, 63, v0")
    a("v_lshlrev_b32 v2, 4, v1")
    a("v_and_b32 %s, 15, v1" % vN)
    a("v_lshrrev_b32 %s, 4, v1" % vG)
    a("s_mov_b32 s6, %d" % WS_USED)
    a("s_mov_b32 s7, 0x20000")

    def late_setup():
        a("s_and_b32 s16, s2, 7")
        a("s_lshr_b32 s17, s2, 3")
        lx = CFG["XC"] - 1
        a("s_lshr_b32 %s, s16, %d" % (sRB, lx))
        a("s_lshl_b32 %s, %s, %d" % (sRB, sRB, lx + 1))
        a("s_and_b32 s18, s17, %d" % ((2 << lx) - 1))
        a("s_add_u32 %s, %s, s18" % (sRB, sRB))
        a("s_lshr_b32 s17, s17, %d" % (lx + 1))
        a("s_and_b32 s16, s16, %d" % lx)
        a("s_lshl_b32 %s, s16, 3" % sP)
        a("s_add_u32 %s, %s, s17" % (sP, sP))
        a("s_lshl_b32 %s, %s, 1" % (sRB64, sRB))
        a("s_and_b32 s18, %s, 1" % sP)
        a("s_add_u32 %s, %s, s18" % (sRB64, sRB64))
        a("s_lshr_b32 %s, %s, 1" % (sCG, sP))
        a("s_and_b32 s18, %s, %d" % (sRB, 3 if CFG["ROT"] else 0))
        a("s_mul_i32 %s, s18, 3" % sROT12)
        a("s_mul_i32 %s, s18, 5" % sROT10)
        a("s_lshr_b32 %s, %s, 1" % (sROT10, sROT10))
        a("s_mov_b32 %s, 0" % sLAY)
        a("s_mov_b32 %s, 0" % sTGT)
        a("s_lshl_b32 s17, %s, 11" % sRB)
        a("s_add_u32 s17, s17, %d" % CNT)
        a("v_lshl_add_u32 %s, %s, 7, s17" % (vCNT, vN))
        a("v_mov_b32 v255, 0x%x" % OOB)
        a("v_cmp_gt_u32 vcc, 16, v1")
        a("s_lshl_b32 s18, %s, 7" % sP)
        a("s_add_u32 s17, s17, s18")
        a("v_cndmask_b32 %s, v255, %s, vcc" % (vCNT, vCNT))
        a("v_mov_b32 %s, s17" % vPL)
        a("s_add_u32 s100, s4, s17")
        a("s_addc_u32 s101, s5, 0")
        a("v_cmp_eq_u32 vcc, 0, v1")
        a("v_cndmask_b32 %s, v255, %s, vcc" % (vPL, vPL))
    p1, p3 = P1(a), P3(a)
    p2 = PK(a, 5, W2, PQ, XA, XB, STB, 122880, False, lambda k: Reg("a", 192 + 4 * k if k < 16 else 156 + 4 * (k - 16), 4), vPRE[2], "s47")
    p4 = PK(a, 12, W4, H, XB, XA + LSTR, STA + LSTR, 122880, True, lambda k: Reg("a", 4 * k, 4), vPRE[3], "s58")
    p0_phase(a, p1, late_setup)
    a.vm = []
    for f in p1.pre_loads(CFG["NPRE1A"]):
        f()
    p1.body(p2, p3, p4, CFG["NPRE1A"], True)
    tail_state = list(a.vm[a.vm.index("out"):])
    a("L_mid:")
    ex = p1.extra
    w = Weaver(a, ex[:CFG["NX2"]], 8)
    for x in ([] if CFG["AE"] & 1 else p2.addr_lines()):
        w(x)
    w.flush()
    p2.before_wait(); arrive(a); wait(a, ex[CFG["NX2"]:CFG["NX2"] + CFG["NX3"]])
    rest = ex[CFG["NX2"] + CFG["NX3"]:]
    assert len(ex) - len(rest) >= len(ex) - 6 * CFG["NE3"] - CFG["NW4P"]
    p2.body((), rest)
    stamp(a, 5)
    w = Weaver(a, p2.left, 6)
    p3.before_wait(w); w.flush(); wait_first(a, p3.wait_loads() + p4.take(CFG["NW4Q"]))
    p3.body(p4)
    stamp(a, 5)
    spoll_issue(a, 1)
    for x in ([] if CFG["AE"] & 2 else p4.addr_lines()):
        a(x)
    p4.before_wait()
    stamp(a, 6); stamp(a, 7)
    spoll_wait(a, 1, "s22")
    stamp(a, 8); stamp_dump(a); stamp(a, 0); dbg_time(a)
    p4.body(p1.pre_setup())
    stamp(a, 5)
    a("s_add_u32 %s, %s, %d" % (sLAY, sLAY, LSTR))
    pl = p1.pre_loads(CFG["NPRE1"])
    assert len(pl) - CFG["NP1W"] <= 28
    w = Weaver(a, pl[:len(pl) - CFG["NP1W"]], 12)
    p1.before_wait(w); w.flush(); wait_first(a, pl[len(pl) - CFG["NP1W"]:])
    p1.body(p2, p3, p4, CFG["NPRE1"])
    assert a.vm[a.vm.index("out"):] == tail_state
    a("s_branch L_mid")
    final_store(a, p4.keep, p4.tmp)
    a("L_end:")
    a("s_endpgm")
    a("L_code_end:")
    return a, dict(vgpr=512, acc=256, lds=163840)


def p0_phase(a, p1, late_setup):
    U1, UX, U2, UZ, U3, U4 = 160, 256, 100, 47, 480, 240
    BX = U1; B2 = BX + UX; BZ = B2 + U2; BE = BZ + UZ
    NT = " nt" if CFG["K0NT"] & 1 else ""
    n_, g_ = "v3", "v4"
    DST = [82, 83, 86, 87, 88, 89, 98, 99]

    def nat_flag(kb):
        a("s_mul_i32 s29, %s, 52" % kb)
        a("s_lshr_b32 s29, s29, 8")
        a("s_mul_i32 s29, s29, 5")
        a("s_sub_u32 s29, %s, s29" % kb)
        a("s_cmp_eq_u32 s29, 2")

    def colsum(j, frag):
        a("%s v[%d:%d], v[56:59], %s, 0" % (MF, 64 + 4 * (j % 4), 67 + 4 * (j % 4), frag))

    def colsum_keep(j):
        a("v_cndmask_b32 v%d, v%d, v%d, s[%d:%d]" % (60 + j // 4, 60 + j // 4, 64 + 4 * (j % 4), 50 + 2 * (j % 4), 51 + 2 * (j % 4)))

    def issue128(srd, rs, kb, ch, lds, v):
        a("v_mul_lo_u32 %s, %s, %s" % (v, g_, rs))
        a("v_lshl_add_u32 %s, %s, 4, %s" % (v, n_, v))
        a("s_mul_i32 s17, %s, %s" % (kb, rs))
        a("s_lshl_b32 s17, s17, 5")
        a("s_lshl_b32 s19, %s, 8" % ch)
        a("s_add_u32 s17, s17, s19")
        a("s_lshl_b32 s19, %s, 2" % rs)
        for i in range(8):
            a("s_add_u32 m0, %s, %d" % (lds, i * 1024))
            a("s_nop 0")
            a("buffer_load_dwordx4 %s, %s, s17 offen%s lds" % (v, srd, NT))
            a("s_add_u32 s17, s17, s19")

    def rdaddr128(lds):
        a("v_lshrrev_b32 v230, 2, %s" % n_)
        a("v_lshl_add_u32 v230, %s, s29, v230" % g_)
        a("v_lshlrev_b32 v230, 8, v230")
        a("v_and_b32 v231, 3, %s" % n_)
        a("v_lshl_add_u32 v230, v231, 3, v230")
        a("v_add_u32 v230, %s, v230" % lds)
        a("v_add_u32 v231, s30, v230")

    def dst640(kb, ch, nkb, base):
        a("s_lshl_b32 s17, %s, 3" % ch)
        a("s_mul_i32 s19, s17, 52")
        a("s_lshr_b32 s19, s19, 8")
        a("s_mul_i32 s28, s19, 5")
        a("s_sub_u32 s17, s17, s28")
        a("s_and_b32 s27, s19, 1")
        a("s_mul_i32 s19, s19, %d" % nkb)
        a("s_add_u32 s19, s19, %s" % kb)
        a("s_mul_i32 s19, s19, 5120")
        a("s_add_u32 s19, s19, %d" % base)
        for i in range(8):
            a("s_sub_u32 s28, s17, s27")
            a("s_cselect_b32 s28, 4, s28")
            a("s_lshl_b32 s28, s28, 10")
            a("s_add_u32 s%d, s28, s19" % DST[i])
            if i < 7:
                a("s_add_u32 s17, s17, 1")
                a("s_cmp_eq_u32 s17, 5")
                a("s_cselect_b32 s17, 0, s17")
                a("s_cselect_b32 s28, 1, 0")
                a("s_xor_b32 s27, s27, s28")
                a("s_mul_i32 s28, s28, %d" % (nkb * 5120))
                a("s_add_u32 s19, s19, s28")

    def move128():
        for t in range(8):
            for h in range(2):
                a.ds("ds_read_b64_tr_b16 v[%d:%d], v%d offset:%d" % (96 + 4 * t + 2 * h, 97 + 4 * t + 2 * h, 230 + h, t * 32), ("t", t))
        for t in range(8):
            a.wait_lg(("t", t))
            a("buffer_store_dwordx4 v[%d:%d], v2, s[4:7], s%d offen sc1" % (96 + 4 * t, 99 + 4 * t, DST[t]))

    a("s_lshl_b32 s38, %s, 8" % sWAVE)
    a("s_add_u32 s38, s38, s2")
    a("s_sub_u32 s16, s38, 160")
    a("s_cmp_lt_u32 s2, 160")
    a("s_cselect_b32 s16, s2, s16")
    a("s_cmp_eq_u32 %s, 2" % sWAVE)
    a("s_cselect_b32 s38, s16, s38")
    a("s_add_u32 s39, s2, 256")
    a("s_sub_u32 s16, 767, s2")
    a("s_cmp_eq_u32 %s, 2" % sWAVE)
    a("s_cselect_b32 s39, s16, s39")
    a("s_cmp_eq_u32 %s, 3" % sWAVE)
    a("s_cselect_b32 s39, s2, s39")
    a("s_cmp_eq_u32 %s, 0" % sWAVE)
    a("s_cselect_b32 s39, 0x1000, s39")
    a("s_lshl_b32 s18, %s, 14" % sWAVE)
    a("s_lshl_b32 s37, %s, 13" % sWAVE)
    a("s_add_u32 s37, s37, 0x20000")
    a("s_mov_b32 s23, 0x20000\ns_mov_b32 s35, 0x20000")
    a("s_cmp_lt_u32 s38, %d" % BX)
    a("s_cbranch_scc1 L_i_w1")
    a("s_cmp_lt_u32 s38, %d" % B2)
    a("s_cbranch_scc1 L_i_x")
    a("s_cmp_lt_u32 s38, %d" % BZ)
    a("s_cbranch_scc1 L_i_w2")
    a("s_waitcnt lgkmcnt(0)")
    a("s_cmp_lt_u32 s38, %d" % BE)
    a("s_cbranch_scc0 L_i_b")
    a("s_sub_u32 s16, s38, %d" % BZ)
    a("s_cmp_ge_u32 s16, 14")
    a("s_cselect_b32 s17, %d, 0" % (LSTR - 14 * 4096))
    a("s_cmp_ge_u32 s16, 28")
    a("s_cselect_b32 s17, 0x%x, s17" % ((CS3F - KV - 28 * 4096) & 0xffffffff))
    a("s_cmp_ge_u32 s16, 31")
    a("s_cselect_b32 s17, 0x%x, s17" % ((CNT - KV - 31 * 4096) & 0xffffffff))
    a("s_add_u32 s17, s17, %d" % KV)
    a("s_lshl_b32 s16, s16, 12")
    a("s_add_u32 s17, s17, s16")
    for q in range(4):
        a("v_mov_b32 v%d, 0" % (16 + q))
    for q in range(4):
        a("buffer_store_dwordx4 v[16:19], v2, s[4:7], s17 offen offset:%d sc1" % (q * 1024))
    a("s_branch L_i_b")

    a("L_i_w1:")
    a("s_lshr_b32 s24, s38, 3")
    a("s_and_b32 s25, s38, 7")
    a("v_mul_u32_u24 v12, 205, v1")
    a("v_lshrrev_b32 v12, 11, v12")
    a("v_mul_u32_u24 v13, 10, v12")
    a("v_sub_u32 v13, v1, v13")
    a("v_cmp_le_u32 vcc, 3, v12")
    a("v_cndmask_b32 v14, 0, 1, vcc")
    a("v_mul_u32_u24 v15, 3, v14")
    a("v_sub_u32 v12, v12, v15")
    a("v_add_u32 v12, 1, v12")
    a("v_cmp_eq_u32 vcc, 3, v12")
    a("v_cndmask_b32 v12, v12, 0, vcc")
    a("v_mul_u32_u24 v12, 1280, v12")
    a("v_lshl_add_u32 v12, v13, 4, v12")
    a("v_mul_u32_u24 v14, 3840, v14")
    a("s_mul_i32 s17, s24, %d" % (32 * 3840))
    a("s_mul_i32 s19, s25, 160")
    a("s_add_u32 s17, s17, s19")
    a("s_mul_i32 s19, %s, %d" % (sWAVE, 8 * 3840))
    a("s_add_u32 s17, s17, s19")
    a("s_lshl_b32 s18, %s, 12" % sWAVE)
    a("v_add3_u32 v12, v12, v14, s17")
    a("v_mov_b32 v13, 0x%x" % OOB)
    a("v_cmp_gt_u32 vcc, 60, v1")
    a("v_cndmask_b32 v12, v13, v12, vcc")
    a("s_mov_b32 s22, %d" % (640 * 1920 * 2))
    a("s_waitcnt lgkmcnt(0)")
    a("s_mov_b32 s20, s86\ns_mov_b32 s21, s87")
    for i in range(8):
        a("s_add_u32 m0, s18, %d" % (i * 1024))
        a("s_mov_b32 s19, %d" % (i * 7680))
        a("buffer_load_dwordx4 v12, s[20:23], s19 offen%s lds" % (" nt" if CFG["K0NT"] & 2 else ""))
    a("s_branch L_i_b")

    a("L_i_x:")
    a("s_sub_u32 s16, s38, %d" % BX)
    a("s_lshr_b32 s24, s16, 1")
    a("s_and_b32 s25, s16, 1")
    a("s_mul_i32 s17, s24, 20480")
    a("s_mul_i32 s19, s25, 640")
    a("s_add_u32 s19, s19, s17")
    a("v_mul_u32_u24 v12, 1280, %s" % n_)
    a("v_lshl_add_u32 v13, %s, 4, v12" % g_)
    a("s_mov_b32 s22, %d" % (S * D * 2))
    a("s_waitcnt lgkmcnt(0)")
    a("s_mov_b32 s20, s84\ns_mov_b32 s21, s85")
    for kb in range(10):
        a("buffer_load_dwordx4 v[%d:%d], v13, s[20:23], s19 offen offset:%d%s" % (96 + 4 * kb, 99 + 4 * kb, kb * 64, " nt" if CFG["K0NT"] & 4 else ""))
    a("s_branch L_i_b")

    a("L_i_w2:")
    a("s_sub_u32 s16, s38, %d" % B2)
    a("s_mul_i32 s24, s16, 52429")
    a("s_lshr_b32 s24, s24, 18")
    a("s_mul_i32 s17, s24, 5")
    a("s_sub_u32 s25, s16, s17")
    a("s_mov_b32 s22, %d\ns_mov_b32 s16, 1280" % (640 * 640 * 2))
    a("s_waitcnt lgkmcnt(0)")
    a("s_mov_b32 s20, s88\ns_mov_b32 s21, s89")
    a("s_mul_i32 s28, s24, 52")
    a("s_lshr_b32 s28, s28, 8")
    a("s_mul_i32 s17, s28, 5")
    a("s_sub_u32 s26, s24, s17")
    a("s_mul_i32 s17, s28, 160")
    a("s_mul_i32 s19, s26, 40")
    a("s_cmp_eq_u32 s26, 4")
    a("s_cselect_b32 s19, 32, s19")
    a("s_cselect_b32 s27, %d, %d" % (36 * 1280, 0))
    a("s_max_u32 s27, s27, %d" % (4 * 1280))
    a("s_add_u32 s17, s17, s19")
    a("s_mul_i32 s17, s17, 1280")
    a("s_lshl_b32 s19, s25, 8")
    a("s_add_u32 s17, s17, s19")
    a("v_mul_u32_u24 v12, 1280, %s" % g_)
    a("v_lshl_add_u32 v12, %s, 4, v12" % n_)
    for i in range(8):
        a("s_add_u32 m0, s18, %d" % (i * 1024))
        a("s_nop 0")
        a("buffer_load_dwordx4 v12, s[20:23], s17 offen%s lds" % NT)
        a("s_add_u32 s17, s17, %s" % ("s27" if i % 2 else str(4 * 1280)))

    a("L_i_b:")
    a("s_mov_b32 s28, s18")
    late_setup()
    a("s_mov_b32 s18, s28")
    a("s_cmp_eq_u32 %s, 3" % sWAVE)
    a("s_cbranch_scc0 L_i_c")
    a("s_cmp_eq_u32 %s, 0" % sP)
    a("s_cbranch_scc0 L_i_c")
    for q in range(4):
        a("v_mov_b32 v%d, 0" % (16 + q))
    a("s_lshl_b32 s17, %s, 11" % sRB)
    a("s_add_u32 s17, s17, %d" % CNT_G)
    a("buffer_store_dwordx4 v[16:19], v2, s[4:7], s17 offen sc1")
    a("buffer_store_dwordx4 v[16:19], v2, s[4:7], s17 offen offset:1024 sc1")
    a("L_i_c:")
    a("s_barrier")
    a("s_cmp_eq_u32 %s, 3" % sWAVE)
    a("s_cbranch_scc0 L_i_b1")
    a("s_cmp_eq_u32 %s, 0" % sP)
    a("s_cbranch_scc0 L_i_b0")
    a("s_mov_b64 exec, 1")
    a("v_mov_b32 v16, 1")
    a("s_waitcnt vmcnt(0)")
    a("global_atomic_add v2, v16, s[94:95]")
    a("s_mov_b64 exec, -1")
    a("L_i_b0:")
    if CFG["CPF"]:
        a("s_getpc_b64 s[32:33]")
        a("L_pc:")
        a("s_lshr_b32 s17, s2, 3")
        a("s_lshl_b32 s17, s17, 11")
        a("v_add_u32 v12, s17, v2")
        a("v_min_u32 v12, L_code_end-L_pc-1040, v12")
        a("v_mov_b32 v15, s33")
        a("v_add_co_u32 v14, vcc, s32, v12")
        a("v_addc_co_u32 v15, vcc, 0, v15, vcc")
        a("global_load_dwordx4 a[252:255], v[14:15], off")
        a("global_load_dwordx4 a[252:255], v[14:15], off offset:1024")
    a("L_i_b1:")

    a("L_p_a:")
    stamp(a, 1)
    for q in range(4):
        a("v_cmp_eq_u32 s[%d:%d], %d, %s" % (50 + 2 * q, 51 + 2 * q, q, g_))
        a("v_mov_b32 v%d, 0x3f803f80" % (56 + q))

    def wait_a():
        a("s_waitcnt vmcnt(0)")
        stamp(a, 2)
        a("s_barrier")
    a("s_cmp_lt_u32 s38, %d" % BX)
    a("s_cbranch_scc1 L_p_w1")
    a("s_cmp_lt_u32 s38, %d" % B2)
    a("s_cbranch_scc1 L_p_x")
    a("s_cmp_lt_u32 s38, %d" % BZ)
    a("s_cbranch_scc1 L_p_w2")
    a("s_barrier")
    a("s_branch L_drain")

    a("L_p_w1:")
    a("s_mov_b32 s29, 2\ns_mov_b32 s30, 2048")
    a("v_lshrrev_b32 v12, 3, %s" % n_)
    a("v_lshl_add_u32 v12, %s, s29, v12" % g_)
    a("v_lshlrev_b32 v12, 10, v12")
    a("v_bfe_u32 v14, %s, 2, 1" % n_)
    a("v_mul_u32_u24 v14, 480, v14")
    a("s_mul_i32 s18, %s, 40" % sWAVE)
    a("v_add3_u32 v12, v12, v14, s18")
    a("v_and_b32 v14, 3, %s" % n_)
    a("v_lshlrev_b32 v14, 2, v14")
    for j in range(8):
        a("v_add_u32 v15, %d, v14" % (16 * j))
        a("v_mul_u32_u24 v32, 205, v15")
        a("v_lshrrev_b32 v32, 13, v32")
        a("v_min_u32 v32, 2, v32")
        a("v_mul_u32_u24 v32, 80, v32")
        a("v_lshl_add_u32 v32, v15, 1, v32")
        a("v_add_u32 v%d, v12, v32" % (16 + j))
        a("v_add_u32 v%d, s30, v%d" % (24 + j, 16 + j))
    kpos_scalar(a, "s27", "s24")
    a("s_lshl_b32 s17, s25, 1")
    a("s_lshr_b32 s19, %s, 1" % sWAVE)
    a("s_add_u32 s17, s17, s19")
    a("s_mul_i32 s17, s17, 163840")
    a("s_add_u32 s17, s17, %d" % W1)
    a("s_mul_i32 s19, s27, 6144")
    a("s_add_u32 s19, s19, s17")
    a("v_add_u32 v33, s19, v2")
    a("s_lshl_b32 s19, s27, 11")
    a("s_add_u32 s19, s19, s17")
    a("s_add_u32 s19, s19, %d" % (120 * 1024))
    a("v_add_u32 v34, s19, v2")
    a("s_lshl_b32 s17, s24, 13")
    a("s_lshl_b32 s19, s25, 10")
    a("s_add_u32 s17, s17, s19")
    a("s_lshl_b32 s19, %s, 8" % sWAVE)
    a("s_add_u32 s17, s17, s19")
    a("s_add_u32 s17, s17, %d" % CSP1)
    a("v_lshl_add_u32 v35, v1, 2, s17")
    a("s_mov_b32 s82, 4096")
    wait_a()
    for j in range(8):
        for h in range(2):
            a.ds("ds_read_b64_tr_b16 v[%d:%d], v%d" % (96 + 4 * j + 2 * h, 97 + 4 * j + 2 * h, 16 + j + 8 * h), ("t", j))
    for j in range(8):
        a.wait_lg(("t", j))
        fr = "v[%d:%d]" % (96 + 4 * j, 99 + 4 * j)
        if j < 6:
            a("buffer_store_dwordx4 %s, v33, s[4:7], %s offen offset:%d sc1" % (fr, ["0", "s82"][j // 4], (j % 4) * 1024))
        else:
            a("buffer_store_dwordx4 %s, v34, s[4:7], 0 offen offset:%d sc1" % (fr, (j - 6) * 1024))
        colsum(j, fr)
        if j >= 2:
            colsum_keep(j - 2)
    colsum_keep(6); colsum_keep(7)
    for q in range(2):
        a("buffer_store_dword v%d, v35, s[4:7], 0 offen offset:%d sc1" % (60 + q, q * 256))
    a("s_branch L_drain")

    a("L_p_x:")
    a("s_mul_i32 s17, s24, 20480")
    a("s_mul_i32 s19, s25, 10240")
    a("s_add_u32 s17, s17, s19")
    a("s_add_u32 s17, s17, %d" % XA)
    a("v_add_u32 v12, s17, v2")
    a("s_mov_b32 s82, 4096\ns_mov_b32 s83, 8192")
    for q in range(4):
        a("v_mov_b32 v%d, 0" % (16 + q))
    a("s_mov_b32 s28, 0x3f803f80")
    a("s_lshl_b32 s17, s24, 10")
    a("s_lshl_b32 s19, s25, 7")
    a("s_add_u32 s17, s17, s19")
    a("s_add_u32 s17, s17, %d" % STA)
    a("v_lshlrev_b32 v14, 3, %s" % n_)
    a("v_lshl_add_u32 v14, %s, 8, v14" % g_)
    wait_a()
    for kb in range(10):
        a("buffer_store_dwordx4 v[%d:%d], v12, s[4:7], %s offen offset:%d sc1" % (96 + 4 * kb, 99 + 4 * kb, ["0", "s82", "s83"][kb // 4], (kb % 4) * 1024))
    for kb in range(10):
        for d in range(4):
            a("v_dot2c_f32_bf16 v%d, s28, v%d" % (16 + 2 * (d % 2), 96 + 4 * kb + d))
            a("v_dot2c_f32_bf16 v%d, v%d, v%d" % (17 + 2 * (d % 2), 96 + 4 * kb + d, 96 + 4 * kb + d))
    a(pk("add", Reg("v", 16, 2), Reg("v", 16, 2), Reg("v", 18, 2)))
    a("buffer_store_dwordx2 v[16:17], v14, s[4:7], s17 offen sc1")
    a("s_branch L_drain")

    a("L_p_w2:")
    a("s_cmp_eq_u32 s26, 4")
    a("s_cselect_b32 s29, 3, 2")
    a("s_cselect_b32 s30, 1, 4")
    a("s_lshl_b32 s30, s30, 10")
    rdaddr128("s18")
    dst640("s24", "s25", 20, W2)
    wait_a()
    move128()

    a("L_drain:")
    stamp(a, 3)
    a("v_mov_b32 v236, 0x%x\nv_mov_b32 v237, 0x%x\nv_mov_b32 v238, 0x%x" % (OOB, OOB, OOB))
    for t in range(8):
        a("s_mov_b32 s%d, 0" % DST[t])
    a("s_mov_b32 s31, 0")
    a("s_cmp_lt_u32 s39, %d" % U3)
    a("s_cbranch_scc1 L_d_w3")
    a("s_cmp_lt_u32 s39, %d" % (U3 + U4))
    a("s_cbranch_scc0 L_d_done")
    a("s_sub_u32 s16, s39, %d" % U3)
    a("s_mul_i32 s36, s16, 52429")
    a("s_lshr_b32 s36, s36, 18")
    a("s_mul_i32 s17, s36, 5")
    a("s_sub_u32 s58, s16, s17")
    a("s_mov_b32 s31, 3\ns_mov_b32 s34, %d\ns_mov_b32 s48, 1280" % (1536 * 640 * 2))
    a("s_mov_b32 s32, s96\ns_mov_b32 s33, s97")
    dst640("s36", "s58", 48, W4)
    a("s_mov_b32 s29, 2\ns_mov_b32 s30, 4096")
    a("s_branch L_d_rd")
    a("L_d_w3:")
    a("s_mul_i32 s36, s39, 43691")
    a("s_lshr_b32 s36, s36, 20")
    a("s_mul_i32 s17, s36, 24")
    a("s_sub_u32 s58, s39, s17")
    a("s_and_b32 s31, s58, 1")
    a("s_lshr_b32 s58, s58, 1")
    a("s_mov_b32 s34, %d\ns_mov_b32 s48, 3072" % (640 * 1536 * 2))
    a("s_cmp_eq_u32 s31, 1")
    a("s_cselect_b32 s32, s92, s90")
    a("s_cselect_b32 s33, s93, s91")
    a("s_add_u32 s31, s31, 1")
    kpos_scalar(a, "s27", "s36")
    a("s_lshl_b32 s17, s58, 4")
    a("s_add_u32 s17, s17, s31")
    a("s_sub_u32 s17, s17, 1")
    a("s_lshl_b32 s28, s17, 6")
    a("s_add_u32 s28, s28, %d" % CS3F)
    a("v_lshl_add_u32 v236, %s, 2, s28" % n_)
    a("v_lshl_add_u32 v236, %s, 7, v236" % g_)
    a("v_add_u32 v237, 512, v236")
    a("s_mul_i32 s19, s17, 43691")
    a("s_lshr_b32 s19, s19, 19")
    a("s_mul_i32 s28, s19, 12")
    a("s_sub_u32 s17, s17, s28")
    a("s_mul_i32 s19, s19, 20")
    a("s_add_u32 s19, s19, s27")
    a("s_mul_i32 s19, s19, 12")
    a("s_add_u32 s19, s19, s17")
    a("s_lshl_b32 s19, s19, 10")
    a("s_add_u32 s19, s19, %d" % W3)
    for i in range(8):
        a("s_mov_b32 s%d, s19" % DST[i])
        if i < 7:
            a("s_add_u32 s17, s17, 2")
            a("s_cmp_ge_u32 s17, 12")
            a("s_cselect_b32 s28, 12, 0")
            a("s_sub_u32 s17, s17, s28")
            a("s_mul_i32 s28, s28, %d" % (19 * 1024))
            a("s_add_u32 s19, s19, s28")
            a("s_add_u32 s19, s19, 2048")
    a("s_mov_b32 s29, 3\ns_mov_b32 s30, 1024")
    a("L_d_rd:")
    rdaddr128("s37")
    if CFG["BPOS"] == 0:
        issue128("s[32:35]", "s48", "s36", "s58", "s37", "v232")
    a("L_d_done:")
    def p1_setup():
        for l in p1.pre_setup():
            a(l)
        p1.before_wait()
    if not CFG["BWL"]:
        p1_setup()
    else:
        p1.alloc()
        a("s_lshl_b32 s17, %s, 7" % sP)
        a("s_add_u32 s17, s17, %d" % CNT_G)
        a("v_lshl_add_u32 %s, v0, 11, s17" % p1.vC1)
        a("v_and_b32 v232, 0x%x, %s" % (OOB, vCNT))
        a("v_or_b32 %s, v232, %s" % (p1.vC1, p1.vC1))
    XL = 49152
    def x_dma(c):
        for i in range(4):
            a("s_add_u32 m0, s24, %d" % ((c % 5) * 4096 + i * 1024))
            a("s_mov_b32 s19, %d" % (i * 10240 + c * 128))
            a("buffer_load_dwordx4 v235, s[88:91], s19 offen lds")
    def x_read(c):
        for ks in range(2):
            for rt in range(2):
                k = 2 * (2 * c + ks) + rt
                a("ds_read_b128 a[%d:%d], v%d offset:%d" % (4 * k, 4 * k + 3, 240 + ks, (c % 5) * 4096 + rt * 2048))
    if CFG["XPRE"]:
        a("s_mov_b32 s25, s88\ns_mov_b32 s22, s89")
        a("s_mov_b32 s88, s84\ns_mov_b32 s89, s85\ns_mov_b32 s90, %d\ns_mov_b32 s91, 0x20000" % (S * D * 2))
        a("s_mul_i32 s24, %s, 20480" % sWAVE)
        a("s_add_u32 s24, s24, %d" % XL)
        a("v_lshrrev_b32 v235, 3, v1")
        a("v_and_b32 v240, 7, v1")
        a("v_xor_b32 v240, v240, v235")
        a("v_mul_u32_u24 v235, 1280, v235")
        a("v_lshl_add_u32 v235, v240, 4, v235")
        a("s_mul_i32 s17, s16, 20480")
        a("v_add_u32 v235, s17, v235")
        a("v_and_b32 v240, 7, %s" % n_)
        a("v_xor_b32 v241, %s, v240" % g_)
        a("v_lshlrev_b32 v241, 4, v241")
        a("v_lshl_add_u32 v240, %s, 7, v241" % n_)
        a("v_add_u32 v240, s24, v240")
        a("v_xor_b32 v241, 64, v240")
    a("v_mov_b32 v229, 0")
    a("s_cmp_eq_u32 %s, 3" % sWAVE)
    a("s_cbranch_scc0 L_clr0")
    a("global_load_dword v233, v229, s[94:95] sc1")
    a("L_clr0:")
    NXD = 20 if CFG["XPRE"] else 0
    for c in range(NXD // 4):
        x_dma(c)
    a("s_cmp_eq_u32 %s, 3" % sWAVE)
    a("s_cbranch_scc0 L_clr_ok")
    a("s_mov_b32 s42, %d" % CFG["TMO"])
    a("s_waitcnt vmcnt(%d)" % NXD)
    a("L_clr:")
    a("v_readfirstlane_b32 s43, v233")
    a("s_cmp_ge_u32 s43, 16")
    a("s_cbranch_scc1 L_clr_ok")
    a("global_load_dword v233, v229, s[94:95] sc1")
    a("s_sub_u32 s42, s42, 1")
    a("s_waitcnt vmcnt(0)")
    a("s_cbranch_scc0 L_clr")
    a("L_clr_ok:")
    if CFG["BPOS"] == 0:
        a("s_cmp_eq_u32 s31, 0")
        a("s_waitcnt vmcnt(%d)" % (8 + NXD))
        a("s_cbranch_scc0 L_drained")
    a("s_waitcnt vmcnt(%d)" % NXD)
    a("L_drained:")
    stamp(a, 4)
    a("s_barrier")
    a("s_cmp_lg_u32 %s, 0" % sWAVE)
    a("s_cbranch_scc1 L_p_b")
    a("v_mov_b32 v232, 1")
    a("buffer_atomic_add v232, %s, s[4:7], 0 offen" % p1.vC1)
    a("L_p_b:")
    stamp(a, 5)
    if CFG["BPOS"] == 2:
        a("s_cmp_eq_u32 s31, 0")
        a("s_cbranch_scc1 L_p_b2")
        issue128("s[32:35]", "s48", "s36", "s58", "s37", "v232")
        a("L_p_b2:")
    if CFG["XPRE"]:
        for c in range(5):
            a("s_waitcnt vmcnt(16)")
            x_read(c)
            a("s_waitcnt lgkmcnt(0)")
            x_dma(c + 5)
    if CFG["BWL"]:
        a("s_cmp_eq_u32 s31, 0")
        a("s_cbranch_scc1 L_p_nb")
        issue128("s[32:35]", "s48", "s36", "s58", "s37", "v232")
        a("L_p_nb:")
        p1_setup()
    a("s_cmp_eq_u32 s31, 0")
    a("s_cbranch_scc1 L_p_x2")
    if CFG["BPOS"] == 1 and not CFG["BWL"]:
        issue128("s[32:35]", "s48", "s36", "s58", "s37", "v232")
    if CFG["BPOS"] == 1 or not CFG["XPRE"]:
        a("s_waitcnt vmcnt(0)")
    a("v_mov_b32 v238, v2")
    for t in range(8):
        for h in range(2):
            a.ds("ds_read_b64_tr_b16 a[%d:%d], v%d offset:%d" % (192 + 4 * t + 2 * h, 193 + 4 * t + 2 * h, 230 + h, t * 32), ("t", t))
    p1.bstores = [(lambda t=t: a.vmem("buffer_store_dwordx4 a[%d:%d], v238, s[4:7], s%d offen sc1" % (192 + 4 * t, 195 + 4 * t, DST[t]), "bst")) for t in range(8)]
    if not CFG["BST"]:
        for t in range(8):
            a.wait_lg(("t", t))
            p1.bstores[t]()
        p1.bstores = []
    for t in range(8):
        a.wait_lg(("t", t))
        colsum(t, "a[%d:%d]" % (192 + 4 * t, 195 + 4 * t))
        if t >= 2:
            colsum_keep(t - 2)
    colsum_keep(6); colsum_keep(7)
    a("v_mov_b32 v234, v60\nv_mov_b32 v239, v61")
    a("L_p_x2:")
    stamp(a, 6)
    if CFG["XPRE"]:
        for c in range(5, 10):
            a("s_waitcnt vmcnt(%d)" % (4 * (9 - c)))
            x_read(c)
        a("s_mov_b32 s88, s25\ns_mov_b32 s89, s22")
    a("s_cmp_lg_u32 %s, 0" % sWAVE)
    a("s_cbranch_scc1 L_go")
    a("s_lshl_b32 s17, %s, 11" % sRB)
    a("s_add_u32 s17, s17, %d" % CNT_G)
    a("s_mov_b64 exec, 0xffff")
    a("v_lshlrev_b32 v233, 7, v1")
    a("s_mov_b32 s42, %d" % CFG["TMO"])
    a("L_gop:")
    a("v_mov_b32 v255, 0")
    a("buffer_atomic_add v255, v233, s[4:7], s17 offen sc0")
    a("s_waitcnt vmcnt(0)")
    a("v_cmp_le_u32 vcc, 16, v255")
    a("s_cmp_eq_u32 vcc_lo, 0xffff")
    a("s_cbranch_scc1 L_go0")
    a("s_sleep 2")
    a("s_sub_u32 s42, s42, 1")
    a("s_cbranch_scc0 L_gop")
    a("L_go0:")
    a("s_mov_b64 exec, -1")
    a("L_go:")
    a("s_waitcnt lgkmcnt(0)")
    stamp(a, 7)
    a("s_mov_b32 s49, 16")
    a("s_mov_b32 s22, 0")
    a("s_load_dwordx2 s[90:91], s[0:1], 56")
    phase_open(a)
    p1.bstores += [lambda: a.vmem("buffer_atomic_add_f32 v234, v236, s[4:7], 0 offen", "bst"),
                   lambda: a.vmem("buffer_atomic_add_f32 v239, v237, s[4:7], 0 offen", "bst")]


def build_all():
    _lbl[0] = 0
    a, info = main_body()
    k = NAME + "_kernel"
    out = "; @launch grid=(256,1,1) block=(256,1,1) lds=%d\n" % info["lds"]
    out += '.amdgcn_target "amdgcn-amd-amdhsa--gfx950"\n'
    st = {}
    txt = a.text(stats=st)
    w = n = 0
    if CFG["AL8"]:
        txt, w, n = align8(txt, CFG["AL8"])
    sys.stderr.write("%d lines, pad states %d, widened %d, align nops %d\n" % (txt.count("\n"), st["pad"], w, n))
    return out + entry(k) + txt + kd(k, info["vgpr"], 102, info["acc"])


if __name__ == "__main__":
    import argparse
    ap = argparse.ArgumentParser()
    ap.add_argument("-o", default="cdna_kernels/%s.s" % NAME)
    ap.add_argument("--cfg", default="")
    args = ap.parse_args()
    for kv in args.cfg.split(","):
        if kv:
            k, v = kv.split("="); CFG[k] = int(v)
    txt = build_all()
    open(args.o, "w").write(txt)
```

```python
import sys, struct
from asmlib import *

S, D, F = 2048, 640, 1536
NAME = "interleave_layers__linear_attn_block__geglu_ffn__prompt"

_off = 0
def ws(n):
    global _off
    o = _off
    _off += (n + 4095) // 4096 * 4096
    return o
W1 = ws(16 * 20 * 8 * 1024)
W2 = ws(8 * 20 * 5 * 1024)
W3 = ws(16 * 20 * 12 * 1024)
W4 = ws(8 * 48 * 5 * 1024)
CSP1 = ws(20 * 2048 * 4)
CS3F = ws(3072 * 4)
CSW = ws(256 * 512)
CNT = ws(3 * 256 * 128)
CNT_G = CNT + 2 * 256 * 128
XA = ws(128 * 20 * 1024); STA = ws(2048 * 64); KV = ws(14 * 4096); PQ = ws(128 * 20 * 1024)
XB = ws(128 * 20 * 1024); STB = ws(2048 * 64); H = ws(128 * 48 * 1024)
LSTR = _off - XA
ws(LSTR)
PROFO = ws(9 * 256 * 4 * 64)
WS_USED = _off
OOB = 0x40000000
PROF = False
CFG = dict(NPRE1=7, NPRE3=5, NW4P=10, SPX=4, NW4L=24, NW4E=18, NW4D=7, NW4W=6, NP1W=6, NW2D=8, NW2L=6, SP4=4, HOT=0, LEAD=26, RATE=10, RA1=6, CPF=1, NPRE1A=2, P1A=8, XPRE=0, SLK=14, SPAN1A=108, SPAN1=96, BPOS=1, ARRK=10, ZF1=2, SP2=6, DBG=0, KARR=5, KPOLL=10, RD2=0, ZFP=3, NWQ=8, ZFQ=0, ZFK=2, KSTG=10, EW1=12, NX1=7, NX2=4, NX3=5, PP=10, PP4=12, BARR=5, BPOLL=13, F1=48, SPLIT=0, XW=4, NE3=4, XC=2, RB=0, WS=0, WSC=1, BSKIP=0, AE=0, AL8=2, BWL=1, BSP=99, NOW=0, T3=1, SDK=3, SNAKE=0, QAFT=0, PKB=24, PKG=12, BS0=0, WSK=3, NW4Q=0, SATOM=0, W1O=32768, TLB=0, K0NT=0, BST=1, DBGT=0, RT=0, SPAN=0, NODS=0, B2O=0, SC=1, PD1=6, PD3=6, P1=12, P3=8, TMO=200000, ROT=0, NPOLL=3, EW3=16, PW=1, PSL=0)

def f32(x):
    return "0x%08x" % struct.unpack("<I", struct.pack("<f", x))[0]
LOG2E = 1.4426950408889634
MF = "v_mfma_f32_16x16x32_bf16"
H2 = [slice(0, 2), slice(2, 4)]

sWAVE, sRB, sP, sRB64, sCG, sLAY, sTGT, sPH = "s10", "s11", "s12", "s13", "s14", "s15", "s40", "s41"
sROT10, sROT12 = "s8", "s9"
vN, vG = Reg("v", 3, 1), Reg("v", 4, 1)
vCNT, vPL, vPG = Reg("v", 5, 1), Reg("v", 6, 1), Reg("v", 7, 1)
vPRE = Reg("v", 8, 4)
VBASE = 12

KORD = [0, 3, 5, 8, 10, 13, 15, 18, 1, 2, 4, 6, 7, 9, 11, 12, 14, 16, 17, 19]
KPOS = [KORD.index(k) for k in range(20)]

def kpos_scalar(a, dst, kb):
    a("s_mul_i32 s28, %s, 52" % kb)
    a("s_lshr_b32 s28, s28, 8")
    a("s_mul_i32 s17, s28, 5")
    a("s_sub_u32 s17, %s, s17" % kb)
    a("s_lshl_b32 s17, s17, 2")
    a("s_lshr_b32 s19, 0xa1980, s17")
    a("s_and_b32 s19, s19, 15")
    a("s_cmp_ge_u32 s19, 8")
    a("s_cselect_b32 s17, 3, 2")
    a("s_mul_i32 s17, s17, s28")
    a("s_add_u32 %s, s17, s19" % dst)


def WSC():
    return " sc1" if CFG["WSC"] else ""


def SC():
    return " sc1" if CFG["SC"] else ""


def stamp(a, i):
    if PROF:
        a("%s s[%d:%d]" % ("s_memrealtime" if CFG["RT"] else "s_memtime", 60 + 2 * i, 61 + 2 * i))

def stamp_dump(a, vb=100):
    if not PROF:
        return
    a("s_memrealtime s[78:79]")
    a("s_lshl_b32 s59, %s, 8" % sPH)
    a("s_add_u32 s59, s59, s2")
    a("s_lshl_b32 s59, s59, 2")
    a("s_add_u32 s59, s59, s10")
    a("s_lshl_b32 s59, s59, 6")
    a("s_add_u32 s59, s59, %d" % PROFO)
    a("s_waitcnt lgkmcnt(0)")
    a.lg = []
    a("s_mov_b64 exec, 1")
    for i in range(10):
        a("v_mov_b32 v%d, s%d" % (vb + i, 60 + 2 * i))
    a("v_mov_b32 v%d, s80" % (vb + 11))
    a("v_mov_b32 v%d, s59" % (vb + 10))
    a("buffer_store_dwordx4 v[%d:%d], v%d, s[4:7], 0 offen" % (vb, vb + 3, vb + 10))
    a("buffer_store_dwordx4 v[%d:%d], v%d, s[4:7], 0 offen offset:16" % (vb + 4, vb + 7, vb + 10))
    a("buffer_store_dwordx4 v[%d:%d], v%d, s[4:7], 0 offen offset:32" % (vb + 8, vb + 11, vb + 10))
    a("s_mov_b64 exec, -1")
    a("s_add_u32 %s, %s, 1" % (sPH, sPH))


_lbl = [0]
def label(p):
    _lbl[0] += 1
    return "L_%s_%d" % (p, _lbl[0])


def arrive(a, loads=()):
    for f in loads:
        f()
    if CFG["DBG"] != 4:
        stamp(a, 6)
    a.wait_vm("out")
    a.wait_all(vm=False)
    stamp(a, 7)
    a("s_add_u32 %s, %s, 16" % (sTGT, sTGT))
    a("s_barrier")
    l = label("arr")
    a("s_cmp_lg_u32 %s, 0" % sWAVE)
    a("s_cbranch_scc1 %s" % l)
    a("v_mov_b32 v255, 1")
    a("buffer_atomic_add v255, %s, s[4:7], 0 offen" % vCNT)
    a("%s:" % l)
    read_back(a, a.rb)
    a.rb = []


def poll_issue(a, k):
    a("v_mov_b32 v%d, 0" % (255 - k))
    a("buffer_atomic_add v%d, %s, s[4:7], 0 offen sc0" % (255 - k, vPL))


def poll_loop(a, d, first):
    NP = CFG["NPOLL"]
    l = label("poll")
    a("s_mov_b32 s42, %d" % CFG["TMO"])
    a("%s:" % l)
    for k0 in range(NP):
        k = (k0 + first) % NP
        poll_issue(a, (k + NP - 1) % NP)
        a("s_waitcnt vmcnt(%d)" % (NP - 1))
        a("v_readfirstlane_b32 s43, v%d" % (255 - k))
        a("s_cmp_ge_u32 s43, %s" % sTGT)
        a("s_cbranch_scc1 %s" % d)
    a("s_sub_u32 s42, s42, 1")
    a("s_cbranch_scc0 %s" % l)


def dbg_time(a):
    if not CFG["DBGT"]:
        return
    l = label("dt")
    a("s_or_b32 s59, s2, %s" % sWAVE)
    a("s_cbranch_scc1 %s" % l)
    a("s_memrealtime s[60:61]")
    a("s_mov_b64 exec, 1")
    a("s_waitcnt lgkmcnt(0)")
    a("s_sub_u32 s60, s60, s80")
    a("v_mov_b32 v254, s60")
    a("v_mov_b32 v251, s62")
    a("global_store_dword v251, v254, s[94:95]")
    a("s_add_u32 s62, s62, 4")
    a("s_mov_b64 exec, -1")
    a("%s:" % l)


def phase_open(a, vb=100):
    a("s_barrier")
    dbg_time(a)
    stamp(a, 8)
    stamp_dump(a, vb)
    stamp(a, 0)


def wait(a, loads=()):
    if CFG["WS"]:
        d = label("pdone")
        loads = list(loads)
        k = min(len(loads), CFG["WSK"])
        for f in loads[:k]:
            f()
        if CFG["WS"] == 2:
            for f in loads[k:]:
                f()
            a("s_cmp_lg_u32 %s, %d" % (sWAVE, CFG["PW"]))
            a("s_cbranch_scc1 %s" % d)
            spoll_issue(a, 0)
            spoll_wait(a, 0, sTGT)
            a("%s:" % d)
            phase_open(a)
            return
        spoll_issue(a, 0)
        for f in loads[k:]:
            f()
        spoll_wait(a, 0, sTGT)
        stamp(a, 8); stamp_dump(a); stamp(a, 0); dbg_time(a)
        return
    d, o = label("pdone"), label("other")
    NP = CFG["NPOLL"]
    loads = list(loads)
    a("s_cmp_lg_u32 %s, %d" % (sWAVE, CFG["PW"]))
    a("s_cbranch_scc1 %s" % o)
    save = list(a.vm)
    per = (len(loads) + NP - 2) // (NP - 1)
    after = []
    for k in range(NP - 1):
        poll_issue(a, k)
        chunk = loads[k * per:(k + 1) * per]
        for f in chunk:
            f()
        if len(chunk) < 2:
            a("s_sleep %d" % (10 // NP))
        after.append(len(chunk))
    a.vm = save
    for k in range(NP - 1):
        poll_issue(a, (k + NP - 1) % NP)
        a("s_waitcnt vmcnt(%d)" % (NP - 1 + sum(after[k:])))
        a("v_readfirstlane_b32 s43, v%d" % (255 - k))
        a("s_cmp_ge_u32 s43, %s" % sTGT)
        a("s_cbranch_scc1 %s" % d)
    poll_loop(a, d, NP - 1)
    a("s_branch %s" % d)
    a("%s:" % o)
    for f in loads:
        f()
    a("%s:" % d)
    phase_open(a)


vRB = [Reg("v", 7, 1), Reg("v", 238, 1), Reg("v", 239, 1)]
def read_back(a, items):
    for v, so, im in (items if CFG["RB"] else []):
        a.vmem("buffer_load_dwordx4 v[244:247], %s, s[4:7], %s offen offset:%d sc1" % (v, so, im), "rb")


FOFF = [0, 32768, 32768 + 4]

def spoll_issue(a, word):
    if CFG["SATOM"]:
        a("s_mov_b32 s43, 0")
        a("s_atomic_add s43, s[100:101], 0x%x glc" % (FOFF[word]))
    else:
        a("s_load_dword s43, s[100:101], 0x%x glc" % (FOFF[word]))


def spoll_wait(a, word, target):
    l, d = label("sp"), label("spd")
    a("s_mov_b32 s42, %d" % CFG["TMO"])
    a("%s:" % l)
    a("s_waitcnt lgkmcnt(0)")
    a("s_cmp_ge_u32 s43, %s" % target)
    a("s_cbranch_scc1 %s" % d)
    spoll_issue(a, word)
    a("s_sub_u32 s42, s42, 1")
    a("s_cbranch_scc0 %s" % l)
    a("s_waitcnt lgkmcnt(0)")
    a("%s:" % d)
    a.lg = []


def signal(a, word):
    l = label("arr")
    a("s_barrier")
    a("s_cmp_lg_u32 %s, 0" % sWAVE)
    a("s_cbranch_scc1 %s" % l)
    a("v_mov_b32 v255, 1")
    a("s_mov_b32 s42, %d" % (FOFF[word]))
    a("buffer_atomic_add v255, %s, s[4:7], s42 offen" % vCNT)
    a("%s:" % l)


def wrap_add(a, r, step, end):
    if (CFG["HOT"] & 1 and r == "s20") or (CFG["HOT"] & 2 and r != "s20"):
        return
    if not CFG["ROT"]:
        a("s_add_u32 %s, %s, %d" % (r, r, step))
        return
    a("s_add_u32 %s, %s, %d" % (r, r, step))
    a("s_cmp_eq_u32 %s, %d" % (r, end))
    a("s_cselect_b32 %s, 0, %s" % (r, r))


def xsum4(a, v, t):
    a("v_mov_b32 %s, %s" % (t, v))
    a("v_permlane16_swap_b32 %s, %s" % (v, t))
    a("v_add_f32 %s, %s, %s" % (v, v, t))
    a("v_mov_b32 %s, %s" % (t, v))
    a("v_permlane32_swap_b32 %s, %s" % (v, t))
    a("v_add_f32 %s, %s, %s" % (v, v, t))


def stats_finish(a, q, mean, rstd, t):
    a("v_add_f32 %s, %s, %s" % (q[0], q[0], q[2]))
    a("v_add_f32 %s, %s, %s" % (q[1], q[1], q[3]))
    xsum4(a, q[0], t)
    xsum4(a, q[1], t)
    a("v_mul_f32 %s, %s, %s" % (mean, f32(1.0 / D), q[0]))
    a("v_mul_f32 %s, %s, %s" % (q[1], f32(1.0 / D), q[1]))
    a("v_fma_f32 %s, -%s, %s, %s" % (q[1], mean, mean, q[1]))
    a("v_max_f32 %s, 0, %s" % (q[1], q[1]))
    a("v_add_f32 %s, %s, %s" % (q[1], f32(1e-5), q[1]))
    a("v_rsq_f32 %s, %s" % (rstd, q[1]))


def pk(op, d, *src, neg=None):
    ops, lo, hi = [], [], []
    for x in src:
        if isinstance(x, str):
            n = int(x[1:])
            ops.append("s[%d:%d]" % (n & ~1, (n & ~1) + 1)); lo.append(n & 1); hi.append(n & 1)
        elif x.n == 2:
            assert x.base % 2 == 0
            ops.append(str(x)); lo.append(0); hi.append(1)
        else:
            b = x.base & ~1
            ops.append("v[%d:%d]" % (b, b + 1)); lo.append(x.base & 1); hi.append(x.base & 1)
    t = "v_pk_%s_f32 %s, %s op_sel:[%s] op_sel_hi:[%s]" % (op, d, ", ".join(ops), ",".join(map(str, lo)), ",".join(map(str, hi)))
    if neg is not None:
        m = ",".join("1" if i == neg else "0" for i in range(len(src)))
        t += " neg_lo:[%s] neg_hi:[%s]" % (m, m)
    return t


class Weaver:
    def __init__(self, a, items, period):
        self.a, self.items, self.period, self.n = a, list(items), period, 0
    def __call__(self, line):
        self.a(line)
        self.n += 1
        if self.n % self.period == 0 and self.items:
            self.items.pop(0)()
    def flush(self):
        while self.items:
            self.items.pop(0)()


def x_load(a, dst, v, step, rt, check, tag, then):
    kb = KORD[step]
    if check and not CFG["SPLIT"]:
        check = False
        if rt == 0 and step == 4:
            for f in then:
                f()
            a.late_ok = True
    if check and rt == 0 and step == 7:
        spoll_issue(a, 0)
    if check and rt == 0 and step == 8:
        keep = list(a.lg)
        spoll_wait(a, 0, sTGT)
        for f in then:
            f()
    if rt == 0 and (step == 0 or KORD[step - 1] // 4 != kb // 4):
        a("s_mov_b32 s20, %d" % (kb // 4 * 4096))
    a.vmem("buffer_load_dwordx4 %s, %s, s[4:7], s20 offen offset:%d%s" % (dst, v, (kb % 4) * 1024, SC()), tag)
    if check and rt == 1 and step == 8:
        a.late_ok = True


class Ring:
    def __init__(self, a, NT, R, vB, vBlast, sL, sB, sB2):
        self.a, self.NT, self.R = a, NT, R
        self.vB, self.vBlast, self.sL, self.sB, self.sB2 = vB, vBlast, sL, sB, sB2
        self.FPS = 2 * NT
        self.SB = self.FPS * 1024
        self.per = self.FPS // 4

    def init_lines(self):
        return ["s_mul_i32 %s, %s, %d" % (self.sB, sROT10, self.SB)] + (["s_add_u32 %s, %s, 3072" % (self.sB2, self.sB)] if self.per > 4 else [])

    def loads(self, s):
        a, per, SB = self.a, self.per, self.SB
        grp = 4 if per == 4 else 3
        out = []
        for i in range(per):
            def f(i=i):
                if CFG["NOW"] & 4:
                    return
                if i % grp == 0:
                    a("s_add_u32 m0, %s, %d" % (self.sL, (s % self.R) * SB + i * 1024))
                so = self.sB if i < grp else self.sB2
                vb = self.vBlast if i == per - 1 else self.vB
                a.vmem("buffer_load_dwordx4 %s, s[4:7], %s offen offset:%d%s lds" % (vb, so, (i % grp) * 1024, WSC()), ("st", s))
                if i == per - 1:
                    wrap_add(a, self.sB, SB, 10 * SB)
                    if per > grp:
                        a("s_add_u32 %s, %s, 3072" % (self.sB2, self.sB))
            out.append(f)
        return out


def gemm_s(a, ring, NPRE, vA, vL, acc, Aring, Bregs, transposed, sA, RA, tail_loads=(), fill=(), nsetup=0, PD=6, P=12, first_barrier=False, NTAIL=99, early=()):
    NST = 10
    NT, R, FPS, SB = ring.NT, ring.R, ring.FPS, ring.SB
    NB = Bregs.n // 4
    BPOS = FPS - PD

    def a_loads(s):
        out = []
        ar = Aring[((s % RA) * 16):((s % RA) * 16 + 16)]
        for ks in range(2):
            for rt in range(2):
                def f(ks=ks, rt=rt):
                    x_load(a, ar.q(ks * 2 + rt), vA[rt], 2 * s + ks, rt, True, ("a", s, ks), early)
                out.append(("a", s, f))
        return out
    bq = [("b", s, f) for s in range(NPRE, NST) for f in ring.loads(s)]
    aq = [x for s in range(NST) for x in a_loads(s)]
    tail = [("t", -1, f) for f in tail_loads]
    fill = list(fill)
    nfill0 = len(fill)
    a.late_ok = False
    for k in range(P):
        aq.pop(0)[2]()
    stamp(a, 1)
    a.wait_vm(("a", 0, 0))
    if first_barrier:
        a("s_barrier")
    stamp(a, 2)

    def rd(n):
        if CFG["NODS"] and n >= NB and n % CFG["NODS"]:
            return
        s, i = divmod(n, FPS)
        addr = (s % R) * SB + i * 1024
        a.ds("ds_read_b128 %s, %s offset:%d" % (Bregs.q(n % NB), vL[addr >> 16], addr & 0xffff), ("f", n))

    NF = NST * FPS
    for n in range(PD):
        rd(n)
    passed = -1

    def next_load(s):
        ca = aq[0] if aq and aq[0][1] - RA < s else None
        cb = bq[0] if bq and (bq[0][1] < R or bq[0][1] - R + 1 <= passed) else None
        ct = len(tail) > keep and len(fill) <= nfill0 - nsetup
        da = ca[1] - s if ca else 99
        db = cb[1] - s - 0.5 if cb else 99
        if min(da, db) > LEAD and ct:
            tail.pop(0)[2]()
        elif ca and da <= db:
            aq.pop(0)[2]()
        elif cb:
            bq.pop(0)[2]()
        elif ct:
            tail.pop(0)[2]()
        else:
            return False
        return True

    nload = len(aq) + len(bq) + min(len(tail), NTAIL)
    LEAD = CFG["LEAD"] / 10.0
    keep = max(0, len(tail) - NTAIL)
    span = FPS * (NST - 1)
    credit = 0.0
    for n in range(NF):
        s, i = divmod(n, FPS)
        ks, j = divmod(i, NT)
        if i == BPOS and s + 1 < NST and s >= 1 and (bq or s + 1 >= NPRE) and not (CFG["BSKIP"] >> s & 1):
            while bq and bq[0][1] <= s + 1:
                sys.stderr.write("late ring load at stage %d\n" % s)
                bq.pop(0)[2]()
            a.wait_vm(("st", s + 1))
            a("s_barrier")
            passed = s
        if j == 0:
            while aq and aq[0][1] <= s:
                sys.stderr.write("late activation load at stage %d\n" % s)
                aq.pop(0)[2]()
            a.wait_vm(("a", s, ks))
        if n + PD < NF:
            rd(n + PD)
        a.wait_lg(("f", n + 1 if n % 2 == 0 else n))
        ar = Aring[((s % RA) * 16):((s % RA) * 16 + 16)]
        credit += nload / span * CFG["RATE"] / 10.0
        did = False
        for pos, rt in enumerate((1, 0) if CFG["SNAKE"] and j % 2 else (0, 1)):
            c = "0" if (s == 0 and ks == 0) else str(acc[rt][j])
            w, x = Bregs.q(n % NB), ar.q(ks * 2 + rt)
            if transposed[j]:
                a("%s %s, %s, %s, %s" % (MF, acc[rt][j], w, x, c))
            else:
                a("%s %s, %s, %s, %s" % (MF, acc[rt][j], x, w, c))
            if pos == 0 and credit >= 1.0:
                did = next_load(s)
                if did:
                    credit -= 1.0
                credit = min(credit, 1.5)
            if pos == 0 and not did and a.late_ok and n > 4 * FPS:
                for _ in range(2):
                    if fill:
                        x = fill.pop(0)
                        x() if callable(x) else a(x)
    assert not aq and not bq and not fill, (len(aq), len(bq), len(fill))
    stamp(a, 3)
    return [t[2] for t in tail]


K1_RED = 0
K1_TRASH = K1_RED + 4 * 3584 + 1024
K1_FR = 122880
K1_PAIRS = [(0, 2), (0, 3), (1, 2), (1, 3), (1, 4), (2, 2), (2, 3), (2, 4)]

class P1:
    def __init__(self, a):
        self.a = a

    def pre_setup(self):
        return ["s_mul_i32 s17, %s, 163840" % sP,
                "s_lshl_b32 s44, %s, 12" % sWAVE,
                "s_add_u32 s17, s17, s44",
                "s_add_u32 s17, s17, %d" % W1,
                "v_add_u32 %s, s17, v2" % vPRE[0],
                "s_mov_b32 s45, 0"]

    def round_loads(self, rho):
        a = self.a
        out = []
        for i in range(4):
            def f(i=i):
                if CFG["NOW"] & 1:
                    return
                if i == 0:
                    a("s_add_u32 m0, s44, s45")
                    a("s_nop 0")
                a.vmem("buffer_load_dwordx4 %s, s[4:7], s45 offen offset:%d%s lds" % (vPRE[0], i * 1024, WSC()), ("st", rho))
                if i == 3:
                    a("s_add_u32 s45, s45, 16384")
            out.append(f)
        return out

    def pre_loads(self, n):
        return [f for rho in range(n) for f in self.round_loads(rho)]

    def alloc(self):
        V = Alloc("v", VBASE, 240)
        r = self
        r.vA = [V.get(1), V.get(1)]
        r.vL = [Reg("v", 2, 1), V.get(1), V.get(1)]
        r.vS = V.get(1); r.vCn = V.get(1); r.vCt = V.get(1)
        r.vQ = V.get(2, 1); r.vKa = V.get(8); r.vGl = V.get(1); r.vR = V.get(1); r.vC1 = V.get(1); r.ret = V.get(1)
        r.mean = [V.get(1), V.get(1)]; r.rstd = [V.get(1), V.get(1)]; r.rl = [V.get(1), V.get(1)]
        r.meanN = [V.get(4), V.get(4)]; r.rstdN = [V.get(4), V.get(4)]; r.rlN = [V.get(4), V.get(4)]
        r.tmp = V.get(16)
        r.acc = [[V.get(4) for j in range(8)] for rt in range(2)]
        r.csn = V.get(8); r.cst = V.get(12)
        r.Xf = V.get(24)
        r.kvd = V.get(32)
        r.fa = Reg("v", 224, 4); r.vGo = r.csn[5]; r.vX = r.csn[6:8]
        r.A = Reg("a", 0, 160)
        r.Bregs = Reg("a", 160, 32)

    def before_wait(self, emit=None):
        self.alloc()
        r, b = self, (emit or self.a)
        n_, g_ = vN, vG
        t = r.kvd[4:12]
        b("s_lshl_b32 s16, %s, 3" % sRB)
        b("s_lshl_b32 s17, %s, 1" % sWAVE)
        b("s_add_u32 s16, s16, s17")
        b("s_mul_i32 s19, s16, 20480")
        b("s_add_u32 s19, s19, %s" % sLAY)
        b("s_add_u32 s17, s19, %d" % XA)
        b("v_add_u32 %s, s17, v2" % r.vA[0])
        b("v_add_u32 %s, 20480, %s" % (r.vA[1], r.vA[0]))
        b("v_add_u32 %s, 0x10000, v2" % r.vL[1])
        b("v_lshlrev_b32 %s, 3, %s" % (t[0], n_))
        b("v_lshl_add_u32 %s, %s, 8, %s" % (t[0], g_, t[0]))
        b("s_lshl_b32 s17, s16, 10")
        b("s_add_u32 s17, s17, %s" % sLAY)
        b("s_add_u32 s17, s17, %d" % STA)
        b("v_add_u32 %s, s17, %s" % (r.vS, t[0]))
        b("v_cmp_lt_u32 s[26:27], %s, 8" % n_)
        b("v_add_u32 %s, 0x20000, v2" % r.vL[2])
        b("s_lshr_b32 s17, %s, 2" % sP)
        b("s_mul_i32 s17, s17, 5120")
        b("s_add_u32 s19, s19, s17")
        b("s_add_u32 s19, s19, %d" % PQ)
        b("s_and_b32 s17, %s, 3" % sP)
        b("s_lshl_b32 s18, s17, 10")
        b("s_add_u32 s18, s18, s19")
        b("v_add_u32 %s, s18, v2" % r.vQ[0])
        b("s_lshl_b32 s17, s17, 8")
        b("s_add_u32 s17, s17, s19")
        b("s_add_u32 s17, s17, 4096")
        b("v_add_u32 %s, s17, v2" % r.vQ[1])
        b("v_mov_b32 %s, 0x%x" % (t[2], OOB))
        b("v_cmp_gt_u32 vcc, 16, v1")
        b("v_cndmask_b32 %s, %s, %s, vcc" % (r.vQ[1], t[2], r.vQ[1]))
        b("s_lshl_b32 s17, %s, 7" % sP)
        b("s_add_u32 s17, s17, %d" % CNT_G)
        b("v_lshl_add_u32 %s, v0, 11, s17" % r.vC1)
        b("v_cmp_gt_u32 vcc, 16, v0")
        b("v_cndmask_b32 %s, %s, %s, vcc" % (r.vC1, t[2], r.vC1))
        b("v_add_u32 %s, %d, v2" % (t[5], K1_TRASH))
        b("s_mul_i32 s19, %s, 3584" % sWAVE)
        b("s_add_u32 s19, s19, %d" % K1_RED)
        b("s_add_u32 s17, s19, 3200")
        for pi, (ka, vb) in enumerate(K1_PAIRS):
            b("v_lshl_add_u32 %s, %s, 2, %d" % (t[0], g_, 16 * ka))
            b("v_add_u32 %s, %d, %s" % (t[1], 16 * vb - 40, n_))
            b("v_cmp_le_u32 vcc, 20, %s" % t[0])
            b("v_cndmask_b32 %s, 0, 20, vcc" % t[2])
            b("v_sub_u32 %s, %s, %s" % (t[3], t[1], t[2]))
            b("v_sub_u32 %s, %s, %s" % (t[2], t[0], t[2]))
            b("v_cmp_gt_u32 vcc, 20, %s" % t[3])
            b("v_mad_i32_i24 %s, %s, 20, %s" % (t[2], t[1], t[2]))
            b("v_lshl_add_u32 %s, %s, 2, s19" % (t[2], t[2]))
            b("v_cndmask_b32 %s, %s, %s, vcc" % (r.vKa[pi], t[5], t[2]))
            if vb == 2:
                b("v_cmp_eq_u32 vcc, 0, %s" % n_)
                b("v_lshl_add_u32 %s, %s, 2, s17" % (t[2], t[0]))
                b("v_cndmask_b32 %s, %s, %s, vcc" % (r.vKa[pi], r.vKa[pi], t[2]))
            if ka == 2:
                b("v_cmp_gt_u32 vcc, 2, %s" % g_)
                b("v_cndmask_b32 %s, %s, %s, vcc" % (r.vKa[pi], t[5], r.vKa[pi]))
        b("v_lshlrev_b32 %s, 2, v0" % r.vR)
        b("s_mul_i32 s17, %s, 3360" % sP)
        b("s_add_u32 s17, s17, %s" % sLAY)
        b("s_add_u32 s17, s17, %d" % KV)
        b("v_add_u32 %s, s17, %s" % (r.vGl, r.vR))
        b("v_add_u32 %s, %d, %s" % (r.vR, K1_RED, r.vR))
        b("s_lshl_b32 s17, s2, 9")
        b("s_add_u32 s17, s17, %d" % CSW)
        b("v_lshl_add_u32 %s, %s, 2, s17" % (r.vCn, n_))
        b("v_lshl_add_u32 %s, %s, 4, s17" % (r.vCt, g_))
        b("s_mov_b32 s23, 20480")
        b("s_mov_b32 s20, 0")
        b("v_lshlrev_b32 %s, 4, %s" % (t[0], g_))
        for q in range(4):
            b("v_add_u32 %s, %d, %s" % (t[1 + q], 4 * q, t[0]))
        fa, u, vGo, vX = r.fa, r.kvd[12:16], r.vGo, r.vX
        raw = (lambda x: b(x))
        b("s_mul_i32 s3, %s, 3360" % sP)
        b("s_add_u32 s3, s3, %s" % sLAY)
        b("s_add_u32 s3, s3, %d" % KV)
        b("v_mov_b32 %s, 0x%x" % (u[3], OOB))
        for i in range(2):
            b("s_lshl_b32 s17, %s, 1" % sWAVE)
            b("s_add_u32 s17, s17, %d" % (i + 1))
            b("s_lshr_b32 s19, s17, 1")
            b("s_lshl_b32 s19, s19, 4")
            b("v_add_u32 %s, s19, %s" % (u[0], vN))
            b("v_cmp_le_u32 vcc, 20, %s" % u[0])
            b("v_cndmask_b32 %s, 0, 20, vcc" % u[1])
            b("v_mul_u32_u24 %s, 20, %s" % (u[2], u[0]))
            b("v_sub_u32 %s, %s, %s" % (u[2], u[2], u[1]))
            b("v_cmp_gt_u32 vcc, 40, %s" % u[0])
            b("v_cndmask_b32 %s, 63, %s, vcc" % (u[1], u[1]))
            raw("s_cmp_eq_u32 s19, 48\ns_cselect_b64 vcc, -1, 0")
            b("v_and_b32 %s, 3, v1" % u[0])
            b("v_mul_u32_u24 %s, 20, %s" % (u[0], u[0]))
            b("v_cndmask_b32 %s, %s, %s, vcc" % (u[1], u[1], u[0]))
            b("v_mov_b32 %s, 800" % u[0])
            b("v_cndmask_b32 %s, %s, %s, vcc" % (u[2], u[2], u[0]))
            raw("s_cmp_eq_u32 %s, %d\ns_cselect_b32 s19, %d, %d" % ((sWAVE, 0, 0, 32) if i == 0 else (sWAVE, 3, 64, 0)))
            for h in range(2):
                b("v_lshl_add_u32 %s, %s, 2, s19" % (u[0], vG))
                if h:
                    b("v_add_u32 %s, 16, %s" % (u[0], u[0]))
                b("v_cmp_gt_u32 s[38:39], 40, %s" % u[0])
                b("v_add_lshl_u32 %s, %s, %s, 2" % (fa[2 * i + h], u[0], u[2]))
                b("v_sub_u32 %s, %s, %s" % (u[0], u[0], u[1]))
                b("v_cmp_gt_u32 vcc, 20, %s" % u[0])
                b("s_and_b64 vcc, vcc, s[38:39]")
                b("v_cndmask_b32 %s, %s, %s, vcc" % (fa[2 * i + h], u[3], fa[2 * i + h]))
        b("s_lshl_b32 s17, %s, 11" % sRB)
        b("s_add_u32 s17, s17, %d" % CNT_G)
        b("v_lshl_add_u32 %s, v1, 7, s17" % vGo)
        raw("s_cmp_eq_u32 %s, %d\ns_cselect_b32 s17, 0, 0x%x" % (sWAVE, CFG["PW"], OOB))
        b("v_and_b32 %s, 0x%x, %s" % (u[0], OOB, vCNT))
        b("v_or3_b32 %s, %s, s17, %s" % (vGo, u[0], vGo))
        b("s_lshl_b32 s17, %s, 11" % sWAVE)
        b("s_add_u32 s17, s17, %d" % K1_FR)
        b("v_add_u32 %s, s17, v2" % vX[0])
        b("v_add_u32 %s, %d, v2" % (vX[1], K1_FR))

    def body(self, nxt, p3, p4, NPRE, first=False):
        r, a = self, self.a
        tmp, t, acc, Xf, kvd, A, Bregs = r.tmp, r.kvd[4:12], r.acc, r.Xf, r.kvd, r.A, r.Bregs
        stat_loads = [(lambda rt=rt, h=h: a.vmem("buffer_load_dwordx2 %s, %s, s[4:7], 0 offen offset:%d%s" % (tmp.q(rt)[2 * h:2 * h + 2], r.vS, rt * 1024 + h * 128, SC()), "stats"))
                      for rt in range(2) for h in range(2)]
        b = Asm()
        for rt in range(2):
            stats_finish(b, tmp.q(rt), r.mean[rt], r.rstd[rt], tmp[8])
            b("v_mul_f32 %s, %s, %s" % (r.rl[rt], f32(LOG2E), r.rstd[rt]))
        fill = [lambda: a.wait_vm("stats")] + list(b.lines)
        for rt in range(2):
            for q in range(4):
                fill.append(lambda rt=rt, q=q: a.ds("ds_bpermute_b32 %s, %s, %s" % (r.meanN[rt][q], t[1 + q], r.mean[rt]), "bp"))
                fill.append(lambda rt=rt, q=q: a.ds("ds_bpermute_b32 %s, %s, %s" % (r.rstdN[rt][q], t[1 + q], r.rstd[rt]), "bp"))
        fill += [None] * 6
        fill.append(lambda: a.wait_lg("bp"))
        for rt in range(2):
            for q in range(4):
                fill.append("v_mul_f32 %s, %s, %s" % (r.rlN[rt][q], f32(LOG2E), r.rstdN[rt][q]))
        fill += nxt.pre_setup()
        csp = []
        if first:
            cp, ad = Reg("v", 156, 40), Reg("v", 232, 2)
            a("s_lshl_b32 s17, %s, 9" % sP)
            a("s_add_u32 s17, s17, %d" % CSP1)
            a("v_lshrrev_b32 %s, 5, v1" % ad[0])
            a("v_lshlrev_b32 %s, 13, %s" % (ad[0], ad[0]))
            a("v_and_b32 %s, 31, v1" % ad[1])
            a("v_lshlrev_b32 %s, 4, %s" % (ad[1], ad[1]))
            a("s_cmp_eq_u32 %s, 0" % sWAVE)
            a("s_cselect_b32 s19, 0, 0x%x" % OOB)
            a("v_add3_u32 %s, %s, %s, s19" % (ad[0], ad[0], ad[1]))
            a("v_or_b32 %s, s19, %s" % (ad[1], ad[1]))
            a("s_lshl_b32 s48, s2, 9")
            a("s_add_u32 s48, s48, %d" % CSW)
            a("s_mov_b32 s21, s17")
            for k in range(10):
                def f(k=k):
                    a.vmem("buffer_load_dwordx4 %s, %s, s[4:7], s21 offen%s" % (cp.q(k), ad[0], SC()), "csp")
                    a("s_add_u32 s21, s21, 16384")
                csp.append(f)
            fin = [lambda: a.wait_vm("csp")]
            for k in range(1, 10):
                for q in range(4):
                    fin.append("v_add_f32 %s, %s, %s" % (cp[q], cp[q], cp.q(k)[q]))
            for q in range(4):
                fin += ["v_mov_b32 %s, %s" % (cp[4], cp[q]), "v_permlane32_swap_b32 %s, %s" % (cp[q], cp[4]), "v_add_f32 %s, %s, %s" % (cp[q], cp[q], cp[4])]
            fin.append(lambda: a.vmem("buffer_store_dwordx4 %s, %s, s[4:7], s48 offen" % (cp[0:4], ad[1]), "csw"))
            fill = fin + fill
        cs = [(lambda j=j: a.vmem("buffer_load_dword %s, %s, s[4:7], 0 offen offset:%d" % (r.csn[j], r.vCn, j * 64), "cs")) for j in range(5)]
        cs += [(lambda j=j: a.vmem("buffer_load_dwordx4 %s, %s, s[4:7], 0 offen offset:%d" % (r.cst.q(j), r.vCt, (5 + j) * 64), "cs")) for j in range(3)]
        PD, NB = CFG["PD1"], 8
        seq = [(ks, j, 6 * ks + j) for ks in range(20) for j in range(6)] + [(ks, j, 120 + 2 * ks + j - 6) for ks in range(20) for j in (6, 7)]
        aq = []
        for ks in range(20):
            for rt in range(2):
                def f(ks=ks, rt=rt):
                    x_load(a, A.q(2 * ks + rt), r.vA[rt], ks, rt, not first, ("a", ks), [] if first else stat_loads)
                aq.append((6 * ks, f))
        bq = [(16 * rho - PD, f) for rho in range(NPRE, 10) for f in self.round_loads(rho)]
        if first and CFG["XPRE"]:
            aq = []
            for f in [bq.pop(0)[1] for _ in range(CFG["P1A"])]:
                f()
        a.late_ok = first
        for _ in range(0 if not aq else CFG["P1A"] if first else CFG["P1"]):
            aq.pop(0)[1]()
        small = []
        if first:
            small = csp + stat_loads
            fill.insert(0, "small")
        stamp(a, 1)
        a.wait_vm([("a", 0), ("st", NPRE - 1)])
        a("s_barrier")
        stamp(a, 2)

        def rd(n):
            f = seq[n][2]
            if f % 16 == 0 and f // 16 >= NPRE:
                while bq and bq[0][0] <= f - PD:
                    sys.stderr.write("P1: late weight load\n")
                    bq.pop(0)[1]()
                a.wait_vm([("st", f // 16), "csw"])
                a("s_barrier")
                st["csok"] = not first or (not fill_has_store())
            a.ds("ds_read_b128 %s, %s offset:%d" % (Bregs.q(n % NB), r.vL[f >> 6], (f & 63) * 1024), ("f", n))

        def pair(n, mid):
            ks, j, f = seq[n]
            if n + PD < len(seq) and n + PD not in done_rd:
                rd(n + PD)
            if n % 2 == 0 or n == 120:
                a.wait_lg(("f", min(n + 1, len(seq) - 1) if n != 119 else n))
            else:
                a.wait_lg(("f", n))
            for pos, rt in enumerate((1, 0) if CFG["SNAKE"] and j % 2 else (0, 1)):
                c = "0" if ks == 0 else str(acc[rt][j])
                w, x = Bregs.q(n % NB), A.q(2 * ks + rt)
                a("%s %s, %s, %s, %s" % ((MF, acc[rt][j], w, x, c) if j >= 5 else (MF, acc[rt][j], x, w, c)))
                if pos == 0:
                    mid()
        done_rd = set()
        st = dict(credit=0.0, csok=not first)
        fill_has_store = lambda: first and fin[-1] in fill
        for n in range(PD):
            rd(n)
        late = [x for x in bq if x[0] >= 120 - PD]
        nload = len(aq) + len(bq) - len(late) + len(cs) + len(small) // 2
        for n in range(120):
            ks, j, f = seq[n]
            if j == 0:
                while aq and aq[0][0] <= n:
                    sys.stderr.write("P1: late activation load\n")
                    aq.pop(0)[1]()
                a.wait_vm(("a", ks))
            def mid():
                if first and CFG["BSP"] < 99 and n % CFG["BSP"] == CFG["BSP"] - 1 and n >= CFG["BS0"] and self.bstores:
                    self.bstores.pop(0)()
                    return
                st["credit"] += nload / float(CFG["SPAN1A"] if first else CFG["SPAN1"])
                if st["credit"] >= 1.0:
                    cb = bq and bq[0][0] < 120 - PD
                    q = None
                    if aq and (not cb or aq[0][0] <= bq[0][0]):
                        q = aq
                    elif cb:
                        q = bq
                    if small and q is not None and q[0][0] - n > CFG["SLK"]:
                        small.pop(0)(); small.pop(0)()
                    elif q is not None:
                        q.pop(0)[1]()
                    elif cs and st["csok"]:
                        cs.pop(0)()
                    elif bq and not first:
                        bq.pop(0)[1]()
                    else:
                        q = "none"
                    st["credit"] -= 1.0
                    if (not first or CFG["XPRE"]) and q != "none":
                        return
                if n > (12 if first else CFG["F1"]) and a.late_ok:
                    if fill and fill[0] == "small":
                        if not small:
                            fill[0:1] = [None] * 16
                        return
                    for _ in range(2):
                        if fill:
                            x = fill.pop(0)
                            if x is not None:
                                x() if callable(x) else a(x)
            pair(n, mid)
        if fill:
            sys.stderr.write("P1: %d fill items left after the first pass\n" % len(fill))
        for x in fill:
            if x is not None:
                x() if callable(x) else a(x)
        assert st["csok"]
        for f in cs:
            f()
        assert not aq
        stamp(a, 3)
        a.wait_vm("cs")
        a("s_mov_b32 s24, %s" % f32(1e-6))
        e = Weaver(a, [x[1] for x in bq] + (self.bstores if first else []), 10 if first else CFG["EW1"])
        bq[:] = []

        def phi(x, m, c, rs, rlg, t, vraw=None):
            for h in H2:
                e(pk("fma", x[h], m(h), c(h), x[h], neg=0))
            for h in H2:
                e(pk("mul", t[h], x[h], rlg(h)))
            if vraw is not None:
                for h in H2:
                    e(pk("mul", vraw[h], x[h], rs(h)))
            for h in H2:
                e(pk("fma", x[h], x[h], rs(h), "s24"))
            for q in range(4):
                e("v_exp_f32 %s, %s clamp" % (t[q], t[q]))
            for q in range(4):
                e("v_max_f32 %s, s24, %s" % (x[q], x[q]))
            for h in H2:
                e(pk("add", x[h], x[h], t[h]))

        for j in range(5):
            for rt in range(2):
                x = acc[rt][j]
                m = lambda h, rt=rt: r.meanN[rt][h]
                rs = lambda h, rt=rt: r.rstdN[rt][h]
                rg = lambda h, rt=rt: r.rlN[rt][h]
                c = lambda h, j=j: r.csn[j]
                if j < 2:
                    phi(x, m, c, rs, rg, tmp[0:4])
                elif j == 2:
                    phi(x, m, c, rs, rg, tmp[0:4], vraw=tmp[4:8])
                    for q in range(4):
                        e("v_cndmask_b32 %s, %s, %s, s[26:27]" % (x[q], tmp[4 + q], x[q]))
                else:
                    for h in H2:
                        e(pk("fma", x[h], m(h), c(h), x[h], neg=0))
                    for h in H2:
                        e(pk("mul", x[h], x[h], rs(h)))
                e("v_cvt_pk_bf16_f32 %s, %s, %s" % (Xf.q(j)[2 * rt], x[0], x[1]))
                e("v_cvt_pk_bf16_f32 %s, %s, %s" % (Xf.q(j)[2 * rt + 1], x[2], x[3]))
        e("v_mov_b32 %s, 0x3f803f80" % tmp[0])
        for q in range(4):
            e("v_cndmask_b32 %s, %s, %s, s[26:27]" % (Xf.q(5)[q], Xf.q(2)[q], tmp[0]))
        e.flush()
        for pi, (ka, vb) in enumerate(K1_PAIRS):
            a("%s %s, %s, %s, 0" % (MF, kvd.q(pi), Xf.q(ka), Xf.q(5 if vb == 2 else vb)))
        qo = [Xf.q(0), Xf.q(1), Xf.q(2), Xf.q(3)]

        def qtile(j, rt):
            x = acc[rt][5 + j]
            phi(x, lambda h: r.mean[rt], lambda h: r.cst.q(j)[h], lambda h: r.rstd[rt], lambda h: r.rl[rt], tmp[0:4])
            o = qo[rt][2 * j:2 * j + 2] if j < 2 else qo[2 + rt][0:2]
            e("v_cvt_pk_bf16_f32 %s, %s, %s" % (o[0], x[0], x[1]))
            e("v_cvt_pk_bf16_f32 %s, %s, %s" % (o[1], x[2], x[3]))
        if NPRE >= 8:
            a("s_barrier")
        for pi in range(8):
            a.ds("ds_write_b128 %s, %s" % (r.vKa[pi], kvd.q(pi)), "add")
        qtile(0, 0)
        a.wait_lg("add")
        a("s_barrier")
        for i in range(4):
            for w in range(4):
                a.ds("ds_read_b32 %s, %s offset:%d" % (kvd[4 * i + w], r.vR, i * 1024 + w * 3584), ("rd", i))
        a("v_mov_b32 %s, 0x%x" % (kvd[17], OOB))
        a("v_cmp_gt_u32 vcc, 72, v0")
        a("v_cndmask_b32 %s, %s, %s, vcc" % (kvd[16], kvd[17], r.vGl))
        for i in range(4):
            a.wait_lg(("rd", i))
            a(pk("add", kvd[4 * i:4 * i + 2], kvd[4 * i:4 * i + 2], kvd[4 * i + 2:4 * i + 4]))
            a("v_add_f32 %s, %s, %s" % (kvd[4 * i], kvd[4 * i], kvd[4 * i + 1]))
            a.vmem("buffer_atomic_add_f32 %s, %s, s[4:7], 0 offen offset:%d" % (kvd[4 * i], r.vGl if i < 3 else kvd[16], i * 1024), "kv")
        a("v_mov_b32 %s, 1" % r.ret)
        stamp(a, 4)
        wo = nxt.take(25)
        fa, vGo, vX = r.fa, r.vGo, r.vX
        b = Asm()
        b("v_cmp_lt_u32 s[36:37], 0, %s" % vG)
        eps = acc[1][1]
        for q in range(4):
            b("v_mov_b32 %s, s24" % eps[q])
        early = list(b.lines) + (nxt.addr_lines() if CFG["AE"] & 1 else [])
        for n in range(120, 160):
            ks = seq[n][0]
            if n == 120 + 2 * CFG["ARRK"]:
                if CFG["DBG"] == 4:
                    stamp(a, 1)
                a.wait_vm("kv")
                a("s_barrier")
                if CFG["DBG"] == 4:
                    stamp(a, 2)
                a.vmem("buffer_atomic_add %s, %s, s[4:7], 0 offen" % (r.ret, r.vC1), "arr")
            def mid():
                if n % 3 == 2 and wo and wo[0].k < 16:
                    wo.pop(0)()
                else:
                    for _ in range(2):
                        if early:
                            a(early.pop(0))
            pair(n, mid)
        if CFG["DBG"] == 4:
            stamp(a, 3)
        e = Weaver(a, [(lambda x=x: a(x)) for x in early] + wo[:CFG["NWQ"]], 3 if early else 16)
        wo = wo[CFG["NWQ"]:]
        a("v_mov_b32 v252, 0")
        a("v_mov_b32 v253, 0")
        a.vmem("buffer_atomic_add v253, %s, s[4:7], 0 offen sc0" % vGo, "go0")
        qq = [(0, 1), (1, 0), (1, 1), (2, 0), (2, 1)]
        nb = 5 - CFG["QAFT"]
        for k, x in enumerate(qq[:nb]):
            if k == min(2, nb - 1):
                a.vmem("buffer_atomic_add v252, %s, s[4:7], 0 offen sc0" % vGo, "go")
            qtile(*x)
        e.flush()
        if CFG["DBG"] == 4:
            stamp(a, 6)
        l, d = label("gp"), label("gd")
        a("s_add_u32 s49, s49, 16")
        a("s_cmp_lg_u32 %s, %d" % (sWAVE, CFG["PW"]))
        a("s_cbranch_scc1 %s" % d)
        a("s_mov_b32 s42, %d" % CFG["TMO"])
        save = list(a.vm)
        a.wait_vm("go0")
        a("v_cmp_le_u32 vcc, s49, v253")
        a("s_cmp_eq_u32 vcc_lo, 0xffff")
        a("s_cbranch_scc1 %s" % d)
        a.wait_vm("go")
        a.vm = save
        a("%s:" % l)
        a("v_cmp_le_u32 vcc, s49, v252")
        a("s_cmp_eq_u32 vcc_lo, 0xffff")
        a("s_cbranch_scc1 %s" % d)
        a("v_mov_b32 v252, 0")
        a("buffer_atomic_add v252, %s, s[4:7], 0 offen sc0" % vGo)
        a("s_sub_u32 s42, s42, 1")
        a("s_waitcnt vmcnt(0)")
        a("s_cbranch_scc0 %s" % l)
        a("%s:" % d)
        a("s_barrier")
        stamp(a, 5)
        stg, fr = kvd[0:16], [kvd.q(k) for k in range(7)]
        for k in range(4):
            a.vmem("buffer_load_dwordx4 %s, %s, s[4:7], s3 offen%s" % (stg.q(k), fa[k], SC()), "kvl")
        for x in p3.pre_setup() + p4.pre_setup():
            a(x)
        extra = wo + p3.pre_loads() + p4.take(CFG["NW4P"])
        e = Weaver(a, extra[:CFG["NX1"]], 12)
        extra = extra[CFG["NX1"]:]
        for x in qq[nb:]:
            qtile(*x)
        for rt in range(2):
            a("v_mov_b32 %s, 0" % qo[2 + rt][2])
            a("v_mov_b32 %s, 0" % qo[2 + rt][3])
        e.flush()
        if CFG["DBG"] == 3:
            stamp(a, 1)
        a.wait_vm("kvl")
        if CFG["DBG"] == 3:
            stamp(a, 2)
        for i in range(2):
            o = tmp.q(1 + i)
            for k in range(4):
                a("v_cvt_pk_bf16_f32 %s, %s, %s" % (o[k], stg[8 * i + 2 * k], stg[8 * i + 2 * k + 1]))
            a.ds("ds_write_b128 %s, %s offset:%d" % (vX[0], o, i * 1024), "fw")
        a.wait_lg("fw")
        a("s_barrier")
        extra.pop(0)()
        for k in (5, 6, 0, 1, 2, 3, 4):
            a.ds("ds_read_b128 %s, %s offset:%d" % (fr[k], vX[1], k * 1024), ("fr", k))
        if CFG["DBG"] == 3:
            stamp(a, 3)
        num = [[acc[rt][2 + t_] for t_ in range(3)] for rt in range(2)]
        den = [acc[0][5], acc[1][5]]
        for k, (t_, kb) in ((5, (3, 0)), (6, (3, 1)), (0, (0, 0)), (1, (1, 0)), (2, (1, 1)), (3, (2, 0)), (4, (2, 1))):
            a.wait_lg(("fr", k))
            for rt in range(2):
                dst = den[rt] if t_ == 3 else num[rt][t_]
                c = dst if kb else (eps if t_ == 3 else "0")
                a("%s %s, %s, %s, %s" % (MF, dst, fr[k], qo[rt] if kb == 0 else qo[2 + rt], c))
        extra.pop(0)()
        extra.pop(0)()
        for rt in range(2):
            a("v_rcp_f32 %s, %s" % (den[rt][0], den[rt][0]))
            a("v_rcp_f32 %s, %s" % (den[rt][1], den[rt][1]))
        for rt in range(2):
            a("v_cndmask_b32 %s, %s, %s, s[36:37]" % (den[rt][2], den[rt][0], den[rt][1]))
        for rt in range(2):
            for t_, dd in ((0, den[rt][0]), (1, den[rt][2])):
                for h in H2:
                    a(pk("mul", num[rt][t_][h], num[rt][t_][h], dd))
                a("v_cvt_pk_bf16_f32 %s, %s, %s" % (qo[rt][2 * t_], num[rt][t_][0], num[rt][t_][1]))
                a("v_cvt_pk_bf16_f32 %s, %s, %s" % (qo[rt][2 * t_ + 1], num[rt][t_][2], num[rt][t_][3]))
            a.vmem("buffer_store_dwordx4 %s, %s, s[4:7], %s offen%s" % (qo[rt], r.vQ[0], "s23" if rt else "0", SC()), "out")
        for rt in range(2):
            z = qo[2 + rt]
            for h in H2:
                a(pk("mul", num[rt][2][h], num[rt][2][h], den[rt][1]))
            a("v_cvt_pk_bf16_f32 %s, %s, %s" % (z[0], num[rt][2][0], num[rt][2][1]))
            a("v_cvt_pk_bf16_f32 %s, %s, %s" % (z[1], num[rt][2][2], num[rt][2][3]))
            a("v_mov_b32 %s, %s" % (z[2], z[0]))
            a("v_mov_b32 %s, %s" % (z[3], z[1]))
            a("v_permlane16_swap_b32 %s, %s" % (z[0], z[2]))
            a("v_permlane16_swap_b32 %s, %s" % (z[1], z[3]))
            a.vmem("buffer_store_dwordx4 %s, %s, s[4:7], %s offen%s" % (z, r.vQ[1], "s23" if rt else "0", SC()), "out")
        if CFG["RB"]:
            a("v_mov_b32 %s, %s" % (vRB[0], r.vQ[0]))
            a("v_mov_b32 %s, %s" % (vRB[1], r.vQ[1]))
        a.rb = [(vRB[0], "0", 0), (vRB[0], "s23", 0), (vRB[1], "0", 0), (vRB[1], "s23", 0)]
        self.extra = extra


class P3:
    def __init__(self, a):
        self.a = a
        self.ring = Ring(a, 12, 6, vPRE[0], vPRE[0], "s44", "s45", "s46")

    def pre_setup(self):
        return ["s_mul_i32 s17, %s, 245760" % sP,
                "s_mul_i32 s44, %s, 6144" % sWAVE,
                "s_add_u32 s17, s17, s44",
                "s_add_u32 s17, s17, %d" % W3,
                "v_add_u32 %s, s17, v2" % vPRE[0]] + self.ring.init_lines()

    def pre_loads(self):
        return [f for s in range(min(CFG["NE3"], CFG["NPRE3"])) for f in self.ring.loads(s)]

    def wait_loads(self):
        return [f for s in range(CFG["NE3"], CFG["NPRE3"]) for f in self.ring.loads(s)]

    def before_wait(self, emit=None):
        r, a = self, (emit or self.a)
        V = Alloc("v", VBASE, 240)
        r.vA = [V.get(1), V.get(1)]
        r.vL = [Reg("v", 2, 1), V.get(1), V.get(1)]
        r.vS = V.get(1); r.vC = V.get(1); r.vH = V.get(1)
        r.mean = [V.get(1), V.get(1)]; r.rstd = [V.get(1), V.get(1)]; r.std = [V.get(1), V.get(1)]; r.c1 = [V.get(1), V.get(1)]
        r.tmp = V.get(16)
        r.acc = [[V.get(4) for j in range(12)] for rt in range(2)]
        r.cs = V.get(48)
        r.Aring = Reg("a", 160, 64)
        r.Bregs = Reg("a", 224, 32)
        tmp = r.tmp
        a("s_lshl_b32 s16, %s, 3" % sRB)
        a("s_lshl_b32 s17, %s, 1" % sWAVE)
        a("s_add_u32 s16, s16, s17")
        a("s_mul_i32 s17, s16, 20480")
        a("s_add_u32 s17, s17, %s" % sLAY)
        a("s_add_u32 s17, s17, %d" % XB)
        a("v_add_u32 %s, s17, v2" % r.vA[0])
        a("v_add_u32 %s, 20480, %s" % (r.vA[1], r.vA[0]))
        a("v_add_u32 %s, 0x10000, v2" % r.vL[1])
        a("v_add_u32 %s, 0x20000, v2" % r.vL[2])
        a("v_lshlrev_b32 %s, 3, %s" % (tmp[0], vN))
        a("v_lshl_add_u32 %s, %s, 8, %s" % (tmp[0], vG, tmp[0]))
        a("s_lshl_b32 s17, s16, 10")
        a("s_add_u32 s17, s17, %s" % sLAY)
        a("s_add_u32 s17, s17, %d" % STB)
        a("v_add_u32 %s, s17, %s" % (r.vS, tmp[0]))
        a("s_mul_i32 s17, %s, 768" % sP)
        a("s_add_u32 s17, s17, %d" % CS3F)
        a("v_lshl_add_u32 %s, %s, 4, s17" % (r.vC, vG))
        a("s_mul_i32 s17, s16, 49152")
        a("s_mul_i32 s19, %s, 3072" % sP)
        a("s_add_u32 s17, s17, s19")
        a("s_add_u32 s17, s17, %s" % sLAY)
        a("s_add_u32 s17, s17, %d" % H)
        a("v_add_u32 %s, s17, v2" % r.vH)
        a("s_mov_b32 s23, 49152")
        a("s_lshl_b32 s20, %s, 11" % sROT10)
        a("s_mov_b32 s24, %s" % f32(-2.0 * 0.7978845608028654 * 0.044715 * LOG2E))
        a("v_mov_b32 %s, %s" % (tmp[15], f32(-2.0 * 0.7978845608028654 * LOG2E)))

    def body(self, nxt):
        r, a = self, self.a
        tmp, acc, cs, mean, rstd, std = r.tmp, r.acc, r.cs, r.mean, r.rstd, r.std
        stat_loads = [(lambda rt=rt, h=h: a.vmem("buffer_load_dwordx2 %s, %s, s[4:7], 0 offen offset:%d%s" % (tmp.q(rt)[2 * h:2 * h + 2], r.vS, rt * 1024 + h * 128, SC()), "stats"))
                      for rt in range(2) for h in range(2)]
        b = Asm()
        for rt in range(2):
            stats_finish(b, tmp.q(rt), mean[rt], rstd[rt], tmp[8])
            b("v_mul_f32 %s, %s, %s" % (std[rt], rstd[rt], rstd[rt]))
            b("v_mul_f32 %s, %s, %s" % (r.c1[rt], tmp[15], rstd[rt]))
            b("v_mul_f32 %s, %s, %s" % (rstd[rt], std[rt], rstd[rt]))
            b("v_rcp_f32 %s, %s" % (std[rt], std[rt]))
            b("v_mul_f32 %s, s24, %s" % (rstd[rt], rstd[rt]))
        fill = [lambda: a.wait_vm("stats")] + list(b.lines) + (nxt.addr_lines() if CFG["AE"] & 2 else [])
        nl = CFG["NW4L"]
        csl = [(lambda j=j: a.vmem("buffer_load_dwordx4 %s, %s, s[4:7], 0 offen offset:%d%s" % (r.cs.q(j), r.vC, j * 64, SC()), "cs")) for j in range(12)]
        pre = nxt.take(nl + CFG["NW4E"])
        assert all(f.k < 39 for f in pre[:nl])
        rest = gemm_s(a, self.ring, CFG["NPRE3"], r.vA, r.vL, acc, r.Aring, r.Bregs, [True] * 12, "s20", 4,
                      csl + pre[:nl], fill, 0, PD=CFG["PD3"], P=CFG["P3"], first_barrier=True, early=stat_loads)
        assert len(rest) <= nl
        a.wait_vm("cs")
        e = Weaver(a, rest + pre[nl:], CFG["EW3"])
        out = tmp[0:8]
        for m in range(3):
            for rt in range(2):
                o = out.q(rt)
                for hh in range(2):
                    jp = 2 * m + hh
                    g, u = acc[rt][2 * jp], acc[rt][2 * jp + 1]
                    cg, cu = cs.q(2 * jp), cs.q(2 * jp + 1)
                    t = tmp[8:12]
                    for h in H2:
                        e(pk("fma", g[h], cg[h], mean[rt], g[h], neg=1))
                    for h in H2:
                        e(pk("fma", u[h], cu[h], mean[rt], u[h], neg=1))
                    for h in H2:
                        e(pk("mul", t[h], g[h], g[h]))
                    for h in H2:
                        e(pk("fma", t[h], t[h], rstd[rt], r.c1[rt]))
                    for h in H2:
                        e(pk("mul", t[h], g[h], t[h]))
                    for h in H2:
                        e(pk("mul", u[h], g[h], u[h]))
                    for q in range(4):
                        e("v_exp_f32 %s, %s" % (t[q], t[q]))
                    for h in H2:
                        e(pk("fma", t[h], t[h], std[rt], std[rt]))
                    for q in range(4):
                        e("v_rcp_f32 %s, %s" % (t[q], t[q]))
                    for h in H2:
                        e(pk("mul", u[h], u[h], t[h]))
                    e("v_cvt_pk_bf16_f32 %s, %s, %s" % (o[2 * hh], u[0], u[1]))
                    e("v_cvt_pk_bf16_f32 %s, %s, %s" % (o[2 * hh + 1], u[2], u[3]))
                a.vmem("buffer_store_dwordx4 %s, %s, s[4:7], %s offen offset:%d%s" % (o, r.vH, "s23" if rt else "0", m * 1024, SC()), ("out0", "out1", "out")[m])
            if m == 1:
                a.wait_vm("out0")
                a("s_add_u32 s22, s22, 16")
                signal(a, 1)
                read_back(a, [(r.vH, "0", 0), (r.vH, "s23", 0)])
        e.flush()
        if CFG["T3"]:
            a.wait_vm("out1")
            signal(a, 2)


def p_addr(a, r, t, red_base, xres, stout, from_x=False):
    a("s_add_u32 s17, %s, 3" % sWAVE)
    a("s_and_b32 s17, s17, 3")
    a("s_mul_i32 s17, s17, 10240")
    a("s_add_u32 s17, s17, %d" % red_base)
    a("v_add_u32 %s, s17, v2" % r.vW)
    a("s_mul_i32 s17, %s, 10240" % sWAVE)
    a("s_add_u32 s17, s17, %d" % red_base)
    a("v_add_u32 %s, s17, v2" % r.vRd)
    a("s_lshl_b32 s16, %s, 2" % sRB64)
    a("s_add_u32 s16, s16, %s" % sWAVE)
    a("s_and_b32 s19, %s, 1" % sCG)
    a("s_mul_i32 s29, %s, 5" % sCG)
    a("s_add_u32 s30, s29, s19")
    a("s_xor_b32 s19, s19, 1")
    a("s_lshl_b32 s19, s19, 2")
    a("s_add_u32 s29, s29, s19")
    a("s_mul_i32 s17, s16, 20480")
    a("s_add_u32 s17, s17, %s" % sLAY)
    a("s_add_u32 s17, s17, %d" % xres)
    a("s_lshl_b32 s19, s30, 9")
    a("s_add_u32 s19, s19, s17")
    a("v_add_u32 %s, s19, v2" % r.vRes[0])
    a("v_lshrrev_b32 %s, 1, %s" % (t, vG))
    a("v_lshlrev_b32 %s, 8, %s" % (t, t))
    a("v_lshl_add_u32 %s, %s, 4, %s" % (t, vN, t))
    a("s_lshl_b32 s19, s29, 9")
    a("s_add_u32 s19, s19, s17")
    a("v_add_u32 %s, s19, %s" % (r.vRes[2], t))
    a("v_add_u32 %s, s17, %s" % (r.vRes[1], t))
    a("v_and_b32 %s, 1, %s" % (t, vG))
    a("v_lshl_add_u32 %s, %s, 3, %s" % (r.vRes[1], t, r.vRes[1]))
    a("v_lshl_add_u32 %s, %s, 30, %s" % (r.vRes[2], t, r.vRes[2]))
    a("s_mov_b32 s32, s4\ns_mov_b32 s33, s5\ns_mov_b32 s34, s6\ns_mov_b32 s35, 0x20000\ns_mov_b32 s31, 512")
    if from_x:
        a("v_mul_u32_u24 %s, 1280, %s" % (t, vN))
        a("v_lshl_add_u32 %s, %s, 3, %s" % (t, vG, t))
        a("s_mul_i32 s19, s16, 20480")
        a("v_add_u32 %s, s19, %s" % (t, t))
        one = ["s_cmp_eq_u32 %s, 0" % sLAY, "s_cselect_b32 s32, s84, s32", "s_cselect_b32 s33, s85, s33",
               "s_cselect_b32 s34, %d, s34" % (S * D * 2), "s_cselect_b32 s31, 32, s31", "s_cselect_b64 vcc, -1, 0"]
        a.lines.append("\n".join(one))
        a("v_cndmask_b32 %s, %s, %s, vcc" % (r.vRes[1], r.vRes[1], t))
    a("s_mul_i32 s38, s30, s31")
    a("s_mul_i32 s39, s29, s31")
    a("s_lshl_b32 s17, s16, 10")
    a("s_add_u32 s17, s17, %s" % sLAY)
    a("s_add_u32 s17, s17, %d" % stout)
    a("s_lshl_b32 s19, %s, 7" % sCG)
    a("s_add_u32 s17, s17, s19")
    a("v_lshl_add_u32 %s, %s, 3, s17" % (r.vSt, vN))
    a("v_mov_b32 %s, 0x%x" % (t, OOB))
    a("v_and_b32 %s, %s, %s" % (t, t, vCNT))
    a("v_or_b32 %s, %s, %s" % (r.vSt, t, r.vSt))


def p_res_loads(a, res, vRes):
    for j in range(4):
        a.vmem("buffer_load_dwordx2 %s, %s, s[32:35], s38 offen%s" % (res[2 * j:2 * j + 2], vRes[1], SC()), "res")
        if j < 3:
            a("s_add_u32 s38, s38, s31")
    a.vmem("buffer_load_dwordx2 %s, %s, s[32:35], s39 offen%s" % (res[8:10], vRes[1], SC()), "res")


def p_write(a, acc, i, vW):
    for j in range(5):
        a.ds("ds_write_b128 %s, %s offset:%d" % (vW[i - 1], acc[i][j], j * 1024), "rw")


def p_epilogue(a, r, acc, res, part, tmp, xdelta, pre, final):
    stamp(a, 3)
    y, o = acc[0], r.keep
    a("s_mov_b32 s28, %d" % xdelta)
    def swaps(b):
        for d in range(2):
            a("v_permlane32_swap_b32 %s, %s" % (o[b + d], o[b + 2 + d]))
        for d in range(2):
            a("v_permlane16_swap_b32 %s, %s" % (o[b + d], o[b + 2 + d]))
    for j in range(5):
        a.wait_lg(("p", j))
        for h in H2:
            a(pk("add", y[j][h], y[j][h], part.q(j)[h]))
    stamp(a, 4)
    for j in range(5):
        a("v_cvt_pk_bf16_f32 %s, %s, %s" % (o[2 * j], y[j][0], y[j][1]))
        a("v_cvt_pk_bf16_f32 %s, %s, %s" % (o[2 * j + 1], y[j][2], y[j][3]))
    if final:
        a("s_cmp_lg_u32 %s, 0" % sLAY)
        a("s_cbranch_scc1 L_final")
    a("v_mov_b32 %s, %s" % (tmp[4], o[8]))
    a("v_mov_b32 %s, %s" % (tmp[5], o[9]))
    a("v_mov_b32 %s, %s" % (tmp[6], o[8]))
    a("v_mov_b32 %s, %s" % (tmp[7], o[9]))
    swaps(0)
    a.vmem("buffer_store_dwordx4 %s, %s, s[4:7], s28 offen%s" % (o[0:4], r.vRes[0], SC()), "out")
    swaps(4)
    a("v_permlane16_swap_b32 %s, %s" % (tmp[4], tmp[6]))
    a("v_permlane16_swap_b32 %s, %s" % (tmp[5], tmp[7]))
    a.vmem("buffer_store_dwordx4 %s, %s, s[4:7], s28 offen offset:1024%s" % (o[4:8], r.vRes[0], SC()), "out")
    a.vmem("buffer_store_dwordx4 %s, %s, s[4:7], s28 offen%s" % (tmp[4:8], r.vRes[2], SC()), "out")
    sq = tmp[2:4]
    a("s_mov_b32 s24, 0x3f803f80")
    for q in range(4):
        a("v_mov_b32 %s, 0" % tmp[q])
    for k in range(10):
        a("v_dot2c_f32_bf16 %s, s24, %s" % (tmp[2 * (k % 2)], o[k]))
        a("v_dot2c_f32_bf16 %s, %s, %s" % (tmp[1 + 2 * (k % 2)], o[k], o[k]))
    a(pk("add", sq, sq, tmp[0:2]))
    for sw in ("v_permlane16_swap_b32", "v_permlane32_swap_b32"):
        a("v_mov_b32 %s, %s" % (tmp[0], sq[0]))
        a("v_mov_b32 %s, %s" % (tmp[1], sq[1]))
        a("%s %s, %s" % (sw, sq[0], tmp[0]))
        a("%s %s, %s" % (sw, sq[1], tmp[1]))
        a(pk("add", sq, sq, tmp[0:2]))
    a.vmem("buffer_store_dwordx2 %s, %s, s[4:7], 0 offen%s" % (sq, r.vSt, SC()), "out")
    if CFG["RB"]:
        a("v_add_u32 %s, s28, %s" % (vRB[0], r.vRes[0]))
        a("v_add_u32 %s, s28, %s" % (vRB[1], r.vRes[2]))
    a.rb = [(vRB[0], "0", 0), (vRB[0], "0", 1024), (vRB[1], "0", 0)]


def wait_first(a, loads=()):
    arrive(a)
    if not CFG["SPLIT"]:
        wait(a, loads)
        return
    spoll_issue(a, 1)
    for f in loads:
        f()
    spoll_wait(a, 1, "s22")
    stamp(a, 8); stamp_dump(a); stamp(a, 0); dbg_time(a)


def final_store(a, o, tmp):
    a("L_final:")
    a("s_mov_b32 s32, s90")
    a("s_mov_b32 s33, s91")
    a("s_mov_b32 s34, %d" % (S * D * 2))
    a("s_mov_b32 s35, 0x20000")
    a("s_mul_i32 s17, s16, 20480")
    a("v_mul_u32_u24 %s, 1280, %s" % (tmp[0], vN))
    a("v_lshl_add_u32 %s, %s, 3, %s" % (tmp[0], vG, tmp[0]))
    a("v_add_u32 %s, s17, %s" % (tmp[0], tmp[0]))
    a("s_lshl_b32 s30, s30, 5")
    a("s_lshl_b32 s29, s29, 5")
    for j in range(4):
        a("buffer_store_dwordx2 %s, %s, s[32:35], s30 offen offset:%d" % (o[2 * j:2 * j + 2], tmp[0], j * 32))
    a("buffer_store_dwordx2 %s, %s, s[32:35], s29 offen" % (o[8:10], tmp[0]))
    dbg_time(a)
    if CFG["SPAN"]:
        a("s_waitcnt vmcnt(0)")
        a("s_memrealtime s[60:61]")
        a("s_lshl_b32 s59, s2, 2")
        a("s_add_u32 s59, s59, s10")
        a("s_lshl_b32 s59, s59, 3")
        a("s_add_u32 s59, s59, %d" % PROFO)
        a("s_mov_b64 exec, 1")
        a("s_waitcnt lgkmcnt(0)")
        a("v_mov_b32 v100, s80\nv_mov_b32 v101, s60\nv_mov_b32 v102, s59")
        a("buffer_store_dwordx2 v[100:101], v102, s[4:7], 0 offen")
    if PROF:
        stamp(a, 5)
        a("s_waitcnt vmcnt(0)")
        stamp(a, 6)
        stamp(a, 7)
        stamp(a, 8)
        stamp_dump(a)


class PK:
    def __init__(self, a, NK, wbase, abase, xres, xout, stout, red, final, wreg, vW_, sW_):
        self.a, self.NK, self.wbase, self.abase = a, NK, wbase, abase
        self.vw, self.sw = vW_, sW_
        self.xres, self.xout, self.stout, self.red, self.final = xres, xout, stout, red, final
        self.W = wreg
        self.todo = None

    def pre_setup(self):
        self.todo = list(range(5 * self.NK))
        return ["s_mul_i32 s17, %s, %d" % (sCG, 4 * self.NK * 5120),
                "s_mul_i32 s19, %s, %d" % (sWAVE, self.NK * 5120),
                "s_add_u32 s17, s17, s19",
                "s_add_u32 s17, s17, %d" % self.wbase,
                "v_add_u32 %s, s17, v2" % self.vw]

    def kmap(self, st):
        return 3 * (st % 4) + st // 4 if self.final else st

    def take(self, n):
        a = self.a
        ks, self.todo = self.todo[:n], self.todo[n:]
        def mk(k):
            def f():
                if CFG["NOW"] & (8 if self.final else 2):
                    return
                st, j = divmod(k, 5)
                if j in (0, 4):
                    a("s_mov_b32 %s, %d" % (self.sw, self.kmap(st) * 5120 + (j // 4) * 4096))
                a.vmem("buffer_load_dwordx4 %s, %s, s[4:7], %s offen offset:%d%s" % (self.W(k), self.vw, self.sw, (j % 4) * 1024, WSC()), ("w", self.NK, k))
            f.k = k
            return f
        return [mk(k) for k in ks]

    def addr_lines(self):
        r, a = self, Asm()
        V = Alloc("v", CFG["PKB"], 228)
        r.vA = Reg("v", 240, 4); r.vW = Reg("v", 244, 1); r.vRd = Reg("v", 245, 1); r.vRes = Reg("v", 246, 3); r.vSt = Reg("v", 249, 1)
        r.tmp = V.get(8)
        V.get(CFG["PKG"])
        r.acc = [[V.get(4) for j in range(5)] for i in range(4)]
        r.ring = V.get(80)
        r.part = V.get(20)
        tts = 4 * self.NK * 1024
        a("s_lshl_b32 s16, %s, 2" % sRB64)
        a("s_mul_i32 s16, s16, %d" % tts)
        a("s_mul_i32 s19, %s, %d" % (sWAVE, self.NK * 1024))
        a("s_add_u32 s16, s16, s19")
        a("s_add_u32 s16, s16, %s" % sLAY)
        a("s_add_u32 s16, s16, %d" % self.abase)
        for i in range(4):
            a("s_add_u32 s17, %s, %d" % (sWAVE, i))
            a("s_and_b32 s17, s17, 3")
            a("s_mul_i32 s17, s17, %d" % tts)
            a("s_add_u32 s17, s17, s16")
            a("v_add_u32 %s, s17, v2" % r.vA[i])
        p_addr(a, r, Reg("v", 250, 1), self.red, self.xres, self.stout)
        return a.lines

    def before_wait(self, emit=None):
        r, a = self, (emit or self.a)
        r.keep = Reg("v", 228, 10)
        if not self.final:
            l = label("res")
            flush = getattr(a, "flush", None)
            if flush:
                flush()
            self.a("s_cmp_lg_u32 %s, 0" % sLAY)
            self.a("s_cbranch_scc1 %s" % l)
            n = len(self.a.vm)
            p_res_loads(self.a, r.keep, r.vRes)
            self.a.vm = self.a.vm[:n]
            self.a("%s:" % l)

    def body(self, setup=(), extra=()):
        r, a = self, self.a
        acc, NK = r.acc, self.NK
        G0 = (8 if CFG["T3"] else 4) if self.final else 0
        seq = [(ks, i) for ks in range(G0) for i in (1, 2, 3, 0)] + [(ks, i) for i in (1, 2, 3, 0) for ks in range(G0, NK)]
        aq = []
        for n, (ks, i) in enumerate(seq):
            def f(n=n, ks=ks, i=i):
                if self.final and n == 16 and CFG["T3"]:
                    spoll_wait(a, 2, "s22")
                if self.final and n == 4 * G0:
                    spoll_wait(a, 0, sTGT)
                kb = self.kmap(ks)
                if st.get("s20") != kb // 4:
                    a("s_mov_b32 s20, %d" % (kb // 4 * 4096))
                    st["s20"] = kb // 4
                if self.final and n == CFG["BPOLL"]:
                    spoll_issue(a, 2 if CFG["T3"] else 0)
                if self.final and CFG["T3"] and n == CFG["BPOLL"] + 16:
                    spoll_issue(a, 0)
                a.vmem("buffer_load_dwordx4 %s, %s, s[4:7], s20 offen offset:%d%s" % (r.ring.q(n % 20), r.vA[i], (kb % 4) * 1024, SC()), ("x", n))
            aq.append((n, f))
        st = {}
        wq = [(f.k // 5, f) for f in self.take(99)]
        for k in range(CFG["PP4"] if self.final else CFG["PP"]):
            aq.pop(0)[1]()
            if self.final and k == CFG["BARR"]:
                a.wait_vm("out")
                a("s_add_u32 %s, %s, 16" % (sTGT, sTGT))
                signal(a, 0)
                read_back(a, [(vRB[0], so, m * 1024) for m in (1, 2) for so in ("0", "s23")])
        stamp(a, 1)
        def unpack():
            l = label("unsw")
            if not self.final:
                a("s_cmp_eq_u32 %s, 0" % sLAY)
                a("s_cbranch_scc1 %s" % l)
            for sw in ("v_permlane16_swap_b32", "v_permlane32_swap_b32"):
                for b in (0, 4):
                    for d in range(2):
                        a("%s %s, %s" % (sw, r.keep[b + d], r.keep[b + 2 + d]))
            a("%s:" % l)
            a("s_nop 0")
            for j in range(5):
                for h in range(2):
                    a("v_lshlrev_b32 %s, 16, %s" % (acc[0][j][2 * h], r.keep[2 * j + h]))
                    a("v_and_b32 %s, 0xffff0000, %s" % (acc[0][j][2 * h + 1], r.keep[2 * j + h]))
        if self.final:
            unpack()
        setup = list(setup)
        extra = list(extra)
        first_use = {}
        for n, (ks, i) in enumerate(seq):
            first_use.setdefault(ks, n)
        wq = [(first_use[ks], f) for ks, f in wq]
        side = []
        cnt, tau, started = 0, 0, set()
        for n, (ks, i) in enumerate(seq):
            while wq and wq[0][0] <= n:
                wq.pop(0)[1]()
            while aq and aq[0][0] <= n:
                aq.pop(0)[1]()
            a.wait_vm([("w", NK, k) for k in range(5 * ks, 5 * ks + 5)] + [("x", n)])
            if n == 0:
                stamp(a, 2)
            if n == 1 and not self.final:
                unpack()
            for j in range(5):
                c = str(acc[i][j]) if (i == 0 or i in started) else "0"
                a("%s %s, %s, %s, %s" % (MF, acc[i][j], self.W(5 * ks + j), r.ring.q(n % 20), c))
                cnt += 1
                if cnt % CFG["SP4"] == 0 and (aq or wq):
                    ca = aq and aq[0][0] - 20 < n
                    if ca and (not wq or aq[0][0] <= wq[0][0] - 4):
                        aq.pop(0)[1]()
                    elif wq:
                        wq.pop(0)[1]()
                    elif ca:
                        aq.pop(0)[1]()
                elif cnt % CFG["SPX"] == 0 and extra and not aq and not wq and not setup:
                    extra.pop(0)()
                elif side:
                    for _ in range(CFG["SDK"]):
                        if side:
                            x = side.pop(0)
                            if x is not None:
                                x() if callable(x) else a(x)
                elif cnt % CFG["SP4"] == 1 and setup and n >= 8:
                    a(setup.pop(0))
            started.add(i)
            if ks == NK - 1 and i:
                for x in side:
                    if x is not None:
                        x() if callable(x) else a(x)
                side = [None] * 4
                par = (tau % 2) * 5120
                for j in range(5):
                    if tau:
                        side.append(lambda j=j: a.wait_lg(("p", j)))
                        side += ["v_add_f32 %s, %s, %s" % (acc[i][j][q], acc[i][j][q], r.part.q(j)[q]) for q in range(4)]
                    side.append(lambda i=i, j=j, par=par: a.ds("ds_write_b128 %s, %s offset:%d" % (r.vW, acc[i][j], par + j * 1024), "rw"))
                side += [None] * CFG["XW"]
                def swap(par=par):
                    a.wait_lg("rw")
                    a("s_barrier")
                    for j in range(5):
                        a.ds("ds_read_b128 %s, %s offset:%d" % (r.part.q(j), r.vRd, par + j * 1024), ("p", j))
                side.append(swap)
                tau += 1
        for x in side:
            if x is not None:
                x() if callable(x) else a(x)
        assert not aq and not wq and not setup
        p_epilogue(a, r, acc, None, r.part, r.tmp, self.xout - self.xres, extra, self.final)
        self.left = extra


def main_body():
    a = Asm()
    a("s_cmp_ge_u32 s2, 256")
    a("s_cbranch_scc1 L_end")
    a("s_load_dwordx2 s[4:5], s[0:1], 72")
    a("s_load_dwordx4 s[84:87], s[0:1], 0")
    a("s_load_dwordx2 s[88:89], s[0:1], 16")
    a("s_load_dwordx2 s[90:91], s[0:1], 32")
    a("s_load_dwordx2 s[92:93], s[0:1], 40")
    a("s_load_dwordx2 s[96:97], s[0:1], 48")
    a("s_load_dwordx2 s[94:95], s[0:1], 64")
    if CFG["SPAN"]:
        a("s_memrealtime s[80:81]")
    if CFG["DBGT"]:
        a("s_memrealtime s[80:81]")
        a("s_mov_b32 s62, 4")
    if PROF:
        a("s_mov_b32 %s, 0" % sPH)
        a("s_memrealtime s[80:81]")
    stamp(a, 0)
    a("v_lshrrev_b32 v1, 6, v0")
    a("v_readfirstlane_b32 %s, v1" % sWAVE)
    a("v_and_b32 v1, 63, v0")
    a("v_lshlrev_b32 v2, 4, v1")
    a("v_and_b32 %s, 15, v1" % vN)
    a("v_lshrrev_b32 %s, 4, v1" % vG)
    a("s_mov_b32 s6, %d" % WS_USED)
    a("s_mov_b32 s7, 0x20000")

    def late_setup():
        a("s_and_b32 s16, s2, 7")
        a("s_lshr_b32 s17, s2, 3")
        lx = CFG["XC"] - 1
        a("s_lshr_b32 %s, s16, %d" % (sRB, lx))
        a("s_lshl_b32 %s, %s, %d" % (sRB, sRB, lx + 1))
        a("s_and_b32 s18, s17, %d" % ((2 << lx) - 1))
        a("s_add_u32 %s, %s, s18" % (sRB, sRB))
        a("s_lshr_b32 s17, s17, %d" % (lx + 1))
        a("s_and_b32 s16, s16, %d" % lx)
        a("s_lshl_b32 %s, s16, 3" % sP)
        a("s_add_u32 %s, %s, s17" % (sP, sP))
        a("s_lshl_b32 %s, %s, 1" % (sRB64, sRB))
        a("s_and_b32 s18, %s, 1" % sP)
        a("s_add_u32 %s, %s, s18" % (sRB64, sRB64))
        a("s_lshr_b32 %s, %s, 1" % (sCG, sP))
        a("s_and_b32 s18, %s, %d" % (sRB, 3 if CFG["ROT"] else 0))
        a("s_mul_i32 %s, s18, 3" % sROT12)
        a("s_mul_i32 %s, s18, 5" % sROT10)
        a("s_lshr_b32 %s, %s, 1" % (sROT10, sROT10))
        a("s_mov_b32 %s, 0" % sLAY)
        a("s_mov_b32 %s, 0" % sTGT)
        a("s_lshl_b32 s17, %s, 11" % sRB)
        a("s_add_u32 s17, s17, %d" % CNT)
        a("v_lshl_add_u32 %s, %s, 7, s17" % (vCNT, vN))
        a("v_mov_b32 v255, 0x%x" % OOB)
        a("v_cmp_gt_u32 vcc, 16, v1")
        a("s_lshl_b32 s18, %s, 7" % sP)
        a("s_add_u32 s17, s17, s18")
        a("v_cndmask_b32 %s, v255, %s, vcc" % (vCNT, vCNT))
        a("v_mov_b32 %s, s17" % vPL)
        a("s_add_u32 s100, s4, s17")
        a("s_addc_u32 s101, s5, 0")
        a("v_cmp_eq_u32 vcc, 0, v1")
        a("v_cndmask_b32 %s, v255, %s, vcc" % (vPL, vPL))
    p1, p3 = P1(a), P3(a)
    p2 = PK(a, 5, W2, PQ, XA, XB, STB, 122880, False, lambda k: Reg("a", 192 + 4 * k if k < 16 else 156 + 4 * (k - 16), 4), vPRE[2], "s47")
    p4 = PK(a, 12, W4, H, XB, XA + LSTR, STA + LSTR, 122880, True, lambda k: Reg("a", 4 * k, 4), vPRE[3], "s58")
    p0_phase(a, p1, late_setup)
    a.vm = []
    for f in p1.pre_loads(CFG["NPRE1A"]):
        f()
    p1.body(p2, p3, p4, CFG["NPRE1A"], True)
    tail_state = list(a.vm[a.vm.index("out"):])
    a("L_mid:")
    ex = p1.extra
    w = Weaver(a, ex[:CFG["NX2"]], 8)
    for x in ([] if CFG["AE"] & 1 else p2.addr_lines()):
        w(x)
    w.flush()
    p2.before_wait(); arrive(a); wait(a, ex[CFG["NX2"]:CFG["NX2"] + CFG["NX3"]])
    rest = ex[CFG["NX2"] + CFG["NX3"]:]
    assert len(ex) - len(rest) >= len(ex) - 6 * CFG["NE3"] - CFG["NW4P"]
    p2.body((), rest)
    stamp(a, 5)
    w = Weaver(a, p2.left, 6)
    p3.before_wait(w); w.flush(); wait_first(a, p3.wait_loads() + p4.take(CFG["NW4Q"]))
    p3.body(p4)
    stamp(a, 5)
    spoll_issue(a, 1)
    for x in ([] if CFG["AE"] & 2 else p4.addr_lines()):
        a(x)
    p4.before_wait()
    stamp(a, 6); stamp(a, 7)
    spoll_wait(a, 1, "s22")
    stamp(a, 8); stamp_dump(a); stamp(a, 0); dbg_time(a)
    p4.body(p1.pre_setup())
    stamp(a, 5)
    a("s_add_u32 %s, %s, %d" % (sLAY, sLAY, LSTR))
    pl = p1.pre_loads(CFG["NPRE1"])
    assert len(pl) - CFG["NP1W"] <= 28
    w = Weaver(a, pl[:len(pl) - CFG["NP1W"]], 12)
    p1.before_wait(w); w.flush(); wait_first(a, pl[len(pl) - CFG["NP1W"]:])
    p1.body(p2, p3, p4, CFG["NPRE1"])
    assert a.vm[a.vm.index("out"):] == tail_state
    a("s_branch L_mid")
    final_store(a, p4.keep, p4.tmp)
    a("L_end:")
    a("s_endpgm")
    a("L_code_end:")
    return a, dict(vgpr=512, acc=256, lds=163840)


def p0_phase(a, p1, late_setup):
    U1, UX, U2, UZ, U3, U4 = 160, 256, 100, 47, 480, 240
    BX = U1; B2 = BX + UX; BZ = B2 + U2; BE = BZ + UZ
    NT = " nt" if CFG["K0NT"] & 1 else ""
    n_, g_ = "v3", "v4"
    DST = [82, 83, 86, 87, 88, 89, 98, 99]

    def nat_flag(kb):
        a("s_mul_i32 s29, %s, 52" % kb)
        a("s_lshr_b32 s29, s29, 8")
        a("s_mul_i32 s29, s29, 5")
        a("s_sub_u32 s29, %s, s29" % kb)
        a("s_cmp_eq_u32 s29, 2")

    def colsum(j, frag):
        a("%s v[%d:%d], v[56:59], %s, 0" % (MF, 64 + 4 * (j % 4), 67 + 4 * (j % 4), frag))

    def colsum_keep(j):
        a("v_cndmask_b32 v%d, v%d, v%d, s[%d:%d]" % (60 + j // 4, 60 + j // 4, 64 + 4 * (j % 4), 50 + 2 * (j % 4), 51 + 2 * (j % 4)))

    def issue128(srd, rs, kb, ch, lds, v):
        a("v_mul_lo_u32 %s, %s, %s" % (v, g_, rs))
        a("v_lshl_add_u32 %s, %s, 4, %s" % (v, n_, v))
        a("s_mul_i32 s17, %s, %s" % (kb, rs))
        a("s_lshl_b32 s17, s17, 5")
        a("s_lshl_b32 s19, %s, 8" % ch)
        a("s_add_u32 s17, s17, s19")
        a("s_lshl_b32 s19, %s, 2" % rs)
        for i in range(8):
            a("s_add_u32 m0, %s, %d" % (lds, i * 1024))
            a("s_nop 0")
            a("buffer_load_dwordx4 %s, %s, s17 offen%s lds" % (v, srd, NT))
            a("s_add_u32 s17, s17, s19")

    def rdaddr128(lds):
        a("v_lshrrev_b32 v230, 2, %s" % n_)
        a("v_lshl_add_u32 v230, %s, s29, v230" % g_)
        a("v_lshlrev_b32 v230, 8, v230")
        a("v_and_b32 v231, 3, %s" % n_)
        a("v_lshl_add_u32 v230, v231, 3, v230")
        a("v_add_u32 v230, %s, v230" % lds)
        a("v_add_u32 v231, s30, v230")

    def dst640(kb, ch, nkb, base):
        a("s_lshl_b32 s17, %s, 3" % ch)
        a("s_mul_i32 s19, s17, 52")
        a("s_lshr_b32 s19, s19, 8")
        a("s_mul_i32 s28, s19, 5")
        a("s_sub_u32 s17, s17, s28")
        a("s_and_b32 s27, s19, 1")
        a("s_mul_i32 s19, s19, %d" % nkb)
        a("s_add_u32 s19, s19, %s" % kb)
        a("s_mul_i32 s19, s19, 5120")
        a("s_add_u32 s19, s19, %d" % base)
        for i in range(8):
            a("s_sub_u32 s28, s17, s27")
            a("s_cselect_b32 s28, 4, s28")
            a("s_lshl_b32 s28, s28, 10")
            a("s_add_u32 s%d, s28, s19" % DST[i])
            if i < 7:
                a("s_add_u32 s17, s17, 1")
                a("s_cmp_eq_u32 s17, 5")
                a("s_cselect_b32 s17, 0, s17")
                a("s_cselect_b32 s28, 1, 0")
                a("s_xor_b32 s27, s27, s28")
                a("s_mul_i32 s28, s28, %d" % (nkb * 5120))
                a("s_add_u32 s19, s19, s28")

    def move128():
        for t in range(8):
            for h in range(2):
                a.ds("ds_read_b64_tr_b16 v[%d:%d], v%d offset:%d" % (96 + 4 * t + 2 * h, 97 + 4 * t + 2 * h, 230 + h, t * 32), ("t", t))
        for t in range(8):
            a.wait_lg(("t", t))
            a("buffer_store_dwordx4 v[%d:%d], v2, s[4:7], s%d offen sc1" % (96 + 4 * t, 99 + 4 * t, DST[t]))

    a("s_lshl_b32 s38, %s, 8" % sWAVE)
    a("s_add_u32 s38, s38, s2")
    a("s_sub_u32 s16, s38, 160")
    a("s_cmp_lt_u32 s2, 160")
    a("s_cselect_b32 s16, s2, s16")
    a("s_cmp_eq_u32 %s, 2" % sWAVE)
    a("s_cselect_b32 s38, s16, s38")
    a("s_add_u32 s39, s2, 256")
    a("s_sub_u32 s16, 767, s2")
    a("s_cmp_eq_u32 %s, 2" % sWAVE)
    a("s_cselect_b32 s39, s16, s39")
    a("s_cmp_eq_u32 %s, 3" % sWAVE)
    a("s_cselect_b32 s39, s2, s39")
    a("s_cmp_eq_u32 %s, 0" % sWAVE)
    a("s_cselect_b32 s39, 0x1000, s39")
    a("s_lshl_b32 s18, %s, 14" % sWAVE)
    a("s_lshl_b32 s37, %s, 13" % sWAVE)
    a("s_add_u32 s37, s37, 0x20000")
    a("s_mov_b32 s23, 0x20000\ns_mov_b32 s35, 0x20000")
    a("s_cmp_lt_u32 s38, %d" % BX)
    a("s_cbranch_scc1 L_i_w1")
    a("s_cmp_lt_u32 s38, %d" % B2)
    a("s_cbranch_scc1 L_i_x")
    a("s_cmp_lt_u32 s38, %d" % BZ)
    a("s_cbranch_scc1 L_i_w2")
    a("s_waitcnt lgkmcnt(0)")
    a("s_cmp_lt_u32 s38, %d" % BE)
    a("s_cbranch_scc0 L_i_b")
    a("s_sub_u32 s16, s38, %d" % BZ)
    a("s_cmp_ge_u32 s16, 14")
    a("s_cselect_b32 s17, %d, 0" % (LSTR - 14 * 4096))
    a("s_cmp_ge_u32 s16, 28")
    a("s_cselect_b32 s17, 0x%x, s17" % ((CS3F - KV - 28 * 4096) & 0xffffffff))
    a("s_cmp_ge_u32 s16, 31")
    a("s_cselect_b32 s17, 0x%x, s17" % ((CNT - KV - 31 * 4096) & 0xffffffff))
    a("s_add_u32 s17, s17, %d" % KV)
    a("s_lshl_b32 s16, s16, 12")
    a("s_add_u32 s17, s17, s16")
    for q in range(4):
        a("v_mov_b32 v%d, 0" % (16 + q))
    for q in range(4):
        a("buffer_store_dwordx4 v[16:19], v2, s[4:7], s17 offen offset:%d sc1" % (q * 1024))
    a("s_branch L_i_b")

    a("L_i_w1:")
    a("s_lshr_b32 s24, s38, 3")
    a("s_and_b32 s25, s38, 7")
    a("v_mul_u32_u24 v12, 205, v1")
    a("v_lshrrev_b32 v12, 11, v12")
    a("v_mul_u32_u24 v13, 10, v12")
    a("v_sub_u32 v13, v1, v13")
    a("v_cmp_le_u32 vcc, 3, v12")
    a("v_cndmask_b32 v14, 0, 1, vcc")
    a("v_mul_u32_u24 v15, 3, v14")
    a("v_sub_u32 v12, v12, v15")
    a("v_add_u32 v12, 1, v12")
    a("v_cmp_eq_u32 vcc, 3, v12")
    a("v_cndmask_b32 v12, v12, 0, vcc")
    a("v_mul_u32_u24 v12, 1280, v12")
    a("v_lshl_add_u32 v12, v13, 4, v12")
    a("v_mul_u32_u24 v14, 3840, v14")
    a("s_mul_i32 s17, s24, %d" % (32 * 3840))
    a("s_mul_i32 s19, s25, 160")
    a("s_add_u32 s17, s17, s19")
    a("s_mul_i32 s19, %s, %d" % (sWAVE, 8 * 3840))
    a("s_add_u32 s17, s17, s19")
    a("s_lshl_b32 s18, %s, 12" % sWAVE)
    a("v_add3_u32 v12, v12, v14, s17")
    a("v_mov_b32 v13, 0x%x" % OOB)
    a("v_cmp_gt_u32 vcc, 60, v1")
    a("v_cndmask_b32 v12, v13, v12, vcc")
    a("s_mov_b32 s22, %d" % (640 * 1920 * 2))
    a("s_waitcnt lgkmcnt(0)")
    a("s_mov_b32 s20, s86\ns_mov_b32 s21, s87")
    for i in range(8):
        a("s_add_u32 m0, s18, %d" % (i * 1024))
        a("s_mov_b32 s19, %d" % (i * 7680))
        a("buffer_load_dwordx4 v12, s[20:23], s19 offen%s lds" % (" nt" if CFG["K0NT"] & 2 else ""))
    a("s_branch L_i_b")

    a("L_i_x:")
    a("s_sub_u32 s16, s38, %d" % BX)
    a("s_lshr_b32 s24, s16, 1")
    a("s_and_b32 s25, s16, 1")
    a("s_mul_i32 s17, s24, 20480")
    a("s_mul_i32 s19, s25, 640")
    a("s_add_u32 s19, s19, s17")
    a("v_mul_u32_u24 v12, 1280, %s" % n_)
    a("v_lshl_add_u32 v13, %s, 4, v12" % g_)
    a("s_mov_b32 s22, %d" % (S * D * 2))
    a("s_waitcnt lgkmcnt(0)")
    a("s_mov_b32 s20, s84\ns_mov_b32 s21, s85")
    for kb in range(10):
        a("buffer_load_dwordx4 v[%d:%d], v13, s[20:23], s19 offen offset:%d%s" % (96 + 4 * kb, 99 + 4 * kb, kb * 64, " nt" if CFG["K0NT"] & 4 else ""))
    a("s_branch L_i_b")

    a("L_i_w2:")
    a("s_sub_u32 s16, s38, %d" % B2)
    a("s_mul_i32 s24, s16, 52429")
    a("s_lshr_b32 s24, s24, 18")
    a("s_mul_i32 s17, s24, 5")
    a("s_sub_u32 s25, s16, s17")
    a("s_mov_b32 s22, %d\ns_mov_b32 s16, 1280" % (640 * 640 * 2))
    a("s_waitcnt lgkmcnt(0)")
    a("s_mov_b32 s20, s88\ns_mov_b32 s21, s89")
    a("s_mul_i32 s28, s24, 52")
    a("s_lshr_b32 s28, s28, 8")
    a("s_mul_i32 s17, s28, 5")
    a("s_sub_u32 s26, s24, s17")
    a("s_mul_i32 s17, s28, 160")
    a("s_mul_i32 s19, s26, 40")
    a("s_cmp_eq_u32 s26, 4")
    a("s_cselect_b32 s19, 32, s19")
    a("s_cselect_b32 s27, %d, %d" % (36 * 1280, 0))
    a("s_max_u32 s27, s27, %d" % (4 * 1280))
    a("s_add_u32 s17, s17, s19")
    a("s_mul_i32 s17, s17, 1280")
    a("s_lshl_b32 s19, s25, 8")
    a("s_add_u32 s17, s17, s19")
    a("v_mul_u32_u24 v12, 1280, %s" % g_)
    a("v_lshl_add_u32 v12, %s, 4, v12" % n_)
    for i in range(8):
        a("s_add_u32 m0, s18, %d" % (i * 1024))
        a("s_nop 0")
        a("buffer_load_dwordx4 v12, s[20:23], s17 offen%s lds" % NT)
        a("s_add_u32 s17, s17, %s" % ("s27" if i % 2 else str(4 * 1280)))

    a("L_i_b:")
    a("s_mov_b32 s28, s18")
    late_setup()
    a("s_mov_b32 s18, s28")
    a("s_cmp_eq_u32 %s, 3" % sWAVE)
    a("s_cbranch_scc0 L_i_c")
    a("s_cmp_eq_u32 %s, 0" % sP)
    a("s_cbranch_scc0 L_i_c")
    for q in range(4):
        a("v_mov_b32 v%d, 0" % (16 + q))
    a("s_lshl_b32 s17, %s, 11" % sRB)
    a("s_add_u32 s17, s17, %d" % CNT_G)
    a("buffer_store_dwordx4 v[16:19], v2, s[4:7], s17 offen sc1")
    a("buffer_store_dwordx4 v[16:19], v2, s[4:7], s17 offen offset:1024 sc1")
    a("L_i_c:")
    a("s_barrier")
    a("s_cmp_eq_u32 %s, 3" % sWAVE)
    a("s_cbranch_scc0 L_i_b1")
    a("s_cmp_eq_u32 %s, 0" % sP)
    a("s_cbranch_scc0 L_i_b0")
    a("s_mov_b64 exec, 1")
    a("v_mov_b32 v16, 1")
    a("s_waitcnt vmcnt(0)")
    a("global_atomic_add v2, v16, s[94:95]")
    a("s_mov_b64 exec, -1")
    a("L_i_b0:")
    if CFG["CPF"]:
        a("s_getpc_b64 s[32:33]")
        a("L_pc:")
        a("s_lshr_b32 s17, s2, 3")
        a("s_lshl_b32 s17, s17, 11")
        a("v_add_u32 v12, s17, v2")
        a("v_min_u32 v12, L_code_end-L_pc-1040, v12")
        a("v_mov_b32 v15, s33")
        a("v_add_co_u32 v14, vcc, s32, v12")
        a("v_addc_co_u32 v15, vcc, 0, v15, vcc")
        a("global_load_dwordx4 a[252:255], v[14:15], off")
        a("global_load_dwordx4 a[252:255], v[14:15], off offset:1024")
    a("L_i_b1:")

    a("L_p_a:")
    stamp(a, 1)
    for q in range(4):
        a("v_cmp_eq_u32 s[%d:%d], %d, %s" % (50 + 2 * q, 51 + 2 * q, q, g_))
        a("v_mov_b32 v%d, 0x3f803f80" % (56 + q))

    def wait_a():
        a("s_waitcnt vmcnt(0)")
        stamp(a, 2)
        a("s_barrier")
    a("s_cmp_lt_u32 s38, %d" % BX)
    a("s_cbranch_scc1 L_p_w1")
    a("s_cmp_lt_u32 s38, %d" % B2)
    a("s_cbranch_scc1 L_p_x")
    a("s_cmp_lt_u32 s38, %d" % BZ)
    a("s_cbranch_scc1 L_p_w2")
    a("s_barrier")
    a("s_branch L_drain")

    a("L_p_w1:")
    a("s_mov_b32 s29, 2\ns_mov_b32 s30, 2048")
    a("v_lshrrev_b32 v12, 3, %s" % n_)
    a("v_lshl_add_u32 v12, %s, s29, v12" % g_)
    a("v_lshlrev_b32 v12, 10, v12")
    a("v_bfe_u32 v14, %s, 2, 1" % n_)
    a("v_mul_u32_u24 v14, 480, v14")
    a("s_mul_i32 s18, %s, 40" % sWAVE)
    a("v_add3_u32 v12, v12, v14, s18")
    a("v_and_b32 v14, 3, %s" % n_)
    a("v_lshlrev_b32 v14, 2, v14")
    for j in range(8):
        a("v_add_u32 v15, %d, v14" % (16 * j))
        a("v_mul_u32_u24 v32, 205, v15")
        a("v_lshrrev_b32 v32, 13, v32")
        a("v_min_u32 v32, 2, v32")
        a("v_mul_u32_u24 v32, 80, v32")
        a("v_lshl_add_u32 v32, v15, 1, v32")
        a("v_add_u32 v%d, v12, v32" % (16 + j))
        a("v_add_u32 v%d, s30, v%d" % (24 + j, 16 + j))
    kpos_scalar(a, "s27", "s24")
    a("s_lshl_b32 s17, s25, 1")
    a("s_lshr_b32 s19, %s, 1" % sWAVE)
    a("s_add_u32 s17, s17, s19")
    a("s_mul_i32 s17, s17, 163840")
    a("s_add_u32 s17, s17, %d" % W1)
    a("s_mul_i32 s19, s27, 6144")
    a("s_add_u32 s19, s19, s17")
    a("v_add_u32 v33, s19, v2")
    a("s_lshl_b32 s19, s27, 11")
    a("s_add_u32 s19, s19, s17")
    a("s_add_u32 s19, s19, %d" % (120 * 1024))
    a("v_add_u32 v34, s19, v2")
    a("s_lshl_b32 s17, s24, 13")
    a("s_lshl_b32 s19, s25, 10")
    a("s_add_u32 s17, s17, s19")
    a("s_lshl_b32 s19, %s, 8" % sWAVE)
    a("s_add_u32 s17, s17, s19")
    a("s_add_u32 s17, s17, %d" % CSP1)
    a("v_lshl_add_u32 v35, v1, 2, s17")
    a("s_mov_b32 s82, 4096")
    wait_a()
    for j in range(8):
        for h in range(2):
            a.ds("ds_read_b64_tr_b16 v[%d:%d], v%d" % (96 + 4 * j + 2 * h, 97 + 4 * j + 2 * h, 16 + j + 8 * h), ("t", j))
    for j in range(8):
        a.wait_lg(("t", j))
        fr = "v[%d:%d]" % (96 + 4 * j, 99 + 4 * j)
        if j < 6:
            a("buffer_store_dwordx4 %s, v33, s[4:7], %s offen offset:%d sc1" % (fr, ["0", "s82"][j // 4], (j % 4) * 1024))
        else:
            a("buffer_store_dwordx4 %s, v34, s[4:7], 0 offen offset:%d sc1" % (fr, (j - 6) * 1024))
        colsum(j, fr)
        if j >= 2:
            colsum_keep(j - 2)
    colsum_keep(6); colsum_keep(7)
    for q in range(2):
        a("buffer_store_dword v%d, v35, s[4:7], 0 offen offset:%d sc1" % (60 + q, q * 256))
    a("s_branch L_drain")

    a("L_p_x:")
    a("s_mul_i32 s17, s24, 20480")
    a("s_mul_i32 s19, s25, 10240")
    a("s_add_u32 s17, s17, s19")
    a("s_add_u32 s17, s17, %d" % XA)
    a("v_add_u32 v12, s17, v2")
    a("s_mov_b32 s82, 4096\ns_mov_b32 s83, 8192")
    for q in range(4):
        a("v_mov_b32 v%d, 0" % (16 + q))
    a("s_mov_b32 s28, 0x3f803f80")
    a("s_lshl_b32 s17, s24, 10")
    a("s_lshl_b32 s19, s25, 7")
    a("s_add_u32 s17, s17, s19")
    a("s_add_u32 s17, s17, %d" % STA)
    a("v_lshlrev_b32 v14, 3, %s" % n_)
    a("v_lshl_add_u32 v14, %s, 8, v14" % g_)
    wait_a()
    for kb in range(10):
        a("buffer_store_dwordx4 v[%d:%d], v12, s[4:7], %s offen offset:%d sc1" % (96 + 4 * kb, 99 + 4 * kb, ["0", "s82", "s83"][kb // 4], (kb % 4) * 1024))
    for kb in range(10):
        for d in range(4):
            a("v_dot2c_f32_bf16 v%d, s28, v%d" % (16 + 2 * (d % 2), 96 + 4 * kb + d))
            a("v_dot2c_f32_bf16 v%d, v%d, v%d" % (17 + 2 * (d % 2), 96 + 4 * kb + d, 96 + 4 * kb + d))
    a(pk("add", Reg("v", 16, 2), Reg("v", 16, 2), Reg("v", 18, 2)))
    a("buffer_store_dwordx2 v[16:17], v14, s[4:7], s17 offen sc1")
    a("s_branch L_drain")

    a("L_p_w2:")
    a("s_cmp_eq_u32 s26, 4")
    a("s_cselect_b32 s29, 3, 2")
    a("s_cselect_b32 s30, 1, 4")
    a("s_lshl_b32 s30, s30, 10")
    rdaddr128("s18")
    dst640("s24", "s25", 20, W2)
    wait_a()
    move128()

    a("L_drain:")
    stamp(a, 3)
    a("v_mov_b32 v236, 0x%x\nv_mov_b32 v237, 0x%x\nv_mov_b32 v238, 0x%x" % (OOB, OOB, OOB))
    for t in range(8):
        a("s_mov_b32 s%d, 0" % DST[t])
    a("s_mov_b32 s31, 0")
    a("s_cmp_lt_u32 s39, %d" % U3)
    a("s_cbranch_scc1 L_d_w3")
    a("s_cmp_lt_u32 s39, %d" % (U3 + U4))
    a("s_cbranch_scc0 L_d_done")
    a("s_sub_u32 s16, s39, %d" % U3)
    a("s_mul_i32 s36, s16, 52429")
    a("s_lshr_b32 s36, s36, 18")
    a("s_mul_i32 s17, s36, 5")
    a("s_sub_u32 s58, s16, s17")
    a("s_mov_b32 s31, 3\ns_mov_b32 s34, %d\ns_mov_b32 s48, 1280" % (1536 * 640 * 2))
    a("s_mov_b32 s32, s96\ns_mov_b32 s33, s97")
    dst640("s36", "s58", 48, W4)
    a("s_mov_b32 s29, 2\ns_mov_b32 s30, 4096")
    a("s_branch L_d_rd")
    a("L_d_w3:")
    a("s_mul_i32 s36, s39, 43691")
    a("s_lshr_b32 s36, s36, 20")
    a("s_mul_i32 s17, s36, 24")
    a("s_sub_u32 s58, s39, s17")
    a("s_and_b32 s31, s58, 1")
    a("s_lshr_b32 s58, s58, 1")
    a("s_mov_b32 s34, %d\ns_mov_b32 s48, 3072" % (640 * 1536 * 2))
    a("s_cmp_eq_u32 s31, 1")
    a("s_cselect_b32 s32, s92, s90")
    a("s_cselect_b32 s33, s93, s91")
    a("s_add_u32 s31, s31, 1")
    kpos_scalar(a, "s27", "s36")
    a("s_lshl_b32 s17, s58, 4")
    a("s_add_u32 s17, s17, s31")
    a("s_sub_u32 s17, s17, 1")
    a("s_lshl_b32 s28, s17, 6")
    a("s_add_u32 s28, s28, %d" % CS3F)
    a("v_lshl_add_u32 v236, %s, 2, s28" % n_)
    a("v_lshl_add_u32 v236, %s, 7, v236" % g_)
    a("v_add_u32 v237, 512, v236")
    a("s_mul_i32 s19, s17, 43691")
    a("s_lshr_b32 s19, s19, 19")
    a("s_mul_i32 s28, s19, 12")
    a("s_sub_u32 s17, s17, s28")
    a("s_mul_i32 s19, s19, 20")
    a("s_add_u32 s19, s19, s27")
    a("s_mul_i32 s19, s19, 12")
    a("s_add_u32 s19, s19, s17")
    a("s_lshl_b32 s19, s19, 10")
    a("s_add_u32 s19, s19, %d" % W3)
    for i in range(8):
        a("s_mov_b32 s%d, s19" % DST[i])
        if i < 7:
            a("s_add_u32 s17, s17, 2")
            a("s_cmp_ge_u32 s17, 12")
            a("s_cselect_b32 s28, 12, 0")
            a("s_sub_u32 s17, s17, s28")
            a("s_mul_i32 s28, s28, %d" % (19 * 1024))
            a("s_add_u32 s19, s19, s28")
            a("s_add_u32 s19, s19, 2048")
    a("s_mov_b32 s29, 3\ns_mov_b32 s30, 1024")
    a("L_d_rd:")
    rdaddr128("s37")
    if CFG["BPOS"] == 0:
        issue128("s[32:35]", "s48", "s36", "s58", "s37", "v232")
    a("L_d_done:")
    def p1_setup():
        for l in p1.pre_setup():
            a(l)
        p1.before_wait()
    if not CFG["BWL"]:
        p1_setup()
    else:
        p1.alloc()
        a("s_lshl_b32 s17, %s, 7" % sP)
        a("s_add_u32 s17, s17, %d" % CNT_G)
        a("v_lshl_add_u32 %s, v0, 11, s17" % p1.vC1)
        a("v_and_b32 v232, 0x%x, %s" % (OOB, vCNT))
        a("v_or_b32 %s, v232, %s" % (p1.vC1, p1.vC1))
    XL = 49152
    def x_dma(c):
        for i in range(4):
            a("s_add_u32 m0, s24, %d" % ((c % 5) * 4096 + i * 1024))
            a("s_mov_b32 s19, %d" % (i * 10240 + c * 128))
            a("buffer_load_dwordx4 v235, s[88:91], s19 offen lds")
    def x_read(c):
        for ks in range(2):
            for rt in range(2):
                k = 2 * (2 * c + ks) + rt
                a("ds_read_b128 a[%d:%d], v%d offset:%d" % (4 * k, 4 * k + 3, 240 + ks, (c % 5) * 4096 + rt * 2048))
    if CFG["XPRE"]:
        a("s_mov_b32 s25, s88\ns_mov_b32 s22, s89")
        a("s_mov_b32 s88, s84\ns_mov_b32 s89, s85\ns_mov_b32 s90, %d\ns_mov_b32 s91, 0x20000" % (S * D * 2))
        a("s_mul_i32 s24, %s, 20480" % sWAVE)
        a("s_add_u32 s24, s24, %d" % XL)
        a("v_lshrrev_b32 v235, 3, v1")
        a("v_and_b32 v240, 7, v1")
        a("v_xor_b32 v240, v240, v235")
        a("v_mul_u32_u24 v235, 1280, v235")
        a("v_lshl_add_u32 v235, v240, 4, v235")
        a("s_mul_i32 s17, s16, 20480")
        a("v_add_u32 v235, s17, v235")
        a("v_and_b32 v240, 7, %s" % n_)
        a("v_xor_b32 v241, %s, v240" % g_)
        a("v_lshlrev_b32 v241, 4, v241")
        a("v_lshl_add_u32 v240, %s, 7, v241" % n_)
        a("v_add_u32 v240, s24, v240")
        a("v_xor_b32 v241, 64, v240")
    a("v_mov_b32 v229, 0")
    a("s_cmp_eq_u32 %s, 3" % sWAVE)
    a("s_cbranch_scc0 L_clr0")
    a("global_load_dword v233, v229, s[94:95] sc1")
    a("L_clr0:")
    NXD = 20 if CFG["XPRE"] else 0
    for c in range(NXD // 4):
        x_dma(c)
    a("s_cmp_eq_u32 %s, 3" % sWAVE)
    a("s_cbranch_scc0 L_clr_ok")
    a("s_mov_b32 s42, %d" % CFG["TMO"])
    a("s_waitcnt vmcnt(%d)" % NXD)
    a("L_clr:")
    a("v_readfirstlane_b32 s43, v233")
    a("s_cmp_ge_u32 s43, 16")
    a("s_cbranch_scc1 L_clr_ok")
    a("global_load_dword v233, v229, s[94:95] sc1")
    a("s_sub_u32 s42, s42, 1")
    a("s_waitcnt vmcnt(0)")
    a("s_cbranch_scc0 L_clr")
    a("L_clr_ok:")
    if CFG["BPOS"] == 0:
        a("s_cmp_eq_u32 s31, 0")
        a("s_waitcnt vmcnt(%d)" % (8 + NXD))
        a("s_cbranch_scc0 L_drained")
    a("s_waitcnt vmcnt(%d)" % NXD)
    a("L_drained:")
    stamp(a, 4)
    a("s_barrier")
    a("s_cmp_lg_u32 %s, 0" % sWAVE)
    a("s_cbranch_scc1 L_p_b")
    a("v_mov_b32 v232, 1")
    a("buffer_atomic_add v232, %s, s[4:7], 0 offen" % p1.vC1)
    a("L_p_b:")
    stamp(a, 5)
    if CFG["BPOS"] == 2:
        a("s_cmp_eq_u32 s31, 0")
        a("s_cbranch_scc1 L_p_b2")
        issue128("s[32:35]", "s48", "s36", "s58", "s37", "v232")
        a("L_p_b2:")
    if CFG["XPRE"]:
        for c in range(5):
            a("s_waitcnt vmcnt(16)")
            x_read(c)
            a("s_waitcnt lgkmcnt(0)")
            x_dma(c + 5)
    if CFG["BWL"]:
        a("s_cmp_eq_u32 s31, 0")
        a("s_cbranch_scc1 L_p_nb")
        issue128("s[32:35]", "s48", "s36", "s58", "s37", "v232")
        a("L_p_nb:")
        p1_setup()
    a("s_cmp_eq_u32 s31, 0")
    a("s_cbranch_scc1 L_p_x2")
    if CFG["BPOS"] == 1 and not CFG["BWL"]:
        issue128("s[32:35]", "s48", "s36", "s58", "s37", "v232")
    if CFG["BPOS"] == 1 or not CFG["XPRE"]:
        a("s_waitcnt vmcnt(0)")
    a("v_mov_b32 v238, v2")
    for t in range(8):
        for h in range(2):
            a.ds("ds_read_b64_tr_b16 a[%d:%d], v%d offset:%d" % (192 + 4 * t + 2 * h, 193 + 4 * t + 2 * h, 230 + h, t * 32), ("t", t))
    p1.bstores = [(lambda t=t: a.vmem("buffer_store_dwordx4 a[%d:%d], v238, s[4:7], s%d offen sc1" % (192 + 4 * t, 195 + 4 * t, DST[t]), "bst")) for t in range(8)]
    if not CFG["BST"]:
        for t in range(8):
            a.wait_lg(("t", t))
            p1.bstores[t]()
        p1.bstores = []
    for t in range(8):
        a.wait_lg(("t", t))
        colsum(t, "a[%d:%d]" % (192 + 4 * t, 195 + 4 * t))
        if t >= 2:
            colsum_keep(t - 2)
    colsum_keep(6); colsum_keep(7)
    a("v_mov_b32 v234, v60\nv_mov_b32 v239, v61")
    a("L_p_x2:")
    stamp(a, 6)
    if CFG["XPRE"]:
        for c in range(5, 10):
            a("s_waitcnt vmcnt(%d)" % (4 * (9 - c)))
            x_read(c)
        a("s_mov_b32 s88, s25\ns_mov_b32 s89, s22")
    a("s_cmp_lg_u32 %s, 0" % sWAVE)
    a("s_cbranch_scc1 L_go")
    a("s_lshl_b32 s17, %s, 11" % sRB)
    a("s_add_u32 s17, s17, %d" % CNT_G)
    a("s_mov_b64 exec, 0xffff")
    a("v_lshlrev_b32 v233, 7, v1")
    a("s_mov_b32 s42, %d" % CFG["TMO"])
    a("L_gop:")
    a("v_mov_b32 v255, 0")
    a("buffer_atomic_add v255, v233, s[4:7], s17 offen sc0")
    a("s_waitcnt vmcnt(0)")
    a("v_cmp_le_u32 vcc, 16, v255")
    a("s_cmp_eq_u32 vcc_lo, 0xffff")
    a("s_cbranch_scc1 L_go0")
    a("s_sleep 2")
    a("s_sub_u32 s42, s42, 1")
    a("s_cbranch_scc0 L_gop")
    a("L_go0:")
    a("s_mov_b64 exec, -1")
    a("L_go:")
    a("s_waitcnt lgkmcnt(0)")
    stamp(a, 7)
    a("s_mov_b32 s49, 16")
    a("s_mov_b32 s22, 0")
    a("s_load_dwordx2 s[90:91], s[0:1], 56")
    phase_open(a)
    p1.bstores += [lambda: a.vmem("buffer_atomic_add_f32 v234, v236, s[4:7], 0 offen", "bst"),
                   lambda: a.vmem("buffer_atomic_add_f32 v239, v237, s[4:7], 0 offen", "bst")]


def build_all():
    _lbl[0] = 0
    a, info = main_body()
    k = NAME + "_kernel"
    out = "; @launch grid=(256,1,1) block=(256,1,1) lds=%d\n" % info["lds"]
    out += '.amdgcn_target "amdgcn-amd-amdhsa--gfx950"\n'
    st = {}
    txt = a.text(stats=st)
    w = n = 0
    if CFG["AL8"]:
        txt, w, n = align8(txt, CFG["AL8"])
    sys.stderr.write("%d lines, pad states %d, widened %d, align nops %d\n" % (txt.count("\n"), st["pad"], w, n))
    return out + entry(k) + txt + kd(k, info["vgpr"], 102, info["acc"])


if __name__ == "__main__":
    import argparse
    ap = argparse.ArgumentParser()
    ap.add_argument("-o", default="cdna_kernels/%s.s" % NAME)
    ap.add_argument("--cfg", default="")
    args = ap.parse_args()
    for kv in args.cfg.split(","):
        if kv:
            k, v = kv.split("="); CFG[k] = int(v)
    txt = build_all()
    open(args.o, "w").write(txt)
```

```python
import sys, struct
from asmlib import *

S, D, F = 2048, 640, 1536
NAME = "interleave_layers__linear_attn_block__geglu_ffn__prompt"

_off = 0
def ws(n):
    global _off
    o = _off
    _off += (n + 4095) // 4096 * 4096
    return o
W1 = ws(16 * 20 * 8 * 1024)
W2 = ws(8 * 20 * 5 * 1024)
W3 = ws(16 * 20 * 12 * 1024)
W4 = ws(8 * 48 * 5 * 1024)
CSP1 = ws(20 * 2048 * 4)
CS3F = ws(3072 * 4)
CSW = ws(256 * 512)
CNT = ws(3 * 256 * 128)
CNT_G = CNT + 2 * 256 * 128
XA = ws(128 * 20 * 1024); STA = ws(2048 * 64); KV = ws(14 * 4096); PQ = ws(128 * 20 * 1024)
XB = ws(128 * 20 * 1024); STB = ws(2048 * 64); H = ws(128 * 48 * 1024)
LSTR = _off - XA
ws(LSTR)
PROFO = ws(9 * 256 * 4 * 64)
WS_USED = _off
OOB = 0x40000000
PROF = False
CFG = dict(NPRE1=7, NPRE3=5, NW4P=10, SPX=4, NW4L=24, NW4E=18, NW4D=7, NW4W=6, NP1W=6, NW2D=8, NW2L=6, SP4=4, HOT=0, LEAD=26, RATE=10, RA1=6, CPF=1, NPRE1A=2, P1A=8, XPRE=0, SLK=14, SPAN1A=108, SPAN1=96, BPOS=1, ARRK=10, ZF1=2, SP2=6, DBG=0, KARR=5, KPOLL=10, RD2=0, ZFP=3, NWQ=8, ZFQ=0, ZFK=2, KSTG=10, EW1=12, NX1=7, NX2=4, NX3=5, PP=10, PP4=12, BARR=5, BPOLL=13, F1=48, SPLIT=0, XW=4, NE3=4, XC=2, RB=0, WS=0, WSC=1, BSKIP=0, AE=0, AL8=2, BWL=1, BSP=99, NOW=0, T3=1, SDK=3, SNAKE=0, QAFT=0, B3=0, H2=0, PKB=24, PKG=12, BS0=0, WSK=3, NW4Q=0, SATOM=0, W1O=32768, TLB=0, K0NT=0, BST=1, DBGT=0, RT=0, SPAN=0, NODS=0, B2O=0, SC=1, PD1=6, PD3=6, P1=12, P3=8, TMO=200000, ROT=0, NPOLL=3, EW3=16, PW=1, PSL=0)

def f32(x):
    return "0x%08x" % struct.unpack("<I", struct.pack("<f", x))[0]
LOG2E = 1.4426950408889634
MF = "v_mfma_f32_16x16x32_bf16"
H2 = [slice(0, 2), slice(2, 4)]

sWAVE, sRB, sP, sRB64, sCG, sLAY, sTGT, sPH = "s10", "s11", "s12", "s13", "s14", "s15", "s40", "s41"
sROT10, sROT12 = "s8", "s9"
vN, vG = Reg("v", 3, 1), Reg("v", 4, 1)
vCNT, vPL, vPG = Reg("v", 5, 1), Reg("v", 6, 1), Reg("v", 7, 1)
vPRE = Reg("v", 8, 4)
VBASE = 12

KORD = [0, 3, 5, 8, 10, 13, 15, 18, 1, 2, 4, 6, 7, 9, 11, 12, 14, 16, 17, 19]
KPOS = [KORD.index(k) for k in range(20)]

def kpos_scalar(a, dst, kb):
    a("s_mul_i32 s28, %s, 52" % kb)
    a("s_lshr_b32 s28, s28, 8")
    a("s_mul_i32 s17, s28, 5")
    a("s_sub_u32 s17, %s, s17" % kb)
    a("s_lshl_b32 s17, s17, 2")
    a("s_lshr_b32 s19, 0xa1980, s17")
    a("s_and_b32 s19, s19, 15")
    a("s_cmp_ge_u32 s19, 8")
    a("s_cselect_b32 s17, 3, 2")
    a("s_mul_i32 s17, s17, s28")
    a("s_add_u32 %s, s17, s19" % dst)


def WSC():
    return " sc1" if CFG["WSC"] else ""


def SC():
    return " sc1" if CFG["SC"] else ""


def stamp(a, i):
    if PROF:
        a("%s s[%d:%d]" % ("s_memrealtime" if CFG["RT"] else "s_memtime", 60 + 2 * i, 61 + 2 * i))

def stamp_dump(a, vb=100):
    if not PROF:
        return
    a("s_memrealtime s[78:79]")
    a("s_lshl_b32 s59, %s, 8" % sPH)
    a("s_add_u32 s59, s59, s2")
    a("s_lshl_b32 s59, s59, 2")
    a("s_add_u32 s59, s59, s10")
    a("s_lshl_b32 s59, s59, 6")
    a("s_add_u32 s59, s59, %d" % PROFO)
    a("s_waitcnt lgkmcnt(0)")
    a.lg = []
    a("s_mov_b64 exec, 1")
    for i in range(10):
        a("v_mov_b32 v%d, s%d" % (vb + i, 60 + 2 * i))
    a("v_mov_b32 v%d, s80" % (vb + 11))
    a("v_mov_b32 v%d, s59" % (vb + 10))
    a("buffer_store_dwordx4 v[%d:%d], v%d, s[4:7], 0 offen" % (vb, vb + 3, vb + 10))
    a("buffer_store_dwordx4 v[%d:%d], v%d, s[4:7], 0 offen offset:16" % (vb + 4, vb + 7, vb + 10))
    a("buffer_store_dwordx4 v[%d:%d], v%d, s[4:7], 0 offen offset:32" % (vb + 8, vb + 11, vb + 10))
    a("s_mov_b64 exec, -1")
    a("s_add_u32 %s, %s, 1" % (sPH, sPH))


_lbl = [0]
def label(p):
    _lbl[0] += 1
    return "L_%s_%d" % (p, _lbl[0])


def arrive(a, loads=()):
    for f in loads:
        f()
    if CFG["DBG"] != 4:
        stamp(a, 6)
    a.wait_vm("out")
    a.wait_all(vm=False)
    stamp(a, 7)
    a("s_add_u32 %s, %s, 16" % (sTGT, sTGT))
    a("s_barrier")
    l = label("arr")
    a("s_cmp_lg_u32 %s, 0" % sWAVE)
    a("s_cbranch_scc1 %s" % l)
    a("v_mov_b32 v255, 1")
    a("buffer_atomic_add v255, %s, s[4:7], 0 offen" % vCNT)
    a("%s:" % l)
    read_back(a, a.rb)
    a.rb = []


def poll_issue(a, k):
    a("v_mov_b32 v%d, 0" % (255 - k))
    a("buffer_atomic_add v%d, %s, s[4:7], 0 offen sc0" % (255 - k, vPL))


def poll_loop(a, d, first):
    NP = CFG["NPOLL"]
    l = label("poll")
    a("s_mov_b32 s42, %d" % CFG["TMO"])
    a("%s:" % l)
    for k0 in range(NP):
        k = (k0 + first) % NP
        poll_issue(a, (k + NP - 1) % NP)
        a("s_waitcnt vmcnt(%d)" % (NP - 1))
        a("v_readfirstlane_b32 s43, v%d" % (255 - k))
        a("s_cmp_ge_u32 s43, %s" % sTGT)
        a("s_cbranch_scc1 %s" % d)
    a("s_sub_u32 s42, s42, 1")
    a("s_cbranch_scc0 %s" % l)


def dbg_time(a):
    if not CFG["DBGT"]:
        return
    l = label("dt")
    a("s_or_b32 s59, s2, %s" % sWAVE)
    a("s_cbranch_scc1 %s" % l)
    a("s_memrealtime s[60:61]")
    a("s_mov_b64 exec, 1")
    a("s_waitcnt lgkmcnt(0)")
    a("s_sub_u32 s60, s60, s80")
    a("v_mov_b32 v254, s60")
    a("v_mov_b32 v251, s62")
    a("global_store_dword v251, v254, s[94:95]")
    a("s_add_u32 s62, s62, 4")
    a("s_mov_b64 exec, -1")
    a("%s:" % l)


def phase_open(a, vb=100):
    a("s_barrier")
    dbg_time(a)
    stamp(a, 8)
    stamp_dump(a, vb)
    stamp(a, 0)


def wait(a, loads=()):
    if CFG["WS"]:
        d = label("pdone")
        loads = list(loads)
        k = min(len(loads), CFG["WSK"])
        for f in loads[:k]:
            f()
        if CFG["WS"] == 2:
            for f in loads[k:]:
                f()
            a("s_cmp_lg_u32 %s, %d" % (sWAVE, CFG["PW"]))
            a("s_cbranch_scc1 %s" % d)
            spoll_issue(a, 0)
            spoll_wait(a, 0, sTGT)
            a("%s:" % d)
            phase_open(a)
            return
        spoll_issue(a, 0)
        for f in loads[k:]:
            f()
        spoll_wait(a, 0, sTGT)
        stamp(a, 8); stamp_dump(a); stamp(a, 0); dbg_time(a)
        return
    d, o = label("pdone"), label("other")
    NP = CFG["NPOLL"]
    loads = list(loads)
    a("s_cmp_lg_u32 %s, %d" % (sWAVE, CFG["PW"]))
    a("s_cbranch_scc1 %s" % o)
    save = list(a.vm)
    per = (len(loads) + NP - 2) // (NP - 1)
    after = []
    for k in range(NP - 1):
        poll_issue(a, k)
        chunk = loads[k * per:(k + 1) * per]
        for f in chunk:
            f()
        if len(chunk) < 2:
            a("s_sleep %d" % (10 // NP))
        after.append(len(chunk))
    a.vm = save
    for k in range(NP - 1):
        poll_issue(a, (k + NP - 1) % NP)
        a("s_waitcnt vmcnt(%d)" % (NP - 1 + sum(after[k:])))
        a("v_readfirstlane_b32 s43, v%d" % (255 - k))
        a("s_cmp_ge_u32 s43, %s" % sTGT)
        a("s_cbranch_scc1 %s" % d)
    poll_loop(a, d, NP - 1)
    a("s_branch %s" % d)
    a("%s:" % o)
    for f in loads:
        f()
    a("%s:" % d)
    phase_open(a)


vRB = [Reg("v", 7, 1), Reg("v", 238, 1), Reg("v", 239, 1)]
def read_back(a, items):
    for v, so, im in (items if CFG["RB"] else []):
        a.vmem("buffer_load_dwordx4 v[244:247], %s, s[4:7], %s offen offset:%d sc1" % (v, so, im), "rb")


FOFF = [0, 32768, 32768 + 4]

def spoll_issue(a, word):
    if CFG["SATOM"]:
        a("s_mov_b32 s43, 0")
        a("s_atomic_add s43, s[100:101], 0x%x glc" % (FOFF[word]))
    else:
        a("s_load_dword s43, s[100:101], 0x%x glc" % (FOFF[word]))


def spoll_wait(a, word, target):
    l, d = label("sp"), label("spd")
    a("s_mov_b32 s42, %d" % CFG["TMO"])
    a("%s:" % l)
    a("s_waitcnt lgkmcnt(0)")
    a("s_cmp_ge_u32 s43, %s" % target)
    a("s_cbranch_scc1 %s" % d)
    spoll_issue(a, word)
    a("s_sub_u32 s42, s42, 1")
    a("s_cbranch_scc0 %s" % l)
    a("s_waitcnt lgkmcnt(0)")
    a("%s:" % d)
    a.lg = []


def signal(a, word):
    l = label("arr")
    a("s_barrier")
    a("s_cmp_lg_u32 %s, 0" % sWAVE)
    a("s_cbranch_scc1 %s" % l)
    a("v_mov_b32 v255, 1")
    a("s_mov_b32 s42, %d" % (FOFF[word]))
    a("buffer_atomic_add v255, %s, s[4:7], s42 offen" % vCNT)
    a("%s:" % l)


def wrap_add(a, r, step, end):
    if (CFG["HOT"] & 1 and r == "s20") or (CFG["HOT"] & 2 and r != "s20"):
        return
    if not CFG["ROT"]:
        a("s_add_u32 %s, %s, %d" % (r, r, step))
        return
    a("s_add_u32 %s, %s, %d" % (r, r, step))
    a("s_cmp_eq_u32 %s, %d" % (r, end))
    a("s_cselect_b32 %s, 0, %s" % (r, r))


def xsum4(a, v, t):
    a("v_mov_b32 %s, %s" % (t, v))
    a("v_permlane16_swap_b32 %s, %s" % (v, t))
    a("v_add_f32 %s, %s, %s" % (v, v, t))
    a("v_mov_b32 %s, %s" % (t, v))
    a("v_permlane32_swap_b32 %s, %s" % (v, t))
    a("v_add_f32 %s, %s, %s" % (v, v, t))


def stats_finish(a, q, mean, rstd, t):
    a("v_add_f32 %s, %s, %s" % (q[0], q[0], q[2]))
    a("v_add_f32 %s, %s, %s" % (q[1], q[1], q[3]))
    xsum4(a, q[0], t)
    xsum4(a, q[1], t)
    a("v_mul_f32 %s, %s, %s" % (mean, f32(1.0 / D), q[0]))
    a("v_mul_f32 %s, %s, %s" % (q[1], f32(1.0 / D), q[1]))
    a("v_fma_f32 %s, -%s, %s, %s" % (q[1], mean, mean, q[1]))
    a("v_max_f32 %s, 0, %s" % (q[1], q[1]))
    a("v_add_f32 %s, %s, %s" % (q[1], f32(1e-5), q[1]))
    a("v_rsq_f32 %s, %s" % (rstd, q[1]))


def pk(op, d, *src, neg=None):
    ops, lo, hi = [], [], []
    for x in src:
        if isinstance(x, str):
            n = int(x[1:])
            ops.append("s[%d:%d]" % (n & ~1, (n & ~1) + 1)); lo.append(n & 1); hi.append(n & 1)
        elif x.n == 2:
            assert x.base % 2 == 0
            ops.append(str(x)); lo.append(0); hi.append(1)
        else:
            b = x.base & ~1
            ops.append("v[%d:%d]" % (b, b + 1)); lo.append(x.base & 1); hi.append(x.base & 1)
    t = "v_pk_%s_f32 %s, %s op_sel:[%s] op_sel_hi:[%s]" % (op, d, ", ".join(ops), ",".join(map(str, lo)), ",".join(map(str, hi)))
    if neg is not None:
        m = ",".join("1" if i == neg else "0" for i in range(len(src)))
        t += " neg_lo:[%s] neg_hi:[%s]" % (m, m)
    return t


class Weaver:
    def __init__(self, a, items, period):
        self.a, self.items, self.period, self.n = a, list(items), period, 0
    def __call__(self, line):
        self.a(line)
        self.n += 1
        if self.n % self.period == 0 and self.items:
            self.items.pop(0)()
    def flush(self):
        while self.items:
            self.items.pop(0)()


def x_load(a, dst, v, step, rt, check, tag, then):
    kb = KORD[step]
    if check and not CFG["SPLIT"]:
        check = False
        if rt == 0 and step == 4:
            for f in then:
                f()
            a.late_ok = True
    if check and rt == 0 and step == 7:
        spoll_issue(a, 0)
    if check and rt == 0 and step == 8:
        keep = list(a.lg)
        spoll_wait(a, 0, sTGT)
        for f in then:
            f()
    if rt == 0 and (step == 0 or KORD[step - 1] // 4 != kb // 4):
        a("s_mov_b32 s20, %d" % (kb // 4 * 4096))
    a.vmem("buffer_load_dwordx4 %s, %s, s[4:7], s20 offen offset:%d%s" % (dst, v, (kb % 4) * 1024, SC()), tag)
    if check and rt == 1 and step == 8:
        a.late_ok = True


class Ring:
    def __init__(self, a, NT, R, vB, vBlast, sL, sB, sB2):
        self.a, self.NT, self.R = a, NT, R
        self.vB, self.vBlast, self.sL, self.sB, self.sB2 = vB, vBlast, sL, sB, sB2
        self.FPS = 2 * NT
        self.SB = self.FPS * 1024
        self.per = self.FPS // 4

    def init_lines(self):
        return ["s_mul_i32 %s, %s, %d" % (self.sB, sROT10, self.SB)] + (["s_add_u32 %s, %s, 3072" % (self.sB2, self.sB)] if self.per > 4 else [])

    def loads(self, s):
        a, per, SB = self.a, self.per, self.SB
        grp = 4 if per == 4 else 3
        out = []
        for i in range(per):
            def f(i=i):
                if CFG["NOW"] & 4:
                    return
                if i % grp == 0:
                    a("s_add_u32 m0, %s, %d" % (self.sL, (s % self.R) * SB + i * 1024))
                so = self.sB if i < grp else self.sB2
                vb = self.vBlast if i == per - 1 else self.vB
                a.vmem("buffer_load_dwordx4 %s, s[4:7], %s offen offset:%d%s lds" % (vb, so, (i % grp) * 1024, WSC()), ("st", s))
                if i == per - 1:
                    wrap_add(a, self.sB, SB, 10 * SB)
                    if per > grp:
                        a("s_add_u32 %s, %s, 3072" % (self.sB2, self.sB))
            out.append(f)
        return out


def gemm_s(a, ring, NPRE, vA, vL, acc, Aring, Bregs, transposed, sA, RA, tail_loads=(), fill=(), nsetup=0, PD=6, P=12, first_barrier=False, NTAIL=99, early=()):
    NST = 10
    NT, R, FPS, SB = ring.NT, ring.R, ring.FPS, ring.SB
    NB = Bregs.n // 4
    BPOS = FPS - PD

    def a_loads(s):
        out = []
        ar = Aring[((s % RA) * 16):((s % RA) * 16 + 16)]
        for ks in range(2):
            for rt in range(2):
                def f(ks=ks, rt=rt):
                    x_load(a, ar.q(ks * 2 + rt), vA[rt], 2 * s + ks, rt, True, ("a", s, ks), early)
                out.append(("a", s, f))
        return out
    bq = [("b", s, f) for s in range(NPRE, NST) for f in ring.loads(s)]
    aq = [x for s in range(NST) for x in a_loads(s)]
    tail = [("t", -1, f) for f in tail_loads]
    fill = list(fill)
    nfill0 = len(fill)
    a.late_ok = False
    for k in range(P):
        aq.pop(0)[2]()
    stamp(a, 1)
    a.wait_vm(("a", 0, 0))
    if first_barrier:
        a("s_barrier")
    stamp(a, 2)

    def rd(n):
        if CFG["NODS"] and n >= NB and n % CFG["NODS"]:
            return
        s, i = divmod(n, FPS)
        addr = (s % R) * SB + i * 1024
        a.ds("ds_read_b128 %s, %s offset:%d" % (Bregs.q(n % NB), vL[addr >> 16], addr & 0xffff), ("f", n))

    NF = NST * FPS
    for n in range(PD):
        rd(n)
    passed = -1

    def next_load(s):
        ca = aq[0] if aq and aq[0][1] - RA < s else None
        cb = bq[0] if bq and (bq[0][1] < R or bq[0][1] - R + 1 <= passed) else None
        ct = len(tail) > keep and len(fill) <= nfill0 - nsetup
        da = ca[1] - s if ca else 99
        db = cb[1] - s - 0.5 if cb else 99
        if min(da, db) > LEAD and ct:
            tail.pop(0)[2]()
        elif ca and da <= db:
            aq.pop(0)[2]()
        elif cb:
            bq.pop(0)[2]()
        elif ct:
            tail.pop(0)[2]()
        else:
            return False
        return True

    nload = len(aq) + len(bq) + min(len(tail), NTAIL)
    LEAD = CFG["LEAD"] / 10.0
    keep = max(0, len(tail) - NTAIL)
    span = FPS * (NST - 1)
    credit = 0.0
    for n in range(NF):
        s, i = divmod(n, FPS)
        ks, j = divmod(i, NT)
        if i == BPOS and s + 1 < NST and s >= 1 and (bq or s + 1 >= NPRE) and not (CFG["BSKIP"] >> s & 1):
            while bq and bq[0][1] <= s + 1:
                sys.stderr.write("late ring load at stage %d\n" % s)
                bq.pop(0)[2]()
            a.wait_vm(("st", s + 1))
            a("s_barrier")
            passed = s
        if j == 0:
            while aq and aq[0][1] <= s:
                sys.stderr.write("late activation load at stage %d\n" % s)
                aq.pop(0)[2]()
            a.wait_vm(("a", s, ks))
        if n + PD < NF:
            rd(n + PD)
        a.wait_lg(("f", n + 1 if n % 2 == 0 else n))
        ar = Aring[((s % RA) * 16):((s % RA) * 16 + 16)]
        credit += nload / span * CFG["RATE"] / 10.0
        did = False
        for pos, rt in enumerate((1, 0) if CFG["SNAKE"] and j % 2 else (0, 1)):
            c = "0" if (s == 0 and ks == 0) else str(acc[rt][j])
            w, x = Bregs.q(n % NB), ar.q(ks * 2 + rt)
            if transposed[j]:
                a("%s %s, %s, %s, %s" % (MF, acc[rt][j], w, x, c))
            else:
                a("%s %s, %s, %s, %s" % (MF, acc[rt][j], x, w, c))
            if pos == 0 and credit >= 1.0:
                did = next_load(s)
                if did:
                    credit -= 1.0
                credit = min(credit, 1.5)
            if pos == 0 and not did and a.late_ok and n > 4 * FPS:
                for _ in range(2):
                    if fill:
                        x = fill.pop(0)
                        x() if callable(x) else a(x)
    assert not aq and not bq and not fill, (len(aq), len(bq), len(fill))
    stamp(a, 3)
    return [t[2] for t in tail]


K1_RED = 0
K1_TRASH = K1_RED + 4 * 3584 + 1024
K1_FR = 122880
K1_PAIRS = [(0, 2), (0, 3), (1, 2), (1, 3), (1, 4), (2, 2), (2, 3), (2, 4)]

class P1:
    def __init__(self, a):
        self.a = a

    def pre_setup(self):
        return ["s_mul_i32 s17, %s, 163840" % sP,
                "s_lshl_b32 s44, %s, 12" % sWAVE,
                "s_add_u32 s17, s17, s44",
                "s_add_u32 s17, s17, %d" % W1,
                "v_add_u32 %s, s17, v2" % vPRE[0],
                "s_mov_b32 s45, 0"]

    def round_loads(self, rho):
        a = self.a
        out = []
        for i in range(4):
            def f(i=i):
                if CFG["NOW"] & 1:
                    return
                if i == 0:
                    a("s_add_u32 m0, s44, s45")
                    a("s_nop 0")
                a.vmem("buffer_load_dwordx4 %s, s[4:7], s45 offen offset:%d%s lds" % (vPRE[0], i * 1024, WSC()), ("st", rho))
                if i == 3:
                    a("s_add_u32 s45, s45, 16384")
            out.append(f)
        return out

    def pre_loads(self, n):
        return [f for rho in range(n) for f in self.round_loads(rho)]

    def alloc(self):
        V = Alloc("v", VBASE, 240)
        r = self
        r.vA = [V.get(1), V.get(1)]
        r.vL = [Reg("v", 2, 1), V.get(1), V.get(1)]
        r.vS = V.get(1); r.vCn = V.get(1); r.vCt = V.get(1)
        r.vQ = V.get(2, 1); r.vKa = V.get(8); r.vGl = V.get(1); r.vR = V.get(1); r.vC1 = V.get(1); r.ret = V.get(1)
        r.mean = [V.get(1), V.get(1)]; r.rstd = [V.get(1), V.get(1)]; r.rl = [V.get(1), V.get(1)]
        r.meanN = [V.get(4), V.get(4)]; r.rstdN = [V.get(4), V.get(4)]; r.rlN = [V.get(4), V.get(4)]
        r.tmp = V.get(16)
        r.acc = [[V.get(4) for j in range(8)] for rt in range(2)]
        r.csn = V.get(8); r.cst = V.get(12)
        r.Xf = V.get(24)
        r.kvd = V.get(32)
        r.fa = Reg("v", 224, 4); r.vGo = r.csn[5]; r.vX = r.csn[6:8]
        r.A = Reg("a", 0, 160)
        r.Bregs = Reg("a", 160, 32)

    def before_wait(self, emit=None):
        self.alloc()
        r, b = self, (emit or self.a)
        n_, g_ = vN, vG
        t = r.kvd[4:12]
        b("s_lshl_b32 s16, %s, 3" % sRB)
        b("s_lshl_b32 s17, %s, 1" % sWAVE)
        b("s_add_u32 s16, s16, s17")
        b("s_mul_i32 s19, s16, 20480")
        b("s_add_u32 s19, s19, %s" % sLAY)
        b("s_add_u32 s17, s19, %d" % XA)
        b("v_add_u32 %s, s17, v2" % r.vA[0])
        b("v_add_u32 %s, 20480, %s" % (r.vA[1], r.vA[0]))
        b("v_add_u32 %s, 0x10000, v2" % r.vL[1])
        b("v_lshlrev_b32 %s, 3, %s" % (t[0], n_))
        b("v_lshl_add_u32 %s, %s, 8, %s" % (t[0], g_, t[0]))
        b("s_lshl_b32 s17, s16, 10")
        b("s_add_u32 s17, s17, %s" % sLAY)
        b("s_add_u32 s17, s17, %d" % STA)
        b("v_add_u32 %s, s17, %s" % (r.vS, t[0]))
        b("v_cmp_lt_u32 s[26:27], %s, 8" % n_)
        b("v_add_u32 %s, 0x20000, v2" % r.vL[2])
        b("s_lshr_b32 s17, %s, 2" % sP)
        b("s_mul_i32 s17, s17, 5120")
        b("s_add_u32 s19, s19, s17")
        b("s_add_u32 s19, s19, %d" % PQ)
        b("s_and_b32 s17, %s, 3" % sP)
        b("s_lshl_b32 s18, s17, 10")
        b("s_add_u32 s18, s18, s19")
        b("v_add_u32 %s, s18, v2" % r.vQ[0])
        b("s_lshl_b32 s17, s17, 8")
        b("s_add_u32 s17, s17, s19")
        b("s_add_u32 s17, s17, 4096")
        b("v_add_u32 %s, s17, v2" % r.vQ[1])
        b("v_mov_b32 %s, 0x%x" % (t[2], OOB))
        b("v_cmp_gt_u32 vcc, 16, v1")
        b("v_cndmask_b32 %s, %s, %s, vcc" % (r.vQ[1], t[2], r.vQ[1]))
        b("s_lshl_b32 s17, %s, 7" % sP)
        b("s_add_u32 s17, s17, %d" % CNT_G)
        b("v_lshl_add_u32 %s, v0, 11, s17" % r.vC1)
        b("v_cmp_gt_u32 vcc, 16, v0")
        b("v_cndmask_b32 %s, %s, %s, vcc" % (r.vC1, t[2], r.vC1))
        b("v_add_u32 %s, %d, v2" % (t[5], K1_TRASH))
        b("s_mul_i32 s19, %s, 3584" % sWAVE)
        b("s_add_u32 s19, s19, %d" % K1_RED)
        b("s_add_u32 s17, s19, 3200")
        for pi, (ka, vb) in enumerate(K1_PAIRS):
            b("v_lshl_add_u32 %s, %s, 2, %d" % (t[0], g_, 16 * ka))
            b("v_add_u32 %s, %d, %s" % (t[1], 16 * vb - 40, n_))
            b("v_cmp_le_u32 vcc, 20, %s" % t[0])
            b("v_cndmask_b32 %s, 0, 20, vcc" % t[2])
            b("v_sub_u32 %s, %s, %s" % (t[3], t[1], t[2]))
            b("v_sub_u32 %s, %s, %s" % (t[2], t[0], t[2]))
            b("v_cmp_gt_u32 vcc, 20, %s" % t[3])
            b("v_mad_i32_i24 %s, %s, 20, %s" % (t[2], t[1], t[2]))
            b("v_lshl_add_u32 %s, %s, 2, s19" % (t[2], t[2]))
            b("v_cndmask_b32 %s, %s, %s, vcc" % (r.vKa[pi], t[5], t[2]))
            if vb == 2:
                b("v_cmp_eq_u32 vcc, 0, %s" % n_)
                b("v_lshl_add_u32 %s, %s, 2, s17" % (t[2], t[0]))
                b("v_cndmask_b32 %s, %s, %s, vcc" % (r.vKa[pi], r.vKa[pi], t[2]))
            if ka == 2:
                b("v_cmp_gt_u32 vcc, 2, %s" % g_)
                b("v_cndmask_b32 %s, %s, %s, vcc" % (r.vKa[pi], t[5], r.vKa[pi]))
        b("v_lshlrev_b32 %s, 2, v0" % r.vR)
        b("s_mul_i32 s17, %s, 3360" % sP)
        b("s_add_u32 s17, s17, %s" % sLAY)
        b("s_add_u32 s17, s17, %d" % KV)
        b("v_add_u32 %s, s17, %s" % (r.vGl, r.vR))
        b("v_add_u32 %s, %d, %s" % (r.vR, K1_RED, r.vR))
        b("s_lshl_b32 s17, s2, 9")
        b("s_add_u32 s17, s17, %d" % CSW)
        b("v_lshl_add_u32 %s, %s, 2, s17" % (r.vCn, n_))
        b("v_lshl_add_u32 %s, %s, 4, s17" % (r.vCt, g_))
        b("s_mov_b32 s23, 20480")
        b("s_mov_b32 s20, 0")
        b("v_lshlrev_b32 %s, 4, %s" % (t[0], g_))
        for q in range(4):
            b("v_add_u32 %s, %d, %s" % (t[1 + q], 4 * q, t[0]))
        fa, u, vGo, vX = r.fa, r.kvd[12:16], r.vGo, r.vX
        raw = (lambda x: b(x))
        b("s_mul_i32 s3, %s, 3360" % sP)
        b("s_add_u32 s3, s3, %s" % sLAY)
        b("s_add_u32 s3, s3, %d" % KV)
        b("v_mov_b32 %s, 0x%x" % (u[3], OOB))
        for i in range(2):
            b("s_lshl_b32 s17, %s, 1" % sWAVE)
            b("s_add_u32 s17, s17, %d" % (i + 1))
            b("s_lshr_b32 s19, s17, 1")
            b("s_lshl_b32 s19, s19, 4")
            b("v_add_u32 %s, s19, %s" % (u[0], vN))
            b("v_cmp_le_u32 vcc, 20, %s" % u[0])
            b("v_cndmask_b32 %s, 0, 20, vcc" % u[1])
            b("v_mul_u32_u24 %s, 20, %s" % (u[2], u[0]))
            b("v_sub_u32 %s, %s, %s" % (u[2], u[2], u[1]))
            b("v_cmp_gt_u32 vcc, 40, %s" % u[0])
            b("v_cndmask_b32 %s, 63, %s, vcc" % (u[1], u[1]))
            raw("s_cmp_eq_u32 s19, 48\ns_cselect_b64 vcc, -1, 0")
            b("v_and_b32 %s, 3, v1" % u[0])
            b("v_mul_u32_u24 %s, 20, %s" % (u[0], u[0]))
            b("v_cndmask_b32 %s, %s, %s, vcc" % (u[1], u[1], u[0]))
            b("v_mov_b32 %s, 800" % u[0])
            b("v_cndmask_b32 %s, %s, %s, vcc" % (u[2], u[2], u[0]))
            raw("s_cmp_eq_u32 %s, %d\ns_cselect_b32 s19, %d, %d" % ((sWAVE, 0, 0, 32) if i == 0 else (sWAVE, 3, 64, 0)))
            for h in range(2):
                b("v_lshl_add_u32 %s, %s, 2, s19" % (u[0], vG))
                if h:
                    b("v_add_u32 %s, 16, %s" % (u[0], u[0]))
                b("v_cmp_gt_u32 s[38:39], 40, %s" % u[0])
                b("v_add_lshl_u32 %s, %s, %s, 2" % (fa[2 * i + h], u[0], u[2]))
                b("v_sub_u32 %s, %s, %s" % (u[0], u[0], u[1]))
                b("v_cmp_gt_u32 vcc, 20, %s" % u[0])
                b("s_and_b64 vcc, vcc, s[38:39]")
                b("v_cndmask_b32 %s, %s, %s, vcc" % (fa[2 * i + h], u[3], fa[2 * i + h]))
        b("s_lshl_b32 s17, %s, 11" % sRB)
        b("s_add_u32 s17, s17, %d" % CNT_G)
        b("v_lshl_add_u32 %s, v1, 7, s17" % vGo)
        raw("s_cmp_eq_u32 %s, %d\ns_cselect_b32 s17, 0, 0x%x" % (sWAVE, CFG["PW"], OOB))
        b("v_and_b32 %s, 0x%x, %s" % (u[0], OOB, vCNT))
        b("v_or3_b32 %s, %s, s17, %s" % (vGo, u[0], vGo))
        b("s_lshl_b32 s17, %s, 11" % sWAVE)
        b("s_add_u32 s17, s17, %d" % K1_FR)
        b("v_add_u32 %s, s17, v2" % vX[0])
        b("v_add_u32 %s, %d, v2" % (vX[1], K1_FR))

    def body(self, nxt, p3, p4, NPRE, first=False):
        r, a = self, self.a
        tmp, t, acc, Xf, kvd, A, Bregs = r.tmp, r.kvd[4:12], r.acc, r.Xf, r.kvd, r.A, r.Bregs
        stat_loads = [(lambda rt=rt, h=h: a.vmem("buffer_load_dwordx2 %s, %s, s[4:7], 0 offen offset:%d%s" % (tmp.q(rt)[2 * h:2 * h + 2], r.vS, rt * 1024 + h * 128, SC()), "stats"))
                      for rt in range(2) for h in range(2)]
        b = Asm()
        for rt in range(2):
            stats_finish(b, tmp.q(rt), r.mean[rt], r.rstd[rt], tmp[8])
            b("v_mul_f32 %s, %s, %s" % (r.rl[rt], f32(LOG2E), r.rstd[rt]))
        fill = [lambda: a.wait_vm("stats")] + list(b.lines)
        for rt in range(2):
            for q in range(4):
                fill.append(lambda rt=rt, q=q: a.ds("ds_bpermute_b32 %s, %s, %s" % (r.meanN[rt][q], t[1 + q], r.mean[rt]), "bp"))
                fill.append(lambda rt=rt, q=q: a.ds("ds_bpermute_b32 %s, %s, %s" % (r.rstdN[rt][q], t[1 + q], r.rstd[rt]), "bp"))
        fill += [None] * 6
        fill.append(lambda: a.wait_lg("bp"))
        for rt in range(2):
            for q in range(4):
                fill.append("v_mul_f32 %s, %s, %s" % (r.rlN[rt][q], f32(LOG2E), r.rstdN[rt][q]))
        fill += nxt.pre_setup()
        csp = []
        if first:
            cp, ad = Reg("v", 156, 40), Reg("v", 232, 2)
            a("s_lshl_b32 s17, %s, 9" % sP)
            a("s_add_u32 s17, s17, %d" % CSP1)
            a("v_lshrrev_b32 %s, 5, v1" % ad[0])
            a("v_lshlrev_b32 %s, 13, %s" % (ad[0], ad[0]))
            a("v_and_b32 %s, 31, v1" % ad[1])
            a("v_lshlrev_b32 %s, 4, %s" % (ad[1], ad[1]))
            a("s_cmp_eq_u32 %s, 0" % sWAVE)
            a("s_cselect_b32 s19, 0, 0x%x" % OOB)
            a("v_add3_u32 %s, %s, %s, s19" % (ad[0], ad[0], ad[1]))
            a("v_or_b32 %s, s19, %s" % (ad[1], ad[1]))
            a("s_lshl_b32 s48, s2, 9")
            a("s_add_u32 s48, s48, %d" % CSW)
            a("s_mov_b32 s21, s17")
            for k in range(10):
                def f(k=k):
                    a.vmem("buffer_load_dwordx4 %s, %s, s[4:7], s21 offen%s" % (cp.q(k), ad[0], SC()), "csp")
                    a("s_add_u32 s21, s21, 16384")
                csp.append(f)
            fin = [lambda: a.wait_vm("csp")]
            for k in range(1, 10):
                for q in range(4):
                    fin.append("v_add_f32 %s, %s, %s" % (cp[q], cp[q], cp.q(k)[q]))
            for q in range(4):
                fin += ["v_mov_b32 %s, %s" % (cp[4], cp[q]), "v_permlane32_swap_b32 %s, %s" % (cp[q], cp[4]), "v_add_f32 %s, %s, %s" % (cp[q], cp[q], cp[4])]
            fin.append(lambda: a.vmem("buffer_store_dwordx4 %s, %s, s[4:7], s48 offen" % (cp[0:4], ad[1]), "csw"))
            fill = fin + fill
        cs = [(lambda j=j: a.vmem("buffer_load_dword %s, %s, s[4:7], 0 offen offset:%d" % (r.csn[j], r.vCn, j * 64), "cs")) for j in range(5)]
        cs += [(lambda j=j: a.vmem("buffer_load_dwordx4 %s, %s, s[4:7], 0 offen offset:%d" % (r.cst.q(j), r.vCt, (5 + j) * 64), "cs")) for j in range(3)]
        PD, NB = CFG["PD1"], 8
        seq = [(ks, j, 6 * ks + j) for ks in range(20) for j in range(6)] + [(ks, j, 120 + 2 * ks + j - 6) for ks in range(20) for j in (6, 7)]
        aq = []
        for ks in range(20):
            for rt in range(2):
                def f(ks=ks, rt=rt):
                    x_load(a, A.q(2 * ks + rt), r.vA[rt], ks, rt, not first, ("a", ks), [] if first else stat_loads)
                aq.append((6 * ks, f))
        bq = [(16 * rho - PD, f) for rho in range(NPRE, 10) for f in self.round_loads(rho)]
        if first and CFG["XPRE"]:
            aq = []
            for f in [bq.pop(0)[1] for _ in range(CFG["P1A"])]:
                f()
        a.late_ok = first
        for _ in range(0 if not aq else CFG["P1A"] if first else CFG["P1"]):
            aq.pop(0)[1]()
        small = []
        if first:
            small = csp + stat_loads
            fill.insert(0, "small")
        stamp(a, 1)
        a.wait_vm([("a", 0), ("st", NPRE - 1)])
        a("s_barrier")
        stamp(a, 2)

        def rd(n):
            f = seq[n][2]
            if f % 16 == 0 and f // 16 >= NPRE:
                while bq and bq[0][0] <= f - PD:
                    sys.stderr.write("P1: late weight load\n")
                    bq.pop(0)[1]()
                a.wait_vm([("st", f // 16), "csw"])
                a("s_barrier")
                st["csok"] = not first or (not fill_has_store())
            a.ds("ds_read_b128 %s, %s offset:%d" % (Bregs.q(n % NB), r.vL[f >> 6], (f & 63) * 1024), ("f", n))

        def pair(n, mid):
            ks, j, f = seq[n]
            if n + PD < len(seq) and n + PD not in done_rd:
                rd(n + PD)
            if n % 2 == 0 or n == 120:
                a.wait_lg(("f", min(n + 1, len(seq) - 1) if n != 119 else n))
            else:
                a.wait_lg(("f", n))
            for pos, rt in enumerate((1, 0) if CFG["SNAKE"] and j % 2 else (0, 1)):
                c = "0" if ks == 0 else str(acc[rt][j])
                w, x = Bregs.q(n % NB), A.q(2 * ks + rt)
                a("%s %s, %s, %s, %s" % ((MF, acc[rt][j], w, x, c) if j >= 5 else (MF, acc[rt][j], x, w, c)))
                if pos == 0:
                    mid()
        done_rd = set()
        st = dict(credit=0.0, csok=not first)
        fill_has_store = lambda: first and fin[-1] in fill
        for n in range(PD):
            rd(n)
        late = [x for x in bq if x[0] >= 120 - PD]
        nload = len(aq) + len(bq) - len(late) + len(cs) + len(small) // 2
        for n in range(120):
            ks, j, f = seq[n]
            if j == 0:
                while aq and aq[0][0] <= n:
                    sys.stderr.write("P1: late activation load\n")
                    aq.pop(0)[1]()
                a.wait_vm(("a", ks))
            def mid():
                if first and CFG["BSP"] < 99 and n % CFG["BSP"] == CFG["BSP"] - 1 and n >= CFG["BS0"] and self.bstores:
                    self.bstores.pop(0)()
                    return
                st["credit"] += nload / float(CFG["SPAN1A"] if first else CFG["SPAN1"])
                if st["credit"] >= 1.0:
                    cb = bq and bq[0][0] < 120 - PD
                    q = None
                    if aq and (not cb or aq[0][0] <= bq[0][0]):
                        q = aq
                    elif cb:
                        q = bq
                    if small and q is not None and q[0][0] - n > CFG["SLK"]:
                        small.pop(0)(); small.pop(0)()
                    elif q is not None:
                        q.pop(0)[1]()
                    elif cs and st["csok"]:
                        cs.pop(0)()
                    elif bq and not first:
                        bq.pop(0)[1]()
                    else:
                        q = "none"
                    st["credit"] -= 1.0
                    if (not first or CFG["XPRE"]) and q != "none":
                        return
                if n > (12 if first else CFG["F1"]) and a.late_ok:
                    if fill and fill[0] == "small":
                        if not small:
                            fill[0:1] = [None] * 16
                        return
                    for _ in range(2):
                        if fill:
                            x = fill.pop(0)
                            if x is not None:
                                x() if callable(x) else a(x)
            pair(n, mid)
        if fill:
            sys.stderr.write("P1: %d fill items left after the first pass\n" % len(fill))
        for x in fill:
            if x is not None:
                x() if callable(x) else a(x)
        assert st["csok"]
        for f in cs:
            f()
        assert not aq
        stamp(a, 3)
        a.wait_vm("cs")
        a("s_mov_b32 s24, %s" % f32(1e-6))
        e = Weaver(a, [x[1] for x in bq] + (self.bstores if first else []), 10 if first else CFG["EW1"])
        bq[:] = []

        def phi(x, m, c, rs, rlg, t, vraw=None):
            for h in H2:
                e(pk("fma", x[h], m(h), c(h), x[h], neg=0))
            for h in H2:
                e(pk("mul", t[h], x[h], rlg(h)))
            if vraw is not None:
                for h in H2:
                    e(pk("mul", vraw[h], x[h], rs(h)))
            for h in H2:
                e(pk("fma", x[h], x[h], rs(h), "s24"))
            for q in range(4):
                e("v_exp_f32 %s, %s clamp" % (t[q], t[q]))
            for q in range(4):
                e("v_max_f32 %s, s24, %s" % (x[q], x[q]))
            for h in H2:
                e(pk("add", x[h], x[h], t[h]))

        for j in range(5):
            for rt in range(2):
                x = acc[rt][j]
                m = lambda h, rt=rt: r.meanN[rt][h]
                rs = lambda h, rt=rt: r.rstdN[rt][h]
                rg = lambda h, rt=rt: r.rlN[rt][h]
                c = lambda h, j=j: r.csn[j]
                if j < 2:
                    phi(x, m, c, rs, rg, tmp[0:4])
                elif j == 2:
                    phi(x, m, c, rs, rg, tmp[0:4], vraw=tmp[4:8])
                    for q in range(4):
                        e("v_cndmask_b32 %s, %s, %s, s[26:27]" % (x[q], tmp[4 + q], x[q]))
                else:
                    for h in H2:
                        e(pk("fma", x[h], m(h), c(h), x[h], neg=0))
                    for h in H2:
                        e(pk("mul", x[h], x[h], rs(h)))
                e("v_cvt_pk_bf16_f32 %s, %s, %s" % (Xf.q(j)[2 * rt], x[0], x[1]))
                e("v_cvt_pk_bf16_f32 %s, %s, %s" % (Xf.q(j)[2 * rt + 1], x[2], x[3]))
        e("v_mov_b32 %s, 0x3f803f80" % tmp[0])
        for q in range(4):
            e("v_cndmask_b32 %s, %s, %s, s[26:27]" % (Xf.q(5)[q], Xf.q(2)[q], tmp[0]))
        e.flush()
        for pi, (ka, vb) in enumerate(K1_PAIRS):
            a("%s %s, %s, %s, 0" % (MF, kvd.q(pi), Xf.q(ka), Xf.q(5 if vb == 2 else vb)))
        qo = [Xf.q(0), Xf.q(1), Xf.q(2), Xf.q(3)]

        def qtile(j, rt):
            x = acc[rt][5 + j]
            phi(x, lambda h: r.mean[rt], lambda h: r.cst.q(j)[h], lambda h: r.rstd[rt], lambda h: r.rl[rt], tmp[0:4])
            o = qo[rt][2 * j:2 * j + 2] if j < 2 else qo[2 + rt][0:2]
            e("v_cvt_pk_bf16_f32 %s, %s, %s" % (o[0], x[0], x[1]))
            e("v_cvt_pk_bf16_f32 %s, %s, %s" % (o[1], x[2], x[3]))
        if NPRE >= 8:
            a("s_barrier")
        for pi in range(8):
            a.ds("ds_write_b128 %s, %s" % (r.vKa[pi], kvd.q(pi)), "add")
        qtile(0, 0)
        a.wait_lg("add")
        a("s_barrier")
        for i in range(4):
            for w in range(4):
                a.ds("ds_read_b32 %s, %s offset:%d" % (kvd[4 * i + w], r.vR, i * 1024 + w * 3584), ("rd", i))
        a("v_mov_b32 %s, 0x%x" % (kvd[17], OOB))
        a("v_cmp_gt_u32 vcc, 72, v0")
        a("v_cndmask_b32 %s, %s, %s, vcc" % (kvd[16], kvd[17], r.vGl))
        for i in range(4):
            a.wait_lg(("rd", i))
            a(pk("add", kvd[4 * i:4 * i + 2], kvd[4 * i:4 * i + 2], kvd[4 * i + 2:4 * i + 4]))
            a("v_add_f32 %s, %s, %s" % (kvd[4 * i], kvd[4 * i], kvd[4 * i + 1]))
            a.vmem("buffer_atomic_add_f32 %s, %s, s[4:7], 0 offen offset:%d" % (kvd[4 * i], r.vGl if i < 3 else kvd[16], i * 1024), "kv")
        a("v_mov_b32 %s, 1" % r.ret)
        stamp(a, 4)
        wo = nxt.take(25)
        fa, vGo, vX = r.fa, r.vGo, r.vX
        b = Asm()
        b("v_cmp_lt_u32 s[36:37], 0, %s" % vG)
        eps = acc[1][1]
        for q in range(4):
            b("v_mov_b32 %s, s24" % eps[q])
        early = list(b.lines) + (nxt.addr_lines() if CFG["AE"] & 1 else [])
        for n in range(120, 160):
            ks = seq[n][0]
            if n == 120 + 2 * CFG["ARRK"]:
                if CFG["DBG"] == 4:
                    stamp(a, 1)
                a.wait_vm("kv")
                a("s_barrier")
                if CFG["DBG"] == 4:
                    stamp(a, 2)
                a.vmem("buffer_atomic_add %s, %s, s[4:7], 0 offen" % (r.ret, r.vC1), "arr")
            def mid():
                if n % 3 == 2 and wo and wo[0].k < 16:
                    wo.pop(0)()
                else:
                    for _ in range(2):
                        if early:
                            a(early.pop(0))
            pair(n, mid)
        if CFG["DBG"] == 4:
            stamp(a, 3)
        e = Weaver(a, [(lambda x=x: a(x)) for x in early] + wo[:CFG["NWQ"]], 3 if early else 16)
        wo = wo[CFG["NWQ"]:]
        a("v_mov_b32 v252, 0")
        a("v_mov_b32 v253, 0")
        a.vmem("buffer_atomic_add v253, %s, s[4:7], 0 offen sc0" % vGo, "go0")
        qq = [(0, 1), (1, 0), (1, 1), (2, 0), (2, 1)]
        nb = 5 - CFG["QAFT"]
        for k, x in enumerate(qq[:nb]):
            if k == min(2, nb - 1):
                a.vmem("buffer_atomic_add v252, %s, s[4:7], 0 offen sc0" % vGo, "go")
            qtile(*x)
        e.flush()
        if CFG["DBG"] == 4:
            stamp(a, 6)
        l, d = label("gp"), label("gd")
        a("s_add_u32 s49, s49, 16")
        a("s_cmp_lg_u32 %s, %d" % (sWAVE, CFG["PW"]))
        a("s_cbranch_scc1 %s" % d)
        a("s_mov_b32 s42, %d" % CFG["TMO"])
        save = list(a.vm)
        a.wait_vm("go0")
        a("v_cmp_le_u32 vcc, s49, v253")
        a("s_cmp_eq_u32 vcc_lo, 0xffff")
        a("s_cbranch_scc1 %s" % d)
        a.wait_vm("go")
        a.vm = save
        a("%s:" % l)
        a("v_cmp_le_u32 vcc, s49, v252")
        a("s_cmp_eq_u32 vcc_lo, 0xffff")
        a("s_cbranch_scc1 %s" % d)
        a("v_mov_b32 v252, 0")
        a("buffer_atomic_add v252, %s, s[4:7], 0 offen sc0" % vGo)
        a("s_sub_u32 s42, s42, 1")
        a("s_waitcnt vmcnt(0)")
        a("s_cbranch_scc0 %s" % l)
        a("%s:" % d)
        a("s_barrier")
        stamp(a, 5)
        stg, fr = kvd[0:16], [kvd.q(k) for k in range(7)]
        for k in range(4):
            a.vmem("buffer_load_dwordx4 %s, %s, s[4:7], s3 offen%s" % (stg.q(k), fa[k], SC()), "kvl")
        for x in p3.pre_setup() + p4.pre_setup():
            a(x)
        extra = wo + p3.pre_loads() + p4.take(CFG["NW4P"])
        e = Weaver(a, extra[:CFG["NX1"]], 12)
        extra = extra[CFG["NX1"]:]
        for x in qq[nb:]:
            qtile(*x)
        for rt in range(2):
            a("v_mov_b32 %s, 0" % qo[2 + rt][2])
            a("v_mov_b32 %s, 0" % qo[2 + rt][3])
        e.flush()
        if CFG["DBG"] == 3:
            stamp(a, 1)
        a.wait_vm("kvl")
        if CFG["DBG"] == 3:
            stamp(a, 2)
        for i in range(2):
            o = tmp.q(1 + i)
            for k in range(4):
                a("v_cvt_pk_bf16_f32 %s, %s, %s" % (o[k], stg[8 * i + 2 * k], stg[8 * i + 2 * k + 1]))
            a.ds("ds_write_b128 %s, %s offset:%d" % (vX[0], o, i * 1024), "fw")
        a.wait_lg("fw")
        a("s_barrier")
        extra.pop(0)()
        for k in (5, 6, 0, 1, 2, 3, 4):
            a.ds("ds_read_b128 %s, %s offset:%d" % (fr[k], vX[1], k * 1024), ("fr", k))
        if CFG["DBG"] == 3:
            stamp(a, 3)
        num = [[acc[rt][2 + t_] for t_ in range(3)] for rt in range(2)]
        den = [acc[0][5], acc[1][5]]
        for k, (t_, kb) in ((5, (3, 0)), (6, (3, 1)), (0, (0, 0)), (1, (1, 0)), (2, (1, 1)), (3, (2, 0)), (4, (2, 1))):
            a.wait_lg(("fr", k))
            for rt in range(2):
                dst = den[rt] if t_ == 3 else num[rt][t_]
                c = dst if kb else (eps if t_ == 3 else "0")
                a("%s %s, %s, %s, %s" % (MF, dst, fr[k], qo[rt] if kb == 0 else qo[2 + rt], c))
        extra.pop(0)()
        extra.pop(0)()
        for rt in range(2):
            a("v_rcp_f32 %s, %s" % (den[rt][0], den[rt][0]))
            a("v_rcp_f32 %s, %s" % (den[rt][1], den[rt][1]))
        for rt in range(2):
            a("v_cndmask_b32 %s, %s, %s, s[36:37]" % (den[rt][2], den[rt][0], den[rt][1]))
        for rt in range(2):
            for t_, dd in ((0, den[rt][0]), (1, den[rt][2])):
                for h in H2:
                    a(pk("mul", num[rt][t_][h], num[rt][t_][h], dd))
                a("v_cvt_pk_bf16_f32 %s, %s, %s" % (qo[rt][2 * t_], num[rt][t_][0], num[rt][t_][1]))
                a("v_cvt_pk_bf16_f32 %s, %s, %s" % (qo[rt][2 * t_ + 1], num[rt][t_][2], num[rt][t_][3]))
            a.vmem("buffer_store_dwordx4 %s, %s, s[4:7], %s offen%s" % (qo[rt], r.vQ[0], "s23" if rt else "0", SC()), "out")
        for rt in range(2):
            z = qo[2 + rt]
            for h in H2:
                a(pk("mul", num[rt][2][h], num[rt][2][h], den[rt][1]))
            a("v_cvt_pk_bf16_f32 %s, %s, %s" % (z[0], num[rt][2][0], num[rt][2][1]))
            a("v_cvt_pk_bf16_f32 %s, %s, %s" % (z[1], num[rt][2][2], num[rt][2][3]))
            a("v_mov_b32 %s, %s" % (z[2], z[0]))
            a("v_mov_b32 %s, %s" % (z[3], z[1]))
            a("v_permlane16_swap_b32 %s, %s" % (z[0], z[2]))
            a("v_permlane16_swap_b32 %s, %s" % (z[1], z[3]))
            a.vmem("buffer_store_dwordx4 %s, %s, s[4:7], %s offen%s" % (z, r.vQ[1], "s23" if rt else "0", SC()), "out")
        if CFG["RB"]:
            a("v_mov_b32 %s, %s" % (vRB[0], r.vQ[0]))
            a("v_mov_b32 %s, %s" % (vRB[1], r.vQ[1]))
        a.rb = [(vRB[0], "0", 0), (vRB[0], "s23", 0), (vRB[1], "0", 0), (vRB[1], "s23", 0)]
        self.extra = extra


class P3:
    def __init__(self, a):
        self.a = a
        self.ring = Ring(a, 12, 6, vPRE[0], vPRE[0], "s44", "s45", "s46")

    def pre_setup(self):
        return ["s_mul_i32 s17, %s, 245760" % sP,
                "s_mul_i32 s44, %s, 6144" % sWAVE,
                "s_add_u32 s17, s17, s44",
                "s_add_u32 s17, s17, %d" % W3,
                "v_add_u32 %s, s17, v2" % vPRE[0]] + self.ring.init_lines()

    def pre_loads(self):
        return [f for s in range(min(CFG["NE3"], CFG["NPRE3"])) for f in self.ring.loads(s)]

    def wait_loads(self):
        return [f for s in range(CFG["NE3"], CFG["NPRE3"]) for f in self.ring.loads(s)]

    def before_wait(self, emit=None):
        r, a = self, (emit or self.a)
        V = Alloc("v", VBASE, 240)
        r.vA = [V.get(1), V.get(1)]
        r.vL = [Reg("v", 2, 1), V.get(1), V.get(1)]
        r.vS = V.get(1); r.vC = V.get(1); r.vH = V.get(1)
        r.mean = [V.get(1), V.get(1)]; r.rstd = [V.get(1), V.get(1)]; r.std = [V.get(1), V.get(1)]; r.c1 = [V.get(1), V.get(1)]
        r.tmp = V.get(16)
        r.acc = [[V.get(4) for j in range(12)] for rt in range(2)]
        r.cs = V.get(48)
        r.Aring = Reg("a", 160, 64)
        r.Bregs = Reg("a", 224, 32)
        tmp = r.tmp
        a("s_lshl_b32 s16, %s, 3" % sRB)
        a("s_lshl_b32 s17, %s, 1" % sWAVE)
        a("s_add_u32 s16, s16, s17")
        a("s_mul_i32 s17, s16, 20480")
        a("s_add_u32 s17, s17, %s" % sLAY)
        a("s_add_u32 s17, s17, %d" % XB)
        a("v_add_u32 %s, s17, v2" % r.vA[0])
        a("v_add_u32 %s, 20480, %s" % (r.vA[1], r.vA[0]))
        a("v_add_u32 %s, 0x10000, v2" % r.vL[1])
        a("v_add_u32 %s, 0x20000, v2" % r.vL[2])
        a("v_lshlrev_b32 %s, 3, %s" % (tmp[0], vN))
        a("v_lshl_add_u32 %s, %s, 8, %s" % (tmp[0], vG, tmp[0]))
        a("s_lshl_b32 s17, s16, 10")
        a("s_add_u32 s17, s17, %s" % sLAY)
        a("s_add_u32 s17, s17, %d" % STB)
        a("v_add_u32 %s, s17, %s" % (r.vS, tmp[0]))
        a("s_mul_i32 s17, %s, 768" % sP)
        a("s_add_u32 s17, s17, %d" % CS3F)
        a("v_lshl_add_u32 %s, %s, 4, s17" % (r.vC, vG))
        a("s_mul_i32 s17, s16, 49152")
        a("s_mul_i32 s19, %s, 3072" % sP)
        a("s_add_u32 s17, s17, s19")
        a("s_add_u32 s17, s17, %s" % sLAY)
        a("s_add_u32 s17, s17, %d" % H)
        a("v_add_u32 %s, s17, v2" % r.vH)
        a("s_mov_b32 s23, 49152")
        a("s_lshl_b32 s20, %s, 11" % sROT10)
        a("s_mov_b32 s24, %s" % f32(-2.0 * 0.7978845608028654 * 0.044715 * LOG2E))
        a("v_mov_b32 %s, %s" % (tmp[15], f32(-2.0 * 0.7978845608028654 * LOG2E)))

    def body(self, nxt):
        r, a = self, self.a
        tmp, acc, cs, mean, rstd, std = r.tmp, r.acc, r.cs, r.mean, r.rstd, r.std
        stat_loads = [(lambda rt=rt, h=h: a.vmem("buffer_load_dwordx2 %s, %s, s[4:7], 0 offen offset:%d%s" % (tmp.q(rt)[2 * h:2 * h + 2], r.vS, rt * 1024 + h * 128, SC()), "stats"))
                      for rt in range(2) for h in range(2)]
        b = Asm()
        for rt in range(2):
            stats_finish(b, tmp.q(rt), mean[rt], rstd[rt], tmp[8])
            b("v_mul_f32 %s, %s, %s" % (std[rt], rstd[rt], rstd[rt]))
            b("v_mul_f32 %s, %s, %s" % (r.c1[rt], tmp[15], rstd[rt]))
            b("v_mul_f32 %s, %s, %s" % (rstd[rt], std[rt], rstd[rt]))
            b("v_rcp_f32 %s, %s" % (std[rt], std[rt]))
            b("v_mul_f32 %s, s24, %s" % (rstd[rt], rstd[rt]))
        fill = [lambda: a.wait_vm("stats")] + list(b.lines) + (nxt.addr_lines() if CFG["AE"] & 2 else [])
        nl = CFG["NW4L"]
        csl = [(lambda j=j: a.vmem("buffer_load_dwordx4 %s, %s, s[4:7], 0 offen offset:%d%s" % (r.cs.q(j), r.vC, j * 64, SC()), "cs")) for j in range(12)]
        pre = nxt.take(nl + CFG["NW4E"])
        assert all(f.k < 39 for f in pre[:nl])
        rest = gemm_s(a, self.ring, CFG["NPRE3"], r.vA, r.vL, acc, r.Aring, r.Bregs, [True] * 12, "s20", 4,
                      csl + pre[:nl], fill, 0, PD=CFG["PD3"], P=CFG["P3"], first_barrier=True, early=stat_loads)
        assert len(rest) <= nl
        a.wait_vm("cs")
        e = Weaver(a, rest + pre[nl:], CFG["EW3"])
        out = tmp[0:8]
        for m in range(3):
            for rt in range(2):
                o = out.q(rt)
                for hh in range(2):
                    jp = 2 * m + hh
                    g, u = acc[rt][2 * jp], acc[rt][2 * jp + 1]
                    cg, cu = cs.q(2 * jp), cs.q(2 * jp + 1)
                    t = tmp[8:12]
                    for h in H2:
                        e(pk("fma", g[h], cg[h], mean[rt], g[h], neg=1))
                    for h in H2:
                        e(pk("fma", u[h], cu[h], mean[rt], u[h], neg=1))
                    for h in H2:
                        e(pk("mul", t[h], g[h], g[h]))
                    for h in H2:
                        e(pk("fma", t[h], t[h], rstd[rt], r.c1[rt]))
                    for h in H2:
                        e(pk("mul", t[h], g[h], t[h]))
                    for h in H2:
                        e(pk("mul", u[h], g[h], u[h]))
                    for q in range(4):
                        e("v_exp_f32 %s, %s" % (t[q], t[q]))
                    for h in H2:
                        e(pk("fma", t[h], t[h], std[rt], std[rt]))
                    for q in range(4):
                        e("v_rcp_f32 %s, %s" % (t[q], t[q]))
                    for h in H2:
                        e(pk("mul", u[h], u[h], t[h]))
                    e("v_cvt_pk_bf16_f32 %s, %s, %s" % (o[2 * hh], u[0], u[1]))
                    e("v_cvt_pk_bf16_f32 %s, %s, %s" % (o[2 * hh + 1], u[2], u[3]))
                a.vmem("buffer_store_dwordx4 %s, %s, s[4:7], %s offen offset:%d%s" % (o, r.vH, "s23" if rt else "0", m * 1024, SC()), ("out0", "out1", "out")[m])
            if m == 1:
                a.wait_vm("out0")
                a("s_add_u32 s22, s22, 16")
                signal(a, 1)
                read_back(a, [(r.vH, "0", 0), (r.vH, "s23", 0)])
        e.flush()
        if CFG["T3"]:
            a.wait_vm("out1")
            signal(a, 2)


def p_addr(a, r, t, red_base, xres, stout, from_x=False):
    a("s_add_u32 s17, %s, 3" % sWAVE)
    a("s_and_b32 s17, s17, 3")
    a("s_mul_i32 s17, s17, 10240")
    a("s_add_u32 s17, s17, %d" % red_base)
    a("v_add_u32 %s, s17, v2" % r.vW)
    a("s_mul_i32 s17, %s, 10240" % sWAVE)
    a("s_add_u32 s17, s17, %d" % red_base)
    a("v_add_u32 %s, s17, v2" % r.vRd)
    a("s_lshl_b32 s16, %s, 2" % sRB64)
    a("s_add_u32 s16, s16, %s" % sWAVE)
    a("s_and_b32 s19, %s, 1" % sCG)
    a("s_mul_i32 s29, %s, 5" % sCG)
    a("s_add_u32 s30, s29, s19")
    a("s_xor_b32 s19, s19, 1")
    a("s_lshl_b32 s19, s19, 2")
    a("s_add_u32 s29, s29, s19")
    a("s_mul_i32 s17, s16, 20480")
    a("s_add_u32 s17, s17, %s" % sLAY)
    a("s_add_u32 s17, s17, %d" % xres)
    a("s_lshl_b32 s19, s30, 9")
    a("s_add_u32 s19, s19, s17")
    a("v_add_u32 %s, s19, v2" % r.vRes[0])
    a("v_lshrrev_b32 %s, 1, %s" % (t, vG))
    a("v_lshlrev_b32 %s, 8, %s" % (t, t))
    a("v_lshl_add_u32 %s, %s, 4, %s" % (t, vN, t))
    a("s_lshl_b32 s19, s29, 9")
    a("s_add_u32 s19, s19, s17")
    a("v_add_u32 %s, s19, %s" % (r.vRes[2], t))
    a("v_add_u32 %s, s17, %s" % (r.vRes[1], t))
    a("v_and_b32 %s, 1, %s" % (t, vG))
    a("v_lshl_add_u32 %s, %s, 3, %s" % (r.vRes[1], t, r.vRes[1]))
    a("v_lshl_add_u32 %s, %s, 30, %s" % (r.vRes[2], t, r.vRes[2]))
    a("s_mov_b32 s32, s4\ns_mov_b32 s33, s5\ns_mov_b32 s34, s6\ns_mov_b32 s35, 0x20000\ns_mov_b32 s31, 512")
    if from_x:
        a("v_mul_u32_u24 %s, 1280, %s" % (t, vN))
        a("v_lshl_add_u32 %s, %s, 3, %s" % (t, vG, t))
        a("s_mul_i32 s19, s16, 20480")
        a("v_add_u32 %s, s19, %s" % (t, t))
        one = ["s_cmp_eq_u32 %s, 0" % sLAY, "s_cselect_b32 s32, s84, s32", "s_cselect_b32 s33, s85, s33",
               "s_cselect_b32 s34, %d, s34" % (S * D * 2), "s_cselect_b32 s31, 32, s31", "s_cselect_b64 vcc, -1, 0"]
        a.lines.append("\n".join(one))
        a("v_cndmask_b32 %s, %s, %s, vcc" % (r.vRes[1], r.vRes[1], t))
    a("s_mul_i32 s38, s30, s31")
    a("s_mul_i32 s39, s29, s31")
    a("s_lshl_b32 s17, s16, 10")
    a("s_add_u32 s17, s17, %s" % sLAY)
    a("s_add_u32 s17, s17, %d" % stout)
    a("s_lshl_b32 s19, %s, 7" % sCG)
    a("s_add_u32 s17, s17, s19")
    a("v_lshl_add_u32 %s, %s, 3, s17" % (r.vSt, vN))
    a("v_mov_b32 %s, 0x%x" % (t, OOB))
    a("v_and_b32 %s, %s, %s" % (t, t, vCNT))
    a("v_or_b32 %s, %s, %s" % (r.vSt, t, r.vSt))


def p_res_loads(a, res, vRes):
    for j in range(4):
        a.vmem("buffer_load_dwordx2 %s, %s, s[32:35], s38 offen%s" % (res[2 * j:2 * j + 2], vRes[1], SC()), "res")
        if j < 3:
            a("s_add_u32 s38, s38, s31")
    a.vmem("buffer_load_dwordx2 %s, %s, s[32:35], s39 offen%s" % (res[8:10], vRes[1], SC()), "res")


def p_write(a, acc, i, vW):
    for j in range(5):
        a.ds("ds_write_b128 %s, %s offset:%d" % (vW[i - 1], acc[i][j], j * 1024), "rw")


def p_epilogue(a, r, acc, res, part, tmp, xdelta, pre, final):
    stamp(a, 3)
    y, o = acc[0], r.keep
    a("s_mov_b32 s28, %d" % xdelta)
    def swaps(b):
        for d in range(2):
            a("v_permlane32_swap_b32 %s, %s" % (o[b + d], o[b + 2 + d]))
        for d in range(2):
            a("v_permlane16_swap_b32 %s, %s" % (o[b + d], o[b + 2 + d]))
    for j in range(5):
        a.wait_lg(("p", j))
        for h in H2:
            a(pk("add", y[j][h], y[j][h], part.q(j)[h]))
    stamp(a, 4)
    for j in range(5):
        a("v_cvt_pk_bf16_f32 %s, %s, %s" % (o[2 * j], y[j][0], y[j][1]))
        a("v_cvt_pk_bf16_f32 %s, %s, %s" % (o[2 * j + 1], y[j][2], y[j][3]))
    if final:
        a("s_cmp_lg_u32 %s, 0" % sLAY)
        a("s_cbranch_scc1 L_final")
    a("v_mov_b32 %s, %s" % (tmp[4], o[8]))
    a("v_mov_b32 %s, %s" % (tmp[5], o[9]))
    a("v_mov_b32 %s, %s" % (tmp[6], o[8]))
    a("v_mov_b32 %s, %s" % (tmp[7], o[9]))
    swaps(0)
    a.vmem("buffer_store_dwordx4 %s, %s, s[4:7], s28 offen%s" % (o[0:4], r.vRes[0], SC()), "out")
    swaps(4)
    a("v_permlane16_swap_b32 %s, %s" % (tmp[4], tmp[6]))
    a("v_permlane16_swap_b32 %s, %s" % (tmp[5], tmp[7]))
    a.vmem("buffer_store_dwordx4 %s, %s, s[4:7], s28 offen offset:1024%s" % (o[4:8], r.vRes[0], SC()), "out")
    a.vmem("buffer_store_dwordx4 %s, %s, s[4:7], s28 offen%s" % (tmp[4:8], r.vRes[2], SC()), "out")
    sq = tmp[2:4]
    a("s_mov_b32 s24, 0x3f803f80")
    for q in range(4):
        a("v_mov_b32 %s, 0" % tmp[q])
    for k in range(10):
        a("v_dot2c_f32_bf16 %s, s24, %s" % (tmp[2 * (k % 2)], o[k]))
        a("v_dot2c_f32_bf16 %s, %s, %s" % (tmp[1 + 2 * (k % 2)], o[k], o[k]))
    a(pk("add", sq, sq, tmp[0:2]))
    for sw in ("v_permlane16_swap_b32", "v_permlane32_swap_b32"):
        a("v_mov_b32 %s, %s" % (tmp[0], sq[0]))
        a("v_mov_b32 %s, %s" % (tmp[1], sq[1]))
        a("%s %s, %s" % (sw, sq[0], tmp[0]))
        a("%s %s, %s" % (sw, sq[1], tmp[1]))
        a(pk("add", sq, sq, tmp[0:2]))
    a.vmem("buffer_store_dwordx2 %s, %s, s[4:7], 0 offen%s" % (sq, r.vSt, SC()), "out")
    if CFG["RB"]:
        a("v_add_u32 %s, s28, %s" % (vRB[0], r.vRes[0]))
        a("v_add_u32 %s, s28, %s" % (vRB[1], r.vRes[2]))
    a.rb = [(vRB[0], "0", 0), (vRB[0], "0", 1024), (vRB[1], "0", 0)]


def wait_first(a, loads=()):
    arrive(a)
    if not CFG["SPLIT"]:
        wait(a, loads)
        return
    spoll_issue(a, 1)
    for f in loads:
        f()
    spoll_wait(a, 1, "s22")
    stamp(a, 8); stamp_dump(a); stamp(a, 0); dbg_time(a)


def final_store(a, o, tmp):
    a("L_final:")
    a("s_mov_b32 s32, s90")
    a("s_mov_b32 s33, s91")
    a("s_mov_b32 s34, %d" % (S * D * 2))
    a("s_mov_b32 s35, 0x20000")
    a("s_mul_i32 s17, s16, 20480")
    a("v_mul_u32_u24 %s, 1280, %s" % (tmp[0], vN))
    a("v_lshl_add_u32 %s, %s, 3, %s" % (tmp[0], vG, tmp[0]))
    a("v_add_u32 %s, s17, %s" % (tmp[0], tmp[0]))
    a("s_lshl_b32 s30, s30, 5")
    a("s_lshl_b32 s29, s29, 5")
    for j in range(4):
        a("buffer_store_dwordx2 %s, %s, s[32:35], s30 offen offset:%d" % (o[2 * j:2 * j + 2], tmp[0], j * 32))
    a("buffer_store_dwordx2 %s, %s, s[32:35], s29 offen" % (o[8:10], tmp[0]))
    dbg_time(a)
    if CFG["SPAN"]:
        a("s_waitcnt vmcnt(0)")
        a("s_memrealtime s[60:61]")
        a("s_lshl_b32 s59, s2, 2")
        a("s_add_u32 s59, s59, s10")
        a("s_lshl_b32 s59, s59, 3")
        a("s_add_u32 s59, s59, %d" % PROFO)
        a("s_mov_b64 exec, 1")
        a("s_waitcnt lgkmcnt(0)")
        a("v_mov_b32 v100, s80\nv_mov_b32 v101, s60\nv_mov_b32 v102, s59")
        a("buffer_store_dwordx2 v[100:101], v102, s[4:7], 0 offen")
    if PROF:
        stamp(a, 5)
        a("s_waitcnt vmcnt(0)")
        stamp(a, 6)
        stamp(a, 7)
        stamp(a, 8)
        stamp_dump(a)


class PK:
    def __init__(self, a, NK, wbase, abase, xres, xout, stout, red, final, wreg, vW_, sW_):
        self.a, self.NK, self.wbase, self.abase = a, NK, wbase, abase
        self.vw, self.sw = vW_, sW_
        self.xres, self.xout, self.stout, self.red, self.final = xres, xout, stout, red, final
        self.W = wreg
        self.todo = None

    def pre_setup(self):
        self.todo = list(range(5 * self.NK))
        return ["s_mul_i32 s17, %s, %d" % (sCG, 4 * self.NK * 5120),
                "s_mul_i32 s19, %s, %d" % (sWAVE, self.NK * 5120),
                "s_add_u32 s17, s17, s19",
                "s_add_u32 s17, s17, %d" % self.wbase,
                "v_add_u32 %s, s17, v2" % self.vw]

    def kmap(self, st):
        return 3 * (st % 4) + st // 4 if self.final else st

    def take(self, n):
        a = self.a
        ks, self.todo = self.todo[:n], self.todo[n:]
        def mk(k):
            def f():
                if CFG["NOW"] & (8 if self.final else 2):
                    return
                st, j = divmod(k, 5)
                if j in (0, 4):
                    a("s_mov_b32 %s, %d" % (self.sw, self.kmap(st) * 5120 + (j // 4) * 4096))
                a.vmem("buffer_load_dwordx4 %s, %s, s[4:7], %s offen offset:%d%s" % (self.W(k), self.vw, self.sw, (j % 4) * 1024, WSC()), ("w", self.NK, k))
            f.k = k
            return f
        return [mk(k) for k in ks]

    def addr_lines(self):
        r, a = self, Asm()
        V = Alloc("v", CFG["PKB"], 228)
        r.vA = Reg("v", 240, 4); r.vW = Reg("v", 244, 1); r.vRd = Reg("v", 245, 1); r.vRes = Reg("v", 246, 3); r.vSt = Reg("v", 249, 1)
        r.tmp = V.get(8)
        V.get(CFG["PKG"])
        r.acc = [[V.get(4) for j in range(5)] for i in range(4)]
        r.ring = V.get(80)
        r.part = V.get(20)
        tts = 4 * self.NK * 1024
        a("s_lshl_b32 s16, %s, 2" % sRB64)
        a("s_mul_i32 s16, s16, %d" % tts)
        a("s_mul_i32 s19, %s, %d" % (sWAVE, self.NK * 1024))
        a("s_add_u32 s16, s16, s19")
        a("s_add_u32 s16, s16, %s" % sLAY)
        a("s_add_u32 s16, s16, %d" % self.abase)
        for i in range(4):
            a("s_add_u32 s17, %s, %d" % (sWAVE, i))
            a("s_and_b32 s17, s17, 3")
            a("s_mul_i32 s17, s17, %d" % tts)
            a("s_add_u32 s17, s17, s16")
            a("v_add_u32 %s, s17, v2" % r.vA[i])
        p_addr(a, r, Reg("v", 250, 1), self.red, self.xres, self.stout)
        return a.lines

    def before_wait(self, emit=None):
        r, a = self, (emit or self.a)
        r.keep = Reg("v", 228, 10)
        if not self.final:
            l = label("res")
            flush = getattr(a, "flush", None)
            if flush:
                flush()
            self.a("s_cmp_lg_u32 %s, 0" % sLAY)
            self.a("s_cbranch_scc1 %s" % l)
            n = len(self.a.vm)
            p_res_loads(self.a, r.keep, r.vRes)
            self.a.vm = self.a.vm[:n]
            self.a("%s:" % l)

    def body(self, setup=(), extra=()):
        r, a = self, self.a
        acc, NK = r.acc, self.NK
        G0 = (8 if CFG["T3"] else 4) if self.final else 0
        seq = [(ks, i) for ks in range(G0) for i in (1, 2, 3, 0)] + [(ks, i) for i in (1, 2, 3, 0) for ks in range(G0, NK)]
        aq = []
        for n, (ks, i) in enumerate(seq):
            def f(n=n, ks=ks, i=i):
                if self.final and n == 16 and CFG["T3"]:
                    spoll_wait(a, 2, "s22")
                if self.final and n == 4 * G0:
                    spoll_wait(a, 0, sTGT)
                kb = self.kmap(ks)
                if st.get("s20") != kb // 4:
                    a("s_mov_b32 s20, %d" % (kb // 4 * 4096))
                    st["s20"] = kb // 4
                if self.final and n == CFG["BPOLL"]:
                    spoll_issue(a, 2 if CFG["T3"] else 0)
                if self.final and CFG["T3"] and n == CFG["BPOLL"] + 16:
                    spoll_issue(a, 0)
                a.vmem("buffer_load_dwordx4 %s, %s, s[4:7], s20 offen offset:%d%s" % (r.ring.q(n % 20), r.vA[i], (kb % 4) * 1024, SC()), ("x", n))
            aq.append((n, f))
        st = {}
        wq = [(f.k // 5, f) for f in self.take(99)]
        for k in range(CFG["PP4"] if self.final else CFG["PP"]):
            aq.pop(0)[1]()
            if self.final and k == CFG["BARR"]:
                a.wait_vm("out")
                a("s_add_u32 %s, %s, 16" % (sTGT, sTGT))
                signal(a, 0)
                read_back(a, [(vRB[0], so, m * 1024) for m in (1, 2) for so in ("0", "s23")])
        stamp(a, 1)
        def unpack():
            l = label("unsw")
            if not self.final:
                a("s_cmp_eq_u32 %s, 0" % sLAY)
                a("s_cbranch_scc1 %s" % l)
            for sw in ("v_permlane16_swap_b32", "v_permlane32_swap_b32"):
                for b in (0, 4):
                    for d in range(2):
                        a("%s %s, %s" % (sw, r.keep[b + d], r.keep[b + 2 + d]))
            a("%s:" % l)
            a("s_nop 0")
            for j in range(5):
                for h in range(2):
                    a("v_lshlrev_b32 %s, 16, %s" % (acc[0][j][2 * h], r.keep[2 * j + h]))
                    a("v_and_b32 %s, 0xffff0000, %s" % (acc[0][j][2 * h + 1], r.keep[2 * j + h]))
        if self.final:
            unpack()
        setup = list(setup)
        extra = list(extra)
        first_use = {}
        for n, (ks, i) in enumerate(seq):
            first_use.setdefault(ks, n)
        wq = [(first_use[ks], f) for ks, f in wq]
        side = []
        cnt, tau, started = 0, 0, set()
        for n, (ks, i) in enumerate(seq):
            while wq and wq[0][0] <= n:
                wq.pop(0)[1]()
            while aq and aq[0][0] <= n:
                aq.pop(0)[1]()
            a.wait_vm([("w", NK, k) for k in range(5 * ks, 5 * ks + 5)] + [("x", n)])
            if n == 0:
                stamp(a, 2)
            if n == 1 and not self.final:
                unpack()
            for j in range(5):
                c = str(acc[i][j]) if (i == 0 or i in started) else "0"
                a("%s %s, %s, %s, %s" % (MF, acc[i][j], self.W(5 * ks + j), r.ring.q(n % 20), c))
                cnt += 1
                if cnt % CFG["SP4"] == 0 and (aq or wq):
                    ca = aq and aq[0][0] - 20 < n
                    if ca and (not wq or aq[0][0] <= wq[0][0] - 4):
                        aq.pop(0)[1]()
                    elif wq:
                        wq.pop(0)[1]()
                    elif ca:
                        aq.pop(0)[1]()
                elif cnt % CFG["SPX"] == 0 and extra and not aq and not wq and not setup:
                    extra.pop(0)()
                elif side:
                    for _ in range(CFG["SDK"]):
                        if side:
                            x = side.pop(0)
                            if x is not None:
                                x() if callable(x) else a(x)
                elif cnt % CFG["SP4"] == 1 and setup and n >= 8:
                    a(setup.pop(0))
            started.add(i)
            if ks == NK - 1 and i:
                for x in side:
                    if x is not None:
                        x() if callable(x) else a(x)
                side = [None] * 4
                par = (tau % 2) * 5120
                for j in range(5):
                    if tau:
                        side.append(lambda j=j: a.wait_lg(("p", j)))
                        side += ["v_add_f32 %s, %s, %s" % (acc[i][j][q], acc[i][j][q], r.part.q(j)[q]) for q in range(4)]
                    side.append(lambda i=i, j=j, par=par: a.ds("ds_write_b128 %s, %s offset:%d" % (r.vW, acc[i][j], par + j * 1024), "rw"))
                side += [None] * CFG["XW"]
                def swap(par=par):
                    a.wait_lg("rw")
                    a("s_barrier")
                    for j in range(5):
                        a.ds("ds_read_b128 %s, %s offset:%d" % (r.part.q(j), r.vRd, par + j * 1024), ("p", j))
                side.append(swap)
                tau += 1
        for x in side:
            if x is not None:
                x() if callable(x) else a(x)
        assert not aq and not wq and not setup
        p_epilogue(a, r, acc, None, r.part, r.tmp, self.xout - self.xres, extra, self.final)
        self.left = extra


def main_body():
    a = Asm()
    a("s_cmp_ge_u32 s2, 256")
    a("s_cbranch_scc1 L_end")
    a("s_load_dwordx2 s[4:5], s[0:1], 72")
    a("s_load_dwordx4 s[84:87], s[0:1], 0")
    a("s_load_dwordx2 s[88:89], s[0:1], 16")
    a("s_load_dwordx2 s[90:91], s[0:1], 32")
    a("s_load_dwordx2 s[92:93], s[0:1], 40")
    a("s_load_dwordx2 s[96:97], s[0:1], 48")
    a("s_load_dwordx2 s[94:95], s[0:1], 64")
    if CFG["SPAN"]:
        a("s_memrealtime s[80:81]")
    if CFG["DBGT"]:
        a("s_memrealtime s[80:81]")
        a("s_mov_b32 s62, 4")
    if PROF:
        a("s_mov_b32 %s, 0" % sPH)
        a("s_memrealtime s[80:81]")
    stamp(a, 0)
    a("v_lshrrev_b32 v1, 6, v0")
    a("v_readfirstlane_b32 %s, v1" % sWAVE)
    a("v_and_b32 v1, 63, v0")
    a("v_lshlrev_b32 v2, 4, v1")
    a("v_and_b32 %s, 15, v1" % vN)
    a("v_lshrrev_b32 %s, 4, v1" % vG)
    a("s_mov_b32 s6, %d" % WS_USED)
    a("s_mov_b32 s7, 0x20000")

    def late_setup():
        a("s_and_b32 s16, s2, 7")
        a("s_lshr_b32 s17, s2, 3")
        lx = CFG["XC"] - 1
        a("s_lshr_b32 %s, s16, %d" % (sRB, lx))
        a("s_lshl_b32 %s, %s, %d" % (sRB, sRB, lx + 1))
        a("s_and_b32 s18, s17, %d" % ((2 << lx) - 1))
        a("s_add_u32 %s, %s, s18" % (sRB, sRB))
        a("s_lshr_b32 s17, s17, %d" % (lx + 1))
        a("s_and_b32 s16, s16, %d" % lx)
        a("s_lshl_b32 %s, s16, 3" % sP)
        a("s_add_u32 %s, %s, s17" % (sP, sP))
        a("s_lshl_b32 %s, %s, 1" % (sRB64, sRB))
        a("s_and_b32 s18, %s, 1" % sP)
        a("s_add_u32 %s, %s, s18" % (sRB64, sRB64))
        a("s_lshr_b32 %s, %s, 1" % (sCG, sP))
        a("s_and_b32 s18, %s, %d" % (sRB, 3 if CFG["ROT"] else 0))
        a("s_mul_i32 %s, s18, 3" % sROT12)
        a("s_mul_i32 %s, s18, 5" % sROT10)
        a("s_lshr_b32 %s, %s, 1" % (sROT10, sROT10))
        a("s_mov_b32 %s, 0" % sLAY)
        a("s_mov_b32 %s, 0" % sTGT)
        a("s_lshl_b32 s17, %s, 11" % sRB)
        a("s_add_u32 s17, s17, %d" % CNT)
        a("v_lshl_add_u32 %s, %s, 7, s17" % (vCNT, vN))
        a("v_mov_b32 v255, 0x%x" % OOB)
        a("v_cmp_gt_u32 vcc, 16, v1")
        a("s_lshl_b32 s18, %s, 7" % sP)
        a("s_add_u32 s17, s17, s18")
        a("v_cndmask_b32 %s, v255, %s, vcc" % (vCNT, vCNT))
        a("v_mov_b32 %s, s17" % vPL)
        a("s_add_u32 s100, s4, s17")
        a("s_addc_u32 s101, s5, 0")
        a("v_cmp_eq_u32 vcc, 0, v1")
        a("v_cndmask_b32 %s, v255, %s, vcc" % (vPL, vPL))
    p1, p3 = P1(a), P3(a)
    p2 = PK(a, 5, W2, PQ, XA, XB, STB, 122880, False, lambda k: Reg("a", 192 + 4 * k if k < 16 else 156 + 4 * (k - 16), 4), vPRE[2], "s47")
    p4 = PK(a, 12, W4, H, XB, XA + LSTR, STA + LSTR, 122880, True, lambda k: Reg("a", 4 * k, 4), vPRE[3], "s58")
    p0_phase(a, p1, late_setup)
    a.vm = []
    for f in p1.pre_loads(CFG["NPRE1A"]):
        f()
    p1.body(p2, p3, p4, CFG["NPRE1A"], True)
    tail_state = list(a.vm[a.vm.index("out"):])
    a("L_mid:")
    ex = p1.extra
    w = Weaver(a, ex[:CFG["NX2"]], 8)
    for x in ([] if CFG["AE"] & 1 else p2.addr_lines()):
        w(x)
    w.flush()
    p2.before_wait(); arrive(a); wait(a, ex[CFG["NX2"]:CFG["NX2"] + CFG["NX3"]])
    rest = ex[CFG["NX2"] + CFG["NX3"]:]
    assert len(ex) - len(rest) >= len(ex) - 6 * CFG["NE3"] - CFG["NW4P"]
    p2.body((), rest)
    stamp(a, 5)
    w = Weaver(a, p2.left, 6)
    p3.before_wait(w); w.flush(); wait_first(a, p3.wait_loads() + p4.take(CFG["NW4Q"]))
    p3.body(p4)
    stamp(a, 5)
    spoll_issue(a, 1)
    for x in ([] if CFG["AE"] & 2 else p4.addr_lines()):
        a(x)
    p4.before_wait()
    stamp(a, 6); stamp(a, 7)
    spoll_wait(a, 1, "s22")
    stamp(a, 8); stamp_dump(a); stamp(a, 0); dbg_time(a)
    p4.body(p1.pre_setup())
    stamp(a, 5)
    a("s_add_u32 %s, %s, %d" % (sLAY, sLAY, LSTR))
    pl = p1.pre_loads(CFG["NPRE1"])
    assert len(pl) - CFG["NP1W"] <= 28
    w = Weaver(a, pl[:len(pl) - CFG["NP1W"]], 12)
    p1.before_wait(w); w.flush(); wait_first(a, pl[len(pl) - CFG["NP1W"]:])
    p1.body(p2, p3, p4, CFG["NPRE1"])
    assert a.vm[a.vm.index("out"):] == tail_state
    a("s_branch L_mid")
    final_store(a, p4.keep, p4.tmp)
    a("L_end:")
    a("s_endpgm")
    a("L_code_end:")
    return a, dict(vgpr=512, acc=256, lds=163840)


def p0_phase(a, p1, late_setup):
    U1, UX, U2, UZ, U3, U4 = 160, 256, 100, 47, 480, 240
    BX = U1; B2 = BX + UX; BZ = B2 + U2; BE = BZ + UZ
    NT = " nt" if CFG["K0NT"] & 1 else ""
    n_, g_ = "v3", "v4"
    DST = [82, 83, 86, 87, 88, 89, 98, 99]

    def nat_flag(kb):
        a("s_mul_i32 s29, %s, 52" % kb)
        a("s_lshr_b32 s29, s29, 8")
        a("s_mul_i32 s29, s29, 5")
        a("s_sub_u32 s29, %s, s29" % kb)
        a("s_cmp_eq_u32 s29, 2")

    def colsum(j, frag):
        a("%s v[%d:%d], v[56:59], %s, 0" % (MF, 64 + 4 * (j % 4), 67 + 4 * (j % 4), frag))

    def colsum_keep(j):
        a("v_cndmask_b32 v%d, v%d, v%d, s[%d:%d]" % (60 + j // 4, 60 + j // 4, 64 + 4 * (j % 4), 50 + 2 * (j % 4), 51 + 2 * (j % 4)))

    def issue128(srd, rs, kb, ch, lds, v):
        a("v_mul_lo_u32 %s, %s, %s" % (v, g_, rs))
        a("v_lshl_add_u32 %s, %s, 4, %s" % (v, n_, v))
        a("s_mul_i32 s17, %s, %s" % (kb, rs))
        a("s_lshl_b32 s17, s17, 5")
        a("s_lshl_b32 s19, %s, 8" % ch)
        a("s_add_u32 s17, s17, s19")
        a("s_lshl_b32 s19, %s, 2" % rs)
        for i in range(8):
            a("s_add_u32 m0, %s, %d" % (lds, i * 1024))
            a("s_nop 0")
            a("buffer_load_dwordx4 %s, %s, s17 offen%s lds" % (v, srd, NT))
            a("s_add_u32 s17, s17, s19")

    def rdaddr128(lds):
        a("v_lshrrev_b32 v230, 2, %s" % n_)
        a("v_lshl_add_u32 v230, %s, s29, v230" % g_)
        a("v_lshlrev_b32 v230, 8, v230")
        a("v_and_b32 v231, 3, %s" % n_)
        a("v_lshl_add_u32 v230, v231, 3, v230")
        a("v_add_u32 v230, %s, v230" % lds)
        a("v_add_u32 v231, s30, v230")

    def dst640(kb, ch, nkb, base):
        a("s_lshl_b32 s17, %s, 3" % ch)
        a("s_mul_i32 s19, s17, 52")
        a("s_lshr_b32 s19, s19, 8")
        a("s_mul_i32 s28, s19, 5")
        a("s_sub_u32 s17, s17, s28")
        a("s_and_b32 s27, s19, 1")
        a("s_mul_i32 s19, s19, %d" % nkb)
        a("s_add_u32 s19, s19, %s" % kb)
        a("s_mul_i32 s19, s19, 5120")
        a("s_add_u32 s19, s19, %d" % base)
        for i in range(8):
            a("s_sub_u32 s28, s17, s27")
            a("s_cselect_b32 s28, 4, s28")
            a("s_lshl_b32 s28, s28, 10")
            a("s_add_u32 s%d, s28, s19" % DST[i])
            if i < 7:
                a("s_add_u32 s17, s17, 1")
                a("s_cmp_eq_u32 s17, 5")
                a("s_cselect_b32 s17, 0, s17")
                a("s_cselect_b32 s28, 1, 0")
                a("s_xor_b32 s27, s27, s28")
                a("s_mul_i32 s28, s28, %d" % (nkb * 5120))
                a("s_add_u32 s19, s19, s28")

    def move128():
        for t in range(8):
            for h in range(2):
                a.ds("ds_read_b64_tr_b16 v[%d:%d], v%d offset:%d" % (96 + 4 * t + 2 * h, 97 + 4 * t + 2 * h, 230 + h, t * 32), ("t", t))
        for t in range(8):
            a.wait_lg(("t", t))
            a("buffer_store_dwordx4 v[%d:%d], v2, s[4:7], s%d offen sc1" % (96 + 4 * t, 99 + 4 * t, DST[t]))

    a("s_lshl_b32 s38, %s, 8" % sWAVE)
    a("s_add_u32 s38, s38, s2")
    a("s_sub_u32 s16, s38, 160")
    a("s_cmp_lt_u32 s2, 160")
    a("s_cselect_b32 s16, s2, s16")
    a("s_cmp_eq_u32 %s, 2" % sWAVE)
    a("s_cselect_b32 s38, s16, s38")
    a("s_add_u32 s39, s2, 256")
    a("s_sub_u32 s16, 767, s2")
    a("s_cmp_eq_u32 %s, 2" % sWAVE)
    a("s_cselect_b32 s39, s16, s39")
    a("s_cmp_eq_u32 %s, 3" % sWAVE)
    a("s_cselect_b32 s39, s2, s39")
    a("s_cmp_eq_u32 %s, 0" % sWAVE)
    a("s_cselect_b32 s39, 0x1000, s39")
    a("s_lshl_b32 s18, %s, 14" % sWAVE)
    a("s_lshl_b32 s37, %s, 13" % sWAVE)
    a("s_add_u32 s37, s37, 0x20000")
    a("s_mov_b32 s23, 0x20000\ns_mov_b32 s35, 0x20000")
    a("s_cmp_lt_u32 s38, %d" % BX)
    a("s_cbranch_scc1 L_i_w1")
    a("s_cmp_lt_u32 s38, %d" % B2)
    a("s_cbranch_scc1 L_i_x")
    a("s_cmp_lt_u32 s38, %d" % BZ)
    a("s_cbranch_scc1 L_i_w2")
    a("s_waitcnt lgkmcnt(0)")
    a("s_cmp_lt_u32 s38, %d" % BE)
    a("s_cbranch_scc0 L_i_b")
    a("s_sub_u32 s16, s38, %d" % BZ)
    a("s_cmp_ge_u32 s16, 14")
    a("s_cselect_b32 s17, %d, 0" % (LSTR - 14 * 4096))
    a("s_cmp_ge_u32 s16, 28")
    a("s_cselect_b32 s17, 0x%x, s17" % ((CS3F - KV - 28 * 4096) & 0xffffffff))
    a("s_cmp_ge_u32 s16, 31")
    a("s_cselect_b32 s17, 0x%x, s17" % ((CNT - KV - 31 * 4096) & 0xffffffff))
    a("s_add_u32 s17, s17, %d" % KV)
    a("s_lshl_b32 s16, s16, 12")
    a("s_add_u32 s17, s17, s16")
    for q in range(4):
        a("v_mov_b32 v%d, 0" % (16 + q))
    for q in range(4):
        a("buffer_store_dwordx4 v[16:19], v2, s[4:7], s17 offen offset:%d sc1" % (q * 1024))
    a("s_branch L_i_b")

    a("L_i_w1:")
    a("s_lshr_b32 s24, s38, 3")
    a("s_and_b32 s25, s38, 7")
    a("v_mul_u32_u24 v12, 205, v1")
    a("v_lshrrev_b32 v12, 11, v12")
    a("v_mul_u32_u24 v13, 10, v12")
    a("v_sub_u32 v13, v1, v13")
    a("v_cmp_le_u32 vcc, 3, v12")
    a("v_cndmask_b32 v14, 0, 1, vcc")
    a("v_mul_u32_u24 v15, 3, v14")
    a("v_sub_u32 v12, v12, v15")
    a("v_add_u32 v12, 1, v12")
    a("v_cmp_eq_u32 vcc, 3, v12")
    a("v_cndmask_b32 v12, v12, 0, vcc")
    a("v_mul_u32_u24 v12, 1280, v12")
    a("v_lshl_add_u32 v12, v13, 4, v12")
    a("v_mul_u32_u24 v14, 3840, v14")
    a("s_mul_i32 s17, s24, %d" % (32 * 3840))
    a("s_mul_i32 s19, s25, 160")
    a("s_add_u32 s17, s17, s19")
    a("s_mul_i32 s19, %s, %d" % (sWAVE, 8 * 3840))
    a("s_add_u32 s17, s17, s19")
    a("s_lshl_b32 s18, %s, 12" % sWAVE)
    a("v_add3_u32 v12, v12, v14, s17")
    a("v_mov_b32 v13, 0x%x" % OOB)
    a("v_cmp_gt_u32 vcc, 60, v1")
    a("v_cndmask_b32 v12, v13, v12, vcc")
    a("s_mov_b32 s22, %d" % (640 * 1920 * 2))
    a("s_waitcnt lgkmcnt(0)")
    a("s_mov_b32 s20, s86\ns_mov_b32 s21, s87")
    for i in range(8):
        a("s_add_u32 m0, s18, %d" % (i * 1024))
        a("s_mov_b32 s19, %d" % (i * 7680))
        a("buffer_load_dwordx4 v12, s[20:23], s19 offen%s lds" % (" nt" if CFG["K0NT"] & 2 else ""))
    a("s_branch L_i_b")

    a("L_i_x:")
    a("s_sub_u32 s16, s38, %d" % BX)
    a("s_lshr_b32 s24, s16, 1")
    a("s_and_b32 s25, s16, 1")
    a("s_mul_i32 s17, s24, 20480")
    a("s_mul_i32 s19, s25, 640")
    a("s_add_u32 s19, s19, s17")
    a("v_mul_u32_u24 v12, 1280, %s" % n_)
    a("v_lshl_add_u32 v13, %s, 4, v12" % g_)
    a("s_mov_b32 s22, %d" % (S * D * 2))
    a("s_waitcnt lgkmcnt(0)")
    a("s_mov_b32 s20, s84\ns_mov_b32 s21, s85")
    for kb in range(10):
        a("buffer_load_dwordx4 v[%d:%d], v13, s[20:23], s19 offen offset:%d%s" % (96 + 4 * kb, 99 + 4 * kb, kb * 64, " nt" if CFG["K0NT"] & 4 else ""))
    a("s_branch L_i_b")

    a("L_i_w2:")
    a("s_sub_u32 s16, s38, %d" % B2)
    a("s_mul_i32 s24, s16, 52429")
    a("s_lshr_b32 s24, s24, 18")
    a("s_mul_i32 s17, s24, 5")
    a("s_sub_u32 s25, s16, s17")
    a("s_mov_b32 s22, %d\ns_mov_b32 s16, 1280" % (640 * 640 * 2))
    a("s_waitcnt lgkmcnt(0)")
    a("s_mov_b32 s20, s88\ns_mov_b32 s21, s89")
    a("s_mul_i32 s28, s24, 52")
    a("s_lshr_b32 s28, s28, 8")
    a("s_mul_i32 s17, s28, 5")
    a("s_sub_u32 s26, s24, s17")
    a("s_mul_i32 s17, s28, 160")
    a("s_mul_i32 s19, s26, 40")
    a("s_cmp_eq_u32 s26, 4")
    a("s_cselect_b32 s19, 32, s19")
    a("s_cselect_b32 s27, %d, %d" % (36 * 1280, 0))
    a("s_max_u32 s27, s27, %d" % (4 * 1280))
    a("s_add_u32 s17, s17, s19")
    a("s_mul_i32 s17, s17, 1280")
    a("s_lshl_b32 s19, s25, 8")
    a("s_add_u32 s17, s17, s19")
    a("v_mul_u32_u24 v12, 1280, %s" % g_)
    a("v_lshl_add_u32 v12, %s, 4, v12" % n_)
    for i in range(8):
        a("s_add_u32 m0, s18, %d" % (i * 1024))
        a("s_nop 0")
        a("buffer_load_dwordx4 v12, s[20:23], s17 offen%s lds" % NT)
        a("s_add_u32 s17, s17, %s" % ("s27" if i % 2 else str(4 * 1280)))

    a("L_i_b:")
    a("s_mov_b32 s28, s18")
    late_setup()
    a("s_mov_b32 s18, s28")
    a("s_cmp_eq_u32 %s, 3" % sWAVE)
    a("s_cbranch_scc0 L_i_c")
    a("s_cmp_eq_u32 %s, 0" % sP)
    a("s_cbranch_scc0 L_i_c")
    for q in range(4):
        a("v_mov_b32 v%d, 0" % (16 + q))
    a("s_lshl_b32 s17, %s, 11" % sRB)
    a("s_add_u32 s17, s17, %d" % CNT_G)
    a("buffer_store_dwordx4 v[16:19], v2, s[4:7], s17 offen sc1")
    a("buffer_store_dwordx4 v[16:19], v2, s[4:7], s17 offen offset:1024 sc1")
    a("L_i_c:")
    a("s_barrier")
    a("s_cmp_eq_u32 %s, 3" % sWAVE)
    a("s_cbranch_scc0 L_i_b1")
    a("s_cmp_eq_u32 %s, 0" % sP)
    a("s_cbranch_scc0 L_i_b0")
    a("s_mov_b64 exec, 1")
    a("v_mov_b32 v16, 1")
    a("s_waitcnt vmcnt(0)")
    if CFG["H2"]:
        a("global_atomic_add v17, v2, v16, s[94:95] sc0")
        a("s_waitcnt vmcnt(0)")
        a("v_readfirstlane_b32 s43, v17")
        a("s_cmp_eq_u32 s43, 15")
        a("s_cbranch_scc0 L_i_b2")
        a("v_mov_b32 v16, 16")
        a("global_store_dword v2, v16, s[94:95] offset:128 sc1")
        a("L_i_b2:")
    else:
        a("global_atomic_add v2, v16, s[94:95]")
    a("s_mov_b64 exec, -1")
    a("L_i_b0:")
    if CFG["CPF"]:
        a("s_getpc_b64 s[32:33]")
        a("L_pc:")
        a("s_lshr_b32 s17, s2, 3")
        a("s_lshl_b32 s17, s17, 11")
        a("v_add_u32 v12, s17, v2")
        a("v_min_u32 v12, L_code_end-L_pc-1040, v12")
        a("v_mov_b32 v15, s33")
        a("v_add_co_u32 v14, vcc, s32, v12")
        a("v_addc_co_u32 v15, vcc, 0, v15, vcc")
        a("global_load_dwordx4 a[252:255], v[14:15], off")
        a("global_load_dwordx4 a[252:255], v[14:15], off offset:1024")
    a("L_i_b1:")

    a("L_p_a:")
    stamp(a, 1)
    for q in range(4):
        a("v_cmp_eq_u32 s[%d:%d], %d, %s" % (50 + 2 * q, 51 + 2 * q, q, g_))
        a("v_mov_b32 v%d, 0x3f803f80" % (56 + q))

    def wait_a():
        a("s_waitcnt vmcnt(0)")
        stamp(a, 2)
        a("s_barrier")
    a("s_cmp_lt_u32 s38, %d" % BX)
    a("s_cbranch_scc1 L_p_w1")
    a("s_cmp_lt_u32 s38, %d" % B2)
    a("s_cbranch_scc1 L_p_x")
    a("s_cmp_lt_u32 s38, %d" % BZ)
    a("s_cbranch_scc1 L_p_w2")
    a("s_barrier")
    a("s_branch L_drain")

    a("L_p_w1:")
    a("s_mov_b32 s29, 2\ns_mov_b32 s30, 2048")
    a("v_lshrrev_b32 v12, 3, %s" % n_)
    a("v_lshl_add_u32 v12, %s, s29, v12" % g_)
    a("v_lshlrev_b32 v12, 10, v12")
    a("v_bfe_u32 v14, %s, 2, 1" % n_)
    a("v_mul_u32_u24 v14, 480, v14")
    a("s_mul_i32 s18, %s, 40" % sWAVE)
    a("v_add3_u32 v12, v12, v14, s18")
    a("v_and_b32 v14, 3, %s" % n_)
    a("v_lshlrev_b32 v14, 2, v14")
    for j in range(8):
        a("v_add_u32 v15, %d, v14" % (16 * j))
        a("v_mul_u32_u24 v32, 205, v15")
        a("v_lshrrev_b32 v32, 13, v32")
        a("v_min_u32 v32, 2, v32")
        a("v_mul_u32_u24 v32, 80, v32")
        a("v_lshl_add_u32 v32, v15, 1, v32")
        a("v_add_u32 v%d, v12, v32" % (16 + j))
        a("v_add_u32 v%d, s30, v%d" % (24 + j, 16 + j))
    kpos_scalar(a, "s27", "s24")
    a("s_lshl_b32 s17, s25, 1")
    a("s_lshr_b32 s19, %s, 1" % sWAVE)
    a("s_add_u32 s17, s17, s19")
    a("s_mul_i32 s17, s17, 163840")
    a("s_add_u32 s17, s17, %d" % W1)
    a("s_mul_i32 s19, s27, 6144")
    a("s_add_u32 s19, s19, s17")
    a("v_add_u32 v33, s19, v2")
    a("s_lshl_b32 s19, s27, 11")
    a("s_add_u32 s19, s19, s17")
    a("s_add_u32 s19, s19, %d" % (120 * 1024))
    a("v_add_u32 v34, s19, v2")
    a("s_lshl_b32 s17, s24, 13")
    a("s_lshl_b32 s19, s25, 10")
    a("s_add_u32 s17, s17, s19")
    a("s_lshl_b32 s19, %s, 8" % sWAVE)
    a("s_add_u32 s17, s17, s19")
    a("s_add_u32 s17, s17, %d" % CSP1)
    a("v_lshl_add_u32 v35, v1, 2, s17")
    a("s_mov_b32 s82, 4096")
    wait_a()
    for j in range(8):
        for h in range(2):
            a.ds("ds_read_b64_tr_b16 v[%d:%d], v%d" % (96 + 4 * j + 2 * h, 97 + 4 * j + 2 * h, 16 + j + 8 * h), ("t", j))
    for j in range(8):
        a.wait_lg(("t", j))
        fr = "v[%d:%d]" % (96 + 4 * j, 99 + 4 * j)
        if j < 6:
            a("buffer_store_dwordx4 %s, v33, s[4:7], %s offen offset:%d sc1" % (fr, ["0", "s82"][j // 4], (j % 4) * 1024))
        else:
            a("buffer_store_dwordx4 %s, v34, s[4:7], 0 offen offset:%d sc1" % (fr, (j - 6) * 1024))
        colsum(j, fr)
        if j >= 2:
            colsum_keep(j - 2)
    colsum_keep(6); colsum_keep(7)
    for q in range(2):
        a("buffer_store_dword v%d, v35, s[4:7], 0 offen offset:%d sc1" % (60 + q, q * 256))
    a("s_branch L_drain")

    a("L_p_x:")
    a("s_mul_i32 s17, s24, 20480")
    a("s_mul_i32 s19, s25, 10240")
    a("s_add_u32 s17, s17, s19")
    a("s_add_u32 s17, s17, %d" % XA)
    a("v_add_u32 v12, s17, v2")
    a("s_mov_b32 s82, 4096\ns_mov_b32 s83, 8192")
    for q in range(4):
        a("v_mov_b32 v%d, 0" % (16 + q))
    a("s_mov_b32 s28, 0x3f803f80")
    a("s_lshl_b32 s17, s24, 10")
    a("s_lshl_b32 s19, s25, 7")
    a("s_add_u32 s17, s17, s19")
    a("s_add_u32 s17, s17, %d" % STA)
    a("v_lshlrev_b32 v14, 3, %s" % n_)
    a("v_lshl_add_u32 v14, %s, 8, v14" % g_)
    wait_a()
    for kb in range(10):
        a("buffer_store_dwordx4 v[%d:%d], v12, s[4:7], %s offen offset:%d sc1" % (96 + 4 * kb, 99 + 4 * kb, ["0", "s82", "s83"][kb // 4], (kb % 4) * 1024))
    for kb in range(10):
        for d in range(4):
            a("v_dot2c_f32_bf16 v%d, s28, v%d" % (16 + 2 * (d % 2), 96 + 4 * kb + d))
            a("v_dot2c_f32_bf16 v%d, v%d, v%d" % (17 + 2 * (d % 2), 96 + 4 * kb + d, 96 + 4 * kb + d))
    a(pk("add", Reg("v", 16, 2), Reg("v", 16, 2), Reg("v", 18, 2)))
    a("buffer_store_dwordx2 v[16:17], v14, s[4:7], s17 offen sc1")
    a("s_branch L_drain")

    a("L_p_w2:")
    a("s_cmp_eq_u32 s26, 4")
    a("s_cselect_b32 s29, 3, 2")
    a("s_cselect_b32 s30, 1, 4")
    a("s_lshl_b32 s30, s30, 10")
    rdaddr128("s18")
    dst640("s24", "s25", 20, W2)
    wait_a()
    move128()

    a("L_drain:")
    stamp(a, 3)
    a("v_mov_b32 v236, 0x%x\nv_mov_b32 v237, 0x%x\nv_mov_b32 v238, 0x%x" % (OOB, OOB, OOB))
    for t in range(8):
        a("s_mov_b32 s%d, 0" % DST[t])
    a("s_mov_b32 s31, 0")
    a("s_mov_b32 s32, s4\ns_mov_b32 s33, s5\ns_mov_b32 s34, 0")
    a("v_mov_b32 v229, 0\nv_add_u32 v230, s37, v2\nv_add_u32 v231, s37, v2")
    a("s_cmp_lt_u32 s39, %d" % U3)
    a("s_cbranch_scc1 L_d_w3")
    a("s_cmp_lt_u32 s39, %d" % (U3 + U4))
    a("s_cbranch_scc0 L_d_done")
    a("s_sub_u32 s16, s39, %d" % U3)
    a("s_mul_i32 s36, s16, 52429")
    a("s_lshr_b32 s36, s36, 18")
    a("s_mul_i32 s17, s36, 5")
    a("s_sub_u32 s58, s16, s17")
    a("s_mov_b32 s31, 3\ns_mov_b32 s34, %d\ns_mov_b32 s48, 1280" % (1536 * 640 * 2))
    a("s_mov_b32 s32, s96\ns_mov_b32 s33, s97")
    dst640("s36", "s58", 48, W4)
    a("s_mov_b32 s29, 2\ns_mov_b32 s30, 4096")
    a("s_branch L_d_rd")
    a("L_d_w3:")
    a("s_mul_i32 s36, s39, 43691")
    a("s_lshr_b32 s36, s36, 20")
    a("s_mul_i32 s17, s36, 24")
    a("s_sub_u32 s58, s39, s17")
    a("s_and_b32 s31, s58, 1")
    a("s_lshr_b32 s58, s58, 1")
    a("s_mov_b32 s34, %d\ns_mov_b32 s48, 3072" % (640 * 1536 * 2))
    a("s_cmp_eq_u32 s31, 1")
    a("s_cselect_b32 s32, s92, s90")
    a("s_cselect_b32 s33, s93, s91")
    a("s_add_u32 s31, s31, 1")
    kpos_scalar(a, "s27", "s36")
    a("s_lshl_b32 s17, s58, 4")
    a("s_add_u32 s17, s17, s31")
    a("s_sub_u32 s17, s17, 1")
    a("s_lshl_b32 s28, s17, 6")
    a("s_add_u32 s28, s28, %d" % CS3F)
    a("v_lshl_add_u32 v236, %s, 2, s28" % n_)
    a("v_lshl_add_u32 v236, %s, 7, v236" % g_)
    a("v_add_u32 v237, 512, v236")
    a("s_mul_i32 s19, s17, 43691")
    a("s_lshr_b32 s19, s19, 19")
    a("s_mul_i32 s28, s19, 12")
    a("s_sub_u32 s17, s17, s28")
    a("s_mul_i32 s19, s19, 20")
    a("s_add_u32 s19, s19, s27")
    a("s_mul_i32 s19, s19, 12")
    a("s_add_u32 s19, s19, s17")
    a("s_lshl_b32 s19, s19, 10")
    a("s_add_u32 s19, s19, %d" % W3)
    for i in range(8):
        a("s_mov_b32 s%d, s19" % DST[i])
        if i < 7:
            a("s_add_u32 s17, s17, 2")
            a("s_cmp_ge_u32 s17, 12")
            a("s_cselect_b32 s28, 12, 0")
            a("s_sub_u32 s17, s17, s28")
            a("s_mul_i32 s28, s28, %d" % (19 * 1024))
            a("s_add_u32 s19, s19, s28")
            a("s_add_u32 s19, s19, 2048")
    a("s_mov_b32 s29, 3\ns_mov_b32 s30, 1024")
    a("L_d_rd:")
    rdaddr128("s37")
    if CFG["BPOS"] == 0:
        issue128("s[32:35]", "s48", "s36", "s58", "s37", "v232")
    if CFG["B3"]:
        a("s_cmp_eq_u32 %s, 3" % sWAVE)
        a("s_cbranch_scc0 L_d_done")
        a("v_mov_b32 v229, 0")
        a("global_load_dword v233, v229, s[94:95] offset:%d sc1" % (128 if CFG["H2"] else 0))
        issue128("s[32:35]", "s48", "s36", "s58", "s37", "v232")
    a("L_d_done:")
    def p1_setup():
        for l in p1.pre_setup():
            a(l)
        p1.before_wait()
    if not CFG["BWL"]:
        p1_setup()
    else:
        p1.alloc()
        a("s_lshl_b32 s17, %s, 7" % sP)
        a("s_add_u32 s17, s17, %d" % CNT_G)
        a("v_lshl_add_u32 %s, v0, 11, s17" % p1.vC1)
        a("v_and_b32 v232, 0x%x, %s" % (OOB, vCNT))
        a("v_or_b32 %s, v232, %s" % (p1.vC1, p1.vC1))
    XL = 49152
    def x_dma(c):
        for i in range(4):
            a("s_add_u32 m0, s24, %d" % ((c % 5) * 4096 + i * 1024))
            a("s_mov_b32 s19, %d" % (i * 10240 + c * 128))
            a("buffer_load_dwordx4 v235, s[88:91], s19 offen lds")
    def x_read(c):
        for ks in range(2):
            for rt in range(2):
                k = 2 * (2 * c + ks) + rt
                a("ds_read_b128 a[%d:%d], v%d offset:%d" % (4 * k, 4 * k + 3, 240 + ks, (c % 5) * 4096 + rt * 2048))
    if CFG["XPRE"]:
        a("s_mov_b32 s25, s88\ns_mov_b32 s22, s89")
        a("s_mov_b32 s88, s84\ns_mov_b32 s89, s85\ns_mov_b32 s90, %d\ns_mov_b32 s91, 0x20000" % (S * D * 2))
        a("s_mul_i32 s24, %s, 20480" % sWAVE)
        a("s_add_u32 s24, s24, %d" % XL)
        a("v_lshrrev_b32 v235, 3, v1")
        a("v_and_b32 v240, 7, v1")
        a("v_xor_b32 v240, v240, v235")
        a("v_mul_u32_u24 v235, 1280, v235")
        a("v_lshl_add_u32 v235, v240, 4, v235")
        a("s_mul_i32 s17, s16, 20480")
        a("v_add_u32 v235, s17, v235")
        a("v_and_b32 v240, 7, %s" % n_)
        a("v_xor_b32 v241, %s, v240" % g_)
        a("v_lshlrev_b32 v241, 4, v241")
        a("v_lshl_add_u32 v240, %s, 7, v241" % n_)
        a("v_add_u32 v240, s24, v240")
        a("v_xor_b32 v241, 64, v240")
    if not CFG["B3"]:
        a("v_mov_b32 v229, 0")
        a("s_cmp_eq_u32 %s, 3" % sWAVE)
        a("s_cbranch_scc0 L_clr0")
        a("global_load_dword v233, v229, s[94:95] offset:%d sc1" % (128 if CFG["H2"] else 0))
        a("L_clr0:")
    NXD = 20 if CFG["XPRE"] else 0
    for c in range(NXD // 4):
        x_dma(c)
    a("s_cmp_eq_u32 %s, 3" % sWAVE)
    a("s_cbranch_scc0 L_clr_ok")
    a("s_mov_b32 s42, %d" % CFG["TMO"])
    a("s_waitcnt vmcnt(%d)" % (NXD + (8 if CFG["B3"] else 0)))
    a("L_clr:")
    a("v_readfirstlane_b32 s43, v233")
    a("s_cmp_ge_u32 s43, 16")
    a("s_cbranch_scc1 %s" % ("L_drained" if CFG["B3"] else "L_clr_ok"))
    a("global_load_dword v233, v229, s[94:95] offset:%d sc1" % (128 if CFG["H2"] else 0))
    a("s_sub_u32 s42, s42, 1")
    a("s_waitcnt vmcnt(0)")
    a("s_cbranch_scc0 L_clr")
    a("L_clr_ok:")
    if CFG["BPOS"] == 0:
        a("s_cmp_eq_u32 s31, 0")
        a("s_waitcnt vmcnt(%d)" % (8 + NXD))
        a("s_cbranch_scc0 L_drained")
    a("s_waitcnt vmcnt(%d)" % NXD)
    a("L_drained:")
    stamp(a, 4)
    a("s_barrier")
    a("s_cmp_lg_u32 %s, 0" % sWAVE)
    a("s_cbranch_scc1 L_p_b")
    a("v_mov_b32 v232, 1")
    a("buffer_atomic_add v232, %s, s[4:7], 0 offen" % p1.vC1)
    a("L_p_b:")
    stamp(a, 5)
    if CFG["BPOS"] == 2:
        a("s_cmp_eq_u32 s31, 0")
        a("s_cbranch_scc1 L_p_b2")
        issue128("s[32:35]", "s48", "s36", "s58", "s37", "v232")
        a("L_p_b2:")
    if CFG["XPRE"]:
        for c in range(5):
            a("s_waitcnt vmcnt(16)")
            x_read(c)
            a("s_waitcnt lgkmcnt(0)")
            x_dma(c + 5)
    if CFG["BWL"]:
        a("s_cmp_eq_u32 s31, 0")
        a("s_cbranch_scc1 L_p_nb")
        if CFG["B3"]:
            a("s_cmp_eq_u32 %s, 3" % sWAVE)
            a("s_cbranch_scc1 L_p_nb")
        issue128("s[32:35]", "s48", "s36", "s58", "s37", "v232")
        a("L_p_nb:")
        p1_setup()
    a("s_cmp_eq_u32 s31, 0")
    a("s_cbranch_scc1 L_p_x2")
    if CFG["BPOS"] == 1 and not CFG["BWL"]:
        issue128("s[32:35]", "s48", "s36", "s58", "s37", "v232")
    if CFG["BPOS"] == 1 or not CFG["XPRE"]:
        a("s_waitcnt vmcnt(0)")
    a("v_mov_b32 v238, v2")
    for t in range(8):
        for h in range(2):
            a.ds("ds_read_b64_tr_b16 a[%d:%d], v%d offset:%d" % (192 + 4 * t + 2 * h, 193 + 4 * t + 2 * h, 230 + h, t * 32), ("t", t))
    p1.bstores = [(lambda t=t: a.vmem("buffer_store_dwordx4 a[%d:%d], v238, s[4:7], s%d offen sc1" % (192 + 4 * t, 195 + 4 * t, DST[t]), "bst")) for t in range(8)]
    if not CFG["BST"]:
        for t in range(8):
            a.wait_lg(("t", t))
            p1.bstores[t]()
        p1.bstores = []
    for t in range(8):
        a.wait_lg(("t", t))
        colsum(t, "a[%d:%d]" % (192 + 4 * t, 195 + 4 * t))
        if t >= 2:
            colsum_keep(t - 2)
    colsum_keep(6); colsum_keep(7)
    a("v_mov_b32 v234, v60\nv_mov_b32 v239, v61")
    a("L_p_x2:")
    stamp(a, 6)
    if CFG["XPRE"]:
        for c in range(5, 10):
            a("s_waitcnt vmcnt(%d)" % (4 * (9 - c)))
            x_read(c)
        a("s_mov_b32 s88, s25\ns_mov_b32 s89, s22")
    a("s_cmp_lg_u32 %s, 0" % sWAVE)
    a("s_cbranch_scc1 L_go")
    a("s_lshl_b32 s17, %s, 11" % sRB)
    a("s_add_u32 s17, s17, %d" % CNT_G)
    a("s_mov_b64 exec, 0xffff")
    a("v_lshlrev_b32 v233, 7, v1")
    a("s_mov_b32 s42, %d" % CFG["TMO"])
    a("L_gop:")
    a("v_mov_b32 v255, 0")
    a("buffer_atomic_add v255, v233, s[4:7], s17 offen sc0")
    a("s_waitcnt vmcnt(0)")
    a("v_cmp_le_u32 vcc, 16, v255")
    a("s_cmp_eq_u32 vcc_lo, 0xffff")
    a("s_cbranch_scc1 L_go0")
    a("s_sleep 2")
    a("s_sub_u32 s42, s42, 1")
    a("s_cbranch_scc0 L_gop")
    a("L_go0:")
    a("s_mov_b64 exec, -1")
    a("L_go:")
    a("s_waitcnt lgkmcnt(0)")
    stamp(a, 7)
    a("s_mov_b32 s49, 16")
    a("s_mov_b32 s22, 0")
    a("s_load_dwordx2 s[90:91], s[0:1], 56")
    phase_open(a)
    p1.bstores += [lambda: a.vmem("buffer_atomic_add_f32 v234, v236, s[4:7], 0 offen", "bst"),
                   lambda: a.vmem("buffer_atomic_add_f32 v239, v237, s[4:7], 0 offen", "bst")]


HEADER = """;
;   P4  x += h w_down      (last layer: row-major store to d_out)
"""


def build_all():
    _lbl[0] = 0
    a, info = main_body()
    k = NAME + "_kernel"
    ref = open("cdna_kernels/%s.s.ref" % NAME).read().split("\n")
    out = "\n".join(l for l in ref[:11]) + "\n"
    out += "; @launch grid=(256,1,1) block=(256,1,1) lds=%d\n" % info["lds"]
    out += HEADER
    out += '.amdgcn_target "amdgcn-amd-amdhsa--gfx950"\n'
    st = {}
    txt = a.text(stats=st)
    w = n = 0
    if CFG["AL8"]:
        txt, w, n = align8(txt, CFG["AL8"])
    sys.stderr.write("%d lines, pad states %d, widened %d, align nops %d\n" % (txt.count("\n"), st["pad"], w, n))
    return out + entry(k) + txt + kd(k, info["vgpr"], 102, info["acc"])


if __name__ == "__main__":
    import argparse
    ap = argparse.ArgumentParser()
    ap.add_argument("-o", default="cdna_kernels/%s.s" % NAME)
    ap.add_argument("--cfg", default="")
    args = ap.parse_args()
    for kv in args.cfg.split(","):
        if kv:
            k, v = kv.split("="); CFG[k] = int(v)
    txt = build_all()
    open(args.o, "w").write(txt)
```

```python
import sys, struct
from asmlib import *

S, D, F = 2048, 640, 1536
NAME = "interleave_layers__linear_attn_block__geglu_ffn__prompt"

_off = 0
def ws(n):
    global _off
    o = _off
    _off += (n + 4095) // 4096 * 4096
    return o
W1 = ws(16 * 20 * 8 * 1024)
W2 = ws(8 * 20 * 5 * 1024)
W3 = ws(16 * 20 * 12 * 1024)
W4 = ws(8 * 48 * 5 * 1024)
CSP1 = ws(20 * 2048 * 4)
CS3F = ws(3072 * 4)
CSW = ws(256 * 512)
CNT = ws(3 * 256 * 128)
CNT_G = CNT + 2 * 256 * 128
XA = ws(128 * 20 * 1024); STA = ws(2048 * 64); KV = ws(14 * 4096); PQ = ws(128 * 20 * 1024)
XB = ws(128 * 20 * 1024); STB = ws(2048 * 64); H = ws(128 * 48 * 1024)
LSTR = _off - XA
ws(LSTR)
PROFO = ws(9 * 256 * 4 * 64)
WS_USED = _off
OOB = 0x40000000
PROF = False
CFG = dict(NPRE1=7, NPRE3=5, NW4P=10, SPX=4, NW4L=24, NW4E=18, NW4D=7, NW4W=6, NP1W=6, NW2D=8, NW2L=6, SP4=4, HOT=0, LEAD=26, RATE=10, RA1=6, CPF=1, NPRE1A=2, P1A=8, XPRE=0, SLK=14, SPAN1A=108, SPAN1=96, BPOS=1, ARRK=10, ZF1=2, SP2=6, DBG=0, KARR=5, KPOLL=10, RD2=0, ZFP=3, NWQ=8, ZFQ=0, ZFK=2, KSTG=10, EW1=12, NX1=7, NX2=4, NX3=5, PP=10, PP4=12, BARR=5, BPOLL=13, F1=48, SPLIT=0, XW=4, NE3=4, XC=2, RB=0, WS=0, WSC=1, BSKIP=0, AE=0, AL8=2, BWL=1, BSP=99, NOW=0, T3=1, SDK=3, SNAKE=0, QAFT=0, B3=0, H2=0, FIN=1, XSTOP=0, W1M=1, XCW=1, NX4=3, PKB=24, PKG=12, BS0=0, WSK=3, NW4Q=0, SATOM=0, W1O=32768, TLB=0, K0NT=0, BST=1, DBGT=0, RT=0, SPAN=0, NODS=0, B2O=0, SC=1, PD1=6, PD3=6, P1=12, P3=8, TMO=200000, ROT=0, NPOLL=4, EW3=16, PW=1, PSL=0)

def f32(x):
    return "0x%08x" % struct.unpack("<I", struct.pack("<f", x))[0]
LOG2E = 1.4426950408889634
MF = "v_mfma_f32_16x16x32_bf16"
H2 = [slice(0, 2), slice(2, 4)]

sWAVE, sRB, sP, sRB64, sCG, sLAY, sTGT, sPH = "s10", "s11", "s12", "s13", "s14", "s15", "s40", "s41"
sROT10, sROT12 = "s8", "s9"
vN, vG = Reg("v", 3, 1), Reg("v", 4, 1)
vCNT, vPL, vPG = Reg("v", 5, 1), Reg("v", 6, 1), Reg("v", 7, 1)
vPRE = Reg("v", 8, 4)
VBASE = 12

KORD = [0, 3, 5, 8, 10, 13, 15, 18, 1, 2, 4, 6, 7, 9, 11, 12, 14, 16, 17, 19]
KPOS = [KORD.index(k) for k in range(20)]

def kpos_scalar(a, dst, kb):
    a("s_mul_i32 s28, %s, 52" % kb)
    a("s_lshr_b32 s28, s28, 8")
    a("s_mul_i32 s17, s28, 5")
    a("s_sub_u32 s17, %s, s17" % kb)
    a("s_lshl_b32 s17, s17, 2")
    a("s_lshr_b32 s19, 0xa1980, s17")
    a("s_and_b32 s19, s19, 15")
    a("s_cmp_ge_u32 s19, 8")
    a("s_cselect_b32 s17, 3, 2")
    a("s_mul_i32 s17, s17, s28")
    a("s_add_u32 %s, s17, s19" % dst)


def WSC():
    return " sc1" if CFG["WSC"] else ""


def SC():
    return " sc1" if CFG["SC"] else ""


def stamp(a, i):
    if PROF:
        a("%s s[%d:%d]" % ("s_memrealtime" if CFG["RT"] else "s_memtime", 60 + 2 * i, 61 + 2 * i))

def stamp_dump(a, vb=100):
    if not PROF:
        return
    a("s_memrealtime s[78:79]")
    a("s_lshl_b32 s59, %s, 8" % sPH)
    a("s_add_u32 s59, s59, s2")
    a("s_lshl_b32 s59, s59, 2")
    a("s_add_u32 s59, s59, s10")
    a("s_lshl_b32 s59, s59, 6")
    a("s_add_u32 s59, s59, %d" % PROFO)
    a("s_waitcnt lgkmcnt(0)")
    a.lg = []
    a("s_mov_b64 exec, 1")
    for i in range(10):
        a("v_mov_b32 v%d, s%d" % (vb + i, 60 + 2 * i))
    a("v_mov_b32 v%d, s80" % (vb + 11))
    a("v_mov_b32 v%d, s59" % (vb + 10))
    a("buffer_store_dwordx4 v[%d:%d], v%d, s[4:7], 0 offen" % (vb, vb + 3, vb + 10))
    a("buffer_store_dwordx4 v[%d:%d], v%d, s[4:7], 0 offen offset:16" % (vb + 4, vb + 7, vb + 10))
    a("buffer_store_dwordx4 v[%d:%d], v%d, s[4:7], 0 offen offset:32" % (vb + 8, vb + 11, vb + 10))
    a("s_mov_b64 exec, -1")
    a("s_add_u32 %s, %s, 1" % (sPH, sPH))


_lbl = [0]
def label(p):
    _lbl[0] += 1
    return "L_%s_%d" % (p, _lbl[0])


def arrive(a, loads=()):
    for f in loads:
        f()
    if CFG["DBG"] != 4:
        stamp(a, 6)
    a.wait_vm("out")
    a.wait_all(vm=False)
    stamp(a, 7)
    a("s_add_u32 %s, %s, 16" % (sTGT, sTGT))
    a("s_barrier")
    l = label("arr")
    a("s_cmp_lg_u32 %s, 0" % sWAVE)
    a("s_cbranch_scc1 %s" % l)
    a("v_mov_b32 v255, 1")
    a("buffer_atomic_add v255, %s, s[4:7], 0 offen" % vCNT)
    a("%s:" % l)
    read_back(a, a.rb)
    a.rb = []


def poll_issue(a, k):
    a("v_mov_b32 v%d, 0" % (255 - k))
    a("buffer_atomic_add v%d, %s, s[4:7], 0 offen sc0" % (255 - k, vPL))


def poll_loop(a, d, first):
    NP = CFG["NPOLL"]
    l = label("poll")
    a("s_mov_b32 s42, %d" % CFG["TMO"])
    a("%s:" % l)
    for k0 in range(NP):
        k = (k0 + first) % NP
        poll_issue(a, (k + NP - 1) % NP)
        a("s_waitcnt vmcnt(%d)" % (NP - 1))
        a("v_readfirstlane_b32 s43, v%d" % (255 - k))
        a("s_cmp_ge_u32 s43, %s" % sTGT)
        a("s_cbranch_scc1 %s" % d)
    a("s_sub_u32 s42, s42, 1")
    a("s_cbranch_scc0 %s" % l)


def dbg_time(a):
    if not CFG["DBGT"]:
        return
    l = label("dt")
    a("s_or_b32 s59, s2, %s" % sWAVE)
    a("s_cbranch_scc1 %s" % l)
    a("s_memrealtime s[60:61]")
    a("s_mov_b64 exec, 1")
    a("s_waitcnt lgkmcnt(0)")
    a("s_sub_u32 s60, s60, s80")
    a("v_mov_b32 v254, s60")
    a("v_mov_b32 v251, s62")
    a("global_store_dword v251, v254, s[94:95]")
    a("s_add_u32 s62, s62, 4")
    a("s_mov_b64 exec, -1")
    a("%s:" % l)


def phase_open(a, vb=100):
    a("s_barrier")
    dbg_time(a)
    stamp(a, 8)
    stamp_dump(a, vb)
    stamp(a, 0)


def wait(a, loads=()):
    if CFG["WS"]:
        d = label("pdone")
        loads = list(loads)
        k = min(len(loads), CFG["WSK"])
        for f in loads[:k]:
            f()
        if CFG["WS"] == 2:
            for f in loads[k:]:
                f()
            a("s_cmp_lg_u32 %s, %d" % (sWAVE, CFG["PW"]))
            a("s_cbranch_scc1 %s" % d)
            spoll_issue(a, 0)
            spoll_wait(a, 0, sTGT)
            a("%s:" % d)
            phase_open(a)
            return
        spoll_issue(a, 0)
        for f in loads[k:]:
            f()
        spoll_wait(a, 0, sTGT)
        stamp(a, 8); stamp_dump(a); stamp(a, 0); dbg_time(a)
        return
    d, o = label("pdone"), label("other")
    NP = CFG["NPOLL"]
    loads = list(loads)
    a("s_cmp_lg_u32 %s, %d" % (sWAVE, CFG["PW"]))
    a("s_cbranch_scc1 %s" % o)
    save = list(a.vm)
    per = (len(loads) + NP - 2) // (NP - 1)
    after = []
    for k in range(NP - 1):
        poll_issue(a, k)
        chunk = loads[k * per:(k + 1) * per]
        for f in chunk:
            f()
        if len(chunk) < 2:
            a("s_sleep %d" % (10 // NP))
        after.append(len(chunk))
    a.vm = save
    for k in range(NP - 1):
        poll_issue(a, (k + NP - 1) % NP)
        a("s_waitcnt vmcnt(%d)" % (NP - 1 + sum(after[k:])))
        a("v_readfirstlane_b32 s43, v%d" % (255 - k))
        a("s_cmp_ge_u32 s43, %s" % sTGT)
        a("s_cbranch_scc1 %s" % d)
    poll_loop(a, d, NP - 1)
    a("s_branch %s" % d)
    a("%s:" % o)
    for f in loads:
        f()
    a("%s:" % d)
    phase_open(a)


vRB = [Reg("v", 7, 1), Reg("v", 238, 1), Reg("v", 239, 1)]
def read_back(a, items):
    for v, so, im in (items if CFG["RB"] else []):
        a.vmem("buffer_load_dwordx4 v[244:247], %s, s[4:7], %s offen offset:%d sc1" % (v, so, im), "rb")


FOFF = [0, 32768, 32768 + 4]

def spoll_issue(a, word):
    if CFG["SATOM"]:
        a("s_mov_b32 s43, 0")
        a("s_atomic_add s43, s[100:101], 0x%x glc" % (FOFF[word]))
    else:
        a("s_load_dword s43, s[100:101], 0x%x glc" % (FOFF[word]))


def spoll_wait(a, word, target):
    l, d = label("sp"), label("spd")
    a("s_mov_b32 s42, %d" % CFG["TMO"])
    a("%s:" % l)
    a("s_waitcnt lgkmcnt(0)")
    a("s_cmp_ge_u32 s43, %s" % target)
    a("s_cbranch_scc1 %s" % d)
    spoll_issue(a, word)
    a("s_sub_u32 s42, s42, 1")
    a("s_cbranch_scc0 %s" % l)
    a("s_waitcnt lgkmcnt(0)")
    a("%s:" % d)
    a.lg = []


def signal(a, word):
    l = label("arr")
    a("s_barrier")
    a("s_cmp_lg_u32 %s, 0" % sWAVE)
    a("s_cbranch_scc1 %s" % l)
    a("v_mov_b32 v255, 1")
    a("s_mov_b32 s42, %d" % (FOFF[word]))
    a("buffer_atomic_add v255, %s, s[4:7], s42 offen" % vCNT)
    a("%s:" % l)


def wrap_add(a, r, step, end):
    if (CFG["HOT"] & 1 and r == "s20") or (CFG["HOT"] & 2 and r != "s20"):
        return
    if not CFG["ROT"]:
        a("s_add_u32 %s, %s, %d" % (r, r, step))
        return
    a("s_add_u32 %s, %s, %d" % (r, r, step))
    a("s_cmp_eq_u32 %s, %d" % (r, end))
    a("s_cselect_b32 %s, 0, %s" % (r, r))


def xsum4(a, v, t):
    a("v_mov_b32 %s, %s" % (t, v))
    a("v_permlane16_swap_b32 %s, %s" % (v, t))
    a("v_add_f32 %s, %s, %s" % (v, v, t))
    a("v_mov_b32 %s, %s" % (t, v))
    a("v_permlane32_swap_b32 %s, %s" % (v, t))
    a("v_add_f32 %s, %s, %s" % (v, v, t))


def stats_finish(a, q, mean, rstd, t):
    a("v_add_f32 %s, %s, %s" % (q[0], q[0], q[2]))
    a("v_add_f32 %s, %s, %s" % (q[1], q[1], q[3]))
    xsum4(a, q[0], t)
    xsum4(a, q[1], t)
    a("v_mul_f32 %s, %s, %s" % (mean, f32(1.0 / D), q[0]))
    a("v_mul_f32 %s, %s, %s" % (q[1], f32(1.0 / D), q[1]))
    a("v_fma_f32 %s, -%s, %s, %s" % (q[1], mean, mean, q[1]))
    a("v_max_f32 %s, 0, %s" % (q[1], q[1]))
    a("v_add_f32 %s, %s, %s" % (q[1], f32(1e-5), q[1]))
    a("v_rsq_f32 %s, %s" % (rstd, q[1]))


def pk(op, d, *src, neg=None):
    ops, lo, hi = [], [], []
    for x in src:
        if isinstance(x, str):
            n = int(x[1:])
            ops.append("s[%d:%d]" % (n & ~1, (n & ~1) + 1)); lo.append(n & 1); hi.append(n & 1)
        elif x.n == 2:
            assert x.base % 2 == 0
            ops.append(str(x)); lo.append(0); hi.append(1)
        else:
            b = x.base & ~1
            ops.append("v[%d:%d]" % (b, b + 1)); lo.append(x.base & 1); hi.append(x.base & 1)
    t = "v_pk_%s_f32 %s, %s op_sel:[%s] op_sel_hi:[%s]" % (op, d, ", ".join(ops), ",".join(map(str, lo)), ",".join(map(str, hi)))
    if neg is not None:
        m = ",".join("1" if i == neg else "0" for i in range(len(src)))
        t += " neg_lo:[%s] neg_hi:[%s]" % (m, m)
    return t


class Weaver:
    def __init__(self, a, items, period):
        self.a, self.items, self.period, self.n = a, list(items), period, 0
    def __call__(self, line):
        self.a(line)
        self.n += 1
        if self.n % self.period == 0 and self.items:
            self.items.pop(0)()
    def flush(self):
        while self.items:
            self.items.pop(0)()


def x_load(a, dst, v, step, rt, check, tag, then):
    kb = KORD[step]
    if check and not CFG["SPLIT"]:
        check = False
        if rt == 0 and step == 4:
            for f in then:
                f()
            a.late_ok = True
    if check and rt == 0 and step == 7:
        spoll_issue(a, 0)
    if check and rt == 0 and step == 8:
        keep = list(a.lg)
        spoll_wait(a, 0, sTGT)
        for f in then:
            f()
    if rt == 0 and (step == 0 or KORD[step - 1] // 4 != kb // 4):
        a("s_mov_b32 s20, %d" % (kb // 4 * 4096))
    a.vmem("buffer_load_dwordx4 %s, %s, s[4:7], s20 offen offset:%d%s" % (dst, v, (kb % 4) * 1024, SC()), tag)
    if check and rt == 1 and step == 8:
        a.late_ok = True


class Ring:
    def __init__(self, a, NT, R, vB, vBlast, sL, sB, sB2):
        self.a, self.NT, self.R = a, NT, R
        self.vB, self.vBlast, self.sL, self.sB, self.sB2 = vB, vBlast, sL, sB, sB2
        self.FPS = 2 * NT
        self.SB = self.FPS * 1024
        self.per = self.FPS // 4

    def init_lines(self):
        return ["s_mul_i32 %s, %s, %d" % (self.sB, sROT10, self.SB)] + (["s_add_u32 %s, %s, 3072" % (self.sB2, self.sB)] if self.per > 4 else [])

    def loads(self, s):
        a, per, SB = self.a, self.per, self.SB
        grp = 4 if per == 4 else 3
        out = []
        for i in range(per):
            def f(i=i):
                if CFG["NOW"] & 4:
                    return
                if i % grp == 0:
                    a("s_add_u32 m0, %s, %d" % (self.sL, (s % self.R) * SB + i * 1024))
                so = self.sB if i < grp else self.sB2
                vb = self.vBlast if i == per - 1 else self.vB
                a.vmem("buffer_load_dwordx4 %s, s[4:7], %s offen offset:%d%s lds" % (vb, so, (i % grp) * 1024, WSC()), ("st", s))
                if i == per - 1:
                    wrap_add(a, self.sB, SB, 10 * SB)
                    if per > grp:
                        a("s_add_u32 %s, %s, 3072" % (self.sB2, self.sB))
            out.append(f)
        return out


def gemm_s(a, ring, NPRE, vA, vL, acc, Aring, Bregs, transposed, sA, RA, tail_loads=(), fill=(), nsetup=0, PD=6, P=12, first_barrier=False, NTAIL=99, early=()):
    NST = 10
    NT, R, FPS, SB = ring.NT, ring.R, ring.FPS, ring.SB
    NB = Bregs.n // 4
    BPOS = FPS - PD

    def a_loads(s):
        out = []
        ar = Aring[((s % RA) * 16):((s % RA) * 16 + 16)]
        for ks in range(2):
            for rt in range(2):
                def f(ks=ks, rt=rt):
                    x_load(a, ar.q(ks * 2 + rt), vA[rt], 2 * s + ks, rt, True, ("a", s, ks), early)
                out.append(("a", s, f))
        return out
    bq = [("b", s, f) for s in range(NPRE, NST) for f in ring.loads(s)]
    aq = [x for s in range(NST) for x in a_loads(s)]
    tail = [("t", -1, f) for f in tail_loads]
    fill = list(fill)
    nfill0 = len(fill)
    a.late_ok = False
    for k in range(P):
        aq.pop(0)[2]()
    stamp(a, 1)
    a.wait_vm(("a", 0, 0))
    if first_barrier:
        a("s_barrier")
    stamp(a, 2)

    def rd(n):
        if CFG["NODS"] and n >= NB and n % CFG["NODS"]:
            return
        s, i = divmod(n, FPS)
        addr = (s % R) * SB + i * 1024
        a.ds("ds_read_b128 %s, %s offset:%d" % (Bregs.q(n % NB), vL[addr >> 16], addr & 0xffff), ("f", n))

    NF = NST * FPS
    for n in range(PD):
        rd(n)
    passed = -1

    def next_load(s):
        ca = aq[0] if aq and aq[0][1] - RA < s else None
        cb = bq[0] if bq and (bq[0][1] < R or bq[0][1] - R + 1 <= passed) else None
        ct = len(tail) > keep and len(fill) <= nfill0 - nsetup
        da = ca[1] - s if ca else 99
        db = cb[1] - s - 0.5 if cb else 99
        if min(da, db) > LEAD and ct:
            tail.pop(0)[2]()
        elif ca and da <= db:
            aq.pop(0)[2]()
        elif cb:
            bq.pop(0)[2]()
        elif ct:
            tail.pop(0)[2]()
        else:
            return False
        return True

    nload = len(aq) + len(bq) + min(len(tail), NTAIL)
    LEAD = CFG["LEAD"] / 10.0
    keep = max(0, len(tail) - NTAIL)
    span = FPS * (NST - 1)
    credit = 0.0
    for n in range(NF):
        s, i = divmod(n, FPS)
        ks, j = divmod(i, NT)
        if i == BPOS and s + 1 < NST and s >= 1 and (bq or s + 1 >= NPRE) and not (CFG["BSKIP"] >> s & 1):
            while bq and bq[0][1] <= s + 1:
                sys.stderr.write("late ring load at stage %d\n" % s)
                bq.pop(0)[2]()
            a.wait_vm(("st", s + 1))
            a("s_barrier")
            passed = s
        if j == 0:
            while aq and aq[0][1] <= s:
                sys.stderr.write("late activation load at stage %d\n" % s)
                aq.pop(0)[2]()
            a.wait_vm(("a", s, ks))
        if n + PD < NF:
            rd(n + PD)
        a.wait_lg(("f", n + 1 if n % 2 == 0 else n))
        ar = Aring[((s % RA) * 16):((s % RA) * 16 + 16)]
        credit += nload / span * CFG["RATE"] / 10.0
        did = False
        for pos, rt in enumerate((1, 0) if CFG["SNAKE"] and j % 2 else (0, 1)):
            c = "0" if (s == 0 and ks == 0) else str(acc[rt][j])
            w, x = Bregs.q(n % NB), ar.q(ks * 2 + rt)
            if transposed[j]:
                a("%s %s, %s, %s, %s" % (MF, acc[rt][j], w, x, c))
            else:
                a("%s %s, %s, %s, %s" % (MF, acc[rt][j], x, w, c))
            if pos == 0 and credit >= 1.0:
                did = next_load(s)
                if did:
                    credit -= 1.0
                credit = min(credit, 1.5)
            if pos == 0 and not did and a.late_ok and n > 4 * FPS:
                for _ in range(2):
                    if fill:
                        x = fill.pop(0)
                        x() if callable(x) else a(x)
    assert not aq and not bq and not fill, (len(aq), len(bq), len(fill))
    stamp(a, 3)
    return [t[2] for t in tail]


K1_RED = 0
K1_TRASH = K1_RED + 4 * 3584 + 1024
K1_FR = 122880
K1_PAIRS = [(0, 2), (0, 3), (1, 2), (1, 3), (1, 4), (2, 2), (2, 3), (2, 4)]

class P1:
    def __init__(self, a):
        self.a = a

    def pre_setup(self):
        return ["s_mul_i32 s17, %s, 163840" % sP,
                "s_lshl_b32 s44, %s, 12" % sWAVE,
                "s_add_u32 s17, s17, s44",
                "s_add_u32 s17, s17, %d" % W1,
                "v_add_u32 %s, s17, v2" % vPRE[0],
                "s_mov_b32 s45, 0"]

    def round_loads(self, rho):
        a = self.a
        out = []
        for i in range(4):
            def f(i=i):
                if CFG["NOW"] & 1:
                    return
                if i == 0:
                    a("s_add_u32 m0, s44, s45")
                    a("s_nop 0")
                a.vmem("buffer_load_dwordx4 %s, s[4:7], s45 offen offset:%d%s lds" % (vPRE[0], i * 1024, WSC()), ("st", rho))
                if i == 3:
                    a("s_add_u32 s45, s45, 16384")
            out.append(f)
        return out

    def pre_loads(self, n):
        return [f for rho in range(n) for f in self.round_loads(rho)]

    def alloc(self):
        V = Alloc("v", VBASE, 240)
        r = self
        r.vA = [V.get(1), V.get(1)]
        r.vL = [Reg("v", 2, 1), V.get(1), V.get(1)]
        r.vS = V.get(1); r.vCn = V.get(1); r.vCt = V.get(1)
        r.vQ = V.get(2, 1); r.vKa = V.get(8); r.vGl = V.get(1); r.vR = V.get(1); r.vC1 = V.get(1); r.ret = V.get(1)
        r.mean = [V.get(1), V.get(1)]; r.rstd = [V.get(1), V.get(1)]; r.rl = [V.get(1), V.get(1)]
        r.meanN = [V.get(4), V.get(4)]; r.rstdN = [V.get(4), V.get(4)]; r.rlN = [V.get(4), V.get(4)]
        r.tmp = V.get(16)
        r.acc = [[V.get(4) for j in range(8)] for rt in range(2)]
        r.csn = V.get(8); r.cst = V.get(12)
        r.Xf = V.get(24)
        r.kvd = V.get(32)
        r.fa = Reg("v", 224, 4); r.vGo = r.csn[5]; r.vX = r.csn[6:8]
        r.A = Reg("a", 0, 160)
        r.Bregs = Reg("a", 160, 32)

    def before_wait(self, emit=None):
        self.alloc()
        r, b = self, (emit or self.a)
        n_, g_ = vN, vG
        t = r.kvd[4:12]
        b("s_lshl_b32 s16, %s, 3" % sRB)
        b("s_lshl_b32 s17, %s, 1" % sWAVE)
        b("s_add_u32 s16, s16, s17")
        b("s_mul_i32 s19, s16, 20480")
        b("s_add_u32 s19, s19, %s" % sLAY)
        b("s_add_u32 s17, s19, %d" % XA)
        b("v_add_u32 %s, s17, v2" % r.vA[0])
        b("v_add_u32 %s, 20480, %s" % (r.vA[1], r.vA[0]))
        b("v_add_u32 %s, 0x10000, v2" % r.vL[1])
        b("v_lshlrev_b32 %s, 3, %s" % (t[0], n_))
        b("v_lshl_add_u32 %s, %s, 8, %s" % (t[0], g_, t[0]))
        b("s_lshl_b32 s17, s16, 10")
        b("s_add_u32 s17, s17, %s" % sLAY)
        b("s_add_u32 s17, s17, %d" % STA)
        b("v_add_u32 %s, s17, %s" % (r.vS, t[0]))
        b("v_cmp_lt_u32 s[26:27], %s, 8" % n_)
        b("v_add_u32 %s, 0x20000, v2" % r.vL[2])
        b("s_lshr_b32 s17, %s, 2" % sP)
        b("s_mul_i32 s17, s17, 5120")
        b("s_add_u32 s19, s19, s17")
        b("s_add_u32 s19, s19, %d" % PQ)
        b("s_and_b32 s17, %s, 3" % sP)
        b("s_lshl_b32 s18, s17, 10")
        b("s_add_u32 s18, s18, s19")
        b("v_add_u32 %s, s18, v2" % r.vQ[0])
        b("s_lshl_b32 s17, s17, 8")
        b("s_add_u32 s17, s17, s19")
        b("s_add_u32 s17, s17, 4096")
        b("v_add_u32 %s, s17, v2" % r.vQ[1])
        b("v_mov_b32 %s, 0x%x" % (t[2], OOB))
        b("v_cmp_gt_u32 vcc, 16, v1")
        b("v_cndmask_b32 %s, %s, %s, vcc" % (r.vQ[1], t[2], r.vQ[1]))
        b("s_lshl_b32 s17, %s, 7" % sP)
        b("s_add_u32 s17, s17, %d" % CNT_G)
        b("v_lshl_add_u32 %s, v0, 11, s17" % r.vC1)
        b("v_cmp_gt_u32 vcc, 16, v0")
        b("v_cndmask_b32 %s, %s, %s, vcc" % (r.vC1, t[2], r.vC1))
        b("v_add_u32 %s, %d, v2" % (t[5], K1_TRASH))
        b("s_mul_i32 s19, %s, 3584" % sWAVE)
        b("s_add_u32 s19, s19, %d" % K1_RED)
        b("s_add_u32 s17, s19, 3200")
        for pi, (ka, vb) in enumerate(K1_PAIRS):
            b("v_lshl_add_u32 %s, %s, 2, %d" % (t[0], g_, 16 * ka))
            b("v_add_u32 %s, %d, %s" % (t[1], 16 * vb - 40, n_))
            b("v_cmp_le_u32 vcc, 20, %s" % t[0])
            b("v_cndmask_b32 %s, 0, 20, vcc" % t[2])
            b("v_sub_u32 %s, %s, %s" % (t[3], t[1], t[2]))
            b("v_sub_u32 %s, %s, %s" % (t[2], t[0], t[2]))
            b("v_cmp_gt_u32 vcc, 20, %s" % t[3])
            b("v_mad_i32_i24 %s, %s, 20, %s" % (t[2], t[1], t[2]))
            b("v_lshl_add_u32 %s, %s, 2, s19" % (t[2], t[2]))
            b("v_cndmask_b32 %s, %s, %s, vcc" % (r.vKa[pi], t[5], t[2]))
            if vb == 2:
                b("v_cmp_eq_u32 vcc, 0, %s" % n_)
                b("v_lshl_add_u32 %s, %s, 2, s17" % (t[2], t[0]))
                b("v_cndmask_b32 %s, %s, %s, vcc" % (r.vKa[pi], r.vKa[pi], t[2]))
            if ka == 2:
                b("v_cmp_gt_u32 vcc, 2, %s" % g_)
                b("v_cndmask_b32 %s, %s, %s, vcc" % (r.vKa[pi], t[5], r.vKa[pi]))
        b("v_lshlrev_b32 %s, 2, v0" % r.vR)
        b("s_mul_i32 s17, %s, 3360" % sP)
        b("s_add_u32 s17, s17, %s" % sLAY)
        b("s_add_u32 s17, s17, %d" % KV)
        b("v_add_u32 %s, s17, %s" % (r.vGl, r.vR))
        b("v_add_u32 %s, %d, %s" % (r.vR, K1_RED, r.vR))
        b("s_lshl_b32 s17, s2, 9")
        b("s_add_u32 s17, s17, %d" % CSW)
        b("v_lshl_add_u32 %s, %s, 2, s17" % (r.vCn, n_))
        b("v_lshl_add_u32 %s, %s, 4, s17" % (r.vCt, g_))
        b("s_mov_b32 s23, 20480")
        b("s_mov_b32 s20, 0")
        b("v_lshlrev_b32 %s, 4, %s" % (t[0], g_))
        for q in range(4):
            b("v_add_u32 %s, %d, %s" % (t[1 + q], 4 * q, t[0]))
        fa, u, vGo, vX = r.fa, r.kvd[12:16], r.vGo, r.vX
        raw = (lambda x: b(x))
        b("s_mul_i32 s3, %s, 3360" % sP)
        b("s_add_u32 s3, s3, %s" % sLAY)
        b("s_add_u32 s3, s3, %d" % KV)
        b("v_mov_b32 %s, 0x%x" % (u[3], OOB))
        for i in range(2):
            b("s_lshl_b32 s17, %s, 1" % sWAVE)
            b("s_add_u32 s17, s17, %d" % (i + 1))
            b("s_lshr_b32 s19, s17, 1")
            b("s_lshl_b32 s19, s19, 4")
            b("v_add_u32 %s, s19, %s" % (u[0], vN))
            b("v_cmp_le_u32 vcc, 20, %s" % u[0])
            b("v_cndmask_b32 %s, 0, 20, vcc" % u[1])
            b("v_mul_u32_u24 %s, 20, %s" % (u[2], u[0]))
            b("v_sub_u32 %s, %s, %s" % (u[2], u[2], u[1]))
            b("v_cmp_gt_u32 vcc, 40, %s" % u[0])
            b("v_cndmask_b32 %s, 63, %s, vcc" % (u[1], u[1]))
            raw("s_cmp_eq_u32 s19, 48\ns_cselect_b64 vcc, -1, 0")
            b("v_and_b32 %s, 3, v1" % u[0])
            b("v_mul_u32_u24 %s, 20, %s" % (u[0], u[0]))
            b("v_cndmask_b32 %s, %s, %s, vcc" % (u[1], u[1], u[0]))
            b("v_mov_b32 %s, 800" % u[0])
            b("v_cndmask_b32 %s, %s, %s, vcc" % (u[2], u[2], u[0]))
            raw("s_cmp_eq_u32 %s, %d\ns_cselect_b32 s19, %d, %d" % ((sWAVE, 0, 0, 32) if i == 0 else (sWAVE, 3, 64, 0)))
            for h in range(2):
                b("v_lshl_add_u32 %s, %s, 2, s19" % (u[0], vG))
                if h:
                    b("v_add_u32 %s, 16, %s" % (u[0], u[0]))
                b("v_cmp_gt_u32 s[38:39], 40, %s" % u[0])
                b("v_add_lshl_u32 %s, %s, %s, 2" % (fa[2 * i + h], u[0], u[2]))
                b("v_sub_u32 %s, %s, %s" % (u[0], u[0], u[1]))
                b("v_cmp_gt_u32 vcc, 20, %s" % u[0])
                b("s_and_b64 vcc, vcc, s[38:39]")
                b("v_cndmask_b32 %s, %s, %s, vcc" % (fa[2 * i + h], u[3], fa[2 * i + h]))
        b("s_lshl_b32 s17, %s, 11" % sRB)
        b("s_add_u32 s17, s17, %d" % CNT_G)
        b("v_lshl_add_u32 %s, v1, 7, s17" % vGo)
        raw("s_cmp_eq_u32 %s, %d\ns_cselect_b32 s17, 0, 0x%x" % (sWAVE, CFG["PW"], OOB))
        b("v_and_b32 %s, 0x%x, %s" % (u[0], OOB, vCNT))
        b("v_or3_b32 %s, %s, s17, %s" % (vGo, u[0], vGo))
        b("s_lshl_b32 s17, %s, 11" % sWAVE)
        b("s_add_u32 s17, s17, %d" % K1_FR)
        b("v_add_u32 %s, s17, v2" % vX[0])
        b("v_add_u32 %s, %d, v2" % (vX[1], K1_FR))

    def body(self, nxt, p3, p4, NPRE, first=False):
        r, a = self, self.a
        tmp, t, acc, Xf, kvd, A, Bregs = r.tmp, r.kvd[4:12], r.acc, r.Xf, r.kvd, r.A, r.Bregs
        stat_loads = [(lambda rt=rt, h=h: a.vmem("buffer_load_dwordx2 %s, %s, s[4:7], 0 offen offset:%d%s" % (tmp.q(rt)[2 * h:2 * h + 2], r.vS, rt * 1024 + h * 128, SC()), "stats"))
                      for rt in range(2) for h in range(2)]
        b = Asm()
        for rt in range(2):
            stats_finish(b, tmp.q(rt), r.mean[rt], r.rstd[rt], tmp[8])
            b("v_mul_f32 %s, %s, %s" % (r.rl[rt], f32(LOG2E), r.rstd[rt]))
        fill = [lambda: a.wait_vm("stats")] + list(b.lines)
        for rt in range(2):
            for q in range(4):
                fill.append(lambda rt=rt, q=q: a.ds("ds_bpermute_b32 %s, %s, %s" % (r.meanN[rt][q], t[1 + q], r.mean[rt]), "bp"))
                fill.append(lambda rt=rt, q=q: a.ds("ds_bpermute_b32 %s, %s, %s" % (r.rstdN[rt][q], t[1 + q], r.rstd[rt]), "bp"))
        fill += [None] * 6
        fill.append(lambda: a.wait_lg("bp"))
        for rt in range(2):
            for q in range(4):
                fill.append("v_mul_f32 %s, %s, %s" % (r.rlN[rt][q], f32(LOG2E), r.rstdN[rt][q]))
        fill += nxt.pre_setup()
        csp = []
        if first:
            cp, ad = Reg("v", 156, 40), Reg("v", 232, 2)
            a("s_lshl_b32 s17, %s, 9" % sP)
            a("s_add_u32 s17, s17, %d" % CSP1)
            a("v_lshrrev_b32 %s, 5, v1" % ad[0])
            a("v_lshlrev_b32 %s, 13, %s" % (ad[0], ad[0]))
            a("v_and_b32 %s, 31, v1" % ad[1])
            a("v_lshlrev_b32 %s, 4, %s" % (ad[1], ad[1]))
            a("s_cmp_eq_u32 %s, 0" % sWAVE)
            a("s_cselect_b32 s19, 0, 0x%x" % OOB)
            a("v_add3_u32 %s, %s, %s, s19" % (ad[0], ad[0], ad[1]))
            a("v_or_b32 %s, s19, %s" % (ad[1], ad[1]))
            a("s_lshl_b32 s48, s2, 9")
            a("s_add_u32 s48, s48, %d" % CSW)
            a("s_mov_b32 s21, s17")
            for k in range(10):
                def f(k=k):
                    a.vmem("buffer_load_dwordx4 %s, %s, s[4:7], s21 offen%s" % (cp.q(k), ad[0], SC()), "csp")
                    a("s_add_u32 s21, s21, 16384")
                csp.append(f)
            fin = [lambda: a.wait_vm("csp")]
            for k in range(1, 10):
                for q in range(4):
                    fin.append("v_add_f32 %s, %s, %s" % (cp[q], cp[q], cp.q(k)[q]))
            for q in range(4):
                fin += ["v_mov_b32 %s, %s" % (cp[4], cp[q]), "v_permlane32_swap_b32 %s, %s" % (cp[q], cp[4]), "v_add_f32 %s, %s, %s" % (cp[q], cp[q], cp[4])]
            fin.append(lambda: a.vmem("buffer_store_dwordx4 %s, %s, s[4:7], s48 offen" % (cp[0:4], ad[1]), "csw"))
            fill = fin + fill
        cs = [(lambda j=j: a.vmem("buffer_load_dword %s, %s, s[4:7], 0 offen offset:%d" % (r.csn[j], r.vCn, j * 64), "cs")) for j in range(5)]
        cs += [(lambda j=j: a.vmem("buffer_load_dwordx4 %s, %s, s[4:7], 0 offen offset:%d" % (r.cst.q(j), r.vCt, (5 + j) * 64), "cs")) for j in range(3)]
        PD, NB = CFG["PD1"], 8
        seq = [(ks, j, 6 * ks + j) for ks in range(20) for j in range(6)] + [(ks, j, 120 + 2 * ks + j - 6) for ks in range(20) for j in (6, 7)]
        aq = []
        for ks in range(20):
            for rt in range(2):
                def f(ks=ks, rt=rt):
                    x_load(a, A.q(2 * ks + rt), r.vA[rt], ks, rt, not first, ("a", ks), [] if first else stat_loads)
                aq.append((6 * ks, f))
        bq = [(16 * rho - PD, f) for rho in range(NPRE, 10) for f in self.round_loads(rho)]
        if first and CFG["XPRE"]:
            aq = []
            for f in [bq.pop(0)[1] for _ in range(CFG["P1A"])]:
                f()
        a.late_ok = first
        for _ in range(0 if not aq else CFG["P1A"] if first else CFG["P1"]):
            aq.pop(0)[1]()
        small = []
        if first:
            small = csp + stat_loads
            fill.insert(0, "small")
        stamp(a, 1)
        a.wait_vm([("a", 0), ("st", NPRE - 1)])
        a("s_barrier")
        stamp(a, 2)

        def rd(n):
            f = seq[n][2]
            if f % 16 == 0 and f // 16 >= NPRE:
                while bq and bq[0][0] <= f - PD:
                    sys.stderr.write("P1: late weight load\n")
                    bq.pop(0)[1]()
                a.wait_vm([("st", f // 16), "csw"])
                a("s_barrier")
                st["csok"] = not first or (not fill_has_store())
            a.ds("ds_read_b128 %s, %s offset:%d" % (Bregs.q(n % NB), r.vL[f >> 6], (f & 63) * 1024), ("f", n))

        def pair(n, mid):
            ks, j, f = seq[n]
            if n + PD < len(seq) and n + PD not in done_rd:
                rd(n + PD)
            if n % 2 == 0 or n == 120:
                a.wait_lg(("f", min(n + 1, len(seq) - 1) if n != 119 else n))
            else:
                a.wait_lg(("f", n))
            for pos, rt in enumerate((1, 0) if CFG["SNAKE"] and j % 2 else (0, 1)):
                c = "0" if ks == 0 else str(acc[rt][j])
                w, x = Bregs.q(n % NB), A.q(2 * ks + rt)
                a("%s %s, %s, %s, %s" % ((MF, acc[rt][j], w, x, c) if j >= 5 else (MF, acc[rt][j], x, w, c)))
                if pos == 0:
                    mid()
        done_rd = set()
        st = dict(credit=0.0, csok=not first)
        fill_has_store = lambda: first and fin[-1] in fill
        for n in range(PD):
            rd(n)
        late = [x for x in bq if x[0] >= 120 - PD]
        nload = len(aq) + len(bq) - len(late) + len(cs) + len(small) // 2
        for n in range(120):
            ks, j, f = seq[n]
            if j == 0:
                while aq and aq[0][0] <= n:
                    sys.stderr.write("P1: late activation load\n")
                    aq.pop(0)[1]()
                a.wait_vm(("a", ks))
            def mid():
                if first and CFG["BSP"] < 99 and n % CFG["BSP"] == CFG["BSP"] - 1 and n >= CFG["BS0"] and self.bstores:
                    self.bstores.pop(0)()
                    return
                st["credit"] += nload / float(CFG["SPAN1A"] if first else CFG["SPAN1"])
                if st["credit"] >= 1.0:
                    cb = bq and bq[0][0] < 120 - PD
                    q = None
                    if aq and (not cb or aq[0][0] <= bq[0][0]):
                        q = aq
                    elif cb:
                        q = bq
                    if small and q is not None and q[0][0] - n > CFG["SLK"]:
                        small.pop(0)(); small.pop(0)()
                    elif q is not None:
                        q.pop(0)[1]()
                    elif cs and st["csok"]:
                        cs.pop(0)()
                    elif bq and not first:
                        bq.pop(0)[1]()
                    else:
                        q = "none"
                    st["credit"] -= 1.0
                    if (not first or CFG["XPRE"]) and q != "none":
                        return
                if n > (12 if first else CFG["F1"]) and a.late_ok:
                    if fill and fill[0] == "small":
                        if not small:
                            fill[0:1] = [None] * 16
                        return
                    for _ in range(2):
                        if fill:
                            x = fill.pop(0)
                            if x is not None:
                                x() if callable(x) else a(x)
            pair(n, mid)
        if fill:
            sys.stderr.write("P1: %d fill items left after the first pass\n" % len(fill))
        for x in fill:
            if x is not None:
                x() if callable(x) else a(x)
        assert st["csok"]
        for f in cs:
            f()
        assert not aq
        stamp(a, 3)
        a.wait_vm("cs")
        a("s_mov_b32 s24, %s" % f32(1e-6))
        e = Weaver(a, [x[1] for x in bq] + (self.bstores if first else []), 10 if first else CFG["EW1"])
        bq[:] = []

        def phi(x, m, c, rs, rlg, t, vraw=None):
            for h in H2:
                e(pk("fma", x[h], m(h), c(h), x[h], neg=0))
            for h in H2:
                e(pk("mul", t[h], x[h], rlg(h)))
            if vraw is not None:
                for h in H2:
                    e(pk("mul", vraw[h], x[h], rs(h)))
            for h in H2:
                e(pk("fma", x[h], x[h], rs(h), "s24"))
            for q in range(4):
                e("v_exp_f32 %s, %s clamp" % (t[q], t[q]))
            for q in range(4):
                e("v_max_f32 %s, s24, %s" % (x[q], x[q]))
            for h in H2:
                e(pk("add", x[h], x[h], t[h]))

        for j in range(5):
            for rt in range(2):
                x = acc[rt][j]
                m = lambda h, rt=rt: r.meanN[rt][h]
                rs = lambda h, rt=rt: r.rstdN[rt][h]
                rg = lambda h, rt=rt: r.rlN[rt][h]
                c = lambda h, j=j: r.csn[j]
                if j < 2:
                    phi(x, m, c, rs, rg, tmp[0:4])
                elif j == 2:
                    phi(x, m, c, rs, rg, tmp[0:4], vraw=tmp[4:8])
                    for q in range(4):
                        e("v_cndmask_b32 %s, %s, %s, s[26:27]" % (x[q], tmp[4 + q], x[q]))
                else:
                    for h in H2:
                        e(pk("fma", x[h], m(h), c(h), x[h], neg=0))
                    for h in H2:
                        e(pk("mul", x[h], x[h], rs(h)))
                e("v_cvt_pk_bf16_f32 %s, %s, %s" % (Xf.q(j)[2 * rt], x[0], x[1]))
                e("v_cvt_pk_bf16_f32 %s, %s, %s" % (Xf.q(j)[2 * rt + 1], x[2], x[3]))
        e("v_mov_b32 %s, 0x3f803f80" % tmp[0])
        for q in range(4):
            e("v_cndmask_b32 %s, %s, %s, s[26:27]" % (Xf.q(5)[q], Xf.q(2)[q], tmp[0]))
        e.flush()
        for pi, (ka, vb) in enumerate(K1_PAIRS):
            a("%s %s, %s, %s, 0" % (MF, kvd.q(pi), Xf.q(ka), Xf.q(5 if vb == 2 else vb)))
        qo = [Xf.q(0), Xf.q(1), Xf.q(2), Xf.q(3)]

        def qtile(j, rt):
            x = acc[rt][5 + j]
            phi(x, lambda h: r.mean[rt], lambda h: r.cst.q(j)[h], lambda h: r.rstd[rt], lambda h: r.rl[rt], tmp[0:4])
            o = qo[rt][2 * j:2 * j + 2] if j < 2 else qo[2 + rt][0:2]
            e("v_cvt_pk_bf16_f32 %s, %s, %s" % (o[0], x[0], x[1]))
            e("v_cvt_pk_bf16_f32 %s, %s, %s" % (o[1], x[2], x[3]))
        if NPRE >= 8:
            a("s_barrier")
        for pi in range(8):
            a.ds("ds_write_b128 %s, %s" % (r.vKa[pi], kvd.q(pi)), "add")
        qtile(0, 0)
        a.wait_lg("add")
        a("s_barrier")
        for i in range(4):
            for w in range(4):
                a.ds("ds_read_b32 %s, %s offset:%d" % (kvd[4 * i + w], r.vR, i * 1024 + w * 3584), ("rd", i))
        a("v_mov_b32 %s, 0x%x" % (kvd[17], OOB))
        a("v_cmp_gt_u32 vcc, 72, v0")
        a("v_cndmask_b32 %s, %s, %s, vcc" % (kvd[16], kvd[17], r.vGl))
        for i in range(4):
            a.wait_lg(("rd", i))
            a(pk("add", kvd[4 * i:4 * i + 2], kvd[4 * i:4 * i + 2], kvd[4 * i + 2:4 * i + 4]))
            a("v_add_f32 %s, %s, %s" % (kvd[4 * i], kvd[4 * i], kvd[4 * i + 1]))
            a.vmem("buffer_atomic_add_f32 %s, %s, s[4:7], 0 offen offset:%d" % (kvd[4 * i], r.vGl if i < 3 else kvd[16], i * 1024), "kv")
        a("v_mov_b32 %s, 1" % r.ret)
        stamp(a, 4)
        wo = nxt.take(25)
        fa, vGo, vX = r.fa, r.vGo, r.vX
        b = Asm()
        b("v_cmp_lt_u32 s[36:37], 0, %s" % vG)
        eps = acc[1][1]
        for q in range(4):
            b("v_mov_b32 %s, s24" % eps[q])
        early = list(b.lines) + (nxt.addr_lines() if CFG["AE"] & 1 else [])
        for n in range(120, 160):
            ks = seq[n][0]
            if n == 120 + 2 * CFG["ARRK"]:
                if CFG["DBG"] == 4:
                    stamp(a, 1)
                a.wait_vm("kv")
                a("s_barrier")
                if CFG["DBG"] == 4:
                    stamp(a, 2)
                a.vmem("buffer_atomic_add %s, %s, s[4:7], 0 offen" % (r.ret, r.vC1), "arr")
            def mid():
                if n % 3 == 2 and wo and wo[0].k < 16:
                    wo.pop(0)()
                else:
                    for _ in range(2):
                        if early:
                            a(early.pop(0))
            pair(n, mid)
        if CFG["DBG"] == 4:
            stamp(a, 3)
        e = Weaver(a, [(lambda x=x: a(x)) for x in early] + wo[:CFG["NWQ"]], 3 if early else 16)
        wo = wo[CFG["NWQ"]:]
        a("v_mov_b32 v252, 0")
        a("v_mov_b32 v253, 0")
        a.vmem("buffer_atomic_add v253, %s, s[4:7], 0 offen sc0" % vGo, "go0")
        qq = [(0, 1), (1, 0), (1, 1), (2, 0), (2, 1)]
        nb = 5 - CFG["QAFT"]
        for k, x in enumerate(qq[:nb]):
            if k == min(2, nb - 1):
                a.vmem("buffer_atomic_add v252, %s, s[4:7], 0 offen sc0" % vGo, "go")
            qtile(*x)
        e.flush()
        if CFG["DBG"] == 4:
            stamp(a, 6)
        l, d = label("gp"), label("gd")
        a("s_add_u32 s49, s49, 16")
        a("s_cmp_lg_u32 %s, %d" % (sWAVE, CFG["PW"]))
        a("s_cbranch_scc1 %s" % d)
        a("s_mov_b32 s42, %d" % CFG["TMO"])
        save = list(a.vm)
        a.wait_vm("go0")
        a("v_cmp_le_u32 vcc, s49, v253")
        a("s_cmp_eq_u32 vcc_lo, 0xffff")
        a("s_cbranch_scc1 %s" % d)
        a.wait_vm("go")
        a.vm = save
        a("%s:" % l)
        a("v_cmp_le_u32 vcc, s49, v252")
        a("s_cmp_eq_u32 vcc_lo, 0xffff")
        a("s_cbranch_scc1 %s" % d)
        a("v_mov_b32 v252, 0")
        a("buffer_atomic_add v252, %s, s[4:7], 0 offen sc0" % vGo)
        a("s_sub_u32 s42, s42, 1")
        a("s_waitcnt vmcnt(0)")
        a("s_cbranch_scc0 %s" % l)
        a("%s:" % d)
        a("s_barrier")
        stamp(a, 5)
        stg, fr = kvd[0:16], [kvd.q(k) for k in range(7)]
        for k in range(4):
            a.vmem("buffer_load_dwordx4 %s, %s, s[4:7], s3 offen%s" % (stg.q(k), fa[k], SC()), "kvl")
        for x in p3.pre_setup() + p4.pre_setup():
            a(x)
        extra = wo + p3.pre_loads() + p4.take(CFG["NW4P"])
        e = Weaver(a, extra[:CFG["NX1"]], 12)
        extra = extra[CFG["NX1"]:]
        for x in qq[nb:]:
            qtile(*x)
        for rt in range(2):
            a("v_mov_b32 %s, 0" % qo[2 + rt][2])
            a("v_mov_b32 %s, 0" % qo[2 + rt][3])
        e.flush()
        if CFG["DBG"] == 3:
            stamp(a, 1)
        a.wait_vm("kvl")
        if CFG["DBG"] == 3:
            stamp(a, 2)
        for i in range(2):
            o = tmp.q(1 + i)
            for k in range(4):
                a("v_cvt_pk_bf16_f32 %s, %s, %s" % (o[k], stg[8 * i + 2 * k], stg[8 * i + 2 * k + 1]))
            a.ds("ds_write_b128 %s, %s offset:%d" % (vX[0], o, i * 1024), "fw")
        a.wait_lg("fw")
        a("s_barrier")
        if CFG["NX4"] > 0:
            extra.pop(0)()
        for k in (5, 6, 0, 1, 2, 3, 4):
            a.ds("ds_read_b128 %s, %s offset:%d" % (fr[k], vX[1], k * 1024), ("fr", k))
        if CFG["DBG"] == 3:
            stamp(a, 3)
        num = [[acc[rt][2 + t_] for t_ in range(3)] for rt in range(2)]
        den = [acc[0][5], acc[1][5]]
        for k, (t_, kb) in ((5, (3, 0)), (6, (3, 1)), (0, (0, 0)), (1, (1, 0)), (2, (1, 1)), (3, (2, 0)), (4, (2, 1))):
            a.wait_lg(("fr", k))
            for rt in range(2):
                dst = den[rt] if t_ == 3 else num[rt][t_]
                c = dst if kb else (eps if t_ == 3 else "0")
                a("%s %s, %s, %s, %s" % (MF, dst, fr[k], qo[rt] if kb == 0 else qo[2 + rt], c))
        for _ in range(CFG["NX4"] - 1):
            extra.pop(0)()
        for rt in range(2):
            a("v_rcp_f32 %s, %s" % (den[rt][0], den[rt][0]))
            a("v_rcp_f32 %s, %s" % (den[rt][1], den[rt][1]))
        for rt in range(2):
            a("v_cndmask_b32 %s, %s, %s, s[36:37]" % (den[rt][2], den[rt][0], den[rt][1]))
        for rt in range(2):
            for t_, dd in ((0, den[rt][0]), (1, den[rt][2])):
                for h in H2:
                    a(pk("mul", num[rt][t_][h], num[rt][t_][h], dd))
                a("v_cvt_pk_bf16_f32 %s, %s, %s" % (qo[rt][2 * t_], num[rt][t_][0], num[rt][t_][1]))
                a("v_cvt_pk_bf16_f32 %s, %s, %s" % (qo[rt][2 * t_ + 1], num[rt][t_][2], num[rt][t_][3]))
            a.vmem("buffer_store_dwordx4 %s, %s, s[4:7], %s offen%s" % (qo[rt], r.vQ[0], "s23" if rt else "0", SC()), "out")
        for rt in range(2):
            z = qo[2 + rt]
            for h in H2:
                a(pk("mul", num[rt][2][h], num[rt][2][h], den[rt][1]))
            a("v_cvt_pk_bf16_f32 %s, %s, %s" % (z[0], num[rt][2][0], num[rt][2][1]))
            a("v_cvt_pk_bf16_f32 %s, %s, %s" % (z[1], num[rt][2][2], num[rt][2][3]))
            a("v_mov_b32 %s, %s" % (z[2], z[0]))
            a("v_mov_b32 %s, %s" % (z[3], z[1]))
            a("v_permlane16_swap_b32 %s, %s" % (z[0], z[2]))
            a("v_permlane16_swap_b32 %s, %s" % (z[1], z[3]))
            a.vmem("buffer_store_dwordx4 %s, %s, s[4:7], %s offen%s" % (z, r.vQ[1], "s23" if rt else "0", SC()), "out")
        if CFG["RB"]:
            a("v_mov_b32 %s, %s" % (vRB[0], r.vQ[0]))
            a("v_mov_b32 %s, %s" % (vRB[1], r.vQ[1]))
        a.rb = [(vRB[0], "0", 0), (vRB[0], "s23", 0), (vRB[1], "0", 0), (vRB[1], "s23", 0)]
        self.extra = extra


class P3:
    def __init__(self, a):
        self.a = a
        self.ring = Ring(a, 12, 6, vPRE[0], vPRE[0], "s44", "s45", "s46")

    def pre_setup(self):
        return ["s_mul_i32 s17, %s, 245760" % sP,
                "s_mul_i32 s44, %s, 6144" % sWAVE,
                "s_add_u32 s17, s17, s44",
                "s_add_u32 s17, s17, %d" % W3,
                "v_add_u32 %s, s17, v2" % vPRE[0]] + self.ring.init_lines()

    def pre_loads(self):
        return [f for s in range(min(CFG["NE3"], CFG["NPRE3"])) for f in self.ring.loads(s)]

    def wait_loads(self):
        return [f for s in range(CFG["NE3"], CFG["NPRE3"]) for f in self.ring.loads(s)]

    def before_wait(self, emit=None):
        r, a = self, (emit or self.a)
        V = Alloc("v", VBASE, 240)
        r.vA = [V.get(1), V.get(1)]
        r.vL = [Reg("v", 2, 1), V.get(1), V.get(1)]
        r.vS = V.get(1); r.vC = V.get(1); r.vH = V.get(1)
        r.mean = [V.get(1), V.get(1)]; r.rstd = [V.get(1), V.get(1)]; r.std = [V.get(1), V.get(1)]; r.c1 = [V.get(1), V.get(1)]
        r.tmp = V.get(16)
        r.acc = [[V.get(4) for j in range(12)] for rt in range(2)]
        r.cs = V.get(48)
        r.Aring = Reg("a", 160, 64)
        r.Bregs = Reg("a", 224, 32)
        tmp = r.tmp
        a("s_lshl_b32 s16, %s, 3" % sRB)
        a("s_lshl_b32 s17, %s, 1" % sWAVE)
        a("s_add_u32 s16, s16, s17")
        a("s_mul_i32 s17, s16, 20480")
        a("s_add_u32 s17, s17, %s" % sLAY)
        a("s_add_u32 s17, s17, %d" % XB)
        a("v_add_u32 %s, s17, v2" % r.vA[0])
        a("v_add_u32 %s, 20480, %s" % (r.vA[1], r.vA[0]))
        a("v_add_u32 %s, 0x10000, v2" % r.vL[1])
        a("v_add_u32 %s, 0x20000, v2" % r.vL[2])
        a("v_lshlrev_b32 %s, 3, %s" % (tmp[0], vN))
        a("v_lshl_add_u32 %s, %s, 8, %s" % (tmp[0], vG, tmp[0]))
        a("s_lshl_b32 s17, s16, 10")
        a("s_add_u32 s17, s17, %s" % sLAY)
        a("s_add_u32 s17, s17, %d" % STB)
        a("v_add_u32 %s, s17, %s" % (r.vS, tmp[0]))
        a("s_mul_i32 s17, %s, 768" % sP)
        a("s_add_u32 s17, s17, %d" % CS3F)
        a("v_lshl_add_u32 %s, %s, 4, s17" % (r.vC, vG))
        a("s_mul_i32 s17, s16, 49152")
        a("s_mul_i32 s19, %s, 3072" % sP)
        a("s_add_u32 s17, s17, s19")
        a("s_add_u32 s17, s17, %s" % sLAY)
        a("s_add_u32 s17, s17, %d" % H)
        a("v_add_u32 %s, s17, v2" % r.vH)
        a("s_mov_b32 s23, 49152")
        a("s_lshl_b32 s20, %s, 11" % sROT10)
        a("s_mov_b32 s24, %s" % f32(-2.0 * 0.7978845608028654 * 0.044715 * LOG2E))
        a("v_mov_b32 %s, %s" % (tmp[15], f32(-2.0 * 0.7978845608028654 * LOG2E)))

    def body(self, nxt):
        r, a = self, self.a
        tmp, acc, cs, mean, rstd, std = r.tmp, r.acc, r.cs, r.mean, r.rstd, r.std
        stat_loads = [(lambda rt=rt, h=h: a.vmem("buffer_load_dwordx2 %s, %s, s[4:7], 0 offen offset:%d%s" % (tmp.q(rt)[2 * h:2 * h + 2], r.vS, rt * 1024 + h * 128, SC()), "stats"))
                      for rt in range(2) for h in range(2)]
        b = Asm()
        for rt in range(2):
            stats_finish(b, tmp.q(rt), mean[rt], rstd[rt], tmp[8])
            b("v_mul_f32 %s, %s, %s" % (std[rt], rstd[rt], rstd[rt]))
            b("v_mul_f32 %s, %s, %s" % (r.c1[rt], tmp[15], rstd[rt]))
            b("v_mul_f32 %s, %s, %s" % (rstd[rt], std[rt], rstd[rt]))
            b("v_rcp_f32 %s, %s" % (std[rt], std[rt]))
            b("v_mul_f32 %s, s24, %s" % (rstd[rt], rstd[rt]))
        fill = [lambda: a.wait_vm("stats")] + list(b.lines) + (nxt.addr_lines() if CFG["AE"] & 2 else [])
        nl = CFG["NW4L"]
        csl = [(lambda j=j: a.vmem("buffer_load_dwordx4 %s, %s, s[4:7], 0 offen offset:%d%s" % (r.cs.q(j), r.vC, j * 64, SC()), "cs")) for j in range(12)]
        pre = nxt.take(nl + CFG["NW4E"])
        assert all(f.k < 39 for f in pre[:nl])
        rest = gemm_s(a, self.ring, CFG["NPRE3"], r.vA, r.vL, acc, r.Aring, r.Bregs, [True] * 12, "s20", 4,
                      csl + pre[:nl], fill, 0, PD=CFG["PD3"], P=CFG["P3"], first_barrier=True, early=stat_loads)
        assert len(rest) <= nl
        a.wait_vm("cs")
        e = Weaver(a, rest + pre[nl:], CFG["EW3"])
        out = tmp[0:8]
        for m in range(3):
            for rt in range(2):
                o = out.q(rt)
                for hh in range(2):
                    jp = 2 * m + hh
                    g, u = acc[rt][2 * jp], acc[rt][2 * jp + 1]
                    cg, cu = cs.q(2 * jp), cs.q(2 * jp + 1)
                    t = tmp[8:12]
                    for h in H2:
                        e(pk("fma", g[h], cg[h], mean[rt], g[h], neg=1))
                    for h in H2:
                        e(pk("fma", u[h], cu[h], mean[rt], u[h], neg=1))
                    for h in H2:
                        e(pk("mul", t[h], g[h], g[h]))
                    for h in H2:
                        e(pk("fma", t[h], t[h], rstd[rt], r.c1[rt]))
                    for h in H2:
                        e(pk("mul", t[h], g[h], t[h]))
                    for h in H2:
                        e(pk("mul", u[h], g[h], u[h]))
                    for q in range(4):
                        e("v_exp_f32 %s, %s" % (t[q], t[q]))
                    for h in H2:
                        e(pk("fma", t[h], t[h], std[rt], std[rt]))
                    for q in range(4):
                        e("v_rcp_f32 %s, %s" % (t[q], t[q]))
                    for h in H2:
                        e(pk("mul", u[h], u[h], t[h]))
                    e("v_cvt_pk_bf16_f32 %s, %s, %s" % (o[2 * hh], u[0], u[1]))
                    e("v_cvt_pk_bf16_f32 %s, %s, %s" % (o[2 * hh + 1], u[2], u[3]))
                a.vmem("buffer_store_dwordx4 %s, %s, s[4:7], %s offen offset:%d%s" % (o, r.vH, "s23" if rt else "0", m * 1024, SC()), ("out0", "out1", "out")[m])
            if m == 1:
                a.wait_vm("out0")
                a("s_add_u32 s22, s22, 16")
                signal(a, 1)
                read_back(a, [(r.vH, "0", 0), (r.vH, "s23", 0)])
        e.flush()
        if CFG["T3"]:
            a.wait_vm("out1")
            signal(a, 2)


def p_addr(a, r, t, red_base, xres, stout, from_x=False):
    a("s_add_u32 s17, %s, 3" % sWAVE)
    a("s_and_b32 s17, s17, 3")
    a("s_mul_i32 s17, s17, 10240")
    a("s_add_u32 s17, s17, %d" % red_base)
    a("v_add_u32 %s, s17, v2" % r.vW)
    a("s_mul_i32 s17, %s, 10240" % sWAVE)
    a("s_add_u32 s17, s17, %d" % red_base)
    a("v_add_u32 %s, s17, v2" % r.vRd)
    a("s_lshl_b32 s16, %s, 2" % sRB64)
    a("s_add_u32 s16, s16, %s" % sWAVE)
    a("s_and_b32 s19, %s, 1" % sCG)
    a("s_mul_i32 s29, %s, 5" % sCG)
    a("s_add_u32 s30, s29, s19")
    a("s_xor_b32 s19, s19, 1")
    a("s_lshl_b32 s19, s19, 2")
    a("s_add_u32 s29, s29, s19")
    a("s_mul_i32 s17, s16, 20480")
    a("s_add_u32 s17, s17, %s" % sLAY)
    a("s_add_u32 s17, s17, %d" % xres)
    a("s_lshl_b32 s19, s30, 9")
    a("s_add_u32 s19, s19, s17")
    a("v_add_u32 %s, s19, v2" % r.vRes[0])
    a("v_lshrrev_b32 %s, 1, %s" % (t, vG))
    a("v_lshlrev_b32 %s, 8, %s" % (t, t))
    a("v_lshl_add_u32 %s, %s, 4, %s" % (t, vN, t))
    a("s_lshl_b32 s19, s29, 9")
    a("s_add_u32 s19, s19, s17")
    a("v_add_u32 %s, s19, %s" % (r.vRes[2], t))
    a("v_add_u32 %s, s17, %s" % (r.vRes[1], t))
    a("v_and_b32 %s, 1, %s" % (t, vG))
    a("v_lshl_add_u32 %s, %s, 3, %s" % (r.vRes[1], t, r.vRes[1]))
    a("v_lshl_add_u32 %s, %s, 30, %s" % (r.vRes[2], t, r.vRes[2]))
    a("s_mov_b32 s32, s4\ns_mov_b32 s33, s5\ns_mov_b32 s34, s6\ns_mov_b32 s35, 0x20000\ns_mov_b32 s31, 512")
    if from_x:
        a("v_mul_u32_u24 %s, 1280, %s" % (t, vN))
        a("v_lshl_add_u32 %s, %s, 3, %s" % (t, vG, t))
        a("s_mul_i32 s19, s16, 20480")
        a("v_add_u32 %s, s19, %s" % (t, t))
        one = ["s_cmp_eq_u32 %s, 0" % sLAY, "s_cselect_b32 s32, s84, s32", "s_cselect_b32 s33, s85, s33",
               "s_cselect_b32 s34, %d, s34" % (S * D * 2), "s_cselect_b32 s31, 32, s31", "s_cselect_b64 vcc, -1, 0"]
        a.lines.append("\n".join(one))
        a("v_cndmask_b32 %s, %s, %s, vcc" % (r.vRes[1], r.vRes[1], t))
    a("s_mul_i32 s38, s30, s31")
    a("s_mul_i32 s39, s29, s31")
    a("s_lshl_b32 s17, s16, 10")
    a("s_add_u32 s17, s17, %s" % sLAY)
    a("s_add_u32 s17, s17, %d" % stout)
    a("s_lshl_b32 s19, %s, 7" % sCG)
    a("s_add_u32 s17, s17, s19")
    a("v_lshl_add_u32 %s, %s, 3, s17" % (r.vSt, vN))
    a("v_mov_b32 %s, 0x%x" % (t, OOB))
    a("v_and_b32 %s, %s, %s" % (t, t, vCNT))
    a("v_or_b32 %s, %s, %s" % (r.vSt, t, r.vSt))


def p_res_loads(a, res, vRes):
    for j in range(4):
        a.vmem("buffer_load_dwordx2 %s, %s, s[32:35], s38 offen%s" % (res[2 * j:2 * j + 2], vRes[1], SC()), "res")
        if j < 3:
            a("s_add_u32 s38, s38, s31")
    a.vmem("buffer_load_dwordx2 %s, %s, s[32:35], s39 offen%s" % (res[8:10], vRes[1], SC()), "res")


def p_write(a, acc, i, vW):
    for j in range(5):
        a.ds("ds_write_b128 %s, %s offset:%d" % (vW[i - 1], acc[i][j], j * 1024), "rw")


def p_epilogue(a, r, acc, res, part, tmp, xdelta, pre, final):
    stamp(a, 3)
    y, o = acc[0], r.keep
    a("s_mov_b32 s28, %d" % xdelta)
    def swaps(b):
        for d in range(2):
            a("v_permlane32_swap_b32 %s, %s" % (o[b + d], o[b + 2 + d]))
        for d in range(2):
            a("v_permlane16_swap_b32 %s, %s" % (o[b + d], o[b + 2 + d]))
    for j in range(5):
        a.wait_lg(("p", j))
        for h in H2:
            a(pk("add", y[j][h], y[j][h], part.q(j)[h]))
    stamp(a, 4)
    for j in range(5):
        a("v_cvt_pk_bf16_f32 %s, %s, %s" % (o[2 * j], y[j][0], y[j][1]))
        a("v_cvt_pk_bf16_f32 %s, %s, %s" % (o[2 * j + 1], y[j][2], y[j][3]))
    if final:
        a("s_cmp_lg_u32 %s, 0" % sLAY)
        a("s_cbranch_scc1 L_final")
    a("v_mov_b32 %s, %s" % (tmp[4], o[8]))
    a("v_mov_b32 %s, %s" % (tmp[5], o[9]))
    a("v_mov_b32 %s, %s" % (tmp[6], o[8]))
    a("v_mov_b32 %s, %s" % (tmp[7], o[9]))
    swaps(0)
    a.vmem("buffer_store_dwordx4 %s, %s, s[4:7], s28 offen%s" % (o[0:4], r.vRes[0], SC()), "out")
    swaps(4)
    a("v_permlane16_swap_b32 %s, %s" % (tmp[4], tmp[6]))
    a("v_permlane16_swap_b32 %s, %s" % (tmp[5], tmp[7]))
    a.vmem("buffer_store_dwordx4 %s, %s, s[4:7], s28 offen offset:1024%s" % (o[4:8], r.vRes[0], SC()), "out")
    a.vmem("buffer_store_dwordx4 %s, %s, s[4:7], s28 offen%s" % (tmp[4:8], r.vRes[2], SC()), "out")
    sq = tmp[2:4]
    a("s_mov_b32 s24, 0x3f803f80")
    for q in range(4):
        a("v_mov_b32 %s, 0" % tmp[q])
    for k in range(10):
        a("v_dot2c_f32_bf16 %s, s24, %s" % (tmp[2 * (k % 2)], o[k]))
        a("v_dot2c_f32_bf16 %s, %s, %s" % (tmp[1 + 2 * (k % 2)], o[k], o[k]))
    a(pk("add", sq, sq, tmp[0:2]))
    for sw in ("v_permlane16_swap_b32", "v_permlane32_swap_b32"):
        a("v_mov_b32 %s, %s" % (tmp[0], sq[0]))
        a("v_mov_b32 %s, %s" % (tmp[1], sq[1]))
        a("%s %s, %s" % (sw, sq[0], tmp[0]))
        a("%s %s, %s" % (sw, sq[1], tmp[1]))
        a(pk("add", sq, sq, tmp[0:2]))
    a.vmem("buffer_store_dwordx2 %s, %s, s[4:7], 0 offen%s" % (sq, r.vSt, SC()), "out")
    if CFG["RB"]:
        a("v_add_u32 %s, s28, %s" % (vRB[0], r.vRes[0]))
        a("v_add_u32 %s, s28, %s" % (vRB[1], r.vRes[2]))
    a.rb = [(vRB[0], "0", 0), (vRB[0], "0", 1024), (vRB[1], "0", 0)]


def wait_first(a, loads=()):
    arrive(a)
    if not CFG["SPLIT"]:
        wait(a, loads)
        return
    spoll_issue(a, 1)
    for f in loads:
        f()
    spoll_wait(a, 1, "s22")
    stamp(a, 8); stamp_dump(a); stamp(a, 0); dbg_time(a)


vF = Reg("v", 238, 2)
def final_setup():
    return ["s_mov_b32 s32, s90", "s_mov_b32 s33, s91", "s_mov_b32 s34, %d" % (S * D * 2), "s_mov_b32 s35, 0x20000",
            "s_mul_i32 s19, s16, 20480", "v_mul_u32_u24 %s, 1280, %s" % (vF[0], vN), "v_add_u32 %s, s19, %s" % (vF[0], vF[0]),
            "v_lshrrev_b32 %s, 1, %s" % (vF[1], vG), "v_lshl_add_u32 %s, %s, 4, %s" % (vF[1], vF[1], vF[0]),
            "v_lshl_add_u32 %s, %s, 4, %s" % (vF[0], vG, vF[0]), "v_and_b32 v250, 1, %s" % vG,
            "v_lshl_add_u32 %s, v250, 30, %s" % (vF[1], vF[1]), "s_lshl_b32 s30, s30, 5", "s_lshl_b32 s29, s29, 5"] if CFG["FIN"] else []


def final_store(a, o, tmp):
    a("L_final:")
    if not CFG["FIN"]:
        a("s_mov_b32 s32, s90")
        a("s_mov_b32 s33, s91")
        a("s_mov_b32 s34, %d" % (S * D * 2))
        a("s_mov_b32 s35, 0x20000")
        a("s_mul_i32 s17, s16, 20480")
    FP = ["", "", " nt", " sc1", " sc0 sc1"][CFG["FIN"]]
    if CFG["FIN"]:
        for q in range(4):
            a("v_mov_b32 %s, %s" % (tmp[4 + q], o[8 + q % 2]))
        for sw in ("v_permlane32_swap_b32", "v_permlane16_swap_b32"):
            for b in (0, 4):
                for d in range(2):
                    a("%s %s, %s" % (sw, o[b + d], o[b + 2 + d]))
        a("buffer_store_dwordx4 %s, %s, s[32:35], s30 offen%s" % (o[0:4], vF[0], FP))
        a("v_permlane16_swap_b32 %s, %s" % (tmp[4], tmp[6]))
        a("v_permlane16_swap_b32 %s, %s" % (tmp[5], tmp[7]))
        a("buffer_store_dwordx4 %s, %s, s[32:35], s30 offen offset:64%s" % (o[4:8], vF[0], FP))
        a("buffer_store_dwordx4 %s, %s, s[32:35], s29 offen%s" % (tmp[4:8], vF[1], FP))
    else:
        a("v_mul_u32_u24 %s, 1280, %s" % (tmp[0], vN))
        a("v_lshl_add_u32 %s, %s, 3, %s" % (tmp[0], vG, tmp[0]))
        a("v_add_u32 %s, s17, %s" % (tmp[0], tmp[0]))
        a("s_lshl_b32 s30, s30, 5")
        a("s_lshl_b32 s29, s29, 5")
        for j in range(4):
            a("buffer_store_dwordx2 %s, %s, s[32:35], s30 offen offset:%d" % (o[2 * j:2 * j + 2], tmp[0], j * 32))
        a("buffer_store_dwordx2 %s, %s, s[32:35], s29 offen" % (o[8:10], tmp[0]))
    dbg_time(a)
    if CFG["SPAN"]:
        a("s_waitcnt vmcnt(0)")
        a("s_memrealtime s[60:61]")
        a("s_lshl_b32 s59, s2, 2")
        a("s_add_u32 s59, s59, s10")
        a("s_lshl_b32 s59, s59, 3")
        a("s_add_u32 s59, s59, %d" % PROFO)
        a("s_mov_b64 exec, 1")
        a("s_waitcnt lgkmcnt(0)")
        a("v_mov_b32 v100, s80\nv_mov_b32 v101, s60\nv_mov_b32 v102, s59")
        a("buffer_store_dwordx2 v[100:101], v102, s[4:7], 0 offen")
    if PROF:
        stamp(a, 5)
        a("s_waitcnt vmcnt(0)")
        stamp(a, 6)
        stamp(a, 7)
        stamp(a, 8)
        stamp_dump(a)


class PK:
    def __init__(self, a, NK, wbase, abase, xres, xout, stout, red, final, wreg, vW_, sW_):
        self.a, self.NK, self.wbase, self.abase = a, NK, wbase, abase
        self.vw, self.sw = vW_, sW_
        self.xres, self.xout, self.stout, self.red, self.final = xres, xout, stout, red, final
        self.W = wreg
        self.todo = None

    def pre_setup(self):
        self.todo = list(range(5 * self.NK))
        return ["s_mul_i32 s17, %s, %d" % (sCG, 4 * self.NK * 5120),
                "s_mul_i32 s19, %s, %d" % (sWAVE, self.NK * 5120),
                "s_add_u32 s17, s17, s19",
                "s_add_u32 s17, s17, %d" % self.wbase,
                "v_add_u32 %s, s17, v2" % self.vw]

    def kmap(self, st):
        return 3 * (st % 4) + st // 4 if self.final else st

    def take(self, n):
        a = self.a
        ks, self.todo = self.todo[:n], self.todo[n:]
        def mk(k):
            def f():
                if CFG["NOW"] & (8 if self.final else 2):
                    return
                st, j = divmod(k, 5)
                if j in (0, 4):
                    a("s_mov_b32 %s, %d" % (self.sw, self.kmap(st) * 5120 + (j // 4) * 4096))
                a.vmem("buffer_load_dwordx4 %s, %s, s[4:7], %s offen offset:%d%s" % (self.W(k), self.vw, self.sw, (j % 4) * 1024, WSC()), ("w", self.NK, k))
            f.k = k
            return f
        return [mk(k) for k in ks]

    def addr_lines(self):
        r, a = self, Asm()
        V = Alloc("v", CFG["PKB"], 228)
        r.vA = Reg("v", 240, 4); r.vW = Reg("v", 244, 1); r.vRd = Reg("v", 245, 1); r.vRes = Reg("v", 246, 3); r.vSt = Reg("v", 249, 1)
        r.tmp = V.get(8)
        V.get(CFG["PKG"])
        r.acc = [[V.get(4) for j in range(5)] for i in range(4)]
        r.ring = V.get(80)
        r.part = V.get(20)
        tts = 4 * self.NK * 1024
        a("s_lshl_b32 s16, %s, 2" % sRB64)
        a("s_mul_i32 s16, s16, %d" % tts)
        a("s_mul_i32 s19, %s, %d" % (sWAVE, self.NK * 1024))
        a("s_add_u32 s16, s16, s19")
        a("s_add_u32 s16, s16, %s" % sLAY)
        a("s_add_u32 s16, s16, %d" % self.abase)
        for i in range(4):
            a("s_add_u32 s17, %s, %d" % (sWAVE, i))
            a("s_and_b32 s17, s17, 3")
            a("s_mul_i32 s17, s17, %d" % tts)
            a("s_add_u32 s17, s17, s16")
            a("v_add_u32 %s, s17, v2" % r.vA[i])
        p_addr(a, r, Reg("v", 250, 1), self.red, self.xres, self.stout)
        return a.lines

    def before_wait(self, emit=None):
        r, a = self, (emit or self.a)
        r.keep = Reg("v", 228, 10)
        if not self.final:
            l = label("res")
            flush = getattr(a, "flush", None)
            if flush:
                flush()
            self.a("s_cmp_lg_u32 %s, 0" % sLAY)
            self.a("s_cbranch_scc1 %s" % l)
            n = len(self.a.vm)
            p_res_loads(self.a, r.keep, r.vRes)
            self.a.vm = self.a.vm[:n]
            self.a("%s:" % l)

    def body(self, setup=(), extra=()):
        r, a = self, self.a
        acc, NK = r.acc, self.NK
        G0 = (8 if CFG["T3"] else 4) if self.final else 0
        seq = [(ks, i) for ks in range(G0) for i in (1, 2, 3, 0)] + [(ks, i) for i in (1, 2, 3, 0) for ks in range(G0, NK)]
        aq = []
        for n, (ks, i) in enumerate(seq):
            def f(n=n, ks=ks, i=i):
                if self.final and n == 16 and CFG["T3"]:
                    spoll_wait(a, 2, "s22")
                if self.final and n == 4 * G0:
                    spoll_wait(a, 0, sTGT)
                kb = self.kmap(ks)
                if st.get("s20") != kb // 4:
                    a("s_mov_b32 s20, %d" % (kb // 4 * 4096))
                    st["s20"] = kb // 4
                if self.final and n == CFG["BPOLL"]:
                    spoll_issue(a, 2 if CFG["T3"] else 0)
                if self.final and CFG["T3"] and n == CFG["BPOLL"] + 16:
                    spoll_issue(a, 0)
                a.vmem("buffer_load_dwordx4 %s, %s, s[4:7], s20 offen offset:%d%s" % (r.ring.q(n % 20), r.vA[i], (kb % 4) * 1024, SC()), ("x", n))
            aq.append((n, f))
        st = {}
        wq = [(f.k // 5, f) for f in self.take(99)]
        for k in range(CFG["PP4"] if self.final else CFG["PP"]):
            aq.pop(0)[1]()
            if self.final and k == CFG["BARR"]:
                a.wait_vm("out")
                a("s_add_u32 %s, %s, 16" % (sTGT, sTGT))
                signal(a, 0)
                read_back(a, [(vRB[0], so, m * 1024) for m in (1, 2) for so in ("0", "s23")])
        stamp(a, 1)
        def unpack():
            l = label("unsw")
            if not self.final:
                a("s_cmp_eq_u32 %s, 0" % sLAY)
                a("s_cbranch_scc1 %s" % l)
            for sw in ("v_permlane16_swap_b32", "v_permlane32_swap_b32"):
                for b in (0, 4):
                    for d in range(2):
                        a("%s %s, %s" % (sw, r.keep[b + d], r.keep[b + 2 + d]))
            a("%s:" % l)
            a("s_nop 0")
            for j in range(5):
                for h in range(2):
                    a("v_lshlrev_b32 %s, 16, %s" % (acc[0][j][2 * h], r.keep[2 * j + h]))
                    a("v_and_b32 %s, 0xffff0000, %s" % (acc[0][j][2 * h + 1], r.keep[2 * j + h]))
        if self.final:
            unpack()
        setup = list(setup)
        extra = list(extra)
        first_use = {}
        for n, (ks, i) in enumerate(seq):
            first_use.setdefault(ks, n)
        wq = [(first_use[ks], f) for ks, f in wq]
        side = []
        cnt, tau, started = 0, 0, set()
        for n, (ks, i) in enumerate(seq):
            while wq and wq[0][0] <= n:
                wq.pop(0)[1]()
            while aq and aq[0][0] <= n:
                aq.pop(0)[1]()
            a.wait_vm([("w", NK, k) for k in range(5 * ks, 5 * ks + 5)] + [("x", n)])
            if n == 0:
                stamp(a, 2)
            if n == 1 and not self.final:
                unpack()
            for j in range(5):
                c = str(acc[i][j]) if (i == 0 or i in started) else "0"
                a("%s %s, %s, %s, %s" % (MF, acc[i][j], self.W(5 * ks + j), r.ring.q(n % 20), c))
                cnt += 1
                if cnt % CFG["SP4"] == 0 and (aq or wq):
                    ca = aq and aq[0][0] - 20 < n
                    if ca and (not wq or aq[0][0] <= wq[0][0] - 4):
                        aq.pop(0)[1]()
                    elif wq:
                        wq.pop(0)[1]()
                    elif ca:
                        aq.pop(0)[1]()
                elif cnt % CFG["SPX"] == 0 and extra and not aq and not wq and not setup and n < len(seq) - CFG["XSTOP"]:
                    extra.pop(0)()
                elif side:
                    for _ in range(CFG["SDK"]):
                        if side:
                            x = side.pop(0)
                            if x is not None:
                                x() if callable(x) else a(x)
                elif cnt % CFG["SP4"] == 1 and setup and n >= 8:
                    a(setup.pop(0))
            started.add(i)
            if ks == NK - 1 and i:
                for x in side:
                    if x is not None:
                        x() if callable(x) else a(x)
                side = [None] * 4
                par = (tau % 2) * 5120
                for j in range(5):
                    if tau:
                        side.append(lambda j=j: a.wait_lg(("p", j)))
                        side += ["v_add_f32 %s, %s, %s" % (acc[i][j][q], acc[i][j][q], r.part.q(j)[q]) for q in range(4)]
                    side.append(lambda i=i, j=j, par=par: a.ds("ds_write_b128 %s, %s offset:%d" % (r.vW, acc[i][j], par + j * 1024), "rw"))
                side += [None] * CFG["XW"]
                def swap(par=par):
                    a.wait_lg("rw")
                    a("s_barrier")
                    for j in range(5):
                        a.ds("ds_read_b128 %s, %s offset:%d" % (r.part.q(j), r.vRd, par + j * 1024), ("p", j))
                side.append(swap)
                tau += 1
        for x in side:
            if x is not None:
                x() if callable(x) else a(x)
        assert not aq and not wq and not setup
        p_epilogue(a, r, acc, None, r.part, r.tmp, self.xout - self.xres, extra, self.final)
        self.left = extra


def main_body():
    a = Asm()
    a("s_cmp_ge_u32 s2, 256")
    a("s_cbranch_scc1 L_end")
    a("s_load_dwordx2 s[4:5], s[0:1], 72")
    a("s_load_dwordx4 s[84:87], s[0:1], 0")
    a("s_load_dwordx2 s[88:89], s[0:1], 16")
    a("s_load_dwordx2 s[90:91], s[0:1], 32")
    a("s_load_dwordx2 s[92:93], s[0:1], 40")
    a("s_load_dwordx2 s[96:97], s[0:1], 48")
    a("s_load_dwordx2 s[94:95], s[0:1], 64")
    if CFG["SPAN"]:
        a("s_memrealtime s[80:81]")
    if CFG["DBGT"]:
        a("s_memrealtime s[80:81]")
        a("s_mov_b32 s62, 4")
    if PROF:
        a("s_mov_b32 %s, 0" % sPH)
        a("s_memrealtime s[80:81]")
    stamp(a, 0)
    a("v_lshrrev_b32 v1, 6, v0")
    a("v_readfirstlane_b32 %s, v1" % sWAVE)
    a("v_and_b32 v1, 63, v0")
    a("v_lshlrev_b32 v2, 4, v1")
    a("v_and_b32 %s, 15, v1" % vN)
    a("v_lshrrev_b32 %s, 4, v1" % vG)
    a("s_mov_b32 s6, %d" % WS_USED)
    a("s_mov_b32 s7, 0x20000")

    def late_setup():
        a("s_and_b32 s16, s2, 7")
        a("s_lshr_b32 s17, s2, 3")
        lx = CFG["XC"] - 1
        a("s_lshr_b32 %s, s16, %d" % (sRB, lx))
        a("s_lshl_b32 %s, %s, %d" % (sRB, sRB, lx + 1))
        a("s_and_b32 s18, s17, %d" % ((2 << lx) - 1))
        a("s_add_u32 %s, %s, s18" % (sRB, sRB))
        a("s_lshr_b32 s17, s17, %d" % (lx + 1))
        a("s_and_b32 s16, s16, %d" % lx)
        a("s_lshl_b32 %s, s16, 3" % sP)
        a("s_add_u32 %s, %s, s17" % (sP, sP))
        a("s_lshl_b32 %s, %s, 1" % (sRB64, sRB))
        a("s_and_b32 s18, %s, 1" % sP)
        a("s_add_u32 %s, %s, s18" % (sRB64, sRB64))
        a("s_lshr_b32 %s, %s, 1" % (sCG, sP))
        a("s_and_b32 s18, %s, %d" % (sRB, 3 if CFG["ROT"] else 0))
        a("s_mul_i32 %s, s18, 3" % sROT12)
        a("s_mul_i32 %s, s18, 5" % sROT10)
        a("s_lshr_b32 %s, %s, 1" % (sROT10, sROT10))
        a("s_mov_b32 %s, 0" % sLAY)
        a("s_mov_b32 %s, 0" % sTGT)
        a("s_lshl_b32 s17, %s, 11" % sRB)
        a("s_add_u32 s17, s17, %d" % CNT)
        a("v_lshl_add_u32 %s, %s, 7, s17" % (vCNT, vN))
        a("v_mov_b32 v255, 0x%x" % OOB)
        a("v_cmp_gt_u32 vcc, 16, v1")
        a("s_lshl_b32 s18, %s, 7" % sP)
        a("s_add_u32 s17, s17, s18")
        a("v_cndmask_b32 %s, v255, %s, vcc" % (vCNT, vCNT))
        a("v_mov_b32 %s, s17" % vPL)
        a("s_add_u32 s100, s4, s17")
        a("s_addc_u32 s101, s5, 0")
        a("v_cmp_eq_u32 vcc, 0, v1")
        a("v_cndmask_b32 %s, v255, %s, vcc" % (vPL, vPL))
    p1, p3 = P1(a), P3(a)
    p2 = PK(a, 5, W2, PQ, XA, XB, STB, 122880, False, lambda k: Reg("a", 192 + 4 * k if k < 16 else 156 + 4 * (k - 16), 4), vPRE[2], "s47")
    p4 = PK(a, 12, W4, H, XB, XA + LSTR, STA + LSTR, 122880, True, lambda k: Reg("a", 4 * k, 4), vPRE[3], "s58")
    p0_phase(a, p1, late_setup)
    a.vm = []
    for f in p1.pre_loads(CFG["NPRE1A"]):
        f()
    p1.body(p2, p3, p4, CFG["NPRE1A"], True)
    tail_state = list(a.vm[a.vm.index("out"):])
    a("L_mid:")
    ex = p1.extra
    w = Weaver(a, ex[:CFG["NX2"]], 8)
    for x in ([] if CFG["AE"] & 1 else p2.addr_lines()):
        w(x)
    w.flush()
    p2.before_wait(); arrive(a); wait(a, ex[CFG["NX2"]:CFG["NX2"] + CFG["NX3"]])
    rest = ex[CFG["NX2"] + CFG["NX3"]:]
    assert len(ex) - len(rest) >= len(ex) - 6 * CFG["NE3"] - CFG["NW4P"]
    p2.body((), rest)
    stamp(a, 5)
    w = Weaver(a, p2.left, 6)
    p3.before_wait(w); w.flush(); wait_first(a, p3.wait_loads() + p4.take(CFG["NW4Q"]))
    p3.body(p4)
    stamp(a, 5)
    spoll_issue(a, 1)
    for x in ([] if CFG["AE"] & 2 else p4.addr_lines()):
        a(x)
    p4.before_wait()
    stamp(a, 6); stamp(a, 7)
    spoll_wait(a, 1, "s22")
    stamp(a, 8); stamp_dump(a); stamp(a, 0); dbg_time(a)
    p4.body(p1.pre_setup() + final_setup())
    stamp(a, 5)
    a("s_add_u32 %s, %s, %d" % (sLAY, sLAY, LSTR))
    pl = p1.pre_loads(CFG["NPRE1"])
    assert len(pl) - CFG["NP1W"] <= 28
    w = Weaver(a, pl[:len(pl) - CFG["NP1W"]], 12)
    p1.before_wait(w); w.flush(); wait_first(a, pl[len(pl) - CFG["NP1W"]:])
    p1.body(p2, p3, p4, CFG["NPRE1"])
    assert a.vm[a.vm.index("out"):] == tail_state
    a("s_branch L_mid")
    final_store(a, p4.keep, p4.tmp)
    a("L_end:")
    a("s_endpgm")
    a("L_code_end:")
    return a, dict(vgpr=512, acc=256, lds=163840)


def p0_phase(a, p1, late_setup):
    U1, UX, U2, UZ, U3, U4 = 160, 256, 100, 47, 480, 240
    BX = U1; B2 = BX + UX; BZ = B2 + U2; BE = BZ + UZ
    NT = " nt" if CFG["K0NT"] & 1 else ""
    n_, g_ = "v3", "v4"
    DST = [82, 83, 86, 87, 88, 89, 98, 99]

    def nat_flag(kb):
        a("s_mul_i32 s29, %s, 52" % kb)
        a("s_lshr_b32 s29, s29, 8")
        a("s_mul_i32 s29, s29, 5")
        a("s_sub_u32 s29, %s, s29" % kb)
        a("s_cmp_eq_u32 s29, 2")

    def colsum(j, frag):
        a("%s v[%d:%d], v[56:59], %s, 0" % (MF, 64 + 4 * (j % 4), 67 + 4 * (j % 4), frag))

    def colsum_keep(j):
        a("v_cndmask_b32 v%d, v%d, v%d, s[%d:%d]" % (60 + j // 4, 60 + j // 4, 64 + 4 * (j % 4), 50 + 2 * (j % 4), 51 + 2 * (j % 4)))

    def issue128(srd, rs, kb, ch, lds, v):
        a("v_mul_lo_u32 %s, %s, %s" % (v, g_, rs))
        a("v_lshl_add_u32 %s, %s, 4, %s" % (v, n_, v))
        a("s_mul_i32 s17, %s, %s" % (kb, rs))
        a("s_lshl_b32 s17, s17, 5")
        a("s_lshl_b32 s19, %s, 8" % ch)
        a("s_add_u32 s17, s17, s19")
        a("s_lshl_b32 s19, %s, 2" % rs)
        for i in range(8):
            a("s_add_u32 m0, %s, %d" % (lds, i * 1024))
            a("s_nop 0")
            a("buffer_load_dwordx4 %s, %s, s17 offen%s lds" % (v, srd, NT))
            a("s_add_u32 s17, s17, s19")

    def rdaddr128(lds):
        a("v_lshrrev_b32 v230, 2, %s" % n_)
        a("v_lshl_add_u32 v230, %s, s29, v230" % g_)
        a("v_lshlrev_b32 v230, 8, v230")
        a("v_and_b32 v231, 3, %s" % n_)
        a("v_lshl_add_u32 v230, v231, 3, v230")
        a("v_add_u32 v230, %s, v230" % lds)
        a("v_add_u32 v231, s30, v230")

    def dst640(kb, ch, nkb, base):
        a("s_lshl_b32 s17, %s, 3" % ch)
        a("s_mul_i32 s19, s17, 52")
        a("s_lshr_b32 s19, s19, 8")
        a("s_mul_i32 s28, s19, 5")
        a("s_sub_u32 s17, s17, s28")
        a("s_and_b32 s27, s19, 1")
        a("s_mul_i32 s19, s19, %d" % nkb)
        a("s_add_u32 s19, s19, %s" % kb)
        a("s_mul_i32 s19, s19, 5120")
        a("s_add_u32 s19, s19, %d" % base)
        for i in range(8):
            a("s_sub_u32 s28, s17, s27")
            a("s_cselect_b32 s28, 4, s28")
            a("s_lshl_b32 s28, s28, 10")
            a("s_add_u32 s%d, s28, s19" % DST[i])
            if i < 7:
                a("s_add_u32 s17, s17, 1")
                a("s_cmp_eq_u32 s17, 5")
                a("s_cselect_b32 s17, 0, s17")
                a("s_cselect_b32 s28, 1, 0")
                a("s_xor_b32 s27, s27, s28")
                a("s_mul_i32 s28, s28, %d" % (nkb * 5120))
                a("s_add_u32 s19, s19, s28")

    def move128():
        for t in range(8):
            for h in range(2):
                a.ds("ds_read_b64_tr_b16 v[%d:%d], v%d offset:%d" % (96 + 4 * t + 2 * h, 97 + 4 * t + 2 * h, 230 + h, t * 32), ("t", t))
        for t in range(8):
            a.wait_lg(("t", t))
            a("buffer_store_dwordx4 v[%d:%d], v2, s[4:7], s%d offen sc1" % (96 + 4 * t, 99 + 4 * t, DST[t]))

    a("s_lshl_b32 s38, %s, 8" % sWAVE)
    a("s_add_u32 s38, s38, s2")
    a("s_sub_u32 s16, s38, 160")
    a("s_cmp_lt_u32 s2, 160")
    a("s_cselect_b32 s16, s2, s16")
    a("s_cmp_eq_u32 %s, 2" % sWAVE)
    a("s_cselect_b32 s38, s16, s38")
    a("s_add_u32 s39, s2, 256")
    a("s_sub_u32 s16, 767, s2")
    a("s_cmp_eq_u32 %s, 2" % sWAVE)
    a("s_cselect_b32 s39, s16, s39")
    a("s_cmp_eq_u32 %s, 3" % sWAVE)
    a("s_cselect_b32 s39, s2, s39")
    a("s_cmp_eq_u32 %s, 0" % sWAVE)
    a("s_cselect_b32 s39, 0x1000, s39")
    a("s_lshl_b32 s18, %s, 14" % sWAVE)
    a("s_lshl_b32 s37, %s, 13" % sWAVE)
    a("s_add_u32 s37, s37, 0x20000")
    a("s_mov_b32 s23, 0x20000\ns_mov_b32 s35, 0x20000")
    a("s_cmp_lt_u32 s38, %d" % BX)
    a("s_cbranch_scc1 L_i_w1")
    a("s_cmp_lt_u32 s38, %d" % B2)
    a("s_cbranch_scc1 L_i_x")
    a("s_cmp_lt_u32 s38, %d" % BZ)
    a("s_cbranch_scc1 L_i_w2")
    a("s_waitcnt lgkmcnt(0)")
    a("s_cmp_lt_u32 s38, %d" % BE)
    a("s_cbranch_scc0 L_i_b")
    a("s_sub_u32 s16, s38, %d" % BZ)
    a("s_cmp_ge_u32 s16, 14")
    a("s_cselect_b32 s17, %d, 0" % (LSTR - 14 * 4096))
    a("s_cmp_ge_u32 s16, 28")
    a("s_cselect_b32 s17, 0x%x, s17" % ((CS3F - KV - 28 * 4096) & 0xffffffff))
    a("s_cmp_ge_u32 s16, 31")
    a("s_cselect_b32 s17, 0x%x, s17" % ((CNT - KV - 31 * 4096) & 0xffffffff))
    a("s_add_u32 s17, s17, %d" % KV)
    a("s_lshl_b32 s16, s16, 12")
    a("s_add_u32 s17, s17, s16")
    for q in range(4):
        a("v_mov_b32 v%d, 0" % (16 + q))
    for q in range(4):
        a("buffer_store_dwordx4 v[16:19], v2, s[4:7], s17 offen offset:%d sc1" % (q * 1024))
    a("s_branch L_i_b")

    a("L_i_w1:")
    if CFG["W1M"]:
        a("s_and_b32 s24, s38, 7")
        a("s_mul_i32 s24, s24, 20")
        a("s_lshr_b32 s25, s38, 3")
        a("s_add_u32 s25, s25, s24")
        a("s_lshr_b32 s24, s25, 3")
        a("s_and_b32 s25, s25, 7")
    else:
        a("s_lshr_b32 s24, s38, 3")
        a("s_and_b32 s25, s38, 7")
    a("v_mul_u32_u24 v12, 205, v1")
    a("v_lshrrev_b32 v12, 11, v12")
    a("v_mul_u32_u24 v13, 10, v12")
    a("v_sub_u32 v13, v1, v13")
    a("v_cmp_le_u32 vcc, 3, v12")
    a("v_cndmask_b32 v14, 0, 1, vcc")
    a("v_mul_u32_u24 v15, 3, v14")
    a("v_sub_u32 v12, v12, v15")
    a("v_add_u32 v12, 1, v12")
    a("v_cmp_eq_u32 vcc, 3, v12")
    a("v_cndmask_b32 v12, v12, 0, vcc")
    a("v_mul_u32_u24 v12, 1280, v12")
    a("v_lshl_add_u32 v12, v13, 4, v12")
    a("v_mul_u32_u24 v14, 3840, v14")
    a("s_mul_i32 s17, s24, %d" % (32 * 3840))
    a("s_mul_i32 s19, s25, 160")
    a("s_add_u32 s17, s17, s19")
    a("s_mul_i32 s19, %s, %d" % (sWAVE, 8 * 3840))
    a("s_add_u32 s17, s17, s19")
    a("s_lshl_b32 s18, %s, 12" % sWAVE)
    a("v_add3_u32 v12, v12, v14, s17")
    a("v_mov_b32 v13, 0x%x" % OOB)
    a("v_cmp_gt_u32 vcc, 60, v1")
    a("v_cndmask_b32 v12, v13, v12, vcc")
    a("s_mov_b32 s22, %d" % (640 * 1920 * 2))
    if CFG["DBG"] == 5:
        stamp(a, 5)
    a("s_waitcnt lgkmcnt(0)")
    if CFG["DBG"] == 5:
        stamp(a, 6)
    a("s_mov_b32 s20, s86\ns_mov_b32 s21, s87")
    for i in range(8):
        a("s_add_u32 m0, s18, %d" % (i * 1024))
        a("s_mov_b32 s19, %d" % (i * 7680))
        a("buffer_load_dwordx4 v12, s[20:23], s19 offen%s lds" % (" nt" if CFG["K0NT"] & 2 else ""))
    a("s_branch L_i_b")

    a("L_i_x:")
    a("s_sub_u32 s16, s38, %d" % BX)
    a("s_lshr_b32 s24, s16, 1")
    a("s_and_b32 s25, s16, 1")
    a("s_mul_i32 s17, s24, 20480")
    a("s_mul_i32 s19, s25, 640")
    a("s_add_u32 s19, s19, s17")
    a("v_mul_u32_u24 v12, 1280, %s" % n_)
    a("v_lshl_add_u32 v13, %s, 4, v12" % g_)
    a("s_mov_b32 s22, %d" % (S * D * 2))
    a("s_waitcnt lgkmcnt(0)")
    a("s_mov_b32 s20, s84\ns_mov_b32 s21, s85")
    for kb in range(10):
        a("buffer_load_dwordx4 v[%d:%d], v13, s[20:23], s19 offen offset:%d%s" % (96 + 4 * kb, 99 + 4 * kb, kb * 64, " nt" if CFG["K0NT"] & 4 else ""))
    a("s_branch L_i_b")

    a("L_i_w2:")
    a("s_sub_u32 s16, s38, %d" % B2)
    a("s_mul_i32 s24, s16, 52429")
    a("s_lshr_b32 s24, s24, 18")
    a("s_mul_i32 s17, s24, 5")
    a("s_sub_u32 s25, s16, s17")
    a("s_mov_b32 s22, %d\ns_mov_b32 s16, 1280" % (640 * 640 * 2))
    a("s_waitcnt lgkmcnt(0)")
    a("s_mov_b32 s20, s88\ns_mov_b32 s21, s89")
    a("s_mul_i32 s28, s24, 52")
    a("s_lshr_b32 s28, s28, 8")
    a("s_mul_i32 s17, s28, 5")
    a("s_sub_u32 s26, s24, s17")
    a("s_mul_i32 s17, s28, 160")
    a("s_mul_i32 s19, s26, 40")
    a("s_cmp_eq_u32 s26, 4")
    a("s_cselect_b32 s19, 32, s19")
    a("s_cselect_b32 s27, %d, %d" % (36 * 1280, 0))
    a("s_max_u32 s27, s27, %d" % (4 * 1280))
    a("s_add_u32 s17, s17, s19")
    a("s_mul_i32 s17, s17, 1280")
    a("s_lshl_b32 s19, s25, 8")
    a("s_add_u32 s17, s17, s19")
    a("v_mul_u32_u24 v12, 1280, %s" % g_)
    a("v_lshl_add_u32 v12, %s, 4, v12" % n_)
    for i in range(8):
        a("s_add_u32 m0, s18, %d" % (i * 1024))
        a("s_nop 0")
        a("buffer_load_dwordx4 v12, s[20:23], s17 offen%s lds" % NT)
        a("s_add_u32 s17, s17, %s" % ("s27" if i % 2 else str(4 * 1280)))

    a("L_i_b:")
    if CFG["DBG"] == 5:
        stamp(a, 7)
    a("s_mov_b32 s28, s18")
    late_setup()
    a("s_mov_b32 s18, s28")
    a("s_cmp_eq_u32 %s, 3" % sWAVE)
    a("s_cbranch_scc0 L_i_c")
    a("s_cmp_eq_u32 %s, 0" % sP)
    a("s_cbranch_scc0 L_i_c")
    for q in range(4):
        a("v_mov_b32 v%d, 0" % (16 + q))
    a("s_lshl_b32 s17, %s, 11" % sRB)
    a("s_add_u32 s17, s17, %d" % CNT_G)
    a("buffer_store_dwordx4 v[16:19], v2, s[4:7], s17 offen sc1")
    a("buffer_store_dwordx4 v[16:19], v2, s[4:7], s17 offen offset:1024 sc1")
    a("L_i_c:")
    a("s_barrier")
    a("s_cmp_eq_u32 %s, 3" % sWAVE)
    a("s_cbranch_scc0 L_i_b1")
    a("s_cmp_eq_u32 %s, 0" % sP)
    a("s_cbranch_scc0 L_i_b0")
    a("s_mov_b64 exec, 1")
    a("v_mov_b32 v16, 1")
    a("s_waitcnt vmcnt(0)")
    if CFG["H2"]:
        a("global_atomic_add v17, v2, v16, s[94:95] sc0")
        a("s_waitcnt vmcnt(0)")
        a("v_readfirstlane_b32 s43, v17")
        a("s_cmp_eq_u32 s43, 15")
        a("s_cbranch_scc0 L_i_b2")
        a("v_mov_b32 v16, 16")
        a("global_store_dword v2, v16, s[94:95] offset:128 sc1")
        a("L_i_b2:")
    else:
        a("global_atomic_add v2, v16, s[94:95]")
    a("s_mov_b64 exec, -1")
    a("L_i_b0:")
    if CFG["TLB"]:
        a("v_lshlrev_b32 v12, %d, v1" % CFG["TLB"])
        a("buffer_load_dword a251, v12, s[4:7], 0 offen")
    if CFG["CPF"]:
        a("s_getpc_b64 s[32:33]")
        a("L_pc:")
        a("s_lshr_b32 s17, s2, 3")
        a("s_lshl_b32 s17, s17, 11")
        a("v_add_u32 v12, s17, v2")
        a("v_min_u32 v12, L_code_end-L_pc-1040, v12")
        a("v_mov_b32 v15, s33")
        a("v_add_co_u32 v14, vcc, s32, v12")
        a("v_addc_co_u32 v15, vcc, 0, v15, vcc")
        a("global_load_dwordx4 a[252:255], v[14:15], off")
        a("global_load_dwordx4 a[252:255], v[14:15], off offset:1024")
    a("L_i_b1:")

    a("L_p_a:")
    stamp(a, 1)
    for q in range(4):
        a("v_cmp_eq_u32 s[%d:%d], %d, %s" % (50 + 2 * q, 51 + 2 * q, q, g_))
        a("v_mov_b32 v%d, 0x3f803f80" % (56 + q))

    def wait_a():
        a("s_waitcnt vmcnt(0)")
        stamp(a, 2)
        a("s_barrier")
    a("s_cmp_lt_u32 s38, %d" % BX)
    a("s_cbranch_scc1 L_p_w1")
    a("s_cmp_lt_u32 s38, %d" % B2)
    a("s_cbranch_scc1 L_p_x")
    a("s_cmp_lt_u32 s38, %d" % BZ)
    a("s_cbranch_scc1 L_p_w2")
    a("s_barrier")
    a("s_branch L_drain")

    a("L_p_w1:")
    a("s_mov_b32 s29, 2\ns_mov_b32 s30, 2048")
    a("v_lshrrev_b32 v12, 3, %s" % n_)
    a("v_lshl_add_u32 v12, %s, s29, v12" % g_)
    a("v_lshlrev_b32 v12, 10, v12")
    a("v_bfe_u32 v14, %s, 2, 1" % n_)
    a("v_mul_u32_u24 v14, 480, v14")
    a("s_mul_i32 s18, %s, 40" % sWAVE)
    a("v_add3_u32 v12, v12, v14, s18")
    a("v_and_b32 v14, 3, %s" % n_)
    a("v_lshlrev_b32 v14, 2, v14")
    for j in range(8):
        a("v_add_u32 v15, %d, v14" % (16 * j))
        a("v_mul_u32_u24 v32, 205, v15")
        a("v_lshrrev_b32 v32, 13, v32")
        a("v_min_u32 v32, 2, v32")
        a("v_mul_u32_u24 v32, 80, v32")
        a("v_lshl_add_u32 v32, v15, 1, v32")
        a("v_add_u32 v%d, v12, v32" % (16 + j))
        a("v_add_u32 v%d, s30, v%d" % (24 + j, 16 + j))
    kpos_scalar(a, "s27", "s24")
    a("s_lshl_b32 s17, s25, 1")
    a("s_lshr_b32 s19, %s, 1" % sWAVE)
    a("s_add_u32 s17, s17, s19")
    a("s_mul_i32 s17, s17, 163840")
    a("s_add_u32 s17, s17, %d" % W1)
    a("s_mul_i32 s19, s27, 6144")
    a("s_add_u32 s19, s19, s17")
    a("v_add_u32 v33, s19, v2")
    a("s_lshl_b32 s19, s27, 11")
    a("s_add_u32 s19, s19, s17")
    a("s_add_u32 s19, s19, %d" % (120 * 1024))
    a("v_add_u32 v34, s19, v2")
    a("s_lshl_b32 s17, s24, 13")
    a("s_lshl_b32 s19, s25, 10")
    a("s_add_u32 s17, s17, s19")
    a("s_lshl_b32 s19, %s, 8" % sWAVE)
    a("s_add_u32 s17, s17, s19")
    a("s_add_u32 s17, s17, %d" % CSP1)
    a("v_lshl_add_u32 v35, v1, 2, s17")
    a("s_mov_b32 s82, 4096")
    wait_a()
    for j in range(8):
        for h in range(2):
            a.ds("ds_read_b64_tr_b16 v[%d:%d], v%d" % (96 + 4 * j + 2 * h, 97 + 4 * j + 2 * h, 16 + j + 8 * h), ("t", j))
    for j in range(8):
        a.wait_lg(("t", j))
        fr = "v[%d:%d]" % (96 + 4 * j, 99 + 4 * j)
        if j < 6:
            a("buffer_store_dwordx4 %s, v33, s[4:7], %s offen offset:%d sc1" % (fr, ["0", "s82"][j // 4], (j % 4) * 1024))
        else:
            a("buffer_store_dwordx4 %s, v34, s[4:7], 0 offen offset:%d sc1" % (fr, (j - 6) * 1024))
        colsum(j, fr)
        if j >= 2:
            colsum_keep(j - 2)
    colsum_keep(6); colsum_keep(7)
    for q in range(2):
        a("buffer_store_dword v%d, v35, s[4:7], 0 offen offset:%d sc1" % (60 + q, q * 256))
    a("s_branch L_drain")

    a("L_p_x:")
    a("s_mul_i32 s17, s24, 20480")
    a("s_mul_i32 s19, s25, 10240")
    a("s_add_u32 s17, s17, s19")
    a("s_add_u32 s17, s17, %d" % XA)
    a("v_add_u32 v12, s17, v2")
    a("s_mov_b32 s82, 4096\ns_mov_b32 s83, 8192")
    for q in range(4):
        a("v_mov_b32 v%d, 0" % (16 + q))
    a("s_mov_b32 s28, 0x3f803f80")
    a("s_lshl_b32 s17, s24, 10")
    a("s_lshl_b32 s19, s25, 7")
    a("s_add_u32 s17, s17, s19")
    a("s_add_u32 s17, s17, %d" % STA)
    a("v_lshlrev_b32 v14, 3, %s" % n_)
    a("v_lshl_add_u32 v14, %s, 8, v14" % g_)
    if not CFG["XCW"]:
        wait_a()
    for kb in range(10):
        if CFG["XCW"]:
            a("s_waitcnt vmcnt(9)")
        a("buffer_store_dwordx4 v[%d:%d], v12, s[4:7], %s offen offset:%d sc1" % (96 + 4 * kb, 99 + 4 * kb, ["0", "s82", "s83"][kb // 4], (kb % 4) * 1024))
    if CFG["XCW"]:
        stamp(a, 2)
        a("s_barrier")
    for kb in range(10):
        for d in range(4):
            a("v_dot2c_f32_bf16 v%d, s28, v%d" % (16 + 2 * (d % 2), 96 + 4 * kb + d))
            a("v_dot2c_f32_bf16 v%d, v%d, v%d" % (17 + 2 * (d % 2), 96 + 4 * kb + d, 96 + 4 * kb + d))
    a(pk("add", Reg("v", 16, 2), Reg("v", 16, 2), Reg("v", 18, 2)))
    a("buffer_store_dwordx2 v[16:17], v14, s[4:7], s17 offen sc1")
    a("s_branch L_drain")

    a("L_p_w2:")
    a("s_cmp_eq_u32 s26, 4")
    a("s_cselect_b32 s29, 3, 2")
    a("s_cselect_b32 s30, 1, 4")
    a("s_lshl_b32 s30, s30, 10")
    rdaddr128("s18")
    dst640("s24", "s25", 20, W2)
    wait_a()
    move128()

    a("L_drain:")
    stamp(a, 3)
    a("v_mov_b32 v236, 0x%x\nv_mov_b32 v237, 0x%x\nv_mov_b32 v238, 0x%x" % (OOB, OOB, OOB))
    for t in range(8):
        a("s_mov_b32 s%d, 0" % DST[t])
    a("s_mov_b32 s31, 0")
    a("s_mov_b32 s32, s4\ns_mov_b32 s33, s5\ns_mov_b32 s34, 0")
    a("v_mov_b32 v229, 0\nv_add_u32 v230, s37, v2\nv_add_u32 v231, s37, v2")
    a("s_cmp_lt_u32 s39, %d" % U3)
    a("s_cbranch_scc1 L_d_w3")
    a("s_cmp_lt_u32 s39, %d" % (U3 + U4))
    a("s_cbranch_scc0 L_d_done")
    a("s_sub_u32 s16, s39, %d" % U3)
    a("s_mul_i32 s36, s16, 52429")
    a("s_lshr_b32 s36, s36, 18")
    a("s_mul_i32 s17, s36, 5")
    a("s_sub_u32 s58, s16, s17")
    a("s_mov_b32 s31, 3\ns_mov_b32 s34, %d\ns_mov_b32 s48, 1280" % (1536 * 640 * 2))
    a("s_mov_b32 s32, s96\ns_mov_b32 s33, s97")
    dst640("s36", "s58", 48, W4)
    a("s_mov_b32 s29, 2\ns_mov_b32 s30, 4096")
    a("s_branch L_d_rd")
    a("L_d_w3:")
    a("s_mul_i32 s36, s39, 43691")
    a("s_lshr_b32 s36, s36, 20")
    a("s_mul_i32 s17, s36, 24")
    a("s_sub_u32 s58, s39, s17")
    a("s_and_b32 s31, s58, 1")
    a("s_lshr_b32 s58, s58, 1")
    a("s_mov_b32 s34, %d\ns_mov_b32 s48, 3072" % (640 * 1536 * 2))
    a("s_cmp_eq_u32 s31, 1")
    a("s_cselect_b32 s32, s92, s90")
    a("s_cselect_b32 s33, s93, s91")
    a("s_add_u32 s31, s31, 1")
    kpos_scalar(a, "s27", "s36")
    a("s_lshl_b32 s17, s58, 4")
    a("s_add_u32 s17, s17, s31")
    a("s_sub_u32 s17, s17, 1")
    a("s_lshl_b32 s28, s17, 6")
    a("s_add_u32 s28, s28, %d" % CS3F)
    a("v_lshl_add_u32 v236, %s, 2, s28" % n_)
    a("v_lshl_add_u32 v236, %s, 7, v236" % g_)
    a("v_add_u32 v237, 512, v236")
    a("s_mul_i32 s19, s17, 43691")
    a("s_lshr_b32 s19, s19, 19")
    a("s_mul_i32 s28, s19, 12")
    a("s_sub_u32 s17, s17, s28")
    a("s_mul_i32 s19, s19, 20")
    a("s_add_u32 s19, s19, s27")
    a("s_mul_i32 s19, s19, 12")
    a("s_add_u32 s19, s19, s17")
    a("s_lshl_b32 s19, s19, 10")
    a("s_add_u32 s19, s19, %d" % W3)
    for i in range(8):
        a("s_mov_b32 s%d, s19" % DST[i])
        if i < 7:
            a("s_add_u32 s17, s17, 2")
            a("s_cmp_ge_u32 s17, 12")
            a("s_cselect_b32 s28, 12, 0")
            a("s_sub_u32 s17, s17, s28")
            a("s_mul_i32 s28, s28, %d" % (19 * 1024))
            a("s_add_u32 s19, s19, s28")
            a("s_add_u32 s19, s19, 2048")
    a("s_mov_b32 s29, 3\ns_mov_b32 s30, 1024")
    a("L_d_rd:")
    rdaddr128("s37")
    if CFG["BPOS"] == 0:
        issue128("s[32:35]", "s48", "s36", "s58", "s37", "v232")
    if CFG["B3"]:
        a("s_cmp_eq_u32 %s, 3" % sWAVE)
        a("s_cbranch_scc0 L_d_done")
        a("v_mov_b32 v229, 0")
        a("global_load_dword v233, v229, s[94:95] offset:%d sc1" % (128 if CFG["H2"] else 0))
        issue128("s[32:35]", "s48", "s36", "s58", "s37", "v232")
    a("L_d_done:")
    def p1_setup():
        for l in p1.pre_setup():
            a(l)
        p1.before_wait()
    if not CFG["BWL"]:
        p1_setup()
    else:
        p1.alloc()
        a("s_lshl_b32 s17, %s, 7" % sP)
        a("s_add_u32 s17, s17, %d" % CNT_G)
        a("v_lshl_add_u32 %s, v0, 11, s17" % p1.vC1)
        a("v_and_b32 v232, 0x%x, %s" % (OOB, vCNT))
        a("v_or_b32 %s, v232, %s" % (p1.vC1, p1.vC1))
    XL = 49152
    def x_dma(c):
        for i in range(4):
            a("s_add_u32 m0, s24, %d" % ((c % 5) * 4096 + i * 1024))
            a("s_mov_b32 s19, %d" % (i * 10240 + c * 128))
            a("buffer_load_dwordx4 v235, s[88:91], s19 offen lds")
    def x_read(c):
        for ks in range(2):
            for rt in range(2):
                k = 2 * (2 * c + ks) + rt
                a("ds_read_b128 a[%d:%d], v%d offset:%d" % (4 * k, 4 * k + 3, 240 + ks, (c % 5) * 4096 + rt * 2048))
    if CFG["XPRE"]:
        a("s_mov_b32 s25, s88\ns_mov_b32 s22, s89")
        a("s_mov_b32 s88, s84\ns_mov_b32 s89, s85\ns_mov_b32 s90, %d\ns_mov_b32 s91, 0x20000" % (S * D * 2))
        a("s_mul_i32 s24, %s, 20480" % sWAVE)
        a("s_add_u32 s24, s24, %d" % XL)
        a("v_lshrrev_b32 v235, 3, v1")
        a("v_and_b32 v240, 7, v1")
        a("v_xor_b32 v240, v240, v235")
        a("v_mul_u32_u24 v235, 1280, v235")
        a("v_lshl_add_u32 v235, v240, 4, v235")
        a("s_mul_i32 s17, s16, 20480")
        a("v_add_u32 v235, s17, v235")
        a("v_and_b32 v240, 7, %s" % n_)
        a("v_xor_b32 v241, %s, v240" % g_)
        a("v_lshlrev_b32 v241, 4, v241")
        a("v_lshl_add_u32 v240, %s, 7, v241" % n_)
        a("v_add_u32 v240, s24, v240")
        a("v_xor_b32 v241, 64, v240")
    if not CFG["B3"]:
        a("v_mov_b32 v229, 0")
        a("s_cmp_eq_u32 %s, 3" % sWAVE)
        a("s_cbranch_scc0 L_clr0")
        a("global_load_dword v233, v229, s[94:95] offset:%d sc1" % (128 if CFG["H2"] else 0))
        a("L_clr0:")
    NXD = 20 if CFG["XPRE"] else 0
    for c in range(NXD // 4):
        x_dma(c)
    a("s_cmp_eq_u32 %s, 3" % sWAVE)
    a("s_cbranch_scc0 L_clr_ok")
    a("s_mov_b32 s42, %d" % CFG["TMO"])
    a("s_waitcnt vmcnt(%d)" % (NXD + (8 if CFG["B3"] else 0)))
    a("L_clr:")
    a("v_readfirstlane_b32 s43, v233")
    a("s_cmp_ge_u32 s43, 16")
    a("s_cbranch_scc1 %s" % ("L_drained" if CFG["B3"] else "L_clr_ok"))
    a("global_load_dword v233, v229, s[94:95] offset:%d sc1" % (128 if CFG["H2"] else 0))
    a("s_sub_u32 s42, s42, 1")
    a("s_waitcnt vmcnt(0)")
    a("s_cbranch_scc0 L_clr")
    a("L_clr_ok:")
    if CFG["BPOS"] == 0:
        a("s_cmp_eq_u32 s31, 0")
        a("s_waitcnt vmcnt(%d)" % (8 + NXD))
        a("s_cbranch_scc0 L_drained")
    a("s_waitcnt vmcnt(%d)" % NXD)
    a("L_drained:")
    stamp(a, 4)
    a("s_barrier")
    a("s_cmp_lg_u32 %s, 0" % sWAVE)
    a("s_cbranch_scc1 L_p_b")
    a("v_mov_b32 v232, 1")
    a("buffer_atomic_add v232, %s, s[4:7], 0 offen" % p1.vC1)
    a("L_p_b:")
    if CFG["DBG"] != 5:
        stamp(a, 5)
    if CFG["BPOS"] == 2:
        a("s_cmp_eq_u32 s31, 0")
        a("s_cbranch_scc1 L_p_b2")
        issue128("s[32:35]", "s48", "s36", "s58", "s37", "v232")
        a("L_p_b2:")
    if CFG["XPRE"]:
        for c in range(5):
            a("s_waitcnt vmcnt(16)")
            x_read(c)
            a("s_waitcnt lgkmcnt(0)")
            x_dma(c + 5)
    if CFG["BWL"]:
        a("s_cmp_eq_u32 s31, 0")
        a("s_cbranch_scc1 L_p_nb")
        if CFG["B3"]:
            a("s_cmp_eq_u32 %s, 3" % sWAVE)
            a("s_cbranch_scc1 L_p_nb")
        issue128("s[32:35]", "s48", "s36", "s58", "s37", "v232")
        a("L_p_nb:")
        p1_setup()
    a("s_cmp_eq_u32 s31, 0")
    a("s_cbranch_scc1 L_p_x2")
    if CFG["BPOS"] == 1 and not CFG["BWL"]:
        issue128("s[32:35]", "s48", "s36", "s58", "s37", "v232")
    if CFG["BPOS"] == 1 or not CFG["XPRE"]:
        a("s_waitcnt vmcnt(0)")
    a("v_mov_b32 v238, v2")
    for t in range(8):
        for h in range(2):
            a.ds("ds_read_b64_tr_b16 a[%d:%d], v%d offset:%d" % (192 + 4 * t + 2 * h, 193 + 4 * t + 2 * h, 230 + h, t * 32), ("t", t))
    p1.bstores = [(lambda t=t: a.vmem("buffer_store_dwordx4 a[%d:%d], v238, s[4:7], s%d offen sc1" % (192 + 4 * t, 195 + 4 * t, DST[t]), "bst")) for t in range(8)]
    if not CFG["BST"]:
        for t in range(8):
            a.wait_lg(("t", t))
            p1.bstores[t]()
        p1.bstores = []
    for t in range(8):
        a.wait_lg(("t", t))
        colsum(t, "a[%d:%d]" % (192 + 4 * t, 195 + 4 * t))
        if t >= 2:
            colsum_keep(t - 2)
    colsum_keep(6); colsum_keep(7)
    a("v_mov_b32 v234, v60\nv_mov_b32 v239, v61")
    a("L_p_x2:")
    if CFG["DBG"] != 5:
        stamp(a, 6)
    if CFG["XPRE"]:
        for c in range(5, 10):
            a("s_waitcnt vmcnt(%d)" % (4 * (9 - c)))
            x_read(c)
        a("s_mov_b32 s88, s25\ns_mov_b32 s89, s22")
    a("s_cmp_lg_u32 %s, 0" % sWAVE)
    a("s_cbranch_scc1 L_go")
    a("s_lshl_b32 s17, %s, 11" % sRB)
    a("s_add_u32 s17, s17, %d" % CNT_G)
    a("s_mov_b64 exec, 0xffff")
    a("v_lshlrev_b32 v233, 7, v1")
    a("s_mov_b32 s42, %d" % CFG["TMO"])
    a("L_gop:")
    a("v_mov_b32 v255, 0")
    a("buffer_atomic_add v255, v233, s[4:7], s17 offen sc0")
    a("s_waitcnt vmcnt(0)")
    a("v_cmp_le_u32 vcc, 16, v255")
    a("s_cmp_eq_u32 vcc_lo, 0xffff")
    a("s_cbranch_scc1 L_go0")
    a("s_sleep 2")
    a("s_sub_u32 s42, s42, 1")
    a("s_cbranch_scc0 L_gop")
    a("L_go0:")
    a("s_mov_b64 exec, -1")
    a("L_go:")
    a("s_waitcnt lgkmcnt(0)")
    if CFG["DBG"] != 5:
        stamp(a, 7)
    a("s_mov_b32 s49, 16")
    a("s_mov_b32 s22, 0")
    a("s_load_dwordx2 s[90:91], s[0:1], 56")
    phase_open(a)
    p1.bstores += [lambda: a.vmem("buffer_atomic_add_f32 v234, v236, s[4:7], 0 offen", "bst"),
                   lambda: a.vmem("buffer_atomic_add_f32 v239, v237, s[4:7], 0 offen", "bst")]


HEADER = """;
;   P4  x += h w_down      (last layer: row-major store to d_out)
"""


def build_all():
    _lbl[0] = 0
    a, info = main_body()
    k = NAME + "_kernel"
    ref = open("cdna_kernels/%s.s.ref" % NAME).read().split("\n")
    out = "\n".join(l for l in ref[:11]) + "\n"
    out += "; @launch grid=(256,1,1) block=(256,1,1) lds=%d\n" % info["lds"]
    out += HEADER
    out += '.amdgcn_target "amdgcn-amd-amdhsa--gfx950"\n'
    st = {}
    txt = a.text(stats=st)
    w = n = 0
    if CFG["AL8"]:
        txt, w, n = align8(txt, CFG["AL8"])
    sys.stderr.write("%d lines, pad states %d, widened %d, align nops %d\n" % (txt.count("\n"), st["pad"], w, n))
    return out + entry(k) + txt + kd(k, info["vgpr"], 102, info["acc"])


if __name__ == "__main__":
    import argparse
    ap = argparse.ArgumentParser()
    ap.add_argument("-o", default="cdna_kernels/%s.s" % NAME)
    ap.add_argument("--cfg", default="")
    args = ap.parse_args()
    for kv in args.cfg.split(","):
        if kv:
            k, v = kv.split("="); CFG[k] = int(v)
    txt = build_all()
    open(args.o, "w").write(txt)
```

```python
import sys, re
from asmlib import Ins, need
lines = [l.strip() for l in open(sys.argv[1]).read().split("\n")]
start = next(i for i, l in enumerate(lines) if l.endswith("_kernel:"))
end = next(i for i, l in enumerate(lines) if l.startswith(".section"))
body = lines[start + 1:end]
body = [re.sub(r"^(v_\w+?)_e64 ", r"\1 ", l) for l in body if l and not l.startswith(";")]
ins = [Ins(l) for l in body]
lab = {l[:-1]: i for i, l in enumerate(body) if l.endswith(":")}
def back(i, n=24):
    out = []
    while i >= 0 and len(out) < n:
        if ins[i].kind not in ("label", "dir"): out.append(ins[i])
        i -= 1
    return out
bad = 0
def check(hist, j, depth=0):
    global bad
    hist = list(hist); k = 0
    while j < len(ins) and k < 24:
        c = ins[j]
        if c.kind in ("label", "dir"): j += 1; continue
        dist = 0
        for p in hist:
            if need(p, c) > dist:
                print("hazard: %s  ->  %s  (need %d, have %d)" % (p.text, c.text, need(p, c), dist)); bad += 1
            dist += p.states
            if dist >= 20: break
        hist.insert(0, c); k += 1
        if c.kind == "branch":
            t = c.text.split()[1]
            if depth < 2: check(hist, lab[t], depth + 1)
            if c.mn == "s_branch": return
        if c.mn == "s_endpgm": return
        j += 1
for i, c in enumerate(ins):
    if c.kind == "branch":
        check(back(i), lab[c.text.split()[1]])
hist = []
for c in ins:
    if c.kind in ("label", "dir"): continue
    dist = 0
    for p in hist:
        if need(p, c) > dist:
            print("linear hazard: %s -> %s" % (p.text, c.text)); bad += 1
        dist += p.states
        if dist >= 20: break
    hist.insert(0, c); hist = hist[:24]
    if c.mn in ("s_branch", "s_endpgm"): hist = []
print("branches", sum(c.kind == "branch" for c in ins), "findings", bad)
```

```python
import sys, struct
from asmlib import *

S, D, F = 2048, 640, 1536
NAME = "interleave_layers__linear_attn_block__geglu_ffn__prompt"

_off = 0
def ws(n):
    global _off
    o = _off
    _off += (n + 4095) // 4096 * 4096
    return o
W1 = ws(16 * 20 * 8 * 1024)
W2 = ws(8 * 20 * 5 * 1024)
W3 = ws(16 * 20 * 12 * 1024)
W4 = ws(8 * 48 * 5 * 1024)
CSP1 = ws(20 * 2048 * 4)
CS3F = ws(3072 * 4)
CSW = ws(256 * 512)
CNT = ws(3 * 256 * 128)
CNT_G = CNT + 2 * 256 * 128
XA = ws(128 * 20 * 1024); STA = ws(2048 * 64); KV = ws(14 * 4096); PQ = ws(128 * 20 * 1024)
XB = ws(128 * 20 * 1024); STB = ws(2048 * 64); H = ws(128 * 48 * 1024)
LSTR = _off - XA
ws(LSTR)
PROFO = ws(9 * 256 * 4 * 64)
WS_USED = _off
OOB = 0x40000000
PROF = False
CFG = dict(NPRE1=7, NPRE3=5, NW4P=10, SPX=4, NW4L=26, NW4E=18, NW4D=7, NW4W=6, NP1W=6, NW2D=8, NW2L=6, SP4=4, HOT=0, LEAD=26, RATE=9, RA1=6, CPF=1, NPRE1A=3, P1A=14, XPRE=0, SLK=14, SPAN1A=108, SPAN1=96, BPOS=1, ARRK=12, ZF1=2, SP2=6, DBG=0, KARR=5, KPOLL=10, RD2=0, ZFP=3, NWQ=8, ZFQ=0, ZFK=2, KSTG=10, EW1=12, NX1=9, NX2=8, NX3=5, PP=10, PP4=12, BARR=5, BPOLL=11, F1=48, SPLIT=0, XW=4, NE3=4, XC=2, RB=0, WS=0, WSC=1, BSKIP=0, AE=2, AL8=2, BWL=1, BSP=99, NOW=0, T3=1, SDK=3, SNAKE=0, QAFT=0, B3=1, H2=0, FIN=1, XSTOP=0, W1M=1, CST3=0, CSL=12, FS3=4, XCW=1, NX4=3, PKB=24, PKG=12, BS0=0, WSK=3, NW4Q=0, SATOM=0, W1O=32768, TLB=0, K0NT=0, BST=1, DBGT=0, RT=0, SPAN=0, NODS=0, B2O=0, SC=1, PD1=6, PD3=5, P1=14, P3=12, TMO=200000, ROT=0, NPOLL=4, EW3=16, PW=1, PSL=0)

def f32(x):
    return "0x%08x" % struct.unpack("<I", struct.pack("<f", x))[0]
LOG2E = 1.4426950408889634
MF = "v_mfma_f32_16x16x32_bf16"
H2 = [slice(0, 2), slice(2, 4)]

sWAVE, sRB, sP, sRB64, sCG, sLAY, sTGT, sPH = "s10", "s11", "s12", "s13", "s14", "s15", "s40", "s41"
sROT10, sROT12 = "s8", "s9"
vN, vG = Reg("v", 3, 1), Reg("v", 4, 1)
vCNT, vPL, vPG = Reg("v", 5, 1), Reg("v", 6, 1), Reg("v", 7, 1)
vPRE = Reg("v", 8, 4)
VBASE = 12

KORD = [0, 3, 5, 8, 10, 13, 15, 18, 1, 2, 4, 6, 7, 9, 11, 12, 14, 16, 17, 19]
KPOS = [KORD.index(k) for k in range(20)]

def kpos_scalar(a, dst, kb):
    a("s_mul_i32 s28, %s, 52" % kb)
    a("s_lshr_b32 s28, s28, 8")
    a("s_mul_i32 s17, s28, 5")
    a("s_sub_u32 s17, %s, s17" % kb)
    a("s_lshl_b32 s17, s17, 2")
    a("s_lshr_b32 s19, 0xa1980, s17")
    a("s_and_b32 s19, s19, 15")
    a("s_cmp_ge_u32 s19, 8")
    a("s_cselect_b32 s17, 3, 2")
    a("s_mul_i32 s17, s17, s28")
    a("s_add_u32 %s, s17, s19" % dst)


def WSC():
    return " sc1" if CFG["WSC"] else ""


def SC():
    return " sc1" if CFG["SC"] else ""


def stamp(a, i):
    if PROF:
        a("%s s[%d:%d]" % ("s_memrealtime" if CFG["RT"] else "s_memtime", 60 + 2 * i, 61 + 2 * i))

def stamp_dump(a, vb=100):
    if not PROF:
        return
    a("s_memrealtime s[78:79]")
    a("s_lshl_b32 s59, %s, 8" % sPH)
    a("s_add_u32 s59, s59, s2")
    a("s_lshl_b32 s59, s59, 2")
    a("s_add_u32 s59, s59, s10")
    a("s_lshl_b32 s59, s59, 6")
    a("s_add_u32 s59, s59, %d" % PROFO)
    a("s_waitcnt lgkmcnt(0)")
    a.lg = []
    a("s_mov_b64 exec, 1")
    for i in range(10):
        a("v_mov_b32 v%d, s%d" % (vb + i, 60 + 2 * i))
    a("v_mov_b32 v%d, s80" % (vb + 11))
    a("v_mov_b32 v%d, s59" % (vb + 10))
    a("buffer_store_dwordx4 v[%d:%d], v%d, s[4:7], 0 offen" % (vb, vb + 3, vb + 10))
    a("buffer_store_dwordx4 v[%d:%d], v%d, s[4:7], 0 offen offset:16" % (vb + 4, vb + 7, vb + 10))
    a("buffer_store_dwordx4 v[%d:%d], v%d, s[4:7], 0 offen offset:32" % (vb + 8, vb + 11, vb + 10))
    a("s_mov_b64 exec, -1")
    a("s_add_u32 %s, %s, 1" % (sPH, sPH))


_lbl = [0]
def label(p):
    _lbl[0] += 1
    return "L_%s_%d" % (p, _lbl[0])


def arrive(a, loads=()):
    for f in loads:
        f()
    if CFG["DBG"] != 4:
        stamp(a, 6)
    a.wait_vm("out")
    a.wait_all(vm=False)
    stamp(a, 7)
    a("s_add_u32 %s, %s, 16" % (sTGT, sTGT))
    a("s_barrier")
    l = label("arr")
    a("s_cmp_lg_u32 %s, 0" % sWAVE)
    a("s_cbranch_scc1 %s" % l)
    a("v_mov_b32 v255, 1")
    a("buffer_atomic_add v255, %s, s[4:7], 0 offen" % vCNT)
    a("%s:" % l)
    read_back(a, a.rb)
    a.rb = []


def poll_issue(a, k):
    a("v_mov_b32 v%d, 0" % (255 - k))
    a("buffer_atomic_add v%d, %s, s[4:7], 0 offen sc0" % (255 - k, vPL))


def poll_loop(a, d, first):
    NP = CFG["NPOLL"]
    l = label("poll")
    a("s_mov_b32 s42, %d" % CFG["TMO"])
    a("%s:" % l)
    for k0 in range(NP):
        k = (k0 + first) % NP
        poll_issue(a, (k + NP - 1) % NP)
        a("s_waitcnt vmcnt(%d)" % (NP - 1))
        a("v_readfirstlane_b32 s43, v%d" % (255 - k))
        a("s_cmp_ge_u32 s43, %s" % sTGT)
        a("s_cbranch_scc1 %s" % d)
    a("s_sub_u32 s42, s42, 1")
    a("s_cbranch_scc0 %s" % l)


def dbg_time(a):
    if not CFG["DBGT"]:
        return
    l = label("dt")
    a("s_or_b32 s59, s2, %s" % sWAVE)
    a("s_cbranch_scc1 %s" % l)
    a("s_memrealtime s[60:61]")
    a("s_mov_b64 exec, 1")
    a("s_waitcnt lgkmcnt(0)")
    a("s_sub_u32 s60, s60, s80")
    a("v_mov_b32 v254, s60")
    a("v_mov_b32 v251, s62")
    a("global_store_dword v251, v254, s[94:95]")
    a("s_add_u32 s62, s62, 4")
    a("s_mov_b64 exec, -1")
    a("%s:" % l)


def phase_open(a, vb=100):
    a("s_barrier")
    dbg_time(a)
    stamp(a, 8)
    stamp_dump(a, vb)
    stamp(a, 0)


def wait(a, loads=()):
    if CFG["WS"]:
        d = label("pdone")
        loads = list(loads)
        k = min(len(loads), CFG["WSK"])
        for f in loads[:k]:
            f()
        if CFG["WS"] == 2:
            for f in loads[k:]:
                f()
            a("s_cmp_lg_u32 %s, %d" % (sWAVE, CFG["PW"]))
            a("s_cbranch_scc1 %s" % d)
            spoll_issue(a, 0)
            spoll_wait(a, 0, sTGT)
            a("%s:" % d)
            phase_open(a)
            return
        spoll_issue(a, 0)
        for f in loads[k:]:
            f()
        spoll_wait(a, 0, sTGT)
        stamp(a, 8); stamp_dump(a); stamp(a, 0); dbg_time(a)
        return
    d, o = label("pdone"), label("other")
    NP = CFG["NPOLL"]
    loads = list(loads)
    a("s_cmp_lg_u32 %s, %d" % (sWAVE, CFG["PW"]))
    a("s_cbranch_scc1 %s" % o)
    save = list(a.vm)
    per = (len(loads) + NP - 2) // (NP - 1)
    after = []
    for k in range(NP - 1):
        poll_issue(a, k)
        chunk = loads[k * per:(k + 1) * per]
        for f in chunk:
            f()
        if len(chunk) < 2:
            a("s_sleep %d" % (10 // NP))
        after.append(len(chunk))
    a.vm = save
    for k in range(NP - 1):
        poll_issue(a, (k + NP - 1) % NP)
        a("s_waitcnt vmcnt(%d)" % (NP - 1 + sum(after[k:])))
        a("v_readfirstlane_b32 s43, v%d" % (255 - k))
        a("s_cmp_ge_u32 s43, %s" % sTGT)
        a("s_cbranch_scc1 %s" % d)
    poll_loop(a, d, NP - 1)
    a("s_branch %s" % d)
    a("%s:" % o)
    for f in loads:
        f()
    a("%s:" % d)
    phase_open(a)


vRB = [Reg("v", 7, 1), Reg("v", 238, 1), Reg("v", 239, 1)]
def read_back(a, items):
    for v, so, im in (items if CFG["RB"] else []):
        a.vmem("buffer_load_dwordx4 v[244:247], %s, s[4:7], %s offen offset:%d sc1" % (v, so, im), "rb")


FOFF = [0, 32768, 32768 + 4]

def spoll_issue(a, word):
    if CFG["SATOM"]:
        a("s_mov_b32 s43, 0")
        a("s_atomic_add s43, s[100:101], 0x%x glc" % (FOFF[word]))
    else:
        a("s_load_dword s43, s[100:101], 0x%x glc" % (FOFF[word]))


def spoll_wait(a, word, target):
    l, d = label("sp"), label("spd")
    a("s_mov_b32 s42, %d" % CFG["TMO"])
    a("%s:" % l)
    a("s_waitcnt lgkmcnt(0)")
    a("s_cmp_ge_u32 s43, %s" % target)
    a("s_cbranch_scc1 %s" % d)
    spoll_issue(a, word)
    a("s_sub_u32 s42, s42, 1")
    a("s_cbranch_scc0 %s" % l)
    a("s_waitcnt lgkmcnt(0)")
    a("%s:" % d)
    a.lg = []


def signal(a, word):
    l = label("arr")
    a("s_barrier")
    a("s_cmp_lg_u32 %s, 0" % sWAVE)
    a("s_cbranch_scc1 %s" % l)
    a("v_mov_b32 v255, 1")
    a("s_mov_b32 s42, %d" % (FOFF[word]))
    a("buffer_atomic_add v255, %s, s[4:7], s42 offen" % vCNT)
    a("%s:" % l)


def wrap_add(a, r, step, end):
    if (CFG["HOT"] & 1 and r == "s20") or (CFG["HOT"] & 2 and r != "s20"):
        return
    if not CFG["ROT"]:
        a("s_add_u32 %s, %s, %d" % (r, r, step))
        return
    a("s_add_u32 %s, %s, %d" % (r, r, step))
    a("s_cmp_eq_u32 %s, %d" % (r, end))
    a("s_cselect_b32 %s, 0, %s" % (r, r))


def xsum4(a, v, t):
    a("v_mov_b32 %s, %s" % (t, v))
    a("v_permlane16_swap_b32 %s, %s" % (v, t))
    a("v_add_f32 %s, %s, %s" % (v, v, t))
    a("v_mov_b32 %s, %s" % (t, v))
    a("v_permlane32_swap_b32 %s, %s" % (v, t))
    a("v_add_f32 %s, %s, %s" % (v, v, t))


def stats_finish(a, q, mean, rstd, t):
    a("v_add_f32 %s, %s, %s" % (q[0], q[0], q[2]))
    a("v_add_f32 %s, %s, %s" % (q[1], q[1], q[3]))
    xsum4(a, q[0], t)
    xsum4(a, q[1], t)
    a("v_mul_f32 %s, %s, %s" % (mean, f32(1.0 / D), q[0]))
    a("v_mul_f32 %s, %s, %s" % (q[1], f32(1.0 / D), q[1]))
    a("v_fma_f32 %s, -%s, %s, %s" % (q[1], mean, mean, q[1]))
    a("v_max_f32 %s, 0, %s" % (q[1], q[1]))
    a("v_add_f32 %s, %s, %s" % (q[1], f32(1e-5), q[1]))
    a("v_rsq_f32 %s, %s" % (rstd, q[1]))


def pk(op, d, *src, neg=None):
    ops, lo, hi = [], [], []
    for x in src:
        if isinstance(x, str):
            n = int(x[1:])
            ops.append("s[%d:%d]" % (n & ~1, (n & ~1) + 1)); lo.append(n & 1); hi.append(n & 1)
        elif x.n == 2:
            assert x.base % 2 == 0
            ops.append(str(x)); lo.append(0); hi.append(1)
        else:
            b = x.base & ~1
            ops.append("v[%d:%d]" % (b, b + 1)); lo.append(x.base & 1); hi.append(x.base & 1)
    t = "v_pk_%s_f32 %s, %s op_sel:[%s] op_sel_hi:[%s]" % (op, d, ", ".join(ops), ",".join(map(str, lo)), ",".join(map(str, hi)))
    if neg is not None:
        m = ",".join("1" if i == neg else "0" for i in range(len(src)))
        t += " neg_lo:[%s] neg_hi:[%s]" % (m, m)
    return t


class Weaver:
    def __init__(self, a, items, period):
        self.a, self.items, self.period, self.n = a, list(items), period, 0
    def __call__(self, line):
        self.a(line)
        self.n += 1
        if self.n % self.period == 0 and self.items:
            self.items.pop(0)()
    def flush(self):
        while self.items:
            self.items.pop(0)()


def x_load(a, dst, v, step, rt, check, tag, then):
    kb = KORD[step]
    if check and not CFG["SPLIT"]:
        check = False
        if rt == 0 and step == 4:
            for f in then:
                f()
            a.late_ok = True
    if check and rt == 0 and step == 7:
        spoll_issue(a, 0)
    if check and rt == 0 and step == 8:
        keep = list(a.lg)
        spoll_wait(a, 0, sTGT)
        for f in then:
            f()
    if rt == 0 and (step == 0 or KORD[step - 1] // 4 != kb // 4):
        a("s_mov_b32 s20, %d" % (kb // 4 * 4096))
    a.vmem("buffer_load_dwordx4 %s, %s, s[4:7], s20 offen offset:%d%s" % (dst, v, (kb % 4) * 1024, SC()), tag)
    if check and rt == 1 and step == 8:
        a.late_ok = True


class Ring:
    def __init__(self, a, NT, R, vB, vBlast, sL, sB, sB2):
        self.a, self.NT, self.R = a, NT, R
        self.vB, self.vBlast, self.sL, self.sB, self.sB2 = vB, vBlast, sL, sB, sB2
        self.FPS = 2 * NT
        self.SB = self.FPS * 1024
        self.per = self.FPS // 4

    def init_lines(self):
        return ["s_mul_i32 %s, %s, %d" % (self.sB, sROT10, self.SB)] + (["s_add_u32 %s, %s, 3072" % (self.sB2, self.sB)] if self.per > 4 else [])

    def loads(self, s):
        a, per, SB = self.a, self.per, self.SB
        grp = 4 if per == 4 else 3
        out = []
        for i in range(per):
            def f(i=i):
                if CFG["NOW"] & 4:
                    return
                if i % grp == 0:
                    a("s_add_u32 m0, %s, %d" % (self.sL, (s % self.R) * SB + i * 1024))
                so = self.sB if i < grp else self.sB2
                vb = self.vBlast if i == per - 1 else self.vB
                a.vmem("buffer_load_dwordx4 %s, s[4:7], %s offen offset:%d%s lds" % (vb, so, (i % grp) * 1024, WSC()), ("st", s))
                if i == per - 1:
                    wrap_add(a, self.sB, SB, 10 * SB)
                    if per > grp:
                        a("s_add_u32 %s, %s, 3072" % (self.sB2, self.sB))
            out.append(f)
        return out


def gemm_s(a, ring, NPRE, vA, vL, acc, Aring, Bregs, transposed, sA, RA, tail_loads=(), fill=(), nsetup=0, PD=6, P=12, first_barrier=False, NTAIL=99, early=(), corr=None):
    NST = 10
    NT, R, FPS, SB = ring.NT, ring.R, ring.FPS, ring.SB
    NB = Bregs.n // 4
    BPOS = FPS - PD

    def a_loads(s):
        out = []
        ar = Aring[((s % RA) * 16):((s % RA) * 16 + 16)]
        for ks in range(2):
            for rt in range(2):
                def f(ks=ks, rt=rt):
                    x_load(a, ar.q(ks * 2 + rt), vA[rt], 2 * s + ks, rt, True, ("a", s, ks), early)
                out.append(("a", s, f))
        return out
    bq = [("b", s, f) for s in range(NPRE, NST) for f in ring.loads(s)]
    aq = [x for s in range(NST) for x in a_loads(s)]
    tail = [("t", -1, f) for f in tail_loads]
    fill = list(fill)
    nfill0 = len(fill)
    a.late_ok = False
    for k in range(P):
        aq.pop(0)[2]()
    stamp(a, 1)
    a.wait_vm(("a", 0, 0))
    if first_barrier:
        a("s_barrier")
    stamp(a, 2)

    def rd(n):
        if CFG["NODS"] and n >= NB and n % CFG["NODS"]:
            return
        s, i = divmod(n, FPS)
        addr = (s % R) * SB + i * 1024
        a.ds("ds_read_b128 %s, %s offset:%d" % (Bregs.q(n % NB), vL[addr >> 16], addr & 0xffff), ("f", n))

    NF = NST * FPS
    for n in range(PD):
        rd(n)
    passed = -1

    def next_load(s):
        ca = aq[0] if aq and aq[0][1] - RA < s else None
        cb = bq[0] if bq and (bq[0][1] < R or bq[0][1] - R + 1 <= passed) else None
        ct = len(tail) > keep and len(fill) <= nfill0 - nsetup
        da = ca[1] - s if ca else 99
        db = cb[1] - s - 0.5 if cb else 99
        if min(da, db) > LEAD and ct:
            tail.pop(0)[2]()
        elif ca and da <= db:
            aq.pop(0)[2]()
        elif cb:
            bq.pop(0)[2]()
        elif ct:
            tail.pop(0)[2]()
        else:
            return False
        return True

    nload = len(aq) + len(bq) + min(len(tail), NTAIL)
    LEAD = CFG["LEAD"] / 10.0
    keep = max(0, len(tail) - NTAIL)
    span = FPS * (NST - 1)
    credit = 0.0
    for n in range(NF):
        s, i = divmod(n, FPS)
        ks, j = divmod(i, NT)
        if i == BPOS and s + 1 < NST and s >= 1 and (bq or s + 1 >= NPRE) and not (CFG["BSKIP"] >> s & 1):
            while bq and bq[0][1] <= s + 1:
                sys.stderr.write("late ring load at stage %d\n" % s)
                bq.pop(0)[2]()
            a.wait_vm(("st", s + 1))
            a("s_barrier")
            passed = s
        if j == 0:
            while aq and aq[0][1] <= s:
                sys.stderr.write("late activation load at stage %d\n" % s)
                aq.pop(0)[2]()
            a.wait_vm(("a", s, ks))
        if n + PD < NF:
            rd(n + PD)
        a.wait_lg(("f", n + 1 if n % 2 == 0 else n))
        ar = Aring[((s % RA) * 16):((s % RA) * 16 + 16)]
        credit += nload / span * CFG["RATE"] / 10.0
        did = False
        for pos, rt in enumerate((1, 0) if CFG["SNAKE"] and j % 2 else (0, 1)):
            c = "0" if (s == 0 and ks == 0) else str(acc[rt][j])
            w, x = Bregs.q(n % NB), ar.q(ks * 2 + rt)
            if transposed[j]:
                a("%s %s, %s, %s, %s" % (MF, acc[rt][j], w, x, c))
            else:
                a("%s %s, %s, %s, %s" % (MF, acc[rt][j], x, w, c))
            if pos == 0 and credit >= 1.0:
                did = next_load(s)
                if did:
                    credit -= 1.0
                credit = min(credit, 1.5)
            if pos == 0 and corr and s >= CFG["CST3"] and corr.get((j + NT // 2) % NT):
                assert len(fill) <= nfill0 - corr["after"]
                if "waited" not in corr:
                    a.wait_vm("cs"); corr["waited"] = True
                for _ in range(1 if did else 2):
                    if corr[(j + NT // 2) % NT]:
                        a(corr[(j + NT // 2) % NT].pop(0))
            elif pos == 0 and not did and a.late_ok and n > CFG["FS3"] * FPS:
                for _ in range(2):
                    if fill:
                        x = fill.pop(0)
                        x() if callable(x) else a(x)
    if fill:
        sys.stderr.write("gemm: %d fill items left\n" % len(fill))
    for x in fill:
        x() if callable(x) else a(x)
    assert not aq and not bq
    stamp(a, 3)
    return [t[2] for t in tail]


K1_RED = 0
K1_TRASH = K1_RED + 4 * 3584 + 1024
K1_FR = 122880
K1_PAIRS = [(0, 2), (0, 3), (1, 2), (1, 3), (1, 4), (2, 2), (2, 3), (2, 4)]

class P1:
    def __init__(self, a):
        self.a = a

    def pre_setup(self):
        return ["s_mul_i32 s17, %s, 163840" % sP,
                "s_lshl_b32 s44, %s, 12" % sWAVE,
                "s_add_u32 s17, s17, s44",
                "s_add_u32 s17, s17, %d" % W1,
                "v_add_u32 %s, s17, v2" % vPRE[0],
                "s_mov_b32 s45, 0"]

    def round_loads(self, rho):
        a = self.a
        out = []
        for i in range(4):
            def f(i=i):
                if CFG["NOW"] & 1:
                    return
                if i == 0:
                    a("s_add_u32 m0, s44, s45")
                    a("s_nop 0")
                a.vmem("buffer_load_dwordx4 %s, s[4:7], s45 offen offset:%d%s lds" % (vPRE[0], i * 1024, WSC()), ("st", rho))
                if i == 3:
                    a("s_add_u32 s45, s45, 16384")
            out.append(f)
        return out

    def pre_loads(self, n):
        return [f for rho in range(n) for f in self.round_loads(rho)]

    def alloc(self):
        V = Alloc("v", VBASE, 240)
        r = self
        r.vA = [V.get(1), V.get(1)]
        r.vL = [Reg("v", 2, 1), V.get(1), V.get(1)]
        r.vS = V.get(1); r.vCn = V.get(1); r.vCt = V.get(1)
        r.vQ = V.get(2, 1); r.vKa = V.get(8); r.vGl = V.get(1); r.vR = V.get(1); r.vC1 = V.get(1); r.ret = V.get(1)
        r.mean = [V.get(1), V.get(1)]; r.rstd = [V.get(1), V.get(1)]; r.rl = [V.get(1), V.get(1)]
        r.meanN = [V.get(4), V.get(4)]; r.rstdN = [V.get(4), V.get(4)]; r.rlN = [V.get(4), V.get(4)]
        r.tmp = V.get(16)
        r.acc = [[V.get(4) for j in range(8)] for rt in range(2)]
        r.csn = V.get(8); r.cst = V.get(12)
        r.Xf = V.get(24)
        r.kvd = V.get(32)
        r.fa = Reg("v", 224, 4); r.vGo = r.csn[5]; r.vX = r.csn[6:8]
        r.A = Reg("a", 0, 160)
        r.Bregs = Reg("a", 160, 32)

    def before_wait(self, emit=None):
        self.alloc()
        r, b = self, (emit or self.a)
        n_, g_ = vN, vG
        t = r.kvd[4:12]
        b("s_lshl_b32 s16, %s, 3" % sRB)
        b("s_lshl_b32 s17, %s, 1" % sWAVE)
        b("s_add_u32 s16, s16, s17")
        b("s_mul_i32 s19, s16, 20480")
        b("s_add_u32 s19, s19, %s" % sLAY)
        b("s_add_u32 s17, s19, %d" % XA)
        b("v_add_u32 %s, s17, v2" % r.vA[0])
        b("v_add_u32 %s, 20480, %s" % (r.vA[1], r.vA[0]))
        b("v_add_u32 %s, 0x10000, v2" % r.vL[1])
        b("v_lshlrev_b32 %s, 3, %s" % (t[0], n_))
        b("v_lshl_add_u32 %s, %s, 8, %s" % (t[0], g_, t[0]))
        b("s_lshl_b32 s17, s16, 10")
        b("s_add_u32 s17, s17, %s" % sLAY)
        b("s_add_u32 s17, s17, %d" % STA)
        b("v_add_u32 %s, s17, %s" % (r.vS, t[0]))
        b("v_cmp_lt_u32 s[26:27], %s, 8" % n_)
        b("v_add_u32 %s, 0x20000, v2" % r.vL[2])
        b("s_lshr_b32 s17, %s, 2" % sP)
        b("s_mul_i32 s17, s17, 5120")
        b("s_add_u32 s19, s19, s17")
        b("s_add_u32 s19, s19, %d" % PQ)
        b("s_and_b32 s17, %s, 3" % sP)
        b("s_lshl_b32 s18, s17, 10")
        b("s_add_u32 s18, s18, s19")
        b("v_add_u32 %s, s18, v2" % r.vQ[0])
        b("s_lshl_b32 s17, s17, 8")
        b("s_add_u32 s17, s17, s19")
        b("s_add_u32 s17, s17, 4096")
        b("v_add_u32 %s, s17, v2" % r.vQ[1])
        b("v_mov_b32 %s, 0x%x" % (t[2], OOB))
        b("v_cmp_gt_u32 vcc, 16, v1")
        b("v_cndmask_b32 %s, %s, %s, vcc" % (r.vQ[1], t[2], r.vQ[1]))
        b("s_lshl_b32 s17, %s, 7" % sP)
        b("s_add_u32 s17, s17, %d" % CNT_G)
        b("v_lshl_add_u32 %s, v0, 11, s17" % r.vC1)
        b("v_cmp_gt_u32 vcc, 16, v0")
        b("v_cndmask_b32 %s, %s, %s, vcc" % (r.vC1, t[2], r.vC1))
        b("v_add_u32 %s, %d, v2" % (t[5], K1_TRASH))
        b("s_mul_i32 s19, %s, 3584" % sWAVE)
        b("s_add_u32 s19, s19, %d" % K1_RED)
        b("s_add_u32 s17, s19, 3200")
        for pi, (ka, vb) in enumerate(K1_PAIRS):
            b("v_lshl_add_u32 %s, %s, 2, %d" % (t[0], g_, 16 * ka))
            b("v_add_u32 %s, %d, %s" % (t[1], 16 * vb - 40, n_))
            b("v_cmp_le_u32 vcc, 20, %s" % t[0])
            b("v_cndmask_b32 %s, 0, 20, vcc" % t[2])
            b("v_sub_u32 %s, %s, %s" % (t[3], t[1], t[2]))
            b("v_sub_u32 %s, %s, %s" % (t[2], t[0], t[2]))
            b("v_cmp_gt_u32 vcc, 20, %s" % t[3])
            b("v_mad_i32_i24 %s, %s, 20, %s" % (t[2], t[1], t[2]))
            b("v_lshl_add_u32 %s, %s, 2, s19" % (t[2], t[2]))
            b("v_cndmask_b32 %s, %s, %s, vcc" % (r.vKa[pi], t[5], t[2]))
            if vb == 2:
                b("v_cmp_eq_u32 vcc, 0, %s" % n_)
                b("v_lshl_add_u32 %s, %s, 2, s17" % (t[2], t[0]))
                b("v_cndmask_b32 %s, %s, %s, vcc" % (r.vKa[pi], r.vKa[pi], t[2]))
            if ka == 2:
                b("v_cmp_gt_u32 vcc, 2, %s" % g_)
                b("v_cndmask_b32 %s, %s, %s, vcc" % (r.vKa[pi], t[5], r.vKa[pi]))
        b("v_lshlrev_b32 %s, 2, v0" % r.vR)
        b("s_mul_i32 s17, %s, 3360" % sP)
        b("s_add_u32 s17, s17, %s" % sLAY)
        b("s_add_u32 s17, s17, %d" % KV)
        b("v_add_u32 %s, s17, %s" % (r.vGl, r.vR))
        b("v_add_u32 %s, %d, %s" % (r.vR, K1_RED, r.vR))
        b("s_lshl_b32 s17, s2, 9")
        b("s_add_u32 s17, s17, %d" % CSW)
        b("v_lshl_add_u32 %s, %s, 2, s17" % (r.vCn, n_))
        b("v_lshl_add_u32 %s, %s, 4, s17" % (r.vCt, g_))
        b("s_mov_b32 s23, 20480")
        b("s_mov_b32 s20, 0")
        b("v_lshlrev_b32 %s, 4, %s" % (t[0], g_))
        for q in range(4):
            b("v_add_u32 %s, %d, %s" % (t[1 + q], 4 * q, t[0]))
        fa, u, vGo, vX = r.fa, r.kvd[12:16], r.vGo, r.vX
        raw = (lambda x: b(x))
        b("s_mul_i32 s3, %s, 3360" % sP)
        b("s_add_u32 s3, s3, %s" % sLAY)
        b("s_add_u32 s3, s3, %d" % KV)
        b("v_mov_b32 %s, 0x%x" % (u[3], OOB))
        for i in range(2):
            b("s_lshl_b32 s17, %s, 1" % sWAVE)
            b("s_add_u32 s17, s17, %d" % (i + 1))
            b("s_lshr_b32 s19, s17, 1")
            b("s_lshl_b32 s19, s19, 4")
            b("v_add_u32 %s, s19, %s" % (u[0], vN))
            b("v_cmp_le_u32 vcc, 20, %s" % u[0])
            b("v_cndmask_b32 %s, 0, 20, vcc" % u[1])
            b("v_mul_u32_u24 %s, 20, %s" % (u[2], u[0]))
            b("v_sub_u32 %s, %s, %s" % (u[2], u[2], u[1]))
            b("v_cmp_gt_u32 vcc, 40, %s" % u[0])
            b("v_cndmask_b32 %s, 63, %s, vcc" % (u[1], u[1]))
            raw("s_cmp_eq_u32 s19, 48\ns_cselect_b64 vcc, -1, 0")
            b("v_and_b32 %s, 3, v1" % u[0])
            b("v_mul_u32_u24 %s, 20, %s" % (u[0], u[0]))
            b("v_cndmask_b32 %s, %s, %s, vcc" % (u[1], u[1], u[0]))
            b("v_mov_b32 %s, 800" % u[0])
            b("v_cndmask_b32 %s, %s, %s, vcc" % (u[2], u[2], u[0]))
            raw("s_cmp_eq_u32 %s, %d\ns_cselect_b32 s19, %d, %d" % ((sWAVE, 0, 0, 32) if i == 0 else (sWAVE, 3, 64, 0)))
            for h in range(2):
                b("v_lshl_add_u32 %s, %s, 2, s19" % (u[0], vG))
                if h:
                    b("v_add_u32 %s, 16, %s" % (u[0], u[0]))
                b("v_cmp_gt_u32 s[38:39], 40, %s" % u[0])
                b("v_add_lshl_u32 %s, %s, %s, 2" % (fa[2 * i + h], u[0], u[2]))
                b("v_sub_u32 %s, %s, %s" % (u[0], u[0], u[1]))
                b("v_cmp_gt_u32 vcc, 20, %s" % u[0])
                b("s_and_b64 vcc, vcc, s[38:39]")
                b("v_cndmask_b32 %s, %s, %s, vcc" % (fa[2 * i + h], u[3], fa[2 * i + h]))
        b("s_lshl_b32 s17, %s, 11" % sRB)
        b("s_add_u32 s17, s17, %d" % CNT_G)
        b("v_lshl_add_u32 %s, v1, 7, s17" % vGo)
        raw("s_cmp_eq_u32 %s, %d\ns_cselect_b32 s17, 0, 0x%x" % (sWAVE, CFG["PW"], OOB))
        b("v_and_b32 %s, 0x%x, %s" % (u[0], OOB, vCNT))
        b("v_or3_b32 %s, %s, s17, %s" % (vGo, u[0], vGo))
        b("s_lshl_b32 s17, %s, 11" % sWAVE)
        b("s_add_u32 s17, s17, %d" % K1_FR)
        b("v_add_u32 %s, s17, v2" % vX[0])
        b("v_add_u32 %s, %d, v2" % (vX[1], K1_FR))

    def body(self, nxt, p3, p4, NPRE, first=False):
        r, a = self, self.a
        tmp, t, acc, Xf, kvd, A, Bregs = r.tmp, r.kvd[4:12], r.acc, r.Xf, r.kvd, r.A, r.Bregs
        stat_loads = [(lambda rt=rt, h=h: a.vmem("buffer_load_dwordx2 %s, %s, s[4:7], 0 offen offset:%d%s" % (tmp.q(rt)[2 * h:2 * h + 2], r.vS, rt * 1024 + h * 128, SC()), "stats"))
                      for rt in range(2) for h in range(2)]
        b = Asm()
        for rt in range(2):
            stats_finish(b, tmp.q(rt), r.mean[rt], r.rstd[rt], tmp[8])
            b("v_mul_f32 %s, %s, %s" % (r.rl[rt], f32(LOG2E), r.rstd[rt]))
        fill = [lambda: a.wait_vm("stats")] + list(b.lines)
        for rt in range(2):
            for q in range(4):
                fill.append(lambda rt=rt, q=q: a.ds("ds_bpermute_b32 %s, %s, %s" % (r.meanN[rt][q], t[1 + q], r.mean[rt]), "bp"))
                fill.append(lambda rt=rt, q=q: a.ds("ds_bpermute_b32 %s, %s, %s" % (r.rstdN[rt][q], t[1 + q], r.rstd[rt]), "bp"))
        fill += [None] * 6
        fill.append(lambda: a.wait_lg("bp"))
        for rt in range(2):
            for q in range(4):
                fill.append("v_mul_f32 %s, %s, %s" % (r.rlN[rt][q], f32(LOG2E), r.rstdN[rt][q]))
        fill += nxt.pre_setup()
        csp = []
        if first:
            cp, ad = Reg("v", 156, 40), Reg("v", 232, 2)
            a("s_lshl_b32 s17, %s, 9" % sP)
            a("s_add_u32 s17, s17, %d" % CSP1)
            a("v_lshrrev_b32 %s, 5, v1" % ad[0])
            a("v_lshlrev_b32 %s, 13, %s" % (ad[0], ad[0]))
            a("v_and_b32 %s, 31, v1" % ad[1])
            a("v_lshlrev_b32 %s, 4, %s" % (ad[1], ad[1]))
            a("s_cmp_eq_u32 %s, 0" % sWAVE)
            a("s_cselect_b32 s19, 0, 0x%x" % OOB)
            a("v_add3_u32 %s, %s, %s, s19" % (ad[0], ad[0], ad[1]))
            a("v_or_b32 %s, s19, %s" % (ad[1], ad[1]))
            a("s_lshl_b32 s48, s2, 9")
            a("s_add_u32 s48, s48, %d" % CSW)
            a("s_mov_b32 s21, s17")
            for k in range(10):
                def f(k=k):
                    a.vmem("buffer_load_dwordx4 %s, %s, s[4:7], s21 offen%s" % (cp.q(k), ad[0], SC()), "csp")
                    a("s_add_u32 s21, s21, 16384")
                csp.append(f)
            fin = [lambda: a.wait_vm("csp")]
            for k in range(1, 10):
                for q in range(4):
                    fin.append("v_add_f32 %s, %s, %s" % (cp[q], cp[q], cp.q(k)[q]))
            for q in range(4):
                fin += ["v_mov_b32 %s, %s" % (cp[4], cp[q]), "v_permlane32_swap_b32 %s, %s" % (cp[q], cp[4]), "v_add_f32 %s, %s, %s" % (cp[q], cp[q], cp[4])]
            fin.append(lambda: a.vmem("buffer_store_dwordx4 %s, %s, s[4:7], s48 offen" % (cp[0:4], ad[1]), "csw"))
            fill = fin + fill
        cs = [(lambda j=j: a.vmem("buffer_load_dword %s, %s, s[4:7], 0 offen offset:%d" % (r.csn[j], r.vCn, j * 64), "cs")) for j in range(5)]
        cs += [(lambda j=j: a.vmem("buffer_load_dwordx4 %s, %s, s[4:7], 0 offen offset:%d" % (r.cst.q(j), r.vCt, (5 + j) * 64), "cs")) for j in range(3)]
        PD, NB = CFG["PD1"], 8
        seq = [(ks, j, 6 * ks + j) for ks in range(20) for j in range(6)] + [(ks, j, 120 + 2 * ks + j - 6) for ks in range(20) for j in (6, 7)]
        aq = []
        for ks in range(20):
            for rt in range(2):
                def f(ks=ks, rt=rt):
                    x_load(a, A.q(2 * ks + rt), r.vA[rt], ks, rt, not first, ("a", ks), [] if first else stat_loads)
                aq.append((6 * ks, f))
        bq = [(16 * rho - PD, f) for rho in range(NPRE, 10) for f in self.round_loads(rho)]
        if first and CFG["XPRE"]:
            aq = []
            for f in [bq.pop(0)[1] for _ in range(CFG["P1A"])]:
                f()
        a.late_ok = first
        for _ in range(0 if not aq else CFG["P1A"] if first else CFG["P1"]):
            aq.pop(0)[1]()
        small = []
        if first:
            small = csp + stat_loads
            fill.insert(0, "small")
        stamp(a, 1)
        a.wait_vm([("a", 0), ("st", NPRE - 1)])
        a("s_barrier")
        stamp(a, 2)

        def rd(n):
            f = seq[n][2]
            if f % 16 == 0 and f // 16 >= NPRE:
                while bq and bq[0][0] <= f - PD:
                    sys.stderr.write("P1: late weight load\n")
                    bq.pop(0)[1]()
                a.wait_vm([("st", f // 16), "csw"])
                a("s_barrier")
                st["csok"] = not first or (not fill_has_store())
            a.ds("ds_read_b128 %s, %s offset:%d" % (Bregs.q(n % NB), r.vL[f >> 6], (f & 63) * 1024), ("f", n))

        def pair(n, mid):
            ks, j, f = seq[n]
            if n + PD < len(seq) and n + PD not in done_rd:
                rd(n + PD)
            if n % 2 == 0 or n == 120:
                a.wait_lg(("f", min(n + 1, len(seq) - 1) if n != 119 else n))
            else:
                a.wait_lg(("f", n))
            for pos, rt in enumerate((1, 0) if CFG["SNAKE"] and j % 2 else (0, 1)):
                c = "0" if ks == 0 else str(acc[rt][j])
                w, x = Bregs.q(n % NB), A.q(2 * ks + rt)
                a("%s %s, %s, %s, %s" % ((MF, acc[rt][j], w, x, c) if j >= 5 else (MF, acc[rt][j], x, w, c)))
                if pos == 0:
                    mid()
        done_rd = set()
        st = dict(credit=0.0, csok=not first)
        fill_has_store = lambda: first and fin[-1] in fill
        for n in range(PD):
            rd(n)
        late = [x for x in bq if x[0] >= 120 - PD]
        nload = len(aq) + len(bq) - len(late) + len(cs) + len(small) // 2
        for n in range(120):
            ks, j, f = seq[n]
            if j == 0:
                while aq and aq[0][0] <= n:
                    sys.stderr.write("P1: late activation load\n")
                    aq.pop(0)[1]()
                a.wait_vm(("a", ks))
            def mid():
                if first and CFG["BSP"] < 99 and n % CFG["BSP"] == CFG["BSP"] - 1 and n >= CFG["BS0"] and self.bstores:
                    self.bstores.pop(0)()
                    return
                st["credit"] += nload / float(CFG["SPAN1A"] if first else CFG["SPAN1"])
                if st["credit"] >= 1.0:
                    cb = bq and bq[0][0] < 120 - PD
                    q = None
                    if aq and (not cb or aq[0][0] <= bq[0][0]):
                        q = aq
                    elif cb:
                        q = bq
                    if small and q is not None and q[0][0] - n > CFG["SLK"]:
                        small.pop(0)(); small.pop(0)()
                    elif q is not None:
                        q.pop(0)[1]()
                    elif cs and st["csok"]:
                        cs.pop(0)()
                    elif bq and not first:
                        bq.pop(0)[1]()
                    else:
                        q = "none"
                    st["credit"] -= 1.0
                    if (not first or CFG["XPRE"]) and q != "none":
                        return
                if n > (12 if first else CFG["F1"]) and a.late_ok:
                    if fill and fill[0] == "small":
                        if not small:
                            fill[0:1] = [None] * 16
                        return
                    for _ in range(2):
                        if fill:
                            x = fill.pop(0)
                            if x is not None:
                                x() if callable(x) else a(x)
            pair(n, mid)
        if fill:
            sys.stderr.write("P1: %d fill items left after the first pass\n" % len(fill))
        for x in fill:
            if x is not None:
                x() if callable(x) else a(x)
        assert st["csok"]
        for f in cs:
            f()
        assert not aq
        stamp(a, 3)
        a.wait_vm("cs")
        a("s_mov_b32 s24, %s" % f32(1e-6))
        e = Weaver(a, [x[1] for x in bq] + (self.bstores if first else []), 10 if first else CFG["EW1"])
        bq[:] = []

        def phi(x, m, c, rs, rlg, t, vraw=None):
            for h in H2:
                e(pk("fma", x[h], m(h), c(h), x[h], neg=0))
            for h in H2:
                e(pk("mul", t[h], x[h], rlg(h)))
            if vraw is not None:
                for h in H2:
                    e(pk("mul", vraw[h], x[h], rs(h)))
            for h in H2:
                e(pk("fma", x[h], x[h], rs(h), "s24"))
            for q in range(4):
                e("v_exp_f32 %s, %s clamp" % (t[q], t[q]))
            for q in range(4):
                e("v_max_f32 %s, s24, %s" % (x[q], x[q]))
            for h in H2:
                e(pk("add", x[h], x[h], t[h]))

        for j in range(5):
            for rt in range(2):
                x = acc[rt][j]
                m = lambda h, rt=rt: r.meanN[rt][h]
                rs = lambda h, rt=rt: r.rstdN[rt][h]
                rg = lambda h, rt=rt: r.rlN[rt][h]
                c = lambda h, j=j: r.csn[j]
                if j < 2:
                    phi(x, m, c, rs, rg, tmp[0:4])
                elif j == 2:
                    phi(x, m, c, rs, rg, tmp[0:4], vraw=tmp[4:8])
                    for q in range(4):
                        e("v_cndmask_b32 %s, %s, %s, s[26:27]" % (x[q], tmp[4 + q], x[q]))
                else:
                    for h in H2:
                        e(pk("fma", x[h], m(h), c(h), x[h], neg=0))
                    for h in H2:
                        e(pk("mul", x[h], x[h], rs(h)))
                e("v_cvt_pk_bf16_f32 %s, %s, %s" % (Xf.q(j)[2 * rt], x[0], x[1]))
                e("v_cvt_pk_bf16_f32 %s, %s, %s" % (Xf.q(j)[2 * rt + 1], x[2], x[3]))
        e("v_mov_b32 %s, 0x3f803f80" % tmp[0])
        for q in range(4):
            e("v_cndmask_b32 %s, %s, %s, s[26:27]" % (Xf.q(5)[q], Xf.q(2)[q], tmp[0]))
        e.flush()
        for pi, (ka, vb) in enumerate(K1_PAIRS):
            a("%s %s, %s, %s, 0" % (MF, kvd.q(pi), Xf.q(ka), Xf.q(5 if vb == 2 else vb)))
        qo = [Xf.q(0), Xf.q(1), Xf.q(2), Xf.q(3)]

        def qtile(j, rt):
            x = acc[rt][5 + j]
            phi(x, lambda h: r.mean[rt], lambda h: r.cst.q(j)[h], lambda h: r.rstd[rt], lambda h: r.rl[rt], tmp[0:4])
            o = qo[rt][2 * j:2 * j + 2] if j < 2 else qo[2 + rt][0:2]
            e("v_cvt_pk_bf16_f32 %s, %s, %s" % (o[0], x[0], x[1]))
            e("v_cvt_pk_bf16_f32 %s, %s, %s" % (o[1], x[2], x[3]))
        if NPRE >= 8:
            a("s_barrier")
        for pi in range(8):
            a.ds("ds_write_b128 %s, %s" % (r.vKa[pi], kvd.q(pi)), "add")
        qtile(0, 0)
        a.wait_lg("add")
        a("s_barrier")
        for i in range(4):
            for w in range(4):
                a.ds("ds_read_b32 %s, %s offset:%d" % (kvd[4 * i + w], r.vR, i * 1024 + w * 3584), ("rd", i))
        a("v_mov_b32 %s, 0x%x" % (kvd[17], OOB))
        a("v_cmp_gt_u32 vcc, 72, v0")
        a("v_cndmask_b32 %s, %s, %s, vcc" % (kvd[16], kvd[17], r.vGl))
        for i in range(4):
            a.wait_lg(("rd", i))
            a(pk("add", kvd[4 * i:4 * i + 2], kvd[4 * i:4 * i + 2], kvd[4 * i + 2:4 * i + 4]))
            a("v_add_f32 %s, %s, %s" % (kvd[4 * i], kvd[4 * i], kvd[4 * i + 1]))
            a.vmem("buffer_atomic_add_f32 %s, %s, s[4:7], 0 offen offset:%d" % (kvd[4 * i], r.vGl if i < 3 else kvd[16], i * 1024), "kv")
        a("v_mov_b32 %s, 1" % r.ret)
        stamp(a, 4)
        wo = nxt.take(25)
        fa, vGo, vX = r.fa, r.vGo, r.vX
        b = Asm()
        b("v_cmp_lt_u32 s[36:37], 0, %s" % vG)
        eps = acc[1][1]
        for q in range(4):
            b("v_mov_b32 %s, s24" % eps[q])
        early = list(b.lines) + (nxt.addr_lines() if CFG["AE"] & 1 else [])
        for n in range(120, 160):
            ks = seq[n][0]
            if n == 120 + 2 * CFG["ARRK"]:
                if CFG["DBG"] == 4:
                    stamp(a, 1)
                a.wait_vm("kv")
                a("s_barrier")
                if CFG["DBG"] == 4:
                    stamp(a, 2)
                a.vmem("buffer_atomic_add %s, %s, s[4:7], 0 offen" % (r.ret, r.vC1), "arr")
            def mid():
                if n % 3 == 2 and wo and wo[0].k < 16:
                    wo.pop(0)()
                else:
                    for _ in range(2):
                        if early:
                            a(early.pop(0))
            pair(n, mid)
        if CFG["DBG"] == 4:
            stamp(a, 3)
        e = Weaver(a, [(lambda x=x: a(x)) for x in early] + wo[:CFG["NWQ"]], 3 if early else 16)
        wo = wo[CFG["NWQ"]:]
        a("v_mov_b32 v252, 0")
        a("v_mov_b32 v253, 0")
        a.vmem("buffer_atomic_add v253, %s, s[4:7], 0 offen sc0" % vGo, "go0")
        qq = [(0, 1), (1, 0), (1, 1), (2, 0), (2, 1)]
        nb = 5 - CFG["QAFT"]
        for k, x in enumerate(qq[:nb]):
            if k == min(2, nb - 1):
                a.vmem("buffer_atomic_add v252, %s, s[4:7], 0 offen sc0" % vGo, "go")
            qtile(*x)
        e.flush()
        if CFG["DBG"] == 4:
            stamp(a, 6)
        l, d = label("gp"), label("gd")
        a("s_add_u32 s49, s49, 16")
        a("s_cmp_lg_u32 %s, %d" % (sWAVE, CFG["PW"]))
        a("s_cbranch_scc1 %s" % d)
        a("s_mov_b32 s42, %d" % CFG["TMO"])
        save = list(a.vm)
        a.wait_vm("go0")
        a("v_cmp_le_u32 vcc, s49, v253")
        a("s_cmp_eq_u32 vcc_lo, 0xffff")
        a("s_cbranch_scc1 %s" % d)
        a.wait_vm("go")
        a.vm = save
        a("%s:" % l)
        a("v_cmp_le_u32 vcc, s49, v252")
        a("s_cmp_eq_u32 vcc_lo, 0xffff")
        a("s_cbranch_scc1 %s" % d)
        a("v_mov_b32 v252, 0")
        a("buffer_atomic_add v252, %s, s[4:7], 0 offen sc0" % vGo)
        a("s_sub_u32 s42, s42, 1")
        a("s_waitcnt vmcnt(0)")
        a("s_cbranch_scc0 %s" % l)
        a("%s:" % d)
        a("s_barrier")
        stamp(a, 5)
        stg, fr = kvd[0:16], [kvd.q(k) for k in range(7)]
        for k in range(4):
            a.vmem("buffer_load_dwordx4 %s, %s, s[4:7], s3 offen%s" % (stg.q(k), fa[k], SC()), "kvl")
        for x in p3.pre_setup() + p4.pre_setup():
            a(x)
        extra = wo + p3.pre_loads() + p4.take(CFG["NW4P"])
        e = Weaver(a, extra[:CFG["NX1"]], 12)
        extra = extra[CFG["NX1"]:]
        for x in qq[nb:]:
            qtile(*x)
        for rt in range(2):
            a("v_mov_b32 %s, 0" % qo[2 + rt][2])
            a("v_mov_b32 %s, 0" % qo[2 + rt][3])
        e.flush()
        if CFG["DBG"] == 3:
            stamp(a, 1)
        a.wait_vm("kvl")
        if CFG["DBG"] == 3:
            stamp(a, 2)
        for i in range(2):
            o = tmp.q(1 + i)
            for k in range(4):
                a("v_cvt_pk_bf16_f32 %s, %s, %s" % (o[k], stg[8 * i + 2 * k], stg[8 * i + 2 * k + 1]))
            a.ds("ds_write_b128 %s, %s offset:%d" % (vX[0], o, i * 1024), "fw")
        a.wait_lg("fw")
        a("s_barrier")
        if CFG["NX4"] > 0:
            extra.pop(0)()
        for k in (5, 6, 0, 1, 2, 3, 4):
            a.ds("ds_read_b128 %s, %s offset:%d" % (fr[k], vX[1], k * 1024), ("fr", k))
        if CFG["DBG"] == 3:
            stamp(a, 3)
        num = [[acc[rt][2 + t_] for t_ in range(3)] for rt in range(2)]
        den = [acc[0][5], acc[1][5]]
        for k, (t_, kb) in ((5, (3, 0)), (6, (3, 1)), (0, (0, 0)), (1, (1, 0)), (2, (1, 1)), (3, (2, 0)), (4, (2, 1))):
            a.wait_lg(("fr", k))
            for rt in range(2):
                dst = den[rt] if t_ == 3 else num[rt][t_]
                c = dst if kb else (eps if t_ == 3 else "0")
                a("%s %s, %s, %s, %s" % (MF, dst, fr[k], qo[rt] if kb == 0 else qo[2 + rt], c))
        for _ in range(CFG["NX4"] - 1):
            extra.pop(0)()
        for rt in range(2):
            a("v_rcp_f32 %s, %s" % (den[rt][0], den[rt][0]))
            a("v_rcp_f32 %s, %s" % (den[rt][1], den[rt][1]))
        for rt in range(2):
            a("v_cndmask_b32 %s, %s, %s, s[36:37]" % (den[rt][2], den[rt][0], den[rt][1]))
        for rt in range(2):
            for t_, dd in ((0, den[rt][0]), (1, den[rt][2])):
                for h in H2:
                    a(pk("mul", num[rt][t_][h], num[rt][t_][h], dd))
                a("v_cvt_pk_bf16_f32 %s, %s, %s" % (qo[rt][2 * t_], num[rt][t_][0], num[rt][t_][1]))
                a("v_cvt_pk_bf16_f32 %s, %s, %s" % (qo[rt][2 * t_ + 1], num[rt][t_][2], num[rt][t_][3]))
            a.vmem("buffer_store_dwordx4 %s, %s, s[4:7], %s offen%s" % (qo[rt], r.vQ[0], "s23" if rt else "0", SC()), "out")
        for rt in range(2):
            z = qo[2 + rt]
            for h in H2:
                a(pk("mul", num[rt][2][h], num[rt][2][h], den[rt][1]))
            a("v_cvt_pk_bf16_f32 %s, %s, %s" % (z[0], num[rt][2][0], num[rt][2][1]))
            a("v_cvt_pk_bf16_f32 %s, %s, %s" % (z[1], num[rt][2][2], num[rt][2][3]))
            a("v_mov_b32 %s, %s" % (z[2], z[0]))
            a("v_mov_b32 %s, %s" % (z[3], z[1]))
            a("v_permlane16_swap_b32 %s, %s" % (z[0], z[2]))
            a("v_permlane16_swap_b32 %s, %s" % (z[1], z[3]))
            a.vmem("buffer_store_dwordx4 %s, %s, s[4:7], %s offen%s" % (z, r.vQ[1], "s23" if rt else "0", SC()), "out")
        if CFG["RB"]:
            a("v_mov_b32 %s, %s" % (vRB[0], r.vQ[0]))
            a("v_mov_b32 %s, %s" % (vRB[1], r.vQ[1]))
        a.rb = [(vRB[0], "0", 0), (vRB[0], "s23", 0), (vRB[1], "0", 0), (vRB[1], "s23", 0)]
        self.extra = extra


class P3:
    def __init__(self, a):
        self.a = a
        self.ring = Ring(a, 12, 6, vPRE[0], vPRE[0], "s44", "s45", "s46")

    def pre_setup(self):
        return ["s_mul_i32 s17, %s, 245760" % sP,
                "s_mul_i32 s44, %s, 6144" % sWAVE,
                "s_add_u32 s17, s17, s44",
                "s_add_u32 s17, s17, %d" % W3,
                "v_add_u32 %s, s17, v2" % vPRE[0]] + self.ring.init_lines()

    def pre_loads(self):
        return [f for s in range(min(CFG["NE3"], CFG["NPRE3"])) for f in self.ring.loads(s)]

    def wait_loads(self):
        return [f for s in range(CFG["NE3"], CFG["NPRE3"]) for f in self.ring.loads(s)]

    def before_wait(self, emit=None):
        r, a = self, (emit or self.a)
        V = Alloc("v", VBASE, 240)
        r.vA = [V.get(1), V.get(1)]
        r.vL = [Reg("v", 2, 1), V.get(1), V.get(1)]
        r.vS = V.get(1); r.vC = V.get(1); r.vH = V.get(1)
        r.mean = [V.get(1), V.get(1)]; r.rstd = [V.get(1), V.get(1)]; r.std = [V.get(1), V.get(1)]; r.c1 = [V.get(1), V.get(1)]
        r.tmp = V.get(16)
        r.acc = [[V.get(4) for j in range(12)] for rt in range(2)]
        r.cs = V.get(48)
        r.Aring = Reg("a", 160, 64)
        r.Bregs = Reg("a", 224, 32)
        tmp = r.tmp
        a("s_lshl_b32 s16, %s, 3" % sRB)
        a("s_lshl_b32 s17, %s, 1" % sWAVE)
        a("s_add_u32 s16, s16, s17")
        a("s_mul_i32 s17, s16, 20480")
        a("s_add_u32 s17, s17, %s" % sLAY)
        a("s_add_u32 s17, s17, %d" % XB)
        a("v_add_u32 %s, s17, v2" % r.vA[0])
        a("v_add_u32 %s, 20480, %s" % (r.vA[1], r.vA[0]))
        a("v_add_u32 %s, 0x10000, v2" % r.vL[1])
        a("v_add_u32 %s, 0x20000, v2" % r.vL[2])
        a("v_lshlrev_b32 %s, 3, %s" % (tmp[0], vN))
        a("v_lshl_add_u32 %s, %s, 8, %s" % (tmp[0], vG, tmp[0]))
        a("s_lshl_b32 s17, s16, 10")
        a("s_add_u32 s17, s17, %s" % sLAY)
        a("s_add_u32 s17, s17, %d" % STB)
        a("v_add_u32 %s, s17, %s" % (r.vS, tmp[0]))
        a("s_mul_i32 s17, %s, 768" % sP)
        a("s_add_u32 s17, s17, %d" % CS3F)
        a("v_lshl_add_u32 %s, %s, 4, s17" % (r.vC, vG))
        a("s_mul_i32 s17, s16, 49152")
        a("s_mul_i32 s19, %s, 3072" % sP)
        a("s_add_u32 s17, s17, s19")
        a("s_add_u32 s17, s17, %s" % sLAY)
        a("s_add_u32 s17, s17, %d" % H)
        a("v_add_u32 %s, s17, v2" % r.vH)
        a("s_mov_b32 s23, 49152")
        a("s_lshl_b32 s20, %s, 11" % sROT10)
        a("s_mov_b32 s24, %s" % f32(-2.0 * 0.7978845608028654 * 0.044715 * LOG2E))
        a("v_mov_b32 %s, %s" % (tmp[15], f32(-2.0 * 0.7978845608028654 * LOG2E)))

    def body(self, nxt):
        r, a = self, self.a
        tmp, acc, cs, mean, rstd, std = r.tmp, r.acc, r.cs, r.mean, r.rstd, r.std
        stat_loads = [(lambda rt=rt, h=h: a.vmem("buffer_load_dwordx2 %s, %s, s[4:7], 0 offen offset:%d%s" % (tmp.q(rt)[2 * h:2 * h + 2], r.vS, rt * 1024 + h * 128, SC()), "stats"))
                      for rt in range(2) for h in range(2)]
        b = Asm()
        for rt in range(2):
            stats_finish(b, tmp.q(rt), mean[rt], rstd[rt], tmp[8])
            b("v_mul_f32 %s, %s, %s" % (std[rt], rstd[rt], rstd[rt]))
            b("v_mul_f32 %s, %s, %s" % (r.c1[rt], tmp[15], rstd[rt]))
            b("v_mul_f32 %s, %s, %s" % (rstd[rt], std[rt], rstd[rt]))
            b("v_rcp_f32 %s, %s" % (std[rt], std[rt]))
            b("v_mul_f32 %s, s24, %s" % (rstd[rt], rstd[rt]))
        fill = [lambda: a.wait_vm("stats")] + list(b.lines) + (nxt.addr_lines() if CFG["AE"] & 2 else [])
        nl = CFG["NW4L"]
        csl = [(lambda j=j: a.vmem("buffer_load_dwordx4 %s, %s, s[4:7], 0 offen offset:%d%s" % (r.cs.q(j), r.vC, j * 64, SC()), "cs")) for j in range(12)]
        pre = nxt.take(nl + CFG["NW4E"])
        assert all(f.k < 39 for f in pre[:nl])
        corr = {j: ["v_fma_f32 %s, -%s, %s, %s" % (acc[rt][j][q], mean[rt], cs.q(j)[q], acc[rt][j][q]) for rt in range(2) for q in range(4)]
                for j in range(12)} if CFG["CST3"] else None
        if corr:
            corr["after"] = 1 + len(b.lines)
        rest = gemm_s(a, self.ring, CFG["NPRE3"], r.vA, r.vL, acc, r.Aring, r.Bregs, [True] * 12, "s20", 4,
                      csl + pre[:nl], fill, 0, PD=CFG["PD3"], P=CFG["P3"], first_barrier=True, early=stat_loads, corr=corr)
        done = corr is not None
        if done:
            assert not any(corr[j] for j in range(12)), [len(corr[j]) for j in range(12)]
        assert len(rest) <= nl
        a.wait_vm("cs")
        e = Weaver(a, rest + pre[nl:], CFG["EW3"])
        out = tmp[0:8]
        for m in range(3):
            for rt in range(2):
                o = out.q(rt)
                for hh in range(2):
                    jp = 2 * m + hh
                    g, u = acc[rt][2 * jp], acc[rt][2 * jp + 1]
                    cg, cu = cs.q(2 * jp), cs.q(2 * jp + 1)
                    t = tmp[8:12]
                    for h in ([] if done else H2):
                        e(pk("fma", g[h], cg[h], mean[rt], g[h], neg=1))
                    for h in ([] if done else H2):
                        e(pk("fma", u[h], cu[h], mean[rt], u[h], neg=1))
                    for h in H2:
                        e(pk("mul", t[h], g[h], g[h]))
                    for h in H2:
                        e(pk("fma", t[h], t[h], rstd[rt], r.c1[rt]))
                    for h in H2:
                        e(pk("mul", t[h], g[h], t[h]))
                    for h in H2:
                        e(pk("mul", u[h], g[h], u[h]))
                    for q in range(4):
                        e("v_exp_f32 %s, %s" % (t[q], t[q]))
                    for h in H2:
                        e(pk("fma", t[h], t[h], std[rt], std[rt]))
                    for q in range(4):
                        e("v_rcp_f32 %s, %s" % (t[q], t[q]))
                    for h in H2:
                        e(pk("mul", u[h], u[h], t[h]))
                    e("v_cvt_pk_bf16_f32 %s, %s, %s" % (o[2 * hh], u[0], u[1]))
                    e("v_cvt_pk_bf16_f32 %s, %s, %s" % (o[2 * hh + 1], u[2], u[3]))
                a.vmem("buffer_store_dwordx4 %s, %s, s[4:7], %s offen offset:%d%s" % (o, r.vH, "s23" if rt else "0", m * 1024, SC()), ("out0", "out1", "out")[m])
            if m == 1:
                a.wait_vm("out0")
                a("s_add_u32 s22, s22, 16")
                signal(a, 1)
                read_back(a, [(r.vH, "0", 0), (r.vH, "s23", 0)])
        e.flush()
        if CFG["T3"] == 1:
            a.wait_vm("out1")
            signal(a, 2)


def p_addr(a, r, t, red_base, xres, stout, from_x=False):
    a("s_add_u32 s17, %s, 3" % sWAVE)
    a("s_and_b32 s17, s17, 3")
    a("s_mul_i32 s17, s17, 10240")
    a("s_add_u32 s17, s17, %d" % red_base)
    a("v_add_u32 %s, s17, v2" % r.vW)
    a("s_mul_i32 s17, %s, 10240" % sWAVE)
    a("s_add_u32 s17, s17, %d" % red_base)
    a("v_add_u32 %s, s17, v2" % r.vRd)
    a("s_lshl_b32 s16, %s, 2" % sRB64)
    a("s_add_u32 s16, s16, %s" % sWAVE)
    a("s_and_b32 s19, %s, 1" % sCG)
    a("s_mul_i32 s29, %s, 5" % sCG)
    a("s_add_u32 s30, s29, s19")
    a("s_xor_b32 s19, s19, 1")
    a("s_lshl_b32 s19, s19, 2")
    a("s_add_u32 s29, s29, s19")
    a("s_mul_i32 s17, s16, 20480")
    a("s_add_u32 s17, s17, %s" % sLAY)
    a("s_add_u32 s17, s17, %d" % xres)
    a("s_lshl_b32 s19, s30, 9")
    a("s_add_u32 s19, s19, s17")
    a("v_add_u32 %s, s19, v2" % r.vRes[0])
    a("v_lshrrev_b32 %s, 1, %s" % (t, vG))
    a("v_lshlrev_b32 %s, 8, %s" % (t, t))
    a("v_lshl_add_u32 %s, %s, 4, %s" % (t, vN, t))
    a("s_lshl_b32 s19, s29, 9")
    a("s_add_u32 s19, s19, s17")
    a("v_add_u32 %s, s19, %s" % (r.vRes[2], t))
    a("v_add_u32 %s, s17, %s" % (r.vRes[1], t))
    a("v_and_b32 %s, 1, %s" % (t, vG))
    a("v_lshl_add_u32 %s, %s, 3, %s" % (r.vRes[1], t, r.vRes[1]))
    a("v_lshl_add_u32 %s, %s, 30, %s" % (r.vRes[2], t, r.vRes[2]))
    a("s_mov_b32 s32, s4\ns_mov_b32 s33, s5\ns_mov_b32 s34, s6\ns_mov_b32 s35, 0x20000\ns_mov_b32 s31, 512")
    if from_x:
        a("v_mul_u32_u24 %s, 1280, %s" % (t, vN))
        a("v_lshl_add_u32 %s, %s, 3, %s" % (t, vG, t))
        a("s_mul_i32 s19, s16, 20480")
        a("v_add_u32 %s, s19, %s" % (t, t))
        one = ["s_cmp_eq_u32 %s, 0" % sLAY, "s_cselect_b32 s32, s84, s32", "s_cselect_b32 s33, s85, s33",
               "s_cselect_b32 s34, %d, s34" % (S * D * 2), "s_cselect_b32 s31, 32, s31", "s_cselect_b64 vcc, -1, 0"]
        a.lines.append("\n".join(one))
        a("v_cndmask_b32 %s, %s, %s, vcc" % (r.vRes[1], r.vRes[1], t))
    a("s_mul_i32 s38, s30, s31")
    a("s_mul_i32 s39, s29, s31")
    a("s_lshl_b32 s17, s16, 10")
    a("s_add_u32 s17, s17, %s" % sLAY)
    a("s_add_u32 s17, s17, %d" % stout)
    a("s_lshl_b32 s19, %s, 7" % sCG)
    a("s_add_u32 s17, s17, s19")
    a("v_lshl_add_u32 %s, %s, 3, s17" % (r.vSt, vN))
    a("v_mov_b32 %s, 0x%x" % (t, OOB))
    a("v_and_b32 %s, %s, %s" % (t, t, vCNT))
    a("v_or_b32 %s, %s, %s" % (r.vSt, t, r.vSt))


def p_res_loads(a, res, vRes):
    for j in range(4):
        a.vmem("buffer_load_dwordx2 %s, %s, s[32:35], s38 offen%s" % (res[2 * j:2 * j + 2], vRes[1], SC()), "res")
        if j < 3:
            a("s_add_u32 s38, s38, s31")
    a.vmem("buffer_load_dwordx2 %s, %s, s[32:35], s39 offen%s" % (res[8:10], vRes[1], SC()), "res")


def p_write(a, acc, i, vW):
    for j in range(5):
        a.ds("ds_write_b128 %s, %s offset:%d" % (vW[i - 1], acc[i][j], j * 1024), "rw")


def p_epilogue(a, r, acc, res, part, tmp, xdelta, pre, final):
    stamp(a, 3)
    y, o = acc[0], r.keep
    a("s_mov_b32 s28, %d" % xdelta)
    def swaps(b):
        for d in range(2):
            a("v_permlane32_swap_b32 %s, %s" % (o[b + d], o[b + 2 + d]))
        for d in range(2):
            a("v_permlane16_swap_b32 %s, %s" % (o[b + d], o[b + 2 + d]))
    for j in range(5):
        a.wait_lg(("p", j))
        for h in H2:
            a(pk("add", y[j][h], y[j][h], part.q(j)[h]))
    stamp(a, 4)
    for j in range(5):
        a("v_cvt_pk_bf16_f32 %s, %s, %s" % (o[2 * j], y[j][0], y[j][1]))
        a("v_cvt_pk_bf16_f32 %s, %s, %s" % (o[2 * j + 1], y[j][2], y[j][3]))
    if final:
        a("s_cmp_lg_u32 %s, 0" % sLAY)
        a("s_cbranch_scc1 L_final")
    a("v_mov_b32 %s, %s" % (tmp[4], o[8]))
    a("v_mov_b32 %s, %s" % (tmp[5], o[9]))
    a("v_mov_b32 %s, %s" % (tmp[6], o[8]))
    a("v_mov_b32 %s, %s" % (tmp[7], o[9]))
    swaps(0)
    a.vmem("buffer_store_dwordx4 %s, %s, s[4:7], s28 offen%s" % (o[0:4], r.vRes[0], SC()), "out")
    swaps(4)
    a("v_permlane16_swap_b32 %s, %s" % (tmp[4], tmp[6]))
    a("v_permlane16_swap_b32 %s, %s" % (tmp[5], tmp[7]))
    a.vmem("buffer_store_dwordx4 %s, %s, s[4:7], s28 offen offset:1024%s" % (o[4:8], r.vRes[0], SC()), "out")
    a.vmem("buffer_store_dwordx4 %s, %s, s[4:7], s28 offen%s" % (tmp[4:8], r.vRes[2], SC()), "out")
    sq = tmp[2:4]
    a("s_mov_b32 s24, 0x3f803f80")
    for q in range(4):
        a("v_mov_b32 %s, 0" % tmp[q])
    for k in range(10):
        a("v_dot2c_f32_bf16 %s, s24, %s" % (tmp[2 * (k % 2)], o[k]))
        a("v_dot2c_f32_bf16 %s, %s, %s" % (tmp[1 + 2 * (k % 2)], o[k], o[k]))
    a(pk("add", sq, sq, tmp[0:2]))
    for sw in ("v_permlane16_swap_b32", "v_permlane32_swap_b32"):
        a("v_mov_b32 %s, %s" % (tmp[0], sq[0]))
        a("v_mov_b32 %s, %s" % (tmp[1], sq[1]))
        a("%s %s, %s" % (sw, sq[0], tmp[0]))
        a("%s %s, %s" % (sw, sq[1], tmp[1]))
        a(pk("add", sq, sq, tmp[0:2]))
    a.vmem("buffer_store_dwordx2 %s, %s, s[4:7], 0 offen%s" % (sq, r.vSt, SC()), "out")
    if CFG["RB"]:
        a("v_add_u32 %s, s28, %s" % (vRB[0], r.vRes[0]))
        a("v_add_u32 %s, s28, %s" % (vRB[1], r.vRes[2]))
    a.rb = [(vRB[0], "0", 0), (vRB[0], "0", 1024), (vRB[1], "0", 0)]


def wait_first(a, loads=()):
    arrive(a)
    if not CFG["SPLIT"]:
        wait(a, loads)
        return
    spoll_issue(a, 1)
    for f in loads:
        f()
    spoll_wait(a, 1, "s22")
    stamp(a, 8); stamp_dump(a); stamp(a, 0); dbg_time(a)


vF = Reg("v", 238, 2)
def final_setup():
    return ["s_mov_b32 s32, s90", "s_mov_b32 s33, s91", "s_mov_b32 s34, %d" % (S * D * 2), "s_mov_b32 s35, 0x20000",
            "s_mul_i32 s19, s16, 20480", "v_mul_u32_u24 %s, 1280, %s" % (vF[0], vN), "v_add_u32 %s, s19, %s" % (vF[0], vF[0]),
            "v_lshrrev_b32 %s, 1, %s" % (vF[1], vG), "v_lshl_add_u32 %s, %s, 4, %s" % (vF[1], vF[1], vF[0]),
            "v_lshl_add_u32 %s, %s, 4, %s" % (vF[0], vG, vF[0]), "v_and_b32 v250, 1, %s" % vG,
            "v_lshl_add_u32 %s, v250, 30, %s" % (vF[1], vF[1]), "s_lshl_b32 s30, s30, 5", "s_lshl_b32 s29, s29, 5"] if CFG["FIN"] else []


def final_store(a, o, tmp):
    a("L_final:")
    if not CFG["FIN"]:
        a("s_mov_b32 s32, s90")
        a("s_mov_b32 s33, s91")
        a("s_mov_b32 s34, %d" % (S * D * 2))
        a("s_mov_b32 s35, 0x20000")
        a("s_mul_i32 s17, s16, 20480")
    FP = ["", "", " nt", " sc1", " sc0 sc1"][CFG["FIN"]]
    if CFG["FIN"]:
        for q in range(4):
            a("v_mov_b32 %s, %s" % (tmp[4 + q], o[8 + q % 2]))
        for sw in ("v_permlane32_swap_b32", "v_permlane16_swap_b32"):
            for b in (0, 4):
                for d in range(2):
                    a("%s %s, %s" % (sw, o[b + d], o[b + 2 + d]))
        a("buffer_store_dwordx4 %s, %s, s[32:35], s30 offen%s" % (o[0:4], vF[0], FP))
        a("v_permlane16_swap_b32 %s, %s" % (tmp[4], tmp[6]))
        a("v_permlane16_swap_b32 %s, %s" % (tmp[5], tmp[7]))
        a("buffer_store_dwordx4 %s, %s, s[32:35], s30 offen offset:64%s" % (o[4:8], vF[0], FP))
        a("buffer_store_dwordx4 %s, %s, s[32:35], s29 offen%s" % (tmp[4:8], vF[1], FP))
    else:
        a("v_mul_u32_u24 %s, 1280, %s" % (tmp[0], vN))
        a("v_lshl_add_u32 %s, %s, 3, %s" % (tmp[0], vG, tmp[0]))
        a("v_add_u32 %s, s17, %s" % (tmp[0], tmp[0]))
        a("s_lshl_b32 s30, s30, 5")
        a("s_lshl_b32 s29, s29, 5")
        for j in range(4):
            a("buffer_store_dwordx2 %s, %s, s[32:35], s30 offen offset:%d" % (o[2 * j:2 * j + 2], tmp[0], j * 32))
        a("buffer_store_dwordx2 %s, %s, s[32:35], s29 offen" % (o[8:10], tmp[0]))
    dbg_time(a)
    if CFG["SPAN"]:
        a("s_waitcnt vmcnt(0)")
        a("s_memrealtime s[60:61]")
        a("s_lshl_b32 s59, s2, 2")
        a("s_add_u32 s59, s59, s10")
        a("s_lshl_b32 s59, s59, 3")
        a("s_add_u32 s59, s59, %d" % PROFO)
        a("s_mov_b64 exec, 1")
        a("s_waitcnt lgkmcnt(0)")
        a("v_mov_b32 v100, s80\nv_mov_b32 v101, s60\nv_mov_b32 v102, s59")
        a("buffer_store_dwordx2 v[100:101], v102, s[4:7], 0 offen")
    if PROF:
        stamp(a, 5)
        a("s_waitcnt vmcnt(0)")
        stamp(a, 6)
        stamp(a, 7)
        stamp(a, 8)
        stamp_dump(a)


class PK:
    def __init__(self, a, NK, wbase, abase, xres, xout, stout, red, final, wreg, vW_, sW_):
        self.a, self.NK, self.wbase, self.abase = a, NK, wbase, abase
        self.vw, self.sw = vW_, sW_
        self.xres, self.xout, self.stout, self.red, self.final = xres, xout, stout, red, final
        self.W = wreg
        self.todo = None

    def pre_setup(self):
        self.todo = list(range(5 * self.NK))
        return ["s_mul_i32 s17, %s, %d" % (sCG, 4 * self.NK * 5120),
                "s_mul_i32 s19, %s, %d" % (sWAVE, self.NK * 5120),
                "s_add_u32 s17, s17, s19",
                "s_add_u32 s17, s17, %d" % self.wbase,
                "v_add_u32 %s, s17, v2" % self.vw]

    def kmap(self, st):
        return 3 * (st % 4) + st // 4 if self.final else st

    def take(self, n):
        a = self.a
        ks, self.todo = self.todo[:n], self.todo[n:]
        def mk(k):
            def f():
                if CFG["NOW"] & (8 if self.final else 2):
                    return
                st, j = divmod(k, 5)
                if j in (0, 4):
                    a("s_mov_b32 %s, %d" % (self.sw, self.kmap(st) * 5120 + (j // 4) * 4096))
                a.vmem("buffer_load_dwordx4 %s, %s, s[4:7], %s offen offset:%d%s" % (self.W(k), self.vw, self.sw, (j % 4) * 1024, WSC()), ("w", self.NK, k))
            f.k = k
            return f
        return [mk(k) for k in ks]

    def addr_lines(self):
        r, a = self, Asm()
        V = Alloc("v", CFG["PKB"], 228)
        r.vA = Reg("v", 240, 4); r.vW = Reg("v", 244, 1); r.vRd = Reg("v", 245, 1); r.vRes = Reg("v", 246, 3); r.vSt = Reg("v", 249, 1)
        r.tmp = V.get(8)
        V.get(CFG["PKG"])
        r.acc = [[V.get(4) for j in range(5)] for i in range(4)]
        r.ring = V.get(80)
        r.part = V.get(20)
        tts = 4 * self.NK * 1024
        a("s_lshl_b32 s16, %s, 2" % sRB64)
        a("s_mul_i32 s16, s16, %d" % tts)
        a("s_mul_i32 s19, %s, %d" % (sWAVE, self.NK * 1024))
        a("s_add_u32 s16, s16, s19")
        a("s_add_u32 s16, s16, %s" % sLAY)
        a("s_add_u32 s16, s16, %d" % self.abase)
        for i in range(4):
            a("s_add_u32 s17, %s, %d" % (sWAVE, i))
            a("s_and_b32 s17, s17, 3")
            a("s_mul_i32 s17, s17, %d" % tts)
            a("s_add_u32 s17, s17, s16")
            a("v_add_u32 %s, s17, v2" % r.vA[i])
        p_addr(a, r, Reg("v", 250, 1), self.red, self.xres, self.stout)
        return a.lines

    def before_wait(self, emit=None):
        r, a = self, (emit or self.a)
        r.keep = Reg("v", 228, 10)
        if not self.final:
            l = label("res")
            flush = getattr(a, "flush", None)
            if flush:
                flush()
            self.a("s_cmp_lg_u32 %s, 0" % sLAY)
            self.a("s_cbranch_scc1 %s" % l)
            n = len(self.a.vm)
            p_res_loads(self.a, r.keep, r.vRes)
            self.a.vm = self.a.vm[:n]
            self.a("%s:" % l)

    def body(self, setup=(), extra=()):
        r, a = self, self.a
        acc, NK = r.acc, self.NK
        G0 = (8 if CFG["T3"] else 4) if self.final else 0
        seq = [(ks, i) for ks in range(G0) for i in (1, 2, 3, 0)] + [(ks, i) for i in (1, 2, 3, 0) for ks in range(G0, NK)]
        aq = []
        for n, (ks, i) in enumerate(seq):
            def f(n=n, ks=ks, i=i):
                if self.final and n == 16 and CFG["T3"]:
                    spoll_wait(a, 2, "s22")
                if self.final and n == 4 * G0:
                    spoll_wait(a, 0, sTGT)
                kb = self.kmap(ks)
                if st.get("s20") != kb // 4:
                    a("s_mov_b32 s20, %d" % (kb // 4 * 4096))
                    st["s20"] = kb // 4
                if self.final and n == CFG["BPOLL"]:
                    spoll_issue(a, 2 if CFG["T3"] else 0)
                if self.final and CFG["T3"] and n == CFG["BPOLL"] + 16:
                    spoll_issue(a, 0)
                a.vmem("buffer_load_dwordx4 %s, %s, s[4:7], s20 offen offset:%d%s" % (r.ring.q(n % 20), r.vA[i], (kb % 4) * 1024, SC()), ("x", n))
            aq.append((n, f))
        st = {}
        wq = [(f.k // 5, f) for f in self.take(99)]
        for k in range(CFG["PP4"] if self.final else CFG["PP"]):
            aq.pop(0)[1]()
            if self.final and k == CFG["BARR"]:
                a.wait_vm("out")
                a("s_add_u32 %s, %s, 16" % (sTGT, sTGT))
                signal(a, 0)
                read_back(a, [(vRB[0], so, m * 1024) for m in (1, 2) for so in ("0", "s23")])
        stamp(a, 1)
        def unpack():
            l = label("unsw")
            if not self.final:
                a("s_cmp_eq_u32 %s, 0" % sLAY)
                a("s_cbranch_scc1 %s" % l)
            for sw in ("v_permlane16_swap_b32", "v_permlane32_swap_b32"):
                for b in (0, 4):
                    for d in range(2):
                        a("%s %s, %s" % (sw, r.keep[b + d], r.keep[b + 2 + d]))
            a("%s:" % l)
            a("s_nop 0")
            for j in range(5):
                for h in range(2):
                    a("v_lshlrev_b32 %s, 16, %s" % (acc[0][j][2 * h], r.keep[2 * j + h]))
                    a("v_and_b32 %s, 0xffff0000, %s" % (acc[0][j][2 * h + 1], r.keep[2 * j + h]))
        if self.final:
            unpack()
        setup = list(setup)
        extra = list(extra)
        first_use = {}
        for n, (ks, i) in enumerate(seq):
            first_use.setdefault(ks, n)
        wq = [(first_use[ks], f) for ks, f in wq]
        side = []
        cnt, tau, started = 0, 0, set()
        for n, (ks, i) in enumerate(seq):
            while wq and wq[0][0] <= n:
                wq.pop(0)[1]()
            while aq and aq[0][0] <= n:
                aq.pop(0)[1]()
            a.wait_vm([("w", NK, k) for k in range(5 * ks, 5 * ks + 5)] + [("x", n)])
            if n == 0:
                stamp(a, 2)
            if n == 1 and not self.final:
                unpack()
            for j in range(5):
                c = str(acc[i][j]) if (i == 0 or i in started) else "0"
                a("%s %s, %s, %s, %s" % (MF, acc[i][j], self.W(5 * ks + j), r.ring.q(n % 20), c))
                cnt += 1
                if cnt % CFG["SP4"] == 0 and (aq or wq):
                    ca = aq and aq[0][0] - 20 < n
                    if ca and (not wq or aq[0][0] <= wq[0][0] - 4):
                        aq.pop(0)[1]()
                    elif wq:
                        wq.pop(0)[1]()
                    elif ca:
                        aq.pop(0)[1]()
                elif cnt % CFG["SPX"] == 0 and extra and not aq and not wq and not setup and n < len(seq) - CFG["XSTOP"]:
                    extra.pop(0)()
                elif side:
                    for _ in range(CFG["SDK"]):
                        if side:
                            x = side.pop(0)
                            if x is not None:
                                x() if callable(x) else a(x)
                elif cnt % CFG["SP4"] == 1 and setup and n >= 8:
                    a(setup.pop(0))
            started.add(i)
            if ks == NK - 1 and i:
                for x in side:
                    if x is not None:
                        x() if callable(x) else a(x)
                side = [None] * 4
                par = (tau % 2) * 5120
                for j in range(5):
                    if tau:
                        side.append(lambda j=j: a.wait_lg(("p", j)))
                        side += ["v_add_f32 %s, %s, %s" % (acc[i][j][q], acc[i][j][q], r.part.q(j)[q]) for q in range(4)]
                    side.append(lambda i=i, j=j, par=par: a.ds("ds_write_b128 %s, %s offset:%d" % (r.vW, acc[i][j], par + j * 1024), "rw"))
                side += [None] * CFG["XW"]
                def swap(par=par):
                    a.wait_lg("rw")
                    a("s_barrier")
                    for j in range(5):
                        a.ds("ds_read_b128 %s, %s offset:%d" % (r.part.q(j), r.vRd, par + j * 1024), ("p", j))
                side.append(swap)
                tau += 1
        for x in side:
            if x is not None:
                x() if callable(x) else a(x)
        assert not aq and not wq and not setup
        p_epilogue(a, r, acc, None, r.part, r.tmp, self.xout - self.xres, extra, self.final)
        self.left = extra


def main_body():
    a = Asm()
    a("s_cmp_ge_u32 s2, 256")
    a("s_cbranch_scc1 L_end")
    a("s_load_dwordx2 s[4:5], s[0:1], 72")
    a("s_load_dwordx4 s[84:87], s[0:1], 0")
    a("s_load_dwordx2 s[88:89], s[0:1], 16")
    a("s_load_dwordx2 s[90:91], s[0:1], 32")
    a("s_load_dwordx2 s[92:93], s[0:1], 40")
    a("s_load_dwordx2 s[96:97], s[0:1], 48")
    a("s_load_dwordx2 s[94:95], s[0:1], 64")
    if CFG["SPAN"]:
        a("s_memrealtime s[80:81]")
    if CFG["DBGT"]:
        a("s_memrealtime s[80:81]")
        a("s_mov_b32 s62, 4")
    if PROF:
        a("s_mov_b32 %s, 0" % sPH)
        a("s_memrealtime s[80:81]")
    stamp(a, 0)
    a("v_lshrrev_b32 v1, 6, v0")
    a("v_readfirstlane_b32 %s, v1" % sWAVE)
    a("v_and_b32 v1, 63, v0")
    a("v_lshlrev_b32 v2, 4, v1")
    a("v_and_b32 %s, 15, v1" % vN)
    a("v_lshrrev_b32 %s, 4, v1" % vG)
    a("s_mov_b32 s6, %d" % WS_USED)
    a("s_mov_b32 s7, 0x20000")

    def late_setup():
        a("s_and_b32 s16, s2, 7")
        a("s_lshr_b32 s17, s2, 3")
        lx = CFG["XC"] - 1
        a("s_lshr_b32 %s, s16, %d" % (sRB, lx))
        a("s_lshl_b32 %s, %s, %d" % (sRB, sRB, lx + 1))
        a("s_and_b32 s18, s17, %d" % ((2 << lx) - 1))
        a("s_add_u32 %s, %s, s18" % (sRB, sRB))
        a("s_lshr_b32 s17, s17, %d" % (lx + 1))
        a("s_and_b32 s16, s16, %d" % lx)
        a("s_lshl_b32 %s, s16, 3" % sP)
        a("s_add_u32 %s, %s, s17" % (sP, sP))
        a("s_lshl_b32 %s, %s, 1" % (sRB64, sRB))
        a("s_and_b32 s18, %s, 1" % sP)
        a("s_add_u32 %s, %s, s18" % (sRB64, sRB64))
        a("s_lshr_b32 %s, %s, 1" % (sCG, sP))
        a("s_and_b32 s18, %s, %d" % (sRB, 3 if CFG["ROT"] else 0))
        a("s_mul_i32 %s, s18, 3" % sROT12)
        a("s_mul_i32 %s, s18, 5" % sROT10)
        a("s_lshr_b32 %s, %s, 1" % (sROT10, sROT10))
        a("s_mov_b32 %s, 0" % sLAY)
        a("s_mov_b32 %s, 0" % sTGT)
        a("s_lshl_b32 s17, %s, 11" % sRB)
        a("s_add_u32 s17, s17, %d" % CNT)
        a("v_lshl_add_u32 %s, %s, 7, s17" % (vCNT, vN))
        a("v_mov_b32 v255, 0x%x" % OOB)
        a("v_cmp_gt_u32 vcc, 16, v1")
        a("s_lshl_b32 s18, %s, 7" % sP)
        a("s_add_u32 s17, s17, s18")
        a("v_cndmask_b32 %s, v255, %s, vcc" % (vCNT, vCNT))
        a("v_mov_b32 %s, s17" % vPL)
        a("s_add_u32 s100, s4, s17")
        a("s_addc_u32 s101, s5, 0")
        a("v_cmp_eq_u32 vcc, 0, v1")
        a("v_cndmask_b32 %s, v255, %s, vcc" % (vPL, vPL))
    p1, p3 = P1(a), P3(a)
    p2 = PK(a, 5, W2, PQ, XA, XB, STB, 122880, False, lambda k: Reg("a", 192 + 4 * k if k < 16 else 156 + 4 * (k - 16), 4), vPRE[2], "s47")
    p4 = PK(a, 12, W4, H, XB, XA + LSTR, STA + LSTR, 122880, True, lambda k: Reg("a", 4 * k, 4), vPRE[3], "s58")
    p0_phase(a, p1, late_setup)
    a.vm = []
    for f in p1.pre_loads(CFG["NPRE1A"]):
        f()
    p1.body(p2, p3, p4, CFG["NPRE1A"], True)
    tail_state = list(a.vm[a.vm.index("out"):])
    a("L_mid:")
    ex = p1.extra
    w = Weaver(a, ex[:CFG["NX2"]], 8)
    for x in ([] if CFG["AE"] & 1 else p2.addr_lines()):
        w(x)
    w.flush()
    p2.before_wait(); arrive(a); wait(a, ex[CFG["NX2"]:CFG["NX2"] + CFG["NX3"]])
    rest = ex[CFG["NX2"] + CFG["NX3"]:]
    assert len(ex) - len(rest) >= len(ex) - 6 * CFG["NE3"] - CFG["NW4P"]
    p2.body((), rest)
    stamp(a, 5)
    w = Weaver(a, p2.left, 6)
    p3.before_wait(w); w.flush(); wait_first(a, p3.wait_loads() + p4.take(CFG["NW4Q"]))
    p3.body(p4)
    stamp(a, 5)
    spoll_issue(a, 1)
    for x in ([] if CFG["AE"] & 2 else p4.addr_lines()):
        a(x)
    p4.before_wait()
    if CFG["T3"] == 2:
        a.wait_vm("out1")
        signal(a, 2)
    stamp(a, 6); stamp(a, 7)
    spoll_wait(a, 1, "s22")
    stamp(a, 8); stamp_dump(a); stamp(a, 0); dbg_time(a)
    p4.body(p1.pre_setup() + final_setup())
    stamp(a, 5)
    a("s_add_u32 %s, %s, %d" % (sLAY, sLAY, LSTR))
    pl = p1.pre_loads(CFG["NPRE1"])
    assert len(pl) - CFG["NP1W"] <= 28
    w = Weaver(a, pl[:len(pl) - CFG["NP1W"]], 12)
    p1.before_wait(w); w.flush(); wait_first(a, pl[len(pl) - CFG["NP1W"]:])
    p1.body(p2, p3, p4, CFG["NPRE1"])
    assert a.vm[a.vm.index("out"):] == tail_state
    a("s_branch L_mid")
    final_store(a, p4.keep, p4.tmp)
    a("L_end:")
    a("s_endpgm")
    a("L_code_end:")
    return a, dict(vgpr=512, acc=256, lds=163840)


def p0_phase(a, p1, late_setup):
    U1, UX, U2, UZ, U3, U4 = 160, 256, 100, 47, 480, 240
    BX = U1; B2 = BX + UX; BZ = B2 + U2; BE = BZ + UZ
    NT = " nt" if CFG["K0NT"] & 1 else ""
    n_, g_ = "v3", "v4"
    DST = [82, 83, 86, 87, 88, 89, 98, 99]

    def nat_flag(kb):
        a("s_mul_i32 s29, %s, 52" % kb)
        a("s_lshr_b32 s29, s29, 8")
        a("s_mul_i32 s29, s29, 5")
        a("s_sub_u32 s29, %s, s29" % kb)
        a("s_cmp_eq_u32 s29, 2")

    def colsum(j, frag):
        a("%s v[%d:%d], v[56:59], %s, 0" % (MF, 64 + 4 * (j % 4), 67 + 4 * (j % 4), frag))

    def colsum_keep(j):
        a("v_cndmask_b32 v%d, v%d, v%d, s[%d:%d]" % (60 + j // 4, 60 + j // 4, 64 + 4 * (j % 4), 50 + 2 * (j % 4), 51 + 2 * (j % 4)))

    def issue128(srd, rs, kb, ch, lds, v):
        a("v_mul_lo_u32 %s, %s, %s" % (v, g_, rs))
        a("v_lshl_add_u32 %s, %s, 4, %s" % (v, n_, v))
        a("s_mul_i32 s17, %s, %s" % (kb, rs))
        a("s_lshl_b32 s17, s17, 5")
        a("s_lshl_b32 s19, %s, 8" % ch)
        a("s_add_u32 s17, s17, s19")
        a("s_lshl_b32 s19, %s, 2" % rs)
        for i in range(8):
            a("s_add_u32 m0, %s, %d" % (lds, i * 1024))
            a("s_nop 0")
            a("buffer_load_dwordx4 %s, %s, s17 offen%s lds" % (v, srd, NT))
            a("s_add_u32 s17, s17, s19")

    def rdaddr128(lds):
        a("v_lshrrev_b32 v230, 2, %s" % n_)
        a("v_lshl_add_u32 v230, %s, s29, v230" % g_)
        a("v_lshlrev_b32 v230, 8, v230")
        a("v_and_b32 v231, 3, %s" % n_)
        a("v_lshl_add_u32 v230, v231, 3, v230")
        a("v_add_u32 v230, %s, v230" % lds)
        a("v_add_u32 v231, s30, v230")

    def dst640(kb, ch, nkb, base):
        a("s_lshl_b32 s17, %s, 3" % ch)
        a("s_mul_i32 s19, s17, 52")
        a("s_lshr_b32 s19, s19, 8")
        a("s_mul_i32 s28, s19, 5")
        a("s_sub_u32 s17, s17, s28")
        a("s_and_b32 s27, s19, 1")
        a("s_mul_i32 s19, s19, %d" % nkb)
        a("s_add_u32 s19, s19, %s" % kb)
        a("s_mul_i32 s19, s19, 5120")
        a("s_add_u32 s19, s19, %d" % base)
        for i in range(8):
            a("s_sub_u32 s28, s17, s27")
            a("s_cselect_b32 s28, 4, s28")
            a("s_lshl_b32 s28, s28, 10")
            a("s_add_u32 s%d, s28, s19" % DST[i])
            if i < 7:
                a("s_add_u32 s17, s17, 1")
                a("s_cmp_eq_u32 s17, 5")
                a("s_cselect_b32 s17, 0, s17")
                a("s_cselect_b32 s28, 1, 0")
                a("s_xor_b32 s27, s27, s28")
                a("s_mul_i32 s28, s28, %d" % (nkb * 5120))
                a("s_add_u32 s19, s19, s28")

    def move128():
        for t in range(8):
            for h in range(2):
                a.ds("ds_read_b64_tr_b16 v[%d:%d], v%d offset:%d" % (96 + 4 * t + 2 * h, 97 + 4 * t + 2 * h, 230 + h, t * 32), ("t", t))
        for t in range(8):
            a.wait_lg(("t", t))
            a("buffer_store_dwordx4 v[%d:%d], v2, s[4:7], s%d offen sc1" % (96 + 4 * t, 99 + 4 * t, DST[t]))

    a("s_lshl_b32 s38, %s, 8" % sWAVE)
    a("s_add_u32 s38, s38, s2")
    a("s_sub_u32 s16, s38, 160")
    a("s_cmp_lt_u32 s2, 160")
    a("s_cselect_b32 s16, s2, s16")
    a("s_cmp_eq_u32 %s, 2" % sWAVE)
    a("s_cselect_b32 s38, s16, s38")
    a("s_add_u32 s39, s2, 256")
    a("s_sub_u32 s16, 767, s2")
    a("s_cmp_eq_u32 %s, 2" % sWAVE)
    a("s_cselect_b32 s39, s16, s39")
    a("s_cmp_eq_u32 %s, 3" % sWAVE)
    a("s_cselect_b32 s39, s2, s39")
    a("s_cmp_eq_u32 %s, 0" % sWAVE)
    a("s_cselect_b32 s39, 0x1000, s39")
    a("s_lshl_b32 s18, %s, 14" % sWAVE)
    a("s_lshl_b32 s37, %s, 13" % sWAVE)
    a("s_add_u32 s37, s37, 0x20000")
    a("s_mov_b32 s23, 0x20000\ns_mov_b32 s35, 0x20000")
    a("s_cmp_lt_u32 s38, %d" % BX)
    a("s_cbranch_scc1 L_i_w1")
    a("s_cmp_lt_u32 s38, %d" % B2)
    a("s_cbranch_scc1 L_i_x")
    a("s_cmp_lt_u32 s38, %d" % BZ)
    a("s_cbranch_scc1 L_i_w2")
    a("s_waitcnt lgkmcnt(0)")
    a("s_cmp_lt_u32 s38, %d" % BE)
    a("s_cbranch_scc0 L_i_b")
    a("s_sub_u32 s16, s38, %d" % BZ)
    a("s_cmp_ge_u32 s16, 14")
    a("s_cselect_b32 s17, %d, 0" % (LSTR - 14 * 4096))
    a("s_cmp_ge_u32 s16, 28")
    a("s_cselect_b32 s17, 0x%x, s17" % ((CS3F - KV - 28 * 4096) & 0xffffffff))
    a("s_cmp_ge_u32 s16, 31")
    a("s_cselect_b32 s17, 0x%x, s17" % ((CNT - KV - 31 * 4096) & 0xffffffff))
    a("s_add_u32 s17, s17, %d" % KV)
    a("s_lshl_b32 s16, s16, 12")
    a("s_add_u32 s17, s17, s16")
    for q in range(4):
        a("v_mov_b32 v%d, 0" % (16 + q))
    for q in range(4):
        a("buffer_store_dwordx4 v[16:19], v2, s[4:7], s17 offen offset:%d sc1" % (q * 1024))
    a("s_branch L_i_b")

    a("L_i_w1:")
    if CFG["W1M"]:
        a("s_and_b32 s24, s38, 7")
        a("s_mul_i32 s24, s24, 20")
        a("s_lshr_b32 s25, s38, 3")
        a("s_add_u32 s25, s25, s24")
        a("s_lshr_b32 s24, s25, 3")
        a("s_and_b32 s25, s25, 7")
    else:
        a("s_lshr_b32 s24, s38, 3")
        a("s_and_b32 s25, s38, 7")
    a("v_mul_u32_u24 v12, 205, v1")
    a("v_lshrrev_b32 v12, 11, v12")
    a("v_mul_u32_u24 v13, 10, v12")
    a("v_sub_u32 v13, v1, v13")
    a("v_cmp_le_u32 vcc, 3, v12")
    a("v_cndmask_b32 v14, 0, 1, vcc")
    a("v_mul_u32_u24 v15, 3, v14")
    a("v_sub_u32 v12, v12, v15")
    a("v_add_u32 v12, 1, v12")
    a("v_cmp_eq_u32 vcc, 3, v12")
    a("v_cndmask_b32 v12, v12, 0, vcc")
    a("v_mul_u32_u24 v12, 1280, v12")
    a("v_lshl_add_u32 v12, v13, 4, v12")
    a("v_mul_u32_u24 v14, 3840, v14")
    a("s_mul_i32 s17, s24, %d" % (32 * 3840))
    a("s_mul_i32 s19, s25, 160")
    a("s_add_u32 s17, s17, s19")
    a("s_mul_i32 s19, %s, %d" % (sWAVE, 8 * 3840))
    a("s_add_u32 s17, s17, s19")
    a("s_lshl_b32 s18, %s, 12" % sWAVE)
    a("v_add3_u32 v12, v12, v14, s17")
    a("v_mov_b32 v13, 0x%x" % OOB)
    a("v_cmp_gt_u32 vcc, 60, v1")
    a("v_cndmask_b32 v12, v13, v12, vcc")
    a("s_mov_b32 s22, %d" % (640 * 1920 * 2))
    if CFG["DBG"] == 5:
        stamp(a, 5)
    a("s_waitcnt lgkmcnt(0)")
    if CFG["DBG"] == 5:
        stamp(a, 6)
    a("s_mov_b32 s20, s86\ns_mov_b32 s21, s87")
    for i in range(8):
        a("s_add_u32 m0, s18, %d" % (i * 1024))
        a("s_mov_b32 s19, %d" % (i * 7680))
        a("buffer_load_dwordx4 v12, s[20:23], s19 offen%s lds" % (" nt" if CFG["K0NT"] & 2 else ""))
    a("s_branch L_i_b")

    a("L_i_x:")
    a("s_sub_u32 s16, s38, %d" % BX)
    a("s_lshr_b32 s24, s16, 1")
    a("s_and_b32 s25, s16, 1")
    a("s_mul_i32 s17, s24, 20480")
    a("s_mul_i32 s19, s25, 640")
    a("s_add_u32 s19, s19, s17")
    a("v_mul_u32_u24 v12, 1280, %s" % n_)
    a("v_lshl_add_u32 v13, %s, 4, v12" % g_)
    a("s_mov_b32 s22, %d" % (S * D * 2))
    a("s_waitcnt lgkmcnt(0)")
    a("s_mov_b32 s20, s84\ns_mov_b32 s21, s85")
    for kb in range(10):
        a("buffer_load_dwordx4 v[%d:%d], v13, s[20:23], s19 offen offset:%d%s" % (96 + 4 * kb, 99 + 4 * kb, kb * 64, " nt" if CFG["K0NT"] & 4 else ""))
    a("s_branch L_i_b")

    a("L_i_w2:")
    a("s_sub_u32 s16, s38, %d" % B2)
    a("s_mul_i32 s24, s16, 52429")
    a("s_lshr_b32 s24, s24, 18")
    a("s_mul_i32 s17, s24, 5")
    a("s_sub_u32 s25, s16, s17")
    a("s_mov_b32 s22, %d\ns_mov_b32 s16, 1280" % (640 * 640 * 2))
    a("s_waitcnt lgkmcnt(0)")
    a("s_mov_b32 s20, s88\ns_mov_b32 s21, s89")
    a("s_mul_i32 s28, s24, 52")
    a("s_lshr_b32 s28, s28, 8")
    a("s_mul_i32 s17, s28, 5")
    a("s_sub_u32 s26, s24, s17")
    a("s_mul_i32 s17, s28, 160")
    a("s_mul_i32 s19, s26, 40")
    a("s_cmp_eq_u32 s26, 4")
    a("s_cselect_b32 s19, 32, s19")
    a("s_cselect_b32 s27, %d, %d" % (36 * 1280, 0))
    a("s_max_u32 s27, s27, %d" % (4 * 1280))
    a("s_add_u32 s17, s17, s19")
    a("s_mul_i32 s17, s17, 1280")
    a("s_lshl_b32 s19, s25, 8")
    a("s_add_u32 s17, s17, s19")
    a("v_mul_u32_u24 v12, 1280, %s" % g_)
    a("v_lshl_add_u32 v12, %s, 4, v12" % n_)
    for i in range(8):
        a("s_add_u32 m0, s18, %d" % (i * 1024))
        a("s_nop 0")
        a("buffer_load_dwordx4 v12, s[20:23], s17 offen%s lds" % NT)
        a("s_add_u32 s17, s17, %s" % ("s27" if i % 2 else str(4 * 1280)))

    a("L_i_b:")
    if CFG["DBG"] == 5:
        stamp(a, 7)
    a("s_mov_b32 s28, s18")
    late_setup()
    a("s_mov_b32 s18, s28")
    a("s_cmp_eq_u32 %s, 3" % sWAVE)
    a("s_cbranch_scc0 L_i_c")
    a("s_cmp_eq_u32 %s, 0" % sP)
    a("s_cbranch_scc0 L_i_c")
    for q in range(4):
        a("v_mov_b32 v%d, 0" % (16 + q))
    a("s_lshl_b32 s17, %s, 11" % sRB)
    a("s_add_u32 s17, s17, %d" % CNT_G)
    a("buffer_store_dwordx4 v[16:19], v2, s[4:7], s17 offen sc1")
    a("buffer_store_dwordx4 v[16:19], v2, s[4:7], s17 offen offset:1024 sc1")
    a("L_i_c:")
    a("s_barrier")
    a("s_cmp_eq_u32 %s, 3" % sWAVE)
    a("s_cbranch_scc0 L_i_b1")
    a("s_cmp_eq_u32 %s, 0" % sP)
    a("s_cbranch_scc0 L_i_b0")
    a("s_mov_b64 exec, 1")
    a("v_mov_b32 v16, 1")
    a("s_waitcnt vmcnt(0)")
    if CFG["H2"]:
        a("global_atomic_add v17, v2, v16, s[94:95] sc0")
        a("s_waitcnt vmcnt(0)")
        a("v_readfirstlane_b32 s43, v17")
        a("s_cmp_eq_u32 s43, 15")
        a("s_cbranch_scc0 L_i_b2")
        a("v_mov_b32 v16, 16")
        a("global_store_dword v2, v16, s[94:95] offset:128 sc1")
        a("L_i_b2:")
    else:
        a("global_atomic_add v2, v16, s[94:95]")
    a("s_mov_b64 exec, -1")
    a("L_i_b0:")
    if CFG["TLB"]:
        a("v_lshlrev_b32 v12, %d, v1" % CFG["TLB"])
        a("buffer_load_dword a251, v12, s[4:7], 0 offen")
    if CFG["CPF"]:
        a("s_getpc_b64 s[32:33]")
        a("L_pc:")
        a("s_lshr_b32 s17, s2, 3")
        a("s_lshl_b32 s17, s17, 11")
        a("v_add_u32 v12, s17, v2")
        a("v_min_u32 v12, L_code_end-L_pc-1040, v12")
        a("v_mov_b32 v15, s33")
        a("v_add_co_u32 v14, vcc, s32, v12")
        a("v_addc_co_u32 v15, vcc, 0, v15, vcc")
        a("global_load_dwordx4 a[252:255], v[14:15], off")
        a("global_load_dwordx4 a[252:255], v[14:15], off offset:1024")
    a("L_i_b1:")

    a("L_p_a:")
    stamp(a, 1)
    for q in range(4):
        a("v_cmp_eq_u32 s[%d:%d], %d, %s" % (50 + 2 * q, 51 + 2 * q, q, g_))
        a("v_mov_b32 v%d, 0x3f803f80" % (56 + q))

    def wait_a():
        a("s_waitcnt vmcnt(0)")
        stamp(a, 2)
        a("s_barrier")
    a("s_cmp_lt_u32 s38, %d" % BX)
    a("s_cbranch_scc1 L_p_w1")
    a("s_cmp_lt_u32 s38, %d" % B2)
    a("s_cbranch_scc1 L_p_x")
    a("s_cmp_lt_u32 s38, %d" % BZ)
    a("s_cbranch_scc1 L_p_w2")
    a("s_barrier")
    a("s_branch L_drain")

    a("L_p_w1:")
    a("s_mov_b32 s29, 2\ns_mov_b32 s30, 2048")
    a("v_lshrrev_b32 v12, 3, %s" % n_)
    a("v_lshl_add_u32 v12, %s, s29, v12" % g_)
    a("v_lshlrev_b32 v12, 10, v12")
    a("v_bfe_u32 v14, %s, 2, 1" % n_)
    a("v_mul_u32_u24 v14, 480, v14")
    a("s_mul_i32 s18, %s, 40" % sWAVE)
    a("v_add3_u32 v12, v12, v14, s18")
    a("v_and_b32 v14, 3, %s" % n_)
    a("v_lshlrev_b32 v14, 2, v14")
    for j in range(8):
        a("v_add_u32 v15, %d, v14" % (16 * j))
        a("v_mul_u32_u24 v32, 205, v15")
        a("v_lshrrev_b32 v32, 13, v32")
        a("v_min_u32 v32, 2, v32")
        a("v_mul_u32_u24 v32, 80, v32")
        a("v_lshl_add_u32 v32, v15, 1, v32")
        a("v_add_u32 v%d, v12, v32" % (16 + j))
        a("v_add_u32 v%d, s30, v%d" % (24 + j, 16 + j))
    kpos_scalar(a, "s27", "s24")
    a("s_lshl_b32 s17, s25, 1")
    a("s_lshr_b32 s19, %s, 1" % sWAVE)
    a("s_add_u32 s17, s17, s19")
    a("s_mul_i32 s17, s17, 163840")
    a("s_add_u32 s17, s17, %d" % W1)
    a("s_mul_i32 s19, s27, 6144")
    a("s_add_u32 s19, s19, s17")
    a("v_add_u32 v33, s19, v2")
    a("s_lshl_b32 s19, s27, 11")
    a("s_add_u32 s19, s19, s17")
    a("s_add_u32 s19, s19, %d" % (120 * 1024))
    a("v_add_u32 v34, s19, v2")
    a("s_lshl_b32 s17, s24, 13")
    a("s_lshl_b32 s19, s25, 10")
    a("s_add_u32 s17, s17, s19")
    a("s_lshl_b32 s19, %s, 8" % sWAVE)
    a("s_add_u32 s17, s17, s19")
    a("s_add_u32 s17, s17, %d" % CSP1)
    a("v_lshl_add_u32 v35, v1, 2, s17")
    a("s_mov_b32 s82, 4096")
    wait_a()
    for j in range(8):
        for h in range(2):
            a.ds("ds_read_b64_tr_b16 v[%d:%d], v%d" % (96 + 4 * j + 2 * h, 97 + 4 * j + 2 * h, 16 + j + 8 * h), ("t", j))
    for j in range(8):
        a.wait_lg(("t", j))
        fr = "v[%d:%d]" % (96 + 4 * j, 99 + 4 * j)
        if j < 6:
            a("buffer_store_dwordx4 %s, v33, s[4:7], %s offen offset:%d sc1" % (fr, ["0", "s82"][j // 4], (j % 4) * 1024))
        else:
            a("buffer_store_dwordx4 %s, v34, s[4:7], 0 offen offset:%d sc1" % (fr, (j - 6) * 1024))
        colsum(j, fr)
        if j >= 2:
            colsum_keep(j - 2)
    colsum_keep(6); colsum_keep(7)
    for q in range(2):
        a("buffer_store_dword v%d, v35, s[4:7], 0 offen offset:%d sc1" % (60 + q, q * 256))
    a("s_branch L_drain")

    a("L_p_x:")
    a("s_mul_i32 s17, s24, 20480")
    a("s_mul_i32 s19, s25, 10240")
    a("s_add_u32 s17, s17, s19")
    a("s_add_u32 s17, s17, %d" % XA)
    a("v_add_u32 v12, s17, v2")
    a("s_mov_b32 s82, 4096\ns_mov_b32 s83, 8192")
    for q in range(4):
        a("v_mov_b32 v%d, 0" % (16 + q))
    a("s_mov_b32 s28, 0x3f803f80")
    a("s_lshl_b32 s17, s24, 10")
    a("s_lshl_b32 s19, s25, 7")
    a("s_add_u32 s17, s17, s19")
    a("s_add_u32 s17, s17, %d" % STA)
    a("v_lshlrev_b32 v14, 3, %s" % n_)
    a("v_lshl_add_u32 v14, %s, 8, v14" % g_)
    if not CFG["XCW"]:
        wait_a()
    for kb in range(10):
        if CFG["XCW"]:
            a("s_waitcnt vmcnt(9)")
        a("buffer_store_dwordx4 v[%d:%d], v12, s[4:7], %s offen offset:%d sc1" % (96 + 4 * kb, 99 + 4 * kb, ["0", "s82", "s83"][kb // 4], (kb % 4) * 1024))
    if CFG["XCW"]:
        stamp(a, 2)
        a("s_barrier")
    for kb in range(10):
        for d in range(4):
            a("v_dot2c_f32_bf16 v%d, s28, v%d" % (16 + 2 * (d % 2), 96 + 4 * kb + d))
            a("v_dot2c_f32_bf16 v%d, v%d, v%d" % (17 + 2 * (d % 2), 96 + 4 * kb + d, 96 + 4 * kb + d))
    a(pk("add", Reg("v", 16, 2), Reg("v", 16, 2), Reg("v", 18, 2)))
    a("buffer_store_dwordx2 v[16:17], v14, s[4:7], s17 offen sc1")
    a("s_branch L_drain")

    a("L_p_w2:")
    a("s_cmp_eq_u32 s26, 4")
    a("s_cselect_b32 s29, 3, 2")
    a("s_cselect_b32 s30, 1, 4")
    a("s_lshl_b32 s30, s30, 10")
    rdaddr128("s18")
    dst640("s24", "s25", 20, W2)
    wait_a()
    move128()

    a("L_drain:")
    stamp(a, 3)
    a("v_mov_b32 v236, 0x%x\nv_mov_b32 v237, 0x%x\nv_mov_b32 v238, 0x%x" % (OOB, OOB, OOB))
    for t in range(8):
        a("s_mov_b32 s%d, 0" % DST[t])
    a("s_mov_b32 s31, 0")
    a("s_mov_b32 s32, s4\ns_mov_b32 s33, s5\ns_mov_b32 s34, 0")
    a("v_mov_b32 v229, 0\nv_add_u32 v230, s37, v2\nv_add_u32 v231, s37, v2")
    a("s_cmp_lt_u32 s39, %d" % U3)
    a("s_cbranch_scc1 L_d_w3")
    a("s_cmp_lt_u32 s39, %d" % (U3 + U4))
    a("s_cbranch_scc0 L_d_done")
    a("s_sub_u32 s16, s39, %d" % U3)
    a("s_mul_i32 s36, s16, 52429")
    a("s_lshr_b32 s36, s36, 18")
    a("s_mul_i32 s17, s36, 5")
    a("s_sub_u32 s58, s16, s17")
    a("s_mov_b32 s31, 3\ns_mov_b32 s34, %d\ns_mov_b32 s48, 1280" % (1536 * 640 * 2))
    a("s_mov_b32 s32, s96\ns_mov_b32 s33, s97")
    dst640("s36", "s58", 48, W4)
    a("s_mov_b32 s29, 2\ns_mov_b32 s30, 4096")
    a("s_branch L_d_rd")
    a("L_d_w3:")
    a("s_mul_i32 s36, s39, 43691")
    a("s_lshr_b32 s36, s36, 20")
    a("s_mul_i32 s17, s36, 24")
    a("s_sub_u32 s58, s39, s17")
    a("s_and_b32 s31, s58, 1")
    a("s_lshr_b32 s58, s58, 1")
    a("s_mov_b32 s34, %d\ns_mov_b32 s48, 3072" % (640 * 1536 * 2))
    a("s_cmp_eq_u32 s31, 1")
    a("s_cselect_b32 s32, s92, s90")
    a("s_cselect_b32 s33, s93, s91")
    a("s_add_u32 s31, s31, 1")
    kpos_scalar(a, "s27", "s36")
    a("s_lshl_b32 s17, s58, 4")
    a("s_add_u32 s17, s17, s31")
    a("s_sub_u32 s17, s17, 1")
    a("s_lshl_b32 s28, s17, 6")
    a("s_add_u32 s28, s28, %d" % CS3F)
    a("v_lshl_add_u32 v236, %s, 2, s28" % n_)
    a("v_lshl_add_u32 v236, %s, 7, v236" % g_)
    a("v_add_u32 v237, 512, v236")
    a("s_mul_i32 s19, s17, 43691")
    a("s_lshr_b32 s19, s19, 19")
    a("s_mul_i32 s28, s19, 12")
    a("s_sub_u32 s17, s17, s28")
    a("s_mul_i32 s19, s19, 20")
    a("s_add_u32 s19, s19, s27")
    a("s_mul_i32 s19, s19, 12")
    a("s_add_u32 s19, s19, s17")
    a("s_lshl_b32 s19, s19, 10")
    a("s_add_u32 s19, s19, %d" % W3)
    for i in range(8):
        a("s_mov_b32 s%d, s19" % DST[i])
        if i < 7:
            a("s_add_u32 s17, s17, 2")
            a("s_cmp_ge_u32 s17, 12")
            a("s_cselect_b32 s28, 12, 0")
            a("s_sub_u32 s17, s17, s28")
            a("s_mul_i32 s28, s28, %d" % (19 * 1024))
            a("s_add_u32 s19, s19, s28")
            a("s_add_u32 s19, s19, 2048")
    a("s_mov_b32 s29, 3\ns_mov_b32 s30, 1024")
    a("L_d_rd:")
    rdaddr128("s37")
    if CFG["BPOS"] == 0:
        issue128("s[32:35]", "s48", "s36", "s58", "s37", "v232")
    if CFG["B3"]:
        a("s_cmp_eq_u32 %s, 3" % sWAVE)
        a("s_cbranch_scc0 L_d_done")
        a("v_mov_b32 v229, 0")
        a("global_load_dword v233, v229, s[94:95] offset:%d sc1" % (128 if CFG["H2"] else 0))
        issue128("s[32:35]", "s48", "s36", "s58", "s37", "v232")
    a("L_d_done:")
    def p1_setup():
        for l in p1.pre_setup():
            a(l)
        p1.before_wait()
    if not CFG["BWL"]:
        p1_setup()
    else:
        p1.alloc()
        a("s_lshl_b32 s17, %s, 7" % sP)
        a("s_add_u32 s17, s17, %d" % CNT_G)
        a("v_lshl_add_u32 %s, v0, 11, s17" % p1.vC1)
        a("v_and_b32 v232, 0x%x, %s" % (OOB, vCNT))
        a("v_or_b32 %s, v232, %s" % (p1.vC1, p1.vC1))
    XL = 49152
    def x_dma(c):
        for i in range(4):
            a("s_add_u32 m0, s24, %d" % ((c % 5) * 4096 + i * 1024))
            a("s_mov_b32 s19, %d" % (i * 10240 + c * 128))
            a("buffer_load_dwordx4 v235, s[88:91], s19 offen lds")
    def x_read(c):
        for ks in range(2):
            for rt in range(2):
                k = 2 * (2 * c + ks) + rt
                a("ds_read_b128 a[%d:%d], v%d offset:%d" % (4 * k, 4 * k + 3, 240 + ks, (c % 5) * 4096 + rt * 2048))
    if CFG["XPRE"]:
        a("s_mov_b32 s25, s88\ns_mov_b32 s22, s89")
        a("s_mov_b32 s88, s84\ns_mov_b32 s89, s85\ns_mov_b32 s90, %d\ns_mov_b32 s91, 0x20000" % (S * D * 2))
        a("s_mul_i32 s24, %s, 20480" % sWAVE)
        a("s_add_u32 s24, s24, %d" % XL)
        a("v_lshrrev_b32 v235, 3, v1")
        a("v_and_b32 v240, 7, v1")
        a("v_xor_b32 v240, v240, v235")
        a("v_mul_u32_u24 v235, 1280, v235")
        a("v_lshl_add_u32 v235, v240, 4, v235")
        a("s_mul_i32 s17, s16, 20480")
        a("v_add_u32 v235, s17, v235")
        a("v_and_b32 v240, 7, %s" % n_)
        a("v_xor_b32 v241, %s, v240" % g_)
        a("v_lshlrev_b32 v241, 4, v241")
        a("v_lshl_add_u32 v240, %s, 7, v241" % n_)
        a("v_add_u32 v240, s24, v240")
        a("v_xor_b32 v241, 64, v240")
    if not CFG["B3"]:
        a("v_mov_b32 v229, 0")
        a("s_cmp_eq_u32 %s, 3" % sWAVE)
        a("s_cbranch_scc0 L_clr0")
        a("global_load_dword v233, v229, s[94:95] offset:%d sc1" % (128 if CFG["H2"] else 0))
        a("L_clr0:")
    NXD = 20 if CFG["XPRE"] else 0
    for c in range(NXD // 4):
        x_dma(c)
    a("s_cmp_eq_u32 %s, 3" % sWAVE)
    a("s_cbranch_scc0 L_clr_ok")
    a("s_mov_b32 s42, %d" % CFG["TMO"])
    a("s_waitcnt vmcnt(%d)" % (NXD + (8 if CFG["B3"] else 0)))
    a("L_clr:")
    a("v_readfirstlane_b32 s43, v233")
    a("s_cmp_ge_u32 s43, 16")
    a("s_cbranch_scc1 %s" % ("L_drained" if CFG["B3"] else "L_clr_ok"))
    a("s_sleep %d" % CFG["CSL"])
    a("global_load_dword v233, v229, s[94:95] offset:%d sc1" % (128 if CFG["H2"] else 0))
    a("s_sub_u32 s42, s42, 1")
    a("s_waitcnt vmcnt(0)")
    a("s_cbranch_scc0 L_clr")
    a("L_clr_ok:")
    if CFG["BPOS"] == 0:
        a("s_cmp_eq_u32 s31, 0")
        a("s_waitcnt vmcnt(%d)" % (8 + NXD))
        a("s_cbranch_scc0 L_drained")
    a("s_waitcnt vmcnt(%d)" % NXD)
    a("L_drained:")
    stamp(a, 4)
    a("s_barrier")
    a("s_cmp_lg_u32 %s, 0" % sWAVE)
    a("s_cbranch_scc1 L_p_b")
    a("v_mov_b32 v232, 1")
    a("buffer_atomic_add v232, %s, s[4:7], 0 offen" % p1.vC1)
    a("L_p_b:")
    if CFG["DBG"] != 5:
        stamp(a, 5)
    if CFG["BPOS"] == 2:
        a("s_cmp_eq_u32 s31, 0")
        a("s_cbranch_scc1 L_p_b2")
        issue128("s[32:35]", "s48", "s36", "s58", "s37", "v232")
        a("L_p_b2:")
    if CFG["XPRE"]:
        for c in range(5):
            a("s_waitcnt vmcnt(16)")
            x_read(c)
            a("s_waitcnt lgkmcnt(0)")
            x_dma(c + 5)
    if CFG["BWL"]:
        a("s_cmp_eq_u32 s31, 0")
        a("s_cbranch_scc1 L_p_nb")
        if CFG["B3"]:
            a("s_cmp_eq_u32 %s, 3" % sWAVE)
            a("s_cbranch_scc1 L_p_nb")
        issue128("s[32:35]", "s48", "s36", "s58", "s37", "v232")
        a("L_p_nb:")
        p1_setup()
    a("s_cmp_eq_u32 s31, 0")
    a("s_cbranch_scc1 L_p_x2")
    if CFG["BPOS"] == 1 and not CFG["BWL"]:
        issue128("s[32:35]", "s48", "s36", "s58", "s37", "v232")
    if CFG["BPOS"] == 1 or not CFG["XPRE"]:
        a("s_waitcnt vmcnt(0)")
    a("v_mov_b32 v238, v2")
    for t in range(8):
        for h in range(2):
            a.ds("ds_read_b64_tr_b16 a[%d:%d], v%d offset:%d" % (192 + 4 * t + 2 * h, 193 + 4 * t + 2 * h, 230 + h, t * 32), ("t", t))
    p1.bstores = [(lambda t=t: a.vmem("buffer_store_dwordx4 a[%d:%d], v238, s[4:7], s%d offen sc1" % (192 + 4 * t, 195 + 4 * t, DST[t]), "bst")) for t in range(8)]
    if not CFG["BST"]:
        for t in range(8):
            a.wait_lg(("t", t))
            p1.bstores[t]()
        p1.bstores = []
    for t in range(8):
        a.wait_lg(("t", t))
        colsum(t, "a[%d:%d]" % (192 + 4 * t, 195 + 4 * t))
        if t >= 2:
            colsum_keep(t - 2)
    colsum_keep(6); colsum_keep(7)
    a("v_mov_b32 v234, v60\nv_mov_b32 v239, v61")
    a("L_p_x2:")
    if CFG["DBG"] != 5:
        stamp(a, 6)
    if CFG["XPRE"]:
        for c in range(5, 10):
            a("s_waitcnt vmcnt(%d)" % (4 * (9 - c)))
            x_read(c)
        a("s_mov_b32 s88, s25\ns_mov_b32 s89, s22")
    a("s_cmp_lg_u32 %s, 0" % sWAVE)
    a("s_cbranch_scc1 L_go")
    a("s_lshl_b32 s17, %s, 11" % sRB)
    a("s_add_u32 s17, s17, %d" % CNT_G)
    a("s_mov_b64 exec, 0xffff")
    a("v_lshlrev_b32 v233, 7, v1")
    a("s_mov_b32 s42, %d" % CFG["TMO"])
    a("L_gop:")
    a("v_mov_b32 v255, 0")
    a("buffer_atomic_add v255, v233, s[4:7], s17 offen sc0")
    a("s_waitcnt vmcnt(0)")
    a("v_cmp_le_u32 vcc, 16, v255")
    a("s_cmp_eq_u32 vcc_lo, 0xffff")
    a("s_cbranch_scc1 L_go0")
    a("s_sleep 2")
    a("s_sub_u32 s42, s42, 1")
    a("s_cbranch_scc0 L_gop")
    a("L_go0:")
    a("s_mov_b64 exec, -1")
    a("L_go:")
    a("s_waitcnt lgkmcnt(0)")
    if CFG["DBG"] != 5:
        stamp(a, 7)
    a("s_mov_b32 s49, 16")
    a("s_mov_b32 s22, 0")
    a("s_load_dwordx2 s[90:91], s[0:1], 56")
    phase_open(a)
    p1.bstores += [lambda: a.vmem("buffer_atomic_add_f32 v234, v236, s[4:7], 0 offen", "bst"),
                   lambda: a.vmem("buffer_atomic_add_f32 v239, v237, s[4:7], 0 offen", "bst")]


HEADER = """;
;       after the grid-wide hand-off o = (phi(q) kv) / (phi(q) z + 1e-6) for this workgroup's two heads
;   P4  x += h w_down      (last layer: row-major store to d_out)
"""


def build_all():
    _lbl[0] = 0
    a, info = main_body()
    k = NAME + "_kernel"
    ref = open("cdna_kernels/%s.s.ref" % NAME).read().split("\n")
    out = "\n".join(l for l in ref[:11]) + "\n"
    out += "; @launch grid=(256,1,1) block=(256,1,1) lds=%d\n" % info["lds"]
    out += HEADER
    out += '.amdgcn_target "amdgcn-amd-amdhsa--gfx950"\n'
    st = {}
    txt = a.text(stats=st)
    w = n = 0
    if CFG["AL8"]:
        txt, w, n = align8(txt, CFG["AL8"])
    sys.stderr.write("%d lines, pad states %d, widened %d, align nops %d\n" % (txt.count("\n"), st["pad"], w, n))
    return out + entry(k) + txt + kd(k, info["vgpr"], 102, info["acc"])


if __name__ == "__main__":
    import argparse
    ap = argparse.ArgumentParser()
    ap.add_argument("-o", default="cdna_kernels/%s.s" % NAME)
    ap.add_argument("--cfg", default="")
    args = ap.parse_args()
    for kv in args.cfg.split(","):
        if kv:
            k, v = kv.split("="); CFG[k] = int(v)
    txt = build_all()
    open(args.o, "w").write(txt)
```
